```python
import torch

def _softmax(x, axis=-1):
    return torch.softmax(x, dim=axis)
def _gelu(x):
    return torch.nn.functional.gelu(x, approximate="tanh")
def _silu(x):
    return torch.nn.functional.silu(x)
def _sigmoid(x):
    return torch.sigmoid(x)
def _layernorm(x, axis=-1, eps=1e-5):
    m = x.mean(dim=axis, keepdim=True)
    v = x.var(dim=axis, keepdim=True, unbiased=False)
    return (x - m) / torch.sqrt(v + eps)
def _scatter_add(tgt, idx, src, axis=0):
    return tgt.clone().index_add_(axis, idx, src)
def _segment_sum(src, seg, n):
    out = torch.zeros((n,) + src.shape[1:], dtype=src.dtype)
    return out.index_add_(0, seg, src)
def _pad(x, pw):
    flat = tuple(v for pair in reversed(pw) for v in pair)
    return torch.nn.functional.pad(x, flat)

kernel_name = 'sequential_preLN__grouped_kv_mqa__glu_gated_glu__prompt'

def setup_inputs():

    _w = (lambda a: (lambda t: t.to(torch.bfloat16) if t.is_floating_point() else t)(torch.as_tensor(a)))
    def _A_setup():
        B, S, D, H = 1, 2048, 512, 32
        Dh = D // H
        return {
            "x": _w((lambda *s: torch.randn(*s, dtype=torch.bfloat16) * 0.05)(B, S, D)),
            "wq": _w((lambda *s: torch.randn(*s, dtype=torch.bfloat16) * 0.05)(D, H * Dh)),
            "wk": _w((lambda *s: torch.randn(*s, dtype=torch.bfloat16) * 0.05)(D, Dh)),
            "wv": _w((lambda *s: torch.randn(*s, dtype=torch.bfloat16) * 0.05)(D, Dh)),
            "wo": _w((lambda *s: torch.randn(*s, dtype=torch.bfloat16) * 0.05)(H * Dh, D)),
        }
    _A_in = _A_setup()

    def _B_setup():
        B, S, D, F = 1, 2048, 512, 1792
        return {
            "x": _w((lambda *s: torch.randn(*s, dtype=torch.bfloat16) * 0.05)(B, S, D)),
            "w_gate": _w((lambda *s: torch.randn(*s, dtype=torch.bfloat16) * 0.05)(D, F)),
            "w_up": _w((lambda *s: torch.randn(*s, dtype=torch.bfloat16) * 0.05)(D, F)),
            "w_down": _w((lambda *s: torch.randn(*s, dtype=torch.bfloat16) * 0.05)(F, D)),
        }
    _B_in = _B_setup()

    return {
        "A_x": _A_in["x"],
        "A_wq": _A_in["wq"],
        "A_wk": _A_in["wk"],
        "A_wv": _A_in["wv"],
        "A_wo": _A_in["wo"],
        "B_x": _B_in["x"],
        "B_w_gate": _B_in["w_gate"],
        "B_w_up": _B_in["w_up"],
        "B_w_down": _B_in["w_down"],
    }

def reference(A_x, A_wq, A_wk, A_wv, A_wo, B_x, B_w_gate, B_w_up, B_w_down):
    def _A_ref(x, wq, wk, wv, wo):
        B, S, D = x.shape
        H = 32
        Dh = D // H
        q = (lambda x, *d: x.permute(*d))((x @ wq).reshape(B, S, H, Dh), 0, 2, 1, 3)
        k = x @ wk
        v = x @ wv
        scores = torch.einsum("bhqd,bkd->bhqk", q, k) * (Dh ** -0.5)
        p = _softmax(scores, axis=-1)
        o = torch.einsum("bhqk,bkd->bhqd", p, v)
        return (lambda x, *d: x.permute(*d))(o, 0, 2, 1, 3).reshape(B, S, H * Dh) @ wo

    def _B_ref(x, w_gate, w_up, w_down):
        g = torch.einsum("bsd,df->bsf", x, w_gate)
        u = torch.einsum("bsd,df->bsf", x, w_up)
        h = _sigmoid(g) * u
        return torch.einsum("bsf,fd->bsd", h, w_down)

    x = A_x
    h = x + _A_ref(_layernorm(x, axis=-1), A_wq, A_wk, A_wv, A_wo)
    h2 = h + _B_ref(_layernorm(h, axis=-1), B_w_gate, B_w_up, B_w_down)
    return h2
```

```python
def vr(a, n=1):
    return f"v{a}" if n == 1 else f"v[{a}:{a+n-1}]"

def sr(a, n=1):
    return f"s{a}" if n == 1 else f"s[{a}:{a+n-1}]"

class Stream:
    def __init__(self):
        self.lines = []
        self.vq = []
        self.lq = []
        self.nbar = 0

    def __call__(self, s):
        for l in s.split("\n"):
            self.lines.append(l)

    def label(self, name):
        self.lines.append(name + ":")

    def vm(self, s, tag=None, cond=False):
        self.lines.append(s)
        self.vq.append((tag, cond))

    def ds(self, s, tag=None):
        self.lines.append(s)
        self.lq.append(tag)

    def vcount(self, tag):
        idx = [i for i, (t, _) in enumerate(self.vq) if t == tag]
        if not idx:
            return None
        return idx[-1], sum(1 for (_, c) in self.vq[idx[-1] + 1:] if not c)

    def wait_vm(self, tag=None):
        if tag is None:
            self.lines.append("s_waitcnt vmcnt(0)")
            self.vq = []
            return True
        r = self.vcount(tag)
        if r is None:
            return False
        i, n = r
        assert n <= 63, n
        self.lines.append(f"s_waitcnt vmcnt({n})")
        self.vq = self.vq[i + 1:]
        return True

    def wait_ds(self, tag=None):
        if tag is None:
            self.lines.append("s_waitcnt lgkmcnt(0)")
            self.lq = []
            return True
        idx = [i for i, t in enumerate(self.lq) if t == tag]
        if not idx:
            return False
        n = min(15, len(self.lq) - 1 - idx[-1])
        self.lines.append(f"s_waitcnt lgkmcnt({n})")
        self.lq = self.lq[len(self.lq) - n:] if n else []
        return True

    def bar(self, name):
        self.lines.append(f"s_barrier                ; {name}")
        self.nbar += 1

    def nop(self, n):
        while n > 0:
            k = min(n, 16)
            self.lines.append(f"s_nop {k-1}")
            n -= k

    def text(self):
        out = []
        for l in self.lines:
            out.append(l if l.endswith(":") or l.startswith(".") else "    " + l)
        return "\n".join(out)
```

```python
import re, sys

TRANS = ("v_exp_", "v_log_", "v_rcp_", "v_rsq_", "v_sqrt_", "v_sin_", "v_cos_")
REG = re.compile(r"^(-|abs\(|\|)?([vas])(?:(\d+)|\[(\d+):(\d+)\])")

def regs_of(op):
    op = op.strip()
    if op in ("vcc", "vcc_lo", "vcc_hi"): return {"vcc"}
    if op in ("exec", "exec_lo", "exec_hi"): return {"exec"}
    if op == "m0": return {"m0"}
    op = op.lstrip("-").replace("abs(", "").replace("|", "").replace(")", "")
    m = REG.match(op)
    if not m or (m.end() != len(op)): return set()
    t = m.group(2)
    if m.group(3) is not None: return {f"{t}{m.group(3)}"}
    return {f"{t}{i}" for i in range(int(m.group(4)), int(m.group(5)) + 1)}

class I:
    def __init__(self, text, line):
        self.text, self.line = text, line
        parts = text.split(None, 1)
        self.op = op = parts[0]
        rest = parts[1] if len(parts) > 1 else ""
        ops, depth, cur = [], 0, ""
        for ch in rest:
            if ch in "[(": depth += 1
            if ch in "])": depth -= 1
            if ch == "," and depth == 0: ops.append(cur.strip()); cur = ""
            else: cur += ch
        if cur.strip(): ops.append(cur.strip())
        mods = ""
        if ops and " " in ops[-1] and not op.startswith("s_waitcnt"):
            ops[-1], mods = ops[-1].split(None, 1)
        self.ops, self.mods = ops, mods
        self.mfma = op.startswith("v_mfma") or op.startswith("v_smfmac")
        self.valu = op.startswith("v_") and not self.mfma
        self.trans = op.startswith(TRANS)
        self.dot = op.startswith("v_dot")
        self.dpp = "_dpp" in op
        self.vmem = op.startswith(("buffer_", "global_"))
        self.ds = op.startswith("ds_")
        self.smem = op.startswith(("s_load", "s_memtime", "s_memrealtime"))
        self.salu = op.startswith("s_") and not self.smem
        self.ldslds = self.vmem and re.search(r"\blds\b", mods) is not None
        R = [regs_of(o) for o in ops]
        U = lambda l: set().union(*l) if l else set()
        self.w, self.r = set(), set()
        self.A = self.B = self.C = set()
        self.data = set()
        if self.mfma:
            self.w = R[0]; self.A, self.B = R[1], R[2]
            if op.startswith("v_smfmac"): self.C = R[0]; self.B = R[2] | R[3]
            else: self.C = R[3]
            self.r = self.A | self.B | self.C
            self.passes = 8 if "32x32" in op else 4
        elif self.valu:
            if op.startswith("v_permlane") and "swap" in op: self.w = R[0] | R[1]; self.r = R[0] | R[1]
            elif op.startswith(("v_fmac", "v_dot2c", "v_pk_fmac")): self.w = R[0]; self.r = U(R)
            elif op.startswith(("v_add_co", "v_addc_co", "v_sub_co")): self.w = R[0] | R[1]; self.r = U(R[2:])
            elif op == "v_nop": pass
            else:
                self.w = R[0]; self.r = U(R[1:])
                if self.dpp or op.startswith("v_writelane"): self.r |= R[0] if op.startswith("v_writelane") else set()
        elif self.ds:
            if op.startswith("ds_read"): self.w = R[0]; self.r = U(R[1:])
            else: self.r = U(R)
        elif self.vmem:
            if op == "buffer_wbl2": pass
            elif "load" in op and not self.ldslds: self.w = R[0]; self.r = U(R[1:])
            else:
                self.r = U(R)
                if self.ldslds: self.r |= {"m0"}
                else: self.data = R[0]
        elif self.smem:
            self.w = R[0]; self.r = U(R[1:])
        elif self.salu:
            if op.startswith(("s_cmp", "s_bitcmp")): self.r = U(R)
            elif op.startswith(("s_cbranch", "s_branch", "s_waitcnt", "s_nop", "s_barrier", "s_endpgm", "s_sleep", "s_setprio")): pass
            elif op.startswith(("s_addk", "s_mulk", "s_bitset")): self.w = R[0]; self.r = U(R)
            else:
                self.w = R[0]; self.r = U(R[1:])
                if "saveexec" in op: self.w |= {"exec"}
        self.ws = int(ops[0], 0) + 1 if op == "s_nop" else 1

def parse(text):
    ins, labels = [], {}
    for n, raw in enumerate(text.splitlines(), 1):
        s = raw.split(";")[0].strip()
        if not s: continue
        if s.startswith(".section") or s.startswith(".amdhsa"):
            if s.startswith(".section"): break
            continue
        if s.endswith(":"): labels[s[:-1]] = len(ins); continue
        if s.startswith("."): continue
        ins.append(I(s, n))
    succ = []
    for i, x in enumerate(ins):
        if x.op == "s_endpgm": succ.append([])
        elif x.op == "s_branch" and x.ops[0] == "L_pad0": succ.append([labels["L_walked"]])
        elif x.op == "s_cbranch_scc1" and re.match(r"L_pad\d+$|L_walked", x.ops[0]): succ.append([i + 1])
        elif x.op == "s_branch": succ.append([labels[x.ops[0]]])
        elif x.op.startswith("s_cbranch"): succ.append([i + 1, labels[x.ops[0]]])
        else: succ.append([i + 1])
    return ins, succ, labels

def isv(rs): return {r for r in rs if r[0] in "va" and r != "vcc"}
def iss(rs): return {r for r in rs if r[0] == "s" or r == "vcc"}

def need(p, c):
    n = 0
    if p.mfma:
        big = 12 if p.passes == 8 else 8
        if c.mfma:
            if p.w & (c.A | c.B): n = max(n, big)
            if p.w & c.C and not (p.w == c.C and p.passes == c.passes): n = max(n, big - 2)
            if p.w & c.w and not (p.w & c.C) and p.passes != c.passes: n = max(n, big)
        elif c.valu or c.vmem or c.ds:
            if p.w & (c.r | c.w): n = max(n, big)
            if c.valu and p.C & c.w: n = max(n, p.passes - 1)
    if p.valu:
        pv, ps = isv(p.w), iss(p.w)
        if c.mfma and pv & c.r: n = max(n, 3 if p.dot else 2)
        if p.dot and (c.valu or c.vmem or c.ds) and pv & (c.r | c.w):
            same = c.op == p.op
            srcc = regs_of(c.ops[0]) if c.op.startswith("v_dot2c") else (regs_of(c.ops[3]) if same else set())
            ab = (regs_of(c.ops[1]) | regs_of(c.ops[2])) if same else set()
            if not same or pv & ab or not (pv & srcc): n = max(n, 3)
        if p.trans and c.valu and pv & c.r: n = max(n, 1)
        if c.vmem and ps & c.r: n = max(n, 5)
        if c.valu and ps & c.r: n = max(n, 4 if c.op.startswith(("v_readlane", "v_writelane")) else 2)
        if c.op.startswith(("v_readlane", "v_readfirstlane")) and pv & c.r: n = max(n, 1)
        if c.dpp and pv & c.r: n = max(n, 2)
        if c.op.startswith("v_permlane") and pv & c.r: n = max(n, 2)
    if p.salu and "m0" in p.w and c.ldslds: n = max(n, 1)
    if p.vmem and p.data and p.op.endswith(("x3", "x4")) and p.data & c.w: n = max(n, 2 if c.valu else 1)
    return n

def check_waitstates(ins, succ):
    pred = [[] for _ in ins]
    for i, ss in enumerate(succ):
        for s in ss:
            if s < len(ins): pred[s].append(i)
    errs = []
    for ci, c in enumerate(ins):
        if not (c.mfma or c.valu or c.vmem or c.ds): continue
        stack = [(p, 0) for p in pred[ci]]
        seen = {}
        while stack:
            pi, d = stack.pop()
            if d >= 12 or seen.get(pi, 99) <= d: continue
            seen[pi] = d
            p = ins[pi]
            n = need(p, c)
            if n > d: errs.append(f"line {c.line}: '{c.text}' needs {n} wait states after line {p.line}: '{p.text}' (has {d})")
            for q in pred[pi]: stack.append((q, d + p.ws))
    return errs

def check_pending(ins, succ):
    errs = set()
    seen = set()
    stack = [(0, (), ())]
    steps = 0
    while stack:
        i, vq, lq = stack.pop()
        while True:
            steps += 1
            if steps > 5_000_000: return list(errs) + ["pending check gave up"]
            x = ins[i]
            if x.op == "s_waitcnt":
                t = x.text
                m = re.search(r"vmcnt\((\d+)\)", t)
                if m:
                    n = int(m.group(1)); vq = vq[len(vq) - n:] if n < len(vq) and n > 0 else (() if n == 0 else vq)
                m = re.search(r"lgkmcnt\((\d+)\)", t)
                if m:
                    n = int(m.group(1))
                    if n == 0: lq = ()
                    else:
                        d = [e for e in lq if e[0] == "d"]
                        lq = tuple(e for e in lq if e[0] == "s") + tuple(d[max(0, len(d) - n):])
            else:
                touched = x.r | x.w
                for q in vq:
                    if q & touched and not (x.vmem and not (q & x.r)): errs.add(f"line {x.line}: '{x.text}' touches {sorted(q & touched)[:4]} with a vector load in flight")
                for k, q in lq:
                    if q & touched and not (x.ds and k == "d" and not (q & x.r)): errs.add(f"line {x.line}: '{x.text}' touches {sorted(q & touched)[:4]} with an LDS/scalar load in flight")
                if x.vmem:
                    vq = vq + (frozenset(x.w),)
                    if len(vq) > 63: errs.add(f"line {x.line}: more than 63 vector memory operations in flight"); vq = vq[1:]
                if x.ds: lq = (lq + (("d", frozenset(x.w)),))[-40:]
                if x.smem: lq = lq + (("s", frozenset(x.w)),)
            ss = succ[i]
            if not ss: break
            if len(ss) > 1 or x.op == "s_branch":
                for s in ss:
                    key = (s, vq, lq)
                    if key not in seen:
                        seen.add(key); stack.append(key)
                break
            i = ss[0]
    return sorted(errs)

def check(text):
    ins, succ, labels = parse(text)
    return check_waitstates(ins, succ) + check_pending(ins, succ)

if __name__ == "__main__":
    e = check(open(sys.argv[1]).read())
    for x in e[:60]: print(x)
    print(len(e), "findings")
```

```python
import sys, struct
from emit import Stream, vr, sr

NAME = "sequential_preLN__grouped_kv_mqa__glu_gated_glu__prompt"

def f32(x): return hex(struct.unpack("<I", struct.pack("<f", x))[0])

WS_KV, WS_FLG1, WS_FLG2, WS_FLG3, WS_FLG4 = 0x0, 0x40000, 0x50000, 0x52000, 0x54000
WS_ST, WS_DIAG, WS_O, WS_H, WS_HH, WS_SIZE = 0x60000, 0xA0000, 0x100000, 0x300000, 0x500000, 0xC00000
TILE, RING, SLOT0, SLOT, UOFF = 2080, 0, 33280, 14464, 7296
XN, WKV, WQST, NWQ = 33280, 16640, 67072, 23
STG, STGW = SLOT0 + 5 * SLOT, 14336
LDS_BYTES = 163840
def slot_addr(s): return SLOT0 + s * SLOT if s <= 8 else RING + (s - 9) * SLOT
def unit_slot(u): return u if u <= 10 else u - 11
X, WQ, WKVS, WO, WG, WU, WD, OUT, DBG, WS = 4, 8, 12, 16, 20, 24, 28, 32, 36, 40
sG, sIDX, sRB, sCB, sW, sXCC = 44, 45, 46, 47, 48, 49
sT0, sT1, sT2, sT3, sCNT = 50, 51, 52, 53, 54
sA, sB, sC, sD, sE = 55, 56, 57, 58, 59
sONE, sLO, sHI = 60, 61, 62
sF = 63
CODE = 64
sP = 68
sSTAMP = 76
SPIN = 1 << 17
def srd(b): return sr(b, 4)

class Cfg:
    diag = False
    tail = 3
    force_fallback = False

def mfma32(d, a, b, c=None):
    return f"v_mfma_f32_32x32x16_bf16 {vr(d,16)}, {vr(a,4)}, {vr(b,4)}, {vr(d,16) if c is None else c}"
def mfma16(d, a, b, c=None):
    return f"v_mfma_f32_16x16x32_bf16 {vr(d,4)}, {vr(a,4)}, {vr(b,4)}, {vr(d,4) if c is None else c}"
def smf(d, a, b, idx):
    return f"v_smfmac_f32_32x32x32_bf16 {vr(d,16)}, {vr(a,4)}, {vr(b,8)}, v{idx}"

class Gen:
    def __init__(self, cfg):
        self.c = cfg
        self.tailcode = Stream()
        self.nstamp = {}

    def stamp(self, st, role, name):
        if not self.c.diag: return
        l = self.nstamp.setdefault(role, [])
        i = len(l); l.append(name)
        assert i < 13
        st(f"s_memrealtime {sr(sSTAMP + 2*i, 2)}")

    def dump_stamps(self, st, role):
        if not self.c.diag: return
        n = len(self.nstamp[role])
        st("s_waitcnt lgkmcnt(0)")
        st(f"s_lshl_b32 s{sT0}, s2, 3\ns_add_u32 s{sT0}, s{sT0}, s{sW}")
        st(f"s_add_u32 s{sT0}, s{sT0}, {4 if role == 'h' else 0}\ns_lshl_b32 s{sT0}, s{sT0}, 6\ns_add_u32 s{sT0}, s{sT0}, {WS_DIAG}")
        for i in range(n):
            st(f"v_mov_b32 v1, s{sSTAMP + 2*i}")
            st(f"buffer_store_dword v1, off, {srd(WS)}, s{sT0} offset:{4*i}")
        st("s_waitcnt vmcnt(0)")

    def poll(self, st, name, vaddr, soff, vdst, need, buf=WS):
        st(f"s_mov_b32 s{sCNT}, {SPIN}")
        st.label(name)
        st(f"buffer_load_dword v{vdst}, v{vaddr}, {srd(buf)}, {soff} offen sc1")
        st.wait_vm()
        st(f"v_cmp_gt_u32 vcc, {need}, v{vdst}")
        st(f"s_cbranch_vccz {name}_ok")
        st(f"s_sub_u32 s{sCNT}, s{sCNT}, 1")
        st(f"s_cbranch_scc0 {name}")
        st.label(name + "_ok")

    def prologue(self, st):
        st("s_cmp_ge_u32 s2, 256\ns_cbranch_scc1 L_end")
        for b, off in ((X, 0), (WQ, 8), (WKVS, 16), (sP, 24), (DBG, 80), (WS, 88)):
            st(f"s_load_dwordx2 {sr(b,2)}, s[0:1], {off}")
        st("v_lshrrev_b32 v1, 6, v0\nv_and_b32 v0, 63, v0")
        st(f"s_and_b32 s{sG}, s2, 7")
        st(f"v_readfirstlane_b32 s{sT0}, v1")
        st(f"s_lshr_b32 s{sIDX}, s2, 3")
        st(f"s_lshr_b32 s{sT1}, s{sIDX}, 2\ns_lshl_b32 s{sRB}, s{sG}, 3\ns_add_u32 s{sRB}, s{sRB}, s{sT1}")
        st(f"s_and_b32 s{sCB}, s{sIDX}, 3\ns_and_b32 s{sW}, s{sT0}, 3")
        for b, n in ((X, 2097152), (WQ, 524288), (WKVS, 16384), (WO, 524288), (WG, 1835008), (WU, 1835008),
                     (WD, 1835008), (OUT, 2097152), (DBG, 256), (WS, WS_SIZE)):
            st(f"s_mov_b32 s{b+2}, {n}\ns_mov_b32 s{b+3}, 0x20000")
        st(f"s_mov_b32 s{sONE}, 0x3f803f80\ns_mov_b32 s{sLO}, 0x3f80\ns_mov_b32 s{sHI}, 0x3f800000")
        st(f"s_cmp_ge_u32 s{sT0}, 4\ns_cbranch_scc1 L_helper")

    def main_phase_a(self, st):
        self.stamp(st, "m", "start")
        vD, vTR, vXB, vXC = 2, 3, 4, 5
        WR, XR, ACC = 112, 128, 144
        st(f"v_lshrrev_b32 v10, 2, v0\nv_lshlrev_b32 v10, 10, v10\nv_and_b32 v11, 3, v0\nv_lshlrev_b32 v11, 4, v11")
        st(f"s_lshl_b32 s{sT0}, s{sCB}, 8\ns_lshl_b32 s{sT1}, s{sW}, 6\ns_add_u32 s{sT0}, s{sT0}, s{sT1}")
        st(f"v_add3_u32 v{vD}, v10, v11, s{sT0}")
        st(f"s_mul_i32 s{sA}, s{sW}, {NWQ*1024}\ns_add_u32 s{sA}, s{sA}, {WQST}")
        st(f"s_lshr_b32 s{sB}, s{sIDX}, 2\ns_lshl_b32 s{sC}, s{sB}, 16")
        st("s_waitcnt lgkmcnt(0)")
        st(f"s_lshl_b32 s{sT0}, s2, 2\ns_add_u32 s{sT0}, s{sT0}, s{sW}\ns_cmp_lg_u32 s{sT0}, 1\ns_cbranch_scc1 L_noclr")
        st("v_lshlrev_b32 v12, 7, v0\nv_mov_b32 v13, 0")
        for i in range(4):
            st(f"s_mov_b32 s{sT1}, {WS_FLG1 + 8192*i}")
            st.vm(f"buffer_store_dword v13, v12, {srd(WS)}, s{sT1} offen sc1", "clr", cond=True)
        st.label("L_noclr")
        def dma(j):
            st(f"s_add_u32 m0, s{sA}, {(j % NWQ)*1024}")
            st(f"s_xor_b32 s{sT1}, s{sC}, {j*16384}")
            st.vm(f"buffer_load_dwordx4 v{vD}, {srd(WQ)}, s{sT1} offen lds", ("wq", j))
        for j in range(NWQ): dma(j)
        st(f"s_cmp_lg_u32 s{sT0}, 1\ns_cbranch_scc1 L_nogo")
        st(f"s_waitcnt vmcnt({NWQ})")
        st("v_mov_b32 v13, 1\ns_mov_b64 exec, 1")
        st.vm(f"buffer_store_dword v13, off, {srd(DBG)}, 0 sc1", "go", cond=True)
        st("s_mov_b64 exec, -1")
        st.label("L_nogo")
        st(f"v_lshrrev_b32 v10, 5, v0\nv_lshlrev_b32 v11, 9, v10\nv_bfe_u32 v12, v0, 2, 2\nv_lshl_add_u32 v11, v12, 6, v11")
        st(f"v_bfe_u32 v12, v0, 4, 1\nv_lshl_add_u32 v11, v12, 5, v11\nv_and_b32 v12, 3, v0\nv_lshl_add_u32 v11, v12, 3, v11")
        st(f"v_add_u32 v{vTR}, s{sA}, v11")
        st(f"v_mul_u32_u24 v11, 528, v10\nv_and_b32 v12, 31, v0\nv_lshl_add_u32 v11, v12, 4, v11\nv_add_u32 v{vXB}, {XN}, v11")
        self.attn_setup(st)
        st.bar("B1")
        self.stamp(st, "m", "B1")
        LA = 3
        for j in range(32 + LA):
            if j < 32:
                if j % 4 == 0:
                    st(f"s_xor_b32 s{sT1}, s{sB}, {j//4}\ns_mul_i32 s{sT1}, s{sT1}, 4224\nv_add_u32 v{vXC}, s{sT1}, v{vXB}")
                st.wait_vm(("wq", j))
                w, x = WR + 4 * (j % 4), XR + 4 * (j % 4)
                o = (j % NWQ) * 1024
                st.ds(f"ds_read_b64_tr_b16 {vr(w,2)}, v{vTR} offset:{o}")
                st.ds(f"ds_read_b64_tr_b16 {vr(w+2,2)}, v{vTR} offset:{o+256}")
                st.ds(f"ds_read_b128 {vr(x,4)}, v{vXC} offset:{(j % 4)*1056}", ("rd", j))
            m = j - LA
            if m >= 0:
                st.wait_ds(("rd", m))
                st(mfma32(ACC, WR + 4 * (m % 4), XR + 4 * (m % 4), "0" if m == 0 else None))
                if m + NWQ < 32: dma(m + NWQ)
        st.nop(12)
        sc = f32(0.25 * 1.4426950408889634)
        for r in range(16): st(f"v_mul_f32 v{ACC+r}, {sc}, v{ACC+r}")
        for r in range(8): st(f"v_cvt_pk_bf16_f32 v{self.Q + r}, v{ACC+2*r}, v{ACC+2*r+1}")
        self.stamp(st, "m", "Qdone")

    S, Q, O, KVB, vIDX, vK, vV0, vV1 = (16, 32), 48, (56, 72), (88, 100), 6, 7, 8, 9

    def attn_setup(self, st):
        st(f"v_mov_b32 v{self.vIDX}, 0xdddddddd")
        st(f"v_lshlrev_b32 v{self.vK}, 4, v0")
        st("v_and_b32 v12, 31, v0\nv_lshrrev_b32 v13, 5, v0\nv_lshl_add_u32 v13, v13, 4, v12\nv_lshlrev_b32 v13, 4, v13")
        st("v_and_b32 v14, 27, v0\nv_cmp_eq_u32 vcc, 16, v14\nv_mov_b32 v14, 2064\nv_mov_b32 v15, 2048")
        st("v_cndmask_b32 v14, v14, v15, vcc")
        st("v_cmp_gt_u32 vcc, 16, v12\nv_add_u32 v15, 1024, v13\nv_add_u32 v13, 1536, v13")
        st(f"v_cndmask_b32 v{self.vV0}, v14, v15, vcc\nv_cndmask_b32 v{self.vV1}, v14, v13, vcc")
        for r in range(32): st(f"v_mov_b32 v{self.O[0]+r}, 0")
        for r in range(8): st(f"v_mov_b32 v{self.S[1]+8+r}, 0")
        for r in range(4): st(f"v_mov_b32 v{self.KVB[1]+8+r}, 0")

    def main_attention(self, st):
        S, Q, O, KVB = self.S, self.Q, self.O, self.KVB
        buf = lambda t: KVB[t % 2]
        off = lambda t: (t % 16) * TILE
        rdK = lambda t: f"ds_read_b128 {vr(buf(t),4)}, v{self.vK} offset:{off(t)}"
        rdV0 = lambda t: f"ds_read_b128 {vr(buf(t)+4,4)}, v{self.vV0} offset:{off(t)}"
        rdV1 = lambda t: f"ds_read_b128 {vr(buf(t)+8,4)}, v{self.vV1} offset:{off(t)}"
        body = []
        for t in range(16):
            for q in range(2):
                cur, nxt = S[q], S[1 - q]
                e = [f"v_exp_f32 v{cur+i}, v{cur+i}" for i in range(16)]
                tp = t - 1 if q == 0 else t
                pv1 = smf(O[1 - q], buf(tp) + 8, nxt + 8, self.vIDX)
                qk = mfma32(nxt, buf(t + q), Q + 4 * (1 - q), "0")
                pv0 = smf(O[q], buf(t) + 4, cur, self.vIDX)
                if q == 0:
                    f0, f1, f2 = [rdV1(t + 1)], [], []
                    if t == 1: f2 = [f"s_sub_u32 s{sA}, s{sA}, 1"]
                else:
                    f0, f1, f2 = ["s_waitcnt lgkmcnt(0)"], [rdK(t + 2)], [rdV0(t + 2)]
                    if t % 8 == 6: f0.append("s_barrier                ; BA")
                body += e[0:2] + [pv1] + f0 + e[2:5] + [qk] + f1 + e[5:11] + [pv0] + f2 + e[11:16]
        nhead = 2 + 1 + 1 + 3 + 1
        head, rest = body[:nhead], body[nhead:]
        st.bar("B2")
        self.stamp(st, "m", "B2")
        for s in (rdK(0), rdV0(0), rdV1(0), rdK(1), rdV0(1)): st(s)
        st(f"s_mov_b32 s{sA}, 3")
        st("s_waitcnt lgkmcnt(0)")
        st(mfma32(S[0], buf(0), Q, "0"))
        st.nop(12)
        st("\n".join(head))
        st(".p2align 6")
        st.label("L_attn")
        st("\n".join(rest + head))
        st("s_cbranch_scc0 L_attn")
        st.nbar += 8
        self.stamp(st, "m", "attn_end")
        st("s_waitcnt lgkmcnt(0)")
        st(f"s_lshl_b32 s{sT0}, s{sRB}, 15\ns_lshl_b32 s{sT1}, s{sCB}, 13\ns_add_u32 s{sT0}, s{sT0}, s{sT1}")
        st(f"s_lshl_b32 s{sT1}, s{sW}, 11\ns_add_u32 s{sT0}, s{sT0}, s{sT1}\ns_add_u32 s{sB}, s{sT0}, {WS_O}")
        T = 88
        st(f"v_pk_add_f32 {vr(T,2)}, {vr(O[0],2)}, {vr(O[0]+2,2)}")
        st(f"v_pk_add_f32 {vr(T+2,2)}, {vr(O[0]+4,2)}, {vr(O[0]+6,2)}")
        st(f"v_pk_add_f32 {vr(T+4,2)}, {vr(O[1],2)}, {vr(O[1]+2,2)}")
        st(f"v_pk_add_f32 {vr(T+6,2)}, {vr(O[1]+4,2)}, {vr(O[1]+6,2)}")
        st(f"v_pk_add_f32 {vr(T,2)}, {vr(T,2)}, {vr(T+2,2)}")
        st(f"v_pk_add_f32 {vr(T+4,2)}, {vr(T+4,2)}, {vr(T+6,2)}")
        st(f"v_min_f32 v{T+8}, v{O[0]+8}, v{O[1]+8}\nv_add_f32 v{T+9}, v{O[0]+8}, v{O[1]+8}")
        st(f"v_pk_add_f32 {vr(T,2)}, {vr(T,2)}, {vr(T+4,2)}")
        st(f"v_cmp_nle_f32 vcc, {f32(2.0**-64)}, v{T+8}")
        st(f"v_add_f32 v{T}, v{T}, v{T+1}")
        st(f"s_mov_b64 {sr(sT2,2)}, vcc")
        st(f"v_cmp_nge_f32 vcc, {f32(2.0**64)}, v{T+9}")
        st(f"s_movk_i32 s{sT0}, 0x207")
        st(f"s_or_b64 {sr(sT2,2)}, {sr(sT2,2)}, vcc")
        st(f"v_cmp_class_f32 vcc, v{T}, s{sT0}".replace("v_cmp_class_f32", "v_cmp_class_f32_e64"))
        st(f"s_or_b64 {sr(sT2,2)}, {sr(sT2,2)}, vcc")
        if self.c.force_fallback: st("s_branch L_fallback")
        st("s_cbranch_scc1 L_fallback")
        st.label("L_norm")
        st(f"v_rcp_f32 v{T}, v{O[0]+8}\nv_rcp_f32 v{T+2}, v{O[1]+8}")
        st(f"v_cmp_eq_u32 vcc, 0, v0\nv_mov_b32 v10, 0x80000000\nv_mov_b32 v11, 1")
        for q in range(2):
            for r in range(0, 8, 2):
                st(f"v_pk_mul_f32 {vr(O[q]+r,2)}, {vr(O[q]+r,2)}, {vr(T+2*q,2)} op_sel_hi:[1,0]")
            for r in range(4):
                st(f"v_cvt_pk_bf16_f32 v{T+4+4*q+r}, v{O[q]+2*r}, v{O[q]+2*r+1}")
            st.vm(f"buffer_store_dwordx4 {vr(T+4+4*q,4)}, v{self.vK}, {srd(WS)}, s{sB} offen offset:{1024*q} sc1")
        st("v_cndmask_b32 v10, v10, 0, vcc".replace("v_cndmask_b32", "v_cndmask_b32_e64"))
        st(f"s_lshl_b32 s{sT0}, s{sRB}, 7\ns_lshl_b32 s{sT1}, s{sCB}, 4\ns_add_u32 s{sT0}, s{sT0}, s{sT1}")
        st(f"s_lshl_b32 s{sT1}, s{sW}, 2\ns_add_u32 s{sT0}, s{sT0}, s{sT1}\ns_add_u32 s{sT0}, s{sT0}, {WS_FLG2}")
        st.wait_vm()
        st.vm(f"buffer_store_dword v11, v10, {srd(WS)}, s{sT0} offen sc1")
        self.stamp(st, "m", "Oflag")
        self.fallback()

    def fallback(self):
        st = self.tailcode
        S, Q, O, KVB = self.S, self.Q, self.O, self.KVB
        K, V0, V1, NM = KVB[0], KVB[0] + 4, KVB[0] + 8, (112, 128)
        st.label("L_fallback")
        st("v_mov_b32 v10, 0xff800000\nv_mov_b32 v11, 0xff800000")
        st(f"s_mov_b32 s{sT0}, {WS_KV}")
        st.label("L_fb1")
        st(f"buffer_load_dwordx4 {vr(K,4)}, v{self.vK}, {srd(WS)}, s{sT0} offen sc1\ns_waitcnt vmcnt(0)")
        st(mfma32(S[0], K, Q, "0")); st(mfma32(S[1], K, Q + 4, "0"))
        st.nop(12)
        for q in range(2):
            for r in range(0, 16, 2): st(f"v_max3_f32 v{10+q}, v{S[q]+r}, v{S[q]+r+1}, v{10+q}")
        st(f"s_add_u32 s{sT0}, s{sT0}, 2048\ns_cmp_lt_u32 s{sT0}, {WS_KV + 131072}\ns_cbranch_scc1 L_fb1")
        st("v_mov_b32 v12, v10\nv_mov_b32 v13, v11\ns_nop 1")
        st("v_permlane32_swap_b32 v10, v12\nv_permlane32_swap_b32 v11, v13")
        st("v_max_f32 v10, v10, v12\nv_max_f32 v11, v11, v13")
        for q in range(2):
            for r in range(16):
                st(f"v_sub_f32 v{NM[q]+r}, 0, v{10+q}\nv_mov_b32 v{O[q]+r}, 0")
        st(f"v_and_b32 v12, 27, v0\nv_cmp_eq_u32 vcc, 16, v12\nv_mov_b32 v13, s{sONE}\ns_nop 0\nv_cndmask_b32 v13, 0, v13, vcc")
        for r in range(8): st(f"v_mov_b32 v{V0+r}, v13")
        st(f"s_mov_b32 s{sT0}, {WS_KV}\ns_mov_b32 s{sT2}, 0xffff\ns_mov_b32 s{sT3}, 0xffff")
        st.label("L_fb2")
        st(f"buffer_load_dwordx4 {vr(K,4)}, v{self.vK}, {srd(WS)}, s{sT0} offen sc1")
        st(f"s_mov_b64 exec, {sr(sT2,2)}")
        st(f"buffer_load_dwordx4 {vr(V0,4)}, v{self.vV0}, {srd(WS)}, s{sT0} offen sc1")
        st(f"buffer_load_dwordx4 {vr(V1,4)}, v{self.vV1}, {srd(WS)}, s{sT0} offen sc1")
        st("s_mov_b64 exec, -1\ns_waitcnt vmcnt(0)")
        st(mfma32(S[0], K, Q, vr(NM[0], 16))); st(mfma32(S[1], K, Q + 4, vr(NM[1], 16)))
        st.nop(12)
        for q in range(2):
            for r in range(16): st(f"v_exp_f32 v{S[q]+r}, v{S[q]+r}")
        st.nop(2)
        for q in range(2):
            st(smf(O[q], V0, S[q], self.vIDX)); st(smf(O[q], V1, S[q] + 8, self.vIDX))
        st(f"s_add_u32 s{sT0}, s{sT0}, 2048\ns_cmp_lt_u32 s{sT0}, {WS_KV + 131072}\ns_cbranch_scc1 L_fb2")
        st.nop(12)
        st("s_branch L_norm")

    BD = (1, 3, 5, 7, 9, 11)

    def main_phase_d(self, st):
        T = self.c.tail
        ACC, BR, AR, AC = 144, 112, 80, 16
        NAC = 2 * T + 2
        TMP = AC + 4 * NAC
        assert TMP + 8 <= 64
        STT = 64
        vL, vFZ, vB, vNM, vC1, vSD, vPOLL, vVAL = self.vK, 10, (2, 3, 4), 5, 8, 9, 12, 11
        NBR, LA, NAR = 8, 5, 8
        st(f"s_lshr_b32 s{sT0}, s{sIDX}, 4\ns_lshl_b32 s{sT1}, s{sG}, 1\ns_add_u32 s{sT1}, s{sT1}, s{sT0}")
        st(f"s_lshl_b32 s{sT1}, s{sT1}, 2\ns_add_u32 s{sA}, s{sT1}, s{sW}")
        st(f"s_lshl_b32 s{sT1}, s{sA}, 15\ns_add_u32 s{sT1}, s{sT1}, {WS_H}\ns_lshl_b32 s{sT0}, s{sT0}, 14\ns_add_u32 s{sT1}, s{sT1}, s{sT0}")
        for i in range(8): st(f"s_xor_b32 s{sP+i}, s{sT1}, {4096*i}")
        st(f"s_lshl_b32 s{sB}, s{sA}, 12\ns_add_u32 s{sB}, s{sB}, {WS_ST}")
        st(f"s_and_b32 s{sT0}, s{sIDX}, 15\ns_mul_i32 s{sC}, s{sA}, 114688\ns_mul_i32 s{sT1}, s{sT0}, 7168")
        st(f"s_add_u32 s{sC}, s{sC}, s{sT1}\ns_add_u32 s{sC}, s{sC}, {WS_HH}\ns_add_u32 s{sD}, s{sC}, 4096")
        st(f"s_lshl_b32 s{sT1}, s{sA}, 7\ns_lshl_b32 s{sT0}, s{sT0}, 2\ns_add_u32 s{sE}, s{sT1}, s{sT0}\ns_add_u32 s{sE}, s{sE}, {WS_FLG4}")
        st(f"s_add_u32 s{sF}, s{sT1}, {WS_FLG3}")
        st("v_lshrrev_b32 v13, 5, v0\nv_bfe_u32 v14, v0, 2, 2\nv_lshl_add_u32 v13, v13, 2, v14\nv_mul_u32_u24 v13, 224, v13")
        st(f"v_and_b32 v14, 3, v0\nv_lshl_add_u32 v13, v14, 3, v13\nv_bfe_u32 v14, v0, 4, 1\nv_mul_u32_u24 v14, {UOFF}, v14")
        st(f"v_add_u32 v{vB[0]}, v13, v14\nv_add_u32 v{vB[1]}, 0x10000, v{vB[0]}\nv_add_u32 v{vB[2]}, 0x20000, v{vB[0]}")
        st(f"v_and_b32 v{vPOLL}, 15, v0\nv_lshlrev_b32 v{vPOLL}, 2, v{vPOLL}")
        st.bar("BC1")
        st.bar("BC2")
        self.stamp(st, "m", "BC2")
        nk = 32 - 2 * T
        order = [(k, n) for k in range(nk) for n in range(7)] + [(k, n) for n in range(7) for k in range(nk, 32)]
        def rdB(m):
            k, n = order[m]
            b = BR + 4 * (m % NBR)
            for t in range(2):
                o = slot_addr(unit_slot(k // 2)) + (16 * (k % 2) + 8 * t) * 224 + 32 * n
                st.ds(f"ds_read_b64_tr_b16 {vr(b+2*t,2)}, v{vB[o >> 16]} offset:{o & 0xffff}", ("b", m))
        for m in range(LA): rdB(m)
        self.poll(st, "L_x3", vPOLL, f"s{sF}", 13, 1)
        self.stamp(st, "m", "x3ok")
        for i in range(4):
            st.vm(f"buffer_load_dwordx4 {vr(STT+4*i,4)}, v{vL}, {srd(WS)}, s{sB} offen offset:{1024*i} sc1", "st")
        def ldA(k):
            st.vm(f"buffer_load_dwordx4 {vr(AR+4*(k % NAR),4)}, v{vL}, {srd(WS)}, s{sP + k//4} offen offset:{1024*(k % 4)} sc1", ("a", k))
        for k in range(NAR): ldA(k)
        st.wait_vm("st")
        for i in range(4): st(f"v_pk_add_f32 {vr(STT+2*i,2)}, {vr(STT+2*i,2)}, {vr(STT+8+2*i,2)}")
        for i in range(2): st(f"v_pk_add_f32 {vr(STT+2*i,2)}, {vr(STT+2*i,2)}, {vr(STT+4+2*i,2)}")
        st(f"v_pk_add_f32 {vr(STT,2)}, {vr(STT,2)}, {vr(STT+2,2)}")
        st(f"v_add_f32 v{STT}, v{STT}, v{STT+1}")
        st(f"v_mov_b32 v{STT+1}, v{STT}\ns_nop 1")
        st(f"v_permlane32_swap_b32 v{STT}, v{STT+1}")
        st(f"v_mul_f32 v{vNM}, {f32(-1.0/512)}, v{STT}")
        acslot = lambda k: AC + 4 * (k % 2 if k < nk else 2 + k - nk)
        def center(k):
            a, d = AR + 4 * (k % NAR), acslot(k)
            ops = [lambda k=k: st.wait_vm(("a", k))]
            for r in range(4):
                ops.append(f"v_dot2_f32_bf16 v{TMP+2*r}, v{a+r}, s{sLO}, v{vNM}")
                ops.append(f"v_dot2_f32_bf16 v{TMP+2*r+1}, v{a+r}, s{sHI}, v{vNM}")
            if k + NAR < 32: ops.append(lambda k=k: ldA(k + NAR))
            else: ops.append("s_nop 0")
            for r in range(4): ops.append(f"v_cvt_pk_bf16_f32 v{d+r}, v{TMP+2*r}, v{TMP+2*r+1}")
            return ops
        def run(op): op() if callable(op) else st(op)
        for op in center(0): run(op)
        stats = [f"v_mul_f32 v{STT+2}, v{vNM}, v{vNM}",
                 f"v_fma_f32 v{STT+2}, v{STT+1}, s{sT0}, -v{STT+2}",
                 f"v_max_f32 v{STT+2}, 0, v{STT+2}",
                 f"v_add_f32 v{STT+2}, {f32(1e-5)}, v{STT+2}",
                 f"v_rsq_f32 v{STT+3}, v{STT+2}",
                 "s_nop 0",
                 f"v_mul_f32 v{vSD}, v{STT+2}, v{STT+3}",
                 f"v_mul_f32 v{vC1}, {f32(-1.4426950408889634)}, v{STT+3}"]
        st(f"s_mov_b32 s{sT0}, {f32(1.0/512)}")
        st("s_nop 0")
        def epilogue(n):
            a = ACC + 16 * n
            ops = [f"v_mul_f32 v{a+j}, v{vC1}, v{a+j}" for j in range(8)]
            ops += [f"v_exp_f32 v{a+j}, v{a+j}" for j in range(8)]
            ops += [f"v_fma_f32 v{a+j}, v{a+j}, v{vSD}, v{vSD}" for j in range(8)]
            ops += [f"v_rcp_f32 v{a+j}, v{a+j}" for j in range(8)]
            if n > 0:
                ops.append(f"v_mov_b32 v{vVAL}, {n}")
                ops.append(lambda n=n: st.wait_vm(("hh", n - 1)))
                ops.append(lambda: st.vm(f"buffer_store_dword v{vVAL}, v{vFZ}, {srd(WS)}, s{sE} offen sc1"))
            ops += [f"v_mul_f32 v{a+j}, v{a+j}, v{a+8+j}" for j in range(8)]
            ops += [f"v_cvt_pk_bf16_f32 v{a+8+j}, v{a+2*j}, v{a+2*j+1}" for j in range(4)]
            ops.append(lambda n=n, a=a: st.vm(f"buffer_store_dwordx4 {vr(a+8,4)}, v{vL}, {srd(WS)}, s{sC if n < 4 else sD} offen offset:{1024*(n % 4)} sc1", ("hh", n)))
            return ops
        fill = {m: [] for m in range(224)}
        extra = list(range(nk, 32))
        per = -(-len(extra) // 1) if extra else 0
        for k in range(nk):
            ops = []
            if k + 1 < nk: ops += center(k + 1)
            if k == 0: ops += stats
            j = k - (nk - 1 - len(extra))
            if k == nk - 1:
                ops += center(nk) if extra else []
            for i, op in enumerate(ops): fill[7 * k + min(5, i * 6 // len(ops))].append(op)
        base = 7 * nk
        for i, k in enumerate(extra[1:]):
            fill[base + i] += center(k)
        for n in range(1, 7):
            ops = epilogue(n - 1)
            g0 = base + 2 * T * n
            lo = 0 if T == 0 else min(2, 2 * T - 1)
            ng = max(1, 2 * T - lo)
            if T == 0: continue
            if 2 * T < 4: ops = ["s_nop 7"] + ops
            for i, op in enumerate(ops): fill[g0 + lo + i * ng // len(ops)].append(op)
        for m in range(224):
            k, n = order[m]
            if m % 2 == 0: st.wait_ds(("b", min(m + 1, 223)))
            st(mfma32(ACC + 16 * n, BR + 4 * (m % NBR), acslot(k), "0" if k == 0 else None))
            if m < 7 * nk and n == 6 and k % 2 == 1 and k // 2 in self.BD: st.bar(f"BD{k//2}")
            if m + LA < 224: rdB(m + LA)
            for op in fill[m]: run(op)
            if base <= m < base + len(extra) - 1: st("s_nop 1")
        self.stamp(st, "m", "Dmfma_end")
        st.nop(12)
        for n in (range(7) if T == 0 else [6]):
            for op in epilogue(n): run(op)
        st(f"v_mov_b32 v{vVAL}, 7")
        st.wait_vm()
        st(f"buffer_store_dword v{vVAL}, v{vFZ}, {srd(WS)}, s{sE} offen sc1")
        self.stamp(st, "m", "end")
        self.dump_stamps(st, "m")
        st("s_endpgm")

    def helper_phase_a(self, st):
        self.stamp(st, "h", "start")
        XP, XF, AC = 16, 48, 112
        st(f"s_getpc_b64 {sr(CODE,2)}")
        st.label("L_pc")
        st(f"s_sub_u32 s{CODE}, s{CODE}, L_pc-{NAME}_kernel\ns_subb_u32 s{CODE+1}, s{CODE+1}, 0")
        st(f"s_mov_b32 s{CODE+2}, L_codeend-{NAME}_kernel\ns_mov_b32 s{CODE+3}, 0x20000")
        st(f"s_lshl_b32 s{sT0}, s{sIDX}, 2\ns_add_u32 s{sT0}, s{sT0}, s{sW}\ns_lshl_b32 s{sT0}, s{sT0}, 9")
        st(f"v_and_b32 v2, 3, v0\nv_lshlrev_b32 v2, 7, v2")
        st.vm(f"buffer_load_dword v120, v2, {srd(CODE)}, s{sT0} offen")
        st(f"v_lshrrev_b32 v2, 3, v0\nv_and_b32 v3, 7, v0\nv_lshlrev_b32 v4, 10, v2\nv_lshl_add_u32 v4, v3, 4, v4")
        st(f"s_lshl_b32 s{sT0}, s{sRB}, 15\ns_lshl_b32 s{sT1}, s{sW}, 13\ns_add_u32 s{sA}, s{sT0}, s{sT1}")
        st(f"v_lshlrev_b32 v1, 4, v0")
        st("s_waitcnt lgkmcnt(0)")
        for i in range(8):
            st.vm(f"buffer_load_dwordx4 {vr(XP+4*i,4)}, v4, {srd(X)}, s{sA} offen offset:{128*i}", ("x", i))
        st(f"s_cmp_ge_u32 s{sCB}, 2\ns_cselect_b32 s{WKVS}, s{sP}, s{WKVS}\ns_cselect_b32 s{WKVS+1}, s{sP+1}, s{WKVS+1}")
        st(f"s_lshl_b32 s{sT0}, s{sW}, 12\ns_add_u32 m0, s{sT0}, {WKV}")
        for b, off in ((WO, 32), (WG, 48), (WU, 56), (WD, 64), (OUT, 72)):
            st(f"s_load_dwordx2 {sr(b,2)}, s[0:1], {off}")
        for i in range(4):
            st.vm(f"buffer_load_dwordx4 v1, {srd(WKVS)}, s{sT0} offen offset:{1024*i} lds", "wkv")
        st(f"s_lshl_b32 s{sT0}, s{sCB}, 2\ns_add_u32 s{sT0}, s{sT0}, s{sW}\ns_cmp_lg_u32 s{sT0}, 1\ns_cbranch_scc1 L_noclr2")
        st(f"v_lshrrev_b32 v5, 4, v0\nv_min_u32 v5, 2, v5\nv_lshlrev_b32 v5, 13, v5\nv_and_b32 v6, 15, v0\nv_lshl_add_u32 v5, v6, 2, v5")
        st(f"s_lshl_b32 s{sT0}, s{sRB}, 7\ns_add_u32 s{sT0}, s{sT0}, {WS_FLG2}\nv_mov_b32 v6, 0")
        st.vm(f"buffer_store_dword v6, v5, {srd(WS)}, s{sT0} offen sc1", "clr", cond=True)
        st.label("L_noclr2")
        st(f"s_getreg_b32 s{sXCC}, hwreg(HW_REG_XCC_ID, 0, 4)\ns_or_b32 s{sXCC}, s{sXCC}, 0x100")
        st(f"v_bfe_u32 v5, v0, 1, 3\nv_mul_u32_u24 v5, {TILE}, v5\nv_and_b32 v6, 1, v0\nv_lshl_add_u32 v7, v6, 4, v5")
        st(f"v_cmp_eq_u32 vcc, 0, v6\nv_mov_b32 v8, s{sONE}\ns_nop 0\nv_cndmask_b32 v8, 0, v8, vcc\nv_mov_b32 v9, v8\nv_mov_b32 v10, v8\nv_mov_b32 v11, v8")
        st.ds("ds_write_b128 v7, v[8:11] offset:2048")
        st(f"v_mul_u32_u24 v5, 528, v3\ns_lshl_b32 s{sT0}, s{sW}, 7\ns_add_u32 s{sT0}, s{sT0}, {XN}\nv_lshl_add_u32 v5, v2, 4, v5\nv_add_u32 v5, s{sT0}, v5")
        for i in range(8):
            st.wait_vm(("x", i))
            for r in range(4):
                st(f"v_dot2_f32_bf16 v{AC+r}, v{XP+4*i+r}, s{sONE}, {'0' if i == 0 else 'v%d' % (AC+r)}")
        self.stamp(st, "h", "xland")
        def red8(a):
            for m in ("quad_perm:[1,0,3,2]", "quad_perm:[2,3,0,1]", "row_half_mirror"):
                st(f"s_nop 1\nv_add_f32_dpp v{a}, v{a}, v{a} {m} row_mask:0xf bank_mask:0xf")
        st("s_nop 2")
        st(f"v_pk_add_f32 {vr(AC,2)}, {vr(AC,2)}, {vr(AC+2,2)}\nv_add_f32 v{AC}, v{AC}, v{AC+1}")
        red8(AC)
        st(f"v_mul_f32 v{AC}, {f32(-1.0/512)}, v{AC}")
        for r in range(32):
            st(f"v_dot2_f32_bf16 v{XF+2*r}, v{XP+r}, s{sLO}, v{AC}\nv_dot2_f32_bf16 v{XF+2*r+1}, v{XP+r}, s{sHI}, v{AC}")
        st(f"s_cmp_lg_u32 s{sW}, 3\ns_cbranch_scc1 L_nogo1")
        st.vm(f"buffer_load_dword v121, off, {srd(DBG)}, 0 sc1", "go", cond=True)
        st.label("L_nogo1")
        for r in range(32):
            d = AC + 2 + 2 * (r % 2)
            if r < 2: st(f"v_pk_mul_f32 {vr(d,2)}, {vr(XF+2*r,2)}, {vr(XF+2*r,2)}")
            else: st(f"v_pk_fma_f32 {vr(d,2)}, {vr(XF+2*r,2)}, {vr(XF+2*r,2)}, {vr(d,2)}")
        st(f"v_pk_add_f32 {vr(AC+2,2)}, {vr(AC+2,2)}, {vr(AC+4,2)}\nv_add_f32 v{AC+2}, v{AC+2}, v{AC+3}")
        red8(AC + 2)
        st(f"v_mov_b32 v{AC+3}, {f32(1e-5)}\nv_fmac_f32 v{AC+3}, {f32(1.0/512)}, v{AC+2}\nv_rsq_f32 v{AC+2}, v{AC+3}\ns_nop 0")
        for i in range(8):
            for r in range(4):
                st(f"v_pk_mul_f32 {vr(XF+8*i+2*r,2)}, {vr(XF+8*i+2*r,2)}, {vr(AC+2,2)} op_sel_hi:[1,0]")
            for r in range(4):
                st(f"v_cvt_pk_bf16_f32 v{XP+4*i+r}, v{XF+8*i+2*r}, v{XF+8*i+2*r+1}")
            st.ds(f"ds_write_b128 v5, {vr(XP+4*i,4)} offset:{4224*i}")
        st.wait_vm()
        st(f"s_cmp_lg_u32 s{sW}, 3\ns_cbranch_scc1 L_go_ok")
        st("v_cmp_gt_u32 vcc, 1, v121\nv_mov_b32 v122, 0\ns_cbranch_vccz L_go_ok")
        self.poll(st, "L_go", 122, "0", 121, 1, buf=DBG)
        st.wait_ds()
        st.bar("B1")
        self.stamp(st, "h", "B1")
        st(f"s_cmp_lg_u32 s{sW}, 0\ns_cbranch_scc1 L_nokv")
        self.kv_job(st)
        st.label("L_nokv")

    def kv_job(self, st):
        WR, XR, AC = 48, 64, 80
        st(f"v_lshrrev_b32 v12, 4, v0\nv_and_b32 v13, 15, v0\nv_lshlrev_b32 v14, 8, v12\nv_lshl_add_u32 v14, v13, 3, v14")
        st(f"s_and_b32 s{sT0}, s{sCB}, 1\ns_lshl_b32 s{sT1}, s{sT0}, 8\ns_add_u32 s{sT2}, s{sT1}, {XN}")
        st(f"v_mul_u32_u24 v15, 528, v12\nv_lshl_add_u32 v15, v13, 4, v15\nv_add_u32 v15, s{sT2}, v15")
        st(f"s_cmp_ge_u32 s{sCB}, 2\ns_cbranch_scc1 L_vjob")
        for job in ("k", "v"):
            if job == "v": st.label("L_vjob")
            LA = 3
            for j in range(16 + LA):
                if j < 16:
                    w, x = WR + 4 * (j % 4), XR + 4 * (j % 4)
                    st.ds(f"ds_read_b64_tr_b16 {vr(w,2)}, v14 offset:{WKV + 1024*j}")
                    st.ds(f"ds_read_b64_tr_b16 {vr(w+2,2)}, v14 offset:{WKV + 1024*j + 128}")
                    st.ds(f"ds_read_b128 {vr(x,4)}, v15 offset:{2112*j}", ("rd", j))
                m = j - LA
                if m >= 0:
                    st.wait_ds(("rd", m))
                    w, x = WR + 4 * (m % 4), XR + 4 * (m % 4)
                    a, b = (w, x) if job == "k" else (x, w)
                    st(mfma16(AC, a, b, "0" if m == 0 else None))
            if job == "k":
                st(f"v_and_b32 v14, 1, v12\nv_lshlrev_b32 v14, 9, v14\nv_lshl_add_u32 v14, v13, 4, v14\nv_lshrrev_b32 v15, 1, v12")
                st(f"v_lshl_add_u32 v14, v15, 3, v14\nv_add_u32 v14, s{sT1}, v14")
                st("s_branch L_kvst")
            else:
                st(f"v_lshrrev_b32 v14, 1, v12\nv_lshlrev_b32 v14, 8, v14\nv_lshl_add_u32 v14, v13, 4, v14\nv_and_b32 v15, 1, v12")
                st(f"s_lshl_b32 s{sT1}, s{sT0}, 9\ns_add_u32 s{sT1}, s{sT1}, 1024")
                st(f"v_lshl_add_u32 v14, v15, 3, v14\nv_add_u32 v14, s{sT1}, v14")
        st.label("L_kvst")
        st(f"s_lshl_b32 s{sT0}, s{sRB}, 11\ns_add_u32 s{sT0}, s{sT0}, {WS_KV}")
        st(f"v_cvt_pk_bf16_f32 v{AC+4}, v{AC}, v{AC+1}\nv_cvt_pk_bf16_f32 v{AC+5}, v{AC+2}, v{AC+3}")
        st(f"buffer_store_dwordx2 {vr(AC+4,2)}, v14, {srd(WS)}, s{sT0} offen sc1")
        st(f"s_lshl_b32 s{sT0}, s{sG}, 5\ns_add_u32 s{sT0}, s{sT0}, s{sIDX}\ns_lshl_b32 s{sT0}, s{sT0}, 7\ns_add_u32 s{sT0}, s{sT0}, {WS_FLG1}")
        st(f"v_mov_b32 v15, s{sXCC}\ns_mov_b64 exec, 1")
        st("s_waitcnt vmcnt(0)")
        st(f"buffer_store_dword v15, off, {srd(WS)}, s{sT0} sc1")
        st("s_mov_b64 exec, -1")

    WOR, WDR = 128, 48

    def gu_voffsets(self, st, base, tmp):
        st(f"s_and_b32 s{sT0}, s{sIDX}, 15\ns_mul_i32 s{sT0}, s{sT0}, 224")
        for p in range(7):
            st(f"v_add_u32 v{tmp}, {64*p}, v0\nv_mul_u32_u24 v{tmp+1}, 4682, v{tmp}\nv_lshrrev_b32 v{tmp+1}, 16, v{tmp+1}")
            st(f"v_mul_u32_u24 v{tmp+1}, 3360, v{tmp+1}\nv_lshlrev_b32 v{tmp}, 4, v{tmp}\nv_add3_u32 v{base+p}, v{tmp}, v{tmp+1}, s{sT0}")

    def gu_pair(self, st, u0, vbase, single=False):
        a0 = slot_addr(unit_slot(u0))
        lab = f"L_gu{u0}"
        if single:
            st(f"s_cmp_ge_u32 s{sW}, 2\ns_cbranch_scc1 {lab}")
        else:
            assert slot_addr(unit_slot(u0 + 1)) == a0 + SLOT
        st(f"s_add_u32 s{sT1}, s{sP + (4 if u0 < 8 else 5)}, {u0 * 114688}")
        for p in range(7):
            st(f"s_add_u32 m0, s{sP+6}, {a0 + 1024*p}\ns_nop 0")
            st.vm(f"buffer_load_dwordx4 v{vbase+p}, {srd(WG)}, s{sT1} offen lds", ("gu", u0), cond=single)
        if single: st.label(lab)

    def wd_dma(self, st, j, addr, vD, sbase):
        p, t = j % 4, j // 4
        st(f"s_add_u32 m0, s{sbase}, {addr}\ns_add_u32 s{sT1}, s{sP+7}, {(7*p + t) * 16384}")
        st.vm(f"buffer_load_dwordx4 v{vD}, {srd(WD)}, s{sT1} offen lds")
        st(f"s_add_u32 m0, s{sbase}, {addr + 1024}\ns_add_u32 s{sT1}, s{sT1}, 8192")
        st.vm(f"buffer_load_dwordx4 v{vD}, {srd(WD)}, s{sT1} offen lds", ("wd", j))

    def wd_read(self, st, j, reg, va, off):
        for nt in range(2):
            for t in range(2):
                st.ds(f"ds_read_b64_tr_b16 {vr(reg+4*nt+2*t,2)}, v{va[nt]} offset:{off + 1024*t}", ("wdr", j))

    def wd_addr(self, st, vD, va, t0):
        st(f"v_lshrrev_b32 v{t0}, 3, v0\nv_bfe_u32 v{t0+1}, v0, 4, 1\nv_lshlrev_b32 v{t0+1}, 2, v{t0+1}\nv_and_b32 v{vD}, 7, v0")
        st(f"v_xor_b32 v{vD}, v{vD}, v{t0+1}\nv_lshlrev_b32 v{vD}, 4, v{vD}\nv_lshl_add_u32 v{vD}, v{t0}, 10, v{vD}")
        st(f"v_lshrrev_b32 v{t0}, 5, v0\nv_bfe_u32 v{t0+1}, v0, 2, 2\nv_lshl_add_u32 v{t0}, v{t0}, 2, v{t0+1}\nv_lshlrev_b32 v{t0}, 7, v{t0}")
        st(f"v_bfe_u32 v{t0+1}, v0, 3, 1\ns_and_b32 s{sT0}, s{sW}, 1\nv_xor_b32 v{t0+1}, s{sT0}, v{t0+1}\nv_lshl_add_u32 v{t0}, v{t0+1}, 6, v{t0}")
        st(f"v_bfe_u32 v{t0+1}, v0, 4, 1\nv_lshl_add_u32 v{t0}, v{t0+1}, 5, v{t0}\nv_and_b32 v{t0+1}, 3, v0\nv_lshl_add_u32 v{va[0]}, v{t0+1}, 3, v{t0}")
        st(f"v_xor_b32 v{va[1]}, 64, v{va[0]}")

    def helper_attention(self, st):
        vL, vP, vR = 1, 2, 3
        st(f"v_and_b32 v{vP}, 7, v0\ns_lshl_b32 s{sT0}, s{sW}, 3\nv_add_u32 v{vP}, s{sT0}, v{vP}\nv_lshlrev_b32 v{vP}, 7, v{vP}")
        st(f"s_lshl_b32 s{sT1}, s{sG}, 12\ns_add_u32 s{sB}, s{sT1}, {WS_FLG1}")
        st(f"s_mul_i32 s{sC}, s{sW}, {2*TILE}\ns_lshl_b32 s{sD}, s{sW}, 12\ns_add_u32 s{sD}, s{sD}, {WS_KV}")
        st(f"s_bitcmp1_b32 s{sW}, 0\ns_cselect_b32 s{WG}, s{WU}, s{WG}\ns_cselect_b32 s{WG+1}, s{WU+1}, s{WG+1}")
        self.poll(st, "L_x1a", vP, f"s{sB}", vR, 1)
        self.stamp(st, "h", "x1own")
        def chunk(c):
            st(f"s_add_u32 s{sT0}, s{sG}, {c}\ns_and_b32 s{sT0}, s{sT0}, 7\ns_lshl_b32 s{sT0}, s{sT0}, 14")
            st(f"s_add_u32 m0, s{sC}, {RING + (c % 2) * 8 * TILE}\ns_add_u32 s{sT0}, s{sT0}, s{sD}")
            for i in range(4):
                if i == 2: st("s_add_u32 m0, m0, 32\ns_nop 0")
                st.vm(f"buffer_load_dwordx4 v{vL}, {srd(WS)}, s{sT0} offen offset:{1024*i} sc1 lds", ("kv", c))
        chunk(0)
        st(f"v_lshrrev_b32 v{vR}, 3, v0\nv_lshl_add_u32 v{vP}, v{vR}, 12, v{vP}")
        vWO, vTR, vWD, vWA, GU = 4, 5, 6, (12, 13), 16
        st(f"v_lshrrev_b32 v14, 2, v0\nv_lshlrev_b32 v14, 10, v14\nv_and_b32 v15, 3, v0\nv_lshlrev_b32 v15, 4, v15")
        st(f"s_lshl_b32 s{sT0}, s{sCB}, 8\ns_lshl_b32 s{sT1}, s{sW}, 6\ns_add_u32 s{sT0}, s{sT0}, s{sT1}")
        st(f"v_add3_u32 v{vWO}, v14, v15, s{sT0}")
        st(f"s_mul_i32 s{sE}, s{sW}, {STGW}\ns_add_u32 s{sE}, s{sE}, {STG}")
        st(f"v_lshrrev_b32 v14, 5, v0\nv_lshlrev_b32 v14, 8, v14\nv_bfe_u32 v15, v0, 2, 2\nv_lshl_add_u32 v14, v15, 6, v14")
        st(f"v_bfe_u32 v15, v0, 4, 1\nv_lshl_add_u32 v14, v15, 5, v14\nv_and_b32 v15, 3, v0\nv_lshl_add_u32 v14, v15, 3, v14")
        st(f"v_add_u32 v{vTR}, s{sE}, v14")
        self.wd_addr(st, vWD, vWA, 14)
        st(f"v_add_u32 v24, s{sE}, v{vWA[0]}\nv_add_u32 v25, s{sE}, v{vWA[1]}")
        self.gu_voffsets(st, GU, 14)
        st(f"s_lshr_b32 s{sT0}, s{sW}, 1\ns_lshr_b32 s{sT1}, s{sIDX}, 4\ns_lshl_b32 s{sT1}, s{sT1}, 3")
        st(f"s_add_u32 s{sT2}, s{sT0}, s{sT1}\ns_mul_i32 s{sP+4}, s{sT2}, 114688\ns_sub_u32 s{sT2}, s{sT0}, s{sT1}\ns_mul_i32 s{sP+5}, s{sT2}, 114688")
        st(f"s_mul_i32 s{sT0}, s{sT0}, {SLOT}\ns_and_b32 s{sT1}, s{sW}, 1\ns_mul_i32 s{sT1}, s{sT1}, {UOFF}\ns_add_u32 s{sP+6}, s{sT0}, s{sT1}")
        st(f"s_mul_i32 s{sT0}, s{sW}, {28*16384}\ns_and_b32 s{sT1}, s{sIDX}, 7\ns_lshl_b32 s{sT1}, s{sT1}, 7\ns_add_u32 s{sP+7}, s{sT0}, s{sT1}")
        st.wait_vm(("kv", 0))
        st.bar("B2")
        st.ds(f"ds_write_b128 v7, v[8:11] offset:{8*TILE + 2048}")
        st(f"s_mov_b32 s{sB}, {WS_FLG1}")
        self.poll(st, "L_x1b", vP, f"s{sB}", vR, 1)
        self.stamp(st, "h", "x1all")
        def wo_dma(j, pos):
            st(f"s_add_u32 m0, s{sE}, {1024*pos}\ns_mov_b32 s{sT1}, {j*16384}")
            st.vm(f"buffer_load_dwordx4 v{vWO}, {srd(WO)}, s{sT1} offen lds", ("wo", j))
        def wo_read(j, pos):
            for t in range(2):
                st.ds(f"ds_read_b64_tr_b16 {vr(self.WOR+4*j+2*t,2)}, v{vTR} offset:{1024*pos + 512*t}")
        def endint(c):
            st.wait_vm(("kv", c + 1))
            st.wait_ds()
            st.bar(f"BA{c}")
            if c + 2 < 8: chunk(c + 2)
        chunk(1)
        for j in range(14): wo_dma(j, j)
        endint(0)
        st.wait_vm(("wo", 13))
        for j in range(14): wo_read(j, j)
        st.wait_ds()
        for j in range(14, 28): wo_dma(j, j - 14)
        endint(1)
        st.wait_vm(("wo", 27))
        for j in range(14, 28): wo_read(j, j - 14)
        st.wait_ds()
        for j in range(28, 32): wo_dma(j, j - 28)
        for j in range(5): self.wd_dma(st, j, 4096 + 2048 * j, vWD, sE)
        endint(2)
        st.wait_vm(("wd", 4))
        for j in range(28, 32): wo_read(j, j - 28)
        for j in range(5): self.wd_read(st, j, self.WDR + 8 * j, (24, 25), 4096 + 2048 * j)
        st.wait_ds()
        for j in range(5, 10): self.wd_dma(st, j, 2048 * (j - 5), vWD, sE)
        self.gu_pair(st, 0, GU)
        endint(3)
        self.gu_pair(st, 2, GU)
        st.wait_vm(("wd", 9))
        for j in range(5, 10): self.wd_read(st, j, self.WDR + 8 * j, (24, 25), 2048 * (j - 5))
        endint(4)
        self.gu_pair(st, 4, GU)
        self.gu_pair(st, 6, GU)
        endint(5)
        self.gu_pair(st, 8, GU, single=True)
        endint(6)
        st(f"v_and_b32 v14, 31, v0\nv_lshlrev_b32 v14, 10, v14\nv_lshrrev_b32 v15, 5, v0\nv_lshl_add_u32 v14, v15, 3, v14")
        st(f"s_lshl_b32 s{sT0}, s{sRB}, 15\ns_lshl_b32 s{sT1}, s{sCB}, 8\ns_add_u32 s{sT0}, s{sT0}, s{sT1}\ns_lshl_b32 s{sT1}, s{sW}, 6\ns_add_u32 s{sT0}, s{sT0}, s{sT1}")
        for q in range(4):
            st.vm(f"buffer_load_dwordx2 {vr(4+2*q,2)}, v14, {srd(X)}, s{sT0} offen offset:{16*q}")
        st.wait_vm()
        st.bar("BA7")
        self.stamp(st, "h", "BA7")

    def helper_phase_c(self, st):
        vL, vP, vR, XR, ACC, BRG = 1, 2, 3, 4, 16, 32
        st(f"v_and_b32 v{vP}, 3, v0\nv_lshlrev_b32 v{vP}, 2, v{vP}")
        st(f"s_lshl_b32 s{sT0}, s{sRB}, 7\ns_lshl_b32 s{sT1}, s{sW}, 4\ns_add_u32 s{sB}, s{sT0}, s{sT1}\ns_add_u32 s{sB}, s{sB}, {WS_FLG2}")
        st(f"s_lshl_b32 s{sT1}, s{sCB}, 4\ns_add_u32 s{sT0}, s{sT0}, s{sT1}\ns_lshl_b32 s{sT1}, s{sW}, 2\ns_add_u32 s{sT0}, s{sT0}, s{sT1}\ns_add_u32 s{sF}, s{sT0}, {WS_FLG3}")
        st(f"s_lshl_b32 s{sT0}, s{sRB}, 15\ns_lshl_b32 s{sT2}, s{sW}, 13\ns_add_u32 s{sC}, s{sT0}, s{sT2}\ns_add_u32 s{sC}, s{sC}, {WS_O}\ns_add_u32 s{sD}, s{sC}, 4096")
        st(f"s_lshl_b32 s{sT1}, s{sCB}, 13\ns_add_u32 s{sT0}, s{sT0}, s{sT1}\ns_lshl_b32 s{sT1}, s{sW}, 11\ns_add_u32 s{sT0}, s{sT0}, s{sT1}\ns_add_u32 s{sA}, s{sT0}, {WS_H}")
        st(f"s_lshl_b32 s{sT0}, s{sRB}, 12\ns_lshl_b32 s{sT1}, s{sCB}, 10\ns_add_u32 s{sT0}, s{sT0}, s{sT1}\ns_lshl_b32 s{sT1}, s{sW}, 2\ns_add_u32 s{sT0}, s{sT0}, s{sT1}\ns_add_u32 s{sE}, s{sT0}, {WS_ST}")
        st(f"s_add_u32 m0, s{sT2}, {RING}")
        self.poll(st, "L_x2", vP, f"s{sB}", vR, 1)
        self.stamp(st, "h", "x2ok")
        for i in range(8):
            if i == 4: st("s_add_u32 m0, m0, 4096\ns_nop 0")
            st.vm(f"buffer_load_dwordx4 v{vL}, {srd(WS)}, s{sC if i < 4 else sD} offen offset:{1024*(i % 4)} sc1 lds")
        st(f"v_cmp_eq_u32 vcc, 0, v0\nv_mov_b32 v14, 0x80000000\nv_mov_b32 v15, 1\nv_cndmask_b32_e64 v14, v14, 0, vcc")
        st.wait_vm()
        st.bar("BC1")
        LA = 3
        for j in range(32 + LA):
            if j < 32: st.ds(f"ds_read_b128 {vr(BRG+4*(j % 4),4)}, v{vL} offset:{RING + 1024*j}", ("o", j))
            m = j - LA
            if m >= 0:
                st.wait_ds(("o", m))
                st(mfma32(ACC, self.WOR + 4 * m, BRG + 4 * (m % 4), "0" if m == 0 else None))
        st.bar("BC2")
        st.nop(11)
        for r in range(8):
            st(f"v_dot2_f32_bf16 v{ACC+2*r}, v{XR+r}, s{sLO}, v{ACC+2*r}\nv_dot2_f32_bf16 v{ACC+2*r+1}, v{XR+r}, s{sHI}, v{ACC+2*r+1}")
        for r in range(8):
            st(f"v_cvt_pk_bf16_f32 v{BRG+r}, v{ACC+2*r}, v{ACC+2*r+1}")
            if r % 4 == 3:
                st.vm(f"buffer_store_dwordx4 {vr(BRG+r-3,4)}, v{vL}, {srd(WS)}, s{sA} offen offset:{1024*(r//4)} sc1")
        for r in range(8):
            st(f"v_dot2_f32_bf16 v{ACC}, v{BRG+r}, s{sONE}, {'0' if r == 0 else 'v%d' % ACC}")
            st(f"v_dot2_f32_bf16 v{ACC+1}, v{BRG+r}, v{BRG+r}, {'0' if r == 0 else 'v%d' % (ACC+1)}")
        st("s_nop 2")
        st(f"v_permlane32_swap_b32 v{ACC}, v{ACC+1}\nv_add_f32 v{ACC}, v{ACC}, v{ACC+1}")
        st.vm(f"buffer_store_dword v{ACC}, v{vL}, {srd(WS)}, s{sE} offen sc1")
        st.wait_vm()
        st.vm(f"buffer_store_dword v15, v14, {srd(WS)}, s{sF} offen sc1")
        self.stamp(st, "h", "hflag")

    def helper_phase_de(self, st):
        vL, vP, vR = 1, 2, 3
        vWD, vWA, vWH, GU = 4, (12, 13), (5, 6), 192
        self.gu_voffsets(st, GU, 14)
        self.gu_pair(st, 9, GU)
        self.wd_addr(st, vWD, vWA, 14)
        st(f"s_lshl_b32 s{sE}, s{sW}, 11")
        st(f"v_add_u32 v{vWA[0]}, s{sE}, v{vWA[0]}\nv_add_u32 v{vWA[1]}, s{sE}, v{vWA[1]}")
        st(f"v_add_u32 v{vWH[0]}, {STG}, v{vWA[0]}\nv_add_u32 v{vWH[1]}, {STG}, v{vWA[1]}")
        place = lambda i: STG + 8192 * i if i < 7 else RING + 8192 * (i - 7)
        where = {}
        def dma(j, i):
            where[j] = i
            self.wd_dma(st, j, place(i), vWD, sE)
        def read(j, reg):
            i = where[j]
            if i < 7: self.wd_read(st, j, reg, vWH, 8192 * i)
            else: self.wd_read(st, j, reg, vWA, place(i))
        wreg = {j: self.WDR + 8 * j for j in range(18)}
        st.bar("BD1")
        self.gu_pair(st, 11, GU)
        st.bar("BD3")
        self.gu_pair(st, 13, GU)
        st.bar("BD5")
        self.gu_pair(st, 15, GU, single=True)
        dma(10, 0)
        st.wait_vm(("gu", 9))
        st.bar("BD7")
        for j in range(11, 15): dma(j, j - 10)
        st.wait_vm(("wd", 10))
        read(10, wreg[10]); st.wait_ds()
        dma(15, 0)
        st.bar("BD9")
        dma(16, 5); dma(17, 6); dma(18, 7)
        st.wait_vm(("wd", 15))
        for j in range(11, 16): read(j, wreg[j])
        st.wait_ds()
        for j in range(19, 24): dma(j, j - 19)
        st.bar("BD11")
        dma(26, 8); dma(27, 9)
        st.wait_vm(("wd", 17))
        read(16, wreg[16]); read(17, wreg[17]); st.wait_ds()
        dma(24, 5); dma(25, 6)
        self.stamp(st, "h", "Dhelp_end")
        ACC = 192
        vA = (7, 8, 9, 10)
        st(f"s_lshr_b32 s{sT0}, s{sIDX}, 3\ns_lshl_b32 s{sT1}, s{sG}, 2\ns_add_u32 s{sT0}, s{sT0}, s{sT1}\ns_lshl_b32 s{sA}, s{sT0}, 1")
        st(f"s_mul_i32 s{sT0}, s{sA}, 114688\ns_mul_i32 s{sT1}, s{sW}, {28*1024}\ns_add_u32 s{sT0}, s{sT0}, s{sT1}")
        for p in range(4): st(f"s_add_u32 s{sP+p}, s{sT0}, {WS_HH + 7168*p}")
        st(f"s_lshr_b32 s{sT2}, s{sW}, 1\ns_mul_i32 s{sT0}, s{sT2}, 114688\ns_sub_u32 s{sT1}, 114688, s{sT0}")
        st(f"v_add_u32 v{vA[0]}, s{sT0}, v{vL}\nv_add_u32 v{vA[1]}, s{sT1}, v{vL}\nv_add_u32 v{vA[2]}, 4096, v{vA[0]}\nv_add_u32 v{vA[3]}, 4096, v{vA[1]}")
        st(f"v_bfe_u32 v{vP}, v0, 2, 1\nv_lshlrev_b32 v{vP}, 7, v{vP}\nv_and_b32 v14, 3, v0\nv_lshl_add_u32 v{vP}, v14, 2, v{vP}")
        st(f"s_lshl_b32 s{sT0}, s{sA}, 7\ns_lshl_b32 s{sT1}, s{sW}, 4\ns_add_u32 s{sB}, s{sT0}, s{sT1}\ns_add_u32 s{sB}, s{sB}, {WS_FLG4}")
        st(f"s_add_u32 s{sA}, s{sA}, s{sT2}")
        st(f"s_and_b32 s{sT0}, s{sIDX}, 7\ns_lshl_b32 s{sT0}, s{sT0}, 1\ns_and_b32 s{sT1}, s{sW}, 1\ns_add_u32 s{sT0}, s{sT0}, s{sT1}")
        st(f"s_lshl_b32 s{sT1}, s{sA}, 15\ns_lshl_b32 s{sC}, s{sT0}, 11\ns_add_u32 s{sC}, s{sC}, s{sT1}\ns_add_u32 s{sC}, s{sC}, {WS_H}")
        st(f"s_lshl_b32 s{sD}, s{sT0}, 6\ns_add_u32 s{sD}, s{sD}, s{sT1}")
        free = [16, 24, 32, 40]
        areg = {}
        def ldA(j):
            p, t = j % 4, j // 4
            areg[j] = r = free.pop(0)
            for mt in range(2):
                st.vm(f"buffer_load_dwordx4 {vr(r+4*mt,4)}, v{vA[mt + (2 if t >= 4 else 0)]}, {srd(WS)}, s{sP+p} offen offset:{1024*(t % 4)} sc1", ("a", j))
        def gate(t):
            tc = self.tailcode
            st.wait_vm(("poll", t))
            st(f"v_cmp_gt_u32 vcc, {t+1}, v{vR}\ns_cbranch_vccnz L_x4s{t}")
            st.label(f"L_x4r{t}")
            tc.label(f"L_x4s{t}")
            self.poll(tc, f"L_x4p{t}", vP, f"s{sB}", vR, t + 1)
            tc(f"s_branch L_x4r{t}")
            if t < 6: st.vm(f"buffer_load_dword v{vR}, v{vP}, {srd(WS)}, s{sB} offen sc1", ("poll", t + 1))
        self.poll(st, "L_x4", vP, f"s{sB}", vR, 1)
        self.stamp(st, "h", "x4ok")
        st.vm(f"buffer_load_dword v{vR}, v{vP}, {srd(WS)}, s{sB} offen sc1", ("poll", 1))
        for j in range(4): ldA(j)
        nextA, nextW, DEPTH = 4, 18, 7
        hres = None
        for j in range(28):
            st.wait_vm(("a", j))
            if j >= 18: st.wait_ds(("wdr", j))
            w, a = wreg[j], areg[j]
            acts = []
            def more():
                nonlocal nextA, nextW, hres
                if nextW < 28 and nextW <= j + 3 and free:
                    wreg[nextW] = free.pop(0); read(nextW, wreg[nextW]); nextW += 1
                elif nextA < 28 and nextA <= j + DEPTH and free:
                    if nextA % 4 == 0: gate(nextA // 4)
                    ldA(nextA); nextA += 1
                elif nextA == 28 and hres is None and len(free) > 1:
                    hres = free.pop(0)
                    for i in range(2):
                        st.vm(f"buffer_load_dwordx4 {vr(hres+4*i,4)}, v{vL}, {srd(WS)}, s{sC} offen offset:{1024*i} sc1", "h")
            for i, (nt, mt) in enumerate(((0, 0), (0, 1), (1, 1), (1, 0))):
                st(mfma32(ACC + 16 * (nt + 2 * mt), w + 4 * nt, a + 4 * mt, "0" if j == 0 else None))
                if i < 3: more()
            free += [w, a]
            more()
        assert nextA == 28 and nextW == 28 and hres is not None
        self.stamp(st, "h", "Emfma_end")
        RD = 64 if hres < 64 or hres >= 112 else 112
        assert not (RD <= hres < RD + 48)
        for a in range(1, 4):
            st(f"s_xor_b32 s{sT0}, s{sW}, {a}\ns_mul_i32 s{sT0}, s{sT0}, 12288\nv_add_u32 v{6+a}, s{sT0}, v{vL}")
        st(f"s_mul_i32 s{sT0}, s{sW}, 12288\nv_add_u32 v6, s{sT0}, v{vL}")
        st.bar("BE1")
        for a in (2, 3, 1):
            for q in range(4):
                st.ds(f"ds_write_b128 v{6+a}, {vr(ACC+16*a+4*q,4)} offset:{4096*(a-1) + 1024*q}")
        st(f"v_and_b32 v14, 31, v0\nv_lshlrev_b32 v14, 10, v14\nv_lshrrev_b32 v15, 5, v0\nv_lshl_add_u32 v14, v15, 4, v14")
        st.wait_vm("h")
        for r in range(8):
            st(f"v_dot2_f32_bf16 v{ACC+2*r}, v{hres+r}, s{sLO}, v{ACC+2*r}\nv_dot2_f32_bf16 v{ACC+2*r+1}, v{hres+r}, s{sHI}, v{ACC+2*r+1}")
        st.wait_ds()
        st.bar("BE2")
        for q in range(4):
            for a in range(3):
                st.ds(f"ds_read_b128 {vr(RD+16*a+4*q,4)}, v6 offset:{4096*a + 1024*q}", ("r", q))
        P = ACC + 16
        for q in range(4):
            st.wait_ds(("r", q))
            for hlf in range(2):
                d = ACC + 4 * q + 2 * hlf
                s0 = RD + 4 * q + 2 * hlf
                st(f"v_pk_add_f32 {vr(s0,2)}, {vr(s0,2)}, {vr(s0+16,2)}\nv_pk_add_f32 {vr(d,2)}, {vr(d,2)}, {vr(s0+32,2)}")
            for hlf in range(2):
                d = ACC + 4 * q + 2 * hlf
                s0 = RD + 4 * q + 2 * hlf
                st(f"v_pk_add_f32 {vr(d,2)}, {vr(d,2)}, {vr(s0,2)}")
            for hlf in range(2):
                d = ACC + 4 * q + 2 * hlf
                st(f"v_cvt_pk_bf16_f32 v{P+2*q+hlf}, v{d}, v{d+1}")
            if q % 2 == 1:
                b = P + 2 * q - 2
                st(f"s_nop 1\nv_permlane32_swap_b32 v{b}, v{b+2}\nv_permlane32_swap_b32 v{b+1}, v{b+3}")
                st.vm(f"buffer_store_dwordx4 {vr(b,4)}, v14, {srd(OUT)}, s{sD} offen offset:{32*(q//2)}")
        self.stamp(st, "h", "end")
        self.dump_stamps(st, "h")

    def build(self):
        p, m, h = Stream(), Stream(), Stream()
        self.prologue(p)
        self.main_phase_a(m); self.main_attention(m); self.main_phase_d(m)
        h.label("L_helper")
        self.helper_phase_a(h); self.helper_attention(h); self.helper_phase_c(h); self.helper_phase_de(h)
        assert m.nbar + 2 == h.nbar, (m.nbar, h.nbar)
        ref = open(f"cdna_kernels/{NAME}.s.ref").read().splitlines()
        hdr = [l for l in ref if l.startswith(";") and "@launch" not in l]
        o = "\n".join(hdr) + f"\n; @launch grid=(256,1,1) block=(512,1,1) lds={LDS_BYTES}\n"
        o += f'.amdgcn_target "amdgcn-amd-amdhsa--gfx950"\n.text\n.globl {NAME}_kernel\n.p2align 8\n.type {NAME}_kernel,@function\n{NAME}_kernel:\n'
        o += p.text() + "\n" + m.text() + "\n" + h.text() + "\nL_end:\n    s_endpgm\n" + self.tailcode.text() + "\nL_codeend:\n"
        o += f""".section .rodata,"a"
.p2align 6
.amdhsa_kernel {NAME}_kernel
  .amdhsa_next_free_vgpr 256
  .amdhsa_next_free_sgpr 102
  .amdhsa_accum_offset 256
  .amdhsa_group_segment_fixed_size 0
  .amdhsa_kernarg_size 96
  .amdhsa_user_sgpr_count 2
  .amdhsa_user_sgpr_kernarg_segment_ptr 1
  .amdhsa_system_sgpr_workgroup_id_x 1
.end_amdhsa_kernel
"""
        return o

if __name__ == "__main__":
    import hazcheck, json
    cfg = Cfg()
    out = sys.argv[1]
    for a in sys.argv[2:]:
        k, v = a.split("=")
        setattr(cfg, k, int(v))
    g = Gen(cfg)
    txt = g.build()
    open(out, "w").write(txt)
    json.dump(g.nstamp, open(out + ".stamps.json", "w"))
    errs = hazcheck.check(txt)
    for e in errs[:40]: print(e)
    print(len(errs), "hazard findings;", len(txt.splitlines()), "lines")
```

```python
import sys, struct
from emit import Stream, vr, sr

NAME = "sequential_preLN__grouped_kv_mqa__glu_gated_glu__prompt"

def f32(x): return hex(struct.unpack("<I", struct.pack("<f", x))[0])

WS_KV, WS_KVL, WS_FLG1, WS_FLGL, WS_FLG2, WS_FLG3, WS_FLG4 = 0x0, 0x20000, 0x40000, 0x48000, 0x50000, 0x52000, 0x54000
WS_ST, WS_DIAG, WS_O, WS_H, WS_HH, WS_SIZE = 0x60000, 0xA0000, 0x100000, 0x300000, 0x500000, 0xC00000
TILE, RING, SLOT0, SLOT, UOFF = 2080, 0, 33280, 14464, 7296
XN, WKV, WQST, NWQ = 33280, 16640, 67072, 23
STG, STGW = SLOT0 + 5 * SLOT, 14336
LDS_BYTES = 163840
MISC = SLOT0 + 9 * SLOT
def slot_addr(s): return SLOT0 + s * SLOT if s <= 8 else RING + (s - 9) * SLOT
def unit_slot(u): return u if u <= 10 else u - 11
X, WQ, WKVS, WO, WG, WU, WD, OUT, DBG, WS = 4, 8, 12, 16, 20, 24, 28, 32, 36, 40
sG, sIDX, sRB, sCB, sW, sXCC = 44, 45, 46, 47, 48, 49
sT0, sT1, sT2, sT3, sCNT = 50, 51, 52, 53, 54
sA, sB, sC, sD, sE = 55, 56, 57, 58, 59
sONE, sLO, sHI = 60, 61, 62
sF = 63
CODE = 64
sP = 68
sSTAMP = 76
SPIN = 1 << 17
SPINL = 96
sCOLO = 3
WS_EPOCH = 0x48400
sEP = DBG
sEP1 = DBG + 1
def srd(b): return sr(b, 4)

class Cfg:
    diag = False
    tail = 3
    force_fallback = False
    force_slow = False
    npre = 12
    pace = 3
    flag0 = 4
    etile = 6
    tch = 5
    hhsc = 1
    hhint = 3

def mfma32(d, a, b, c=None):
    return f"v_mfma_f32_32x32x16_bf16 {vr(d,16)}, {vr(a,4)}, {vr(b,4)}, {vr(d,16) if c is None else c}"
def mfma16(d, a, b, c=None):
    return f"v_mfma_f32_16x16x32_bf16 {vr(d,4)}, {vr(a,4)}, {vr(b,4)}, {vr(d,4) if c is None else c}"
def smf(d, a, b, idx):
    return f"v_smfmac_f32_32x32x32_bf16 {vr(d,16)}, {vr(a,4)}, {vr(b,8)}, v{idx}"

class Gen:
    def __init__(self, cfg):
        self.c = cfg
        self.tailcode = Stream()
        self.nstamp = {}

    sc, sfx = "", ""

    def stamp(self, st, role, name, level=1):
        if not (self.c.diag & level) or self.sc: return
        l = self.nstamp.setdefault(role, [])
        i = len(l); l.append(name)
        assert i < 13
        st(f"{'s_memtime' if name.startswith('cyc') else 's_memrealtime'} {sr(sSTAMP + 2*i, 2)}")

    def dump_stamps(self, st, role):
        if not self.c.diag or self.sc: return
        n = len(self.nstamp[role])
        st("s_waitcnt lgkmcnt(0)")
        st(f"s_lshl_b32 s{sT0}, s2, 3\ns_add_u32 s{sT0}, s{sT0}, s{sW}")
        st(f"s_add_u32 s{sT0}, s{sT0}, {4 if role == 'h' else 0}\ns_lshl_b32 s{sT0}, s{sT0}, 6\ns_add_u32 s{sT0}, s{sT0}, {WS_DIAG}")
        for i in range(n):
            st(f"v_mov_b32 v1, s{sSTAMP + 2*i}")
            st(f"buffer_store_dword v1, off, {srd(WS)}, s{sT0} offset:{4*i}")
        st("s_waitcnt vmcnt(0)")

    def notready(self, st, vdst, need):
        st(f"v_subrev_u32 v{vdst}, s{sEP}, v{vdst}")
        st(f"v_subrev_u32 v{vdst}, {need}, v{vdst}")
        st(f"v_cmp_lt_u32 vcc, {15 - need}, v{vdst}")

    def poll(self, st, name, vaddr, soff, vdst, need, exact=False):
        st(f"s_mov_b32 s{sCNT}, {SPIN}")
        st.label(name)
        st(f"buffer_load_dword v{vdst}, v{vaddr}, {srd(WS)}, {soff} offen sc1")
        st.wait_vm()
        if exact: st(f"v_cmp_ne_u32 vcc, s{sEP1}, v{vdst}")
        else: self.notready(st, vdst, need)
        st(f"s_cbranch_vccz {name}_ok")
        st(f"s_sub_u32 s{sCNT}, s{sCNT}, 1")
        st(f"s_cbranch_scc0 {name}")
        st.label(name + "_ok")

    def epoch_load(self, st):
        st(f"s_load_dword s{sEP}, {sr(WS,2)}, {WS_EPOCH}")

    def epoch_make(self, st):
        st(f"s_and_b32 s{sEP}, s{sEP}, 0xfffffff0\ns_add_u32 s{sEP}, s{sEP}, 0x9e3779b0\ns_add_u32 s{sEP1}, s{sEP}, 1")

    def prologue(self, st):
        st("s_cmp_ge_u32 s2, 256\ns_cbranch_scc1 L_end")
        for b, off in ((X, 0), (WQ, 8), (WKVS, 16), (sP, 24), (WO, 32), (WS, 88)):
            st(f"s_load_dwordx2 {sr(b,2)}, s[0:1], {off}")
        st("v_lshrrev_b32 v1, 6, v0\nv_and_b32 v0, 63, v0")
        st(f"s_and_b32 s{sG}, s2, 7")
        st(f"v_readfirstlane_b32 s{sT0}, v1")
        st(f"s_lshr_b32 s{sIDX}, s2, 3")
        st(f"s_lshr_b32 s{sT1}, s{sIDX}, 2\ns_lshl_b32 s{sRB}, s{sG}, 3\ns_add_u32 s{sRB}, s{sRB}, s{sT1}")
        st(f"s_and_b32 s{sCB}, s{sIDX}, 3\ns_and_b32 s{sW}, s{sT0}, 3")
        for b, n in ((X, 2097152), (WQ, 524288), (WKVS, 16384), (WO, 524288), (WG, 1835008), (WU, 1835008),
                     (WD, 1835008), (OUT, 2097152), (WS, WS_SIZE)):
            st(f"s_mov_b32 s{b+2}, {n}\ns_mov_b32 s{b+3}, 0x20000")
        st(f"s_mov_b32 s{sONE}, 0x3f803f80\ns_mov_b32 s{sLO}, 0x3f80\ns_mov_b32 s{sHI}, 0x3f800000")
        st(f"s_cmp_lt_u32 s{sT0}, 4\ns_cbranch_scc1 L_main")

    def main_phase_a(self, st):
        self.stamp(st, "m", "start", 15)
        vD, vTR, vXB, vXC = 2, 3, 4, 5
        WR, XR, ACC = 112, 128, 144
        st(f"v_lshrrev_b32 v10, 2, v0\nv_lshlrev_b32 v10, 10, v10\nv_and_b32 v11, 3, v0\nv_lshlrev_b32 v11, 4, v11")
        st(f"s_lshl_b32 s{sT0}, s{sCB}, 8\ns_lshl_b32 s{sT1}, s{sW}, 6\ns_add_u32 s{sT0}, s{sT0}, s{sT1}")
        st(f"v_add3_u32 v{vD}, v10, v11, s{sT0}")
        st(f"s_mul_i32 s{sA}, s{sW}, {NWQ*1024}\ns_add_u32 s{sA}, s{sA}, {WQST}")
        st(f"s_lshr_b32 s{sB}, s{sIDX}, 2\ns_lshl_b32 s{sC}, s{sB}, 16")
        st("s_waitcnt lgkmcnt(0)")
        self.epoch_load(st)
        st(f"s_lshl_b32 s{sT0}, s2, 2\ns_add_u32 s{sT0}, s{sT0}, s{sW}\ns_lshl_b32 s{sT1}, s{sT0}, 9\nv_and_b32 v12, 3, v0\nv_lshlrev_b32 v12, 7, v12")
        st.bar("B0")
        st.vm(f"buffer_load_dword v160, v12, {srd(WO)}, s{sT1} offen")
        st(f"s_cmp_lg_u32 s{sW}, 0\ns_cbranch_scc1 L_nokvt")
        st(f"s_lshl_b32 s{sT0}, s{sRB}, 11\ns_lshl_b32 s{sT1}, s{sCB}, 9\ns_add_u32 s{sT0}, s{sT0}, s{sT1}\ns_add_u32 s{sT0}, s{sT0}, {WS_KVL}")
        st.vm(f"buffer_load_dword v161, v12, {srd(WS)}, s{sT0} offen sc1", cond=True)
        st(f"s_lshl_b32 s{sT0}, s{sG}, 7\ns_add_u32 s{sT0}, s{sT0}, {WS_FLGL}")
        st.vm(f"buffer_load_dword v162, off, {srd(WS)}, s{sT0} sc1", cond=True)
        st.label("L_nokvt")
        def dma(j):
            st(f"s_add_u32 m0, s{sA}, {(j % NWQ)*1024}")
            st(f"s_xor_b32 s{sT1}, s{sC}, {j*16384}")
            st.vm(f"buffer_load_dwordx4 v{vD}, {srd(WQ)}, s{sT1} offen lds", ("wq", j))
        for j in range(self.c.npre): dma(j)
        st(f"v_lshrrev_b32 v10, 5, v0\nv_lshlrev_b32 v11, 9, v10\nv_bfe_u32 v12, v0, 2, 2\nv_lshl_add_u32 v11, v12, 6, v11")
        st(f"v_bfe_u32 v12, v0, 4, 1\nv_lshl_add_u32 v11, v12, 5, v11\nv_and_b32 v12, 3, v0\nv_lshl_add_u32 v11, v12, 3, v11")
        st(f"v_add_u32 v{vTR}, s{sA}, v11")
        st(f"v_mul_u32_u24 v11, 528, v10\nv_and_b32 v12, 31, v0\nv_lshl_add_u32 v11, v12, 4, v11\nv_add_u32 v{vXB}, {XN}, v11")
        self.attn_setup(st)
        st("s_waitcnt lgkmcnt(0)")
        self.epoch_make(st)
        st.bar("B1")
        self.stamp(st, "m", "B1")
        for j in range(self.c.npre, NWQ): dma(j)
        LA = 3
        for j in range(32 + LA):
            if j < 32:
                if j % 4 == 0:
                    st(f"s_xor_b32 s{sT1}, s{sB}, {j//4}\ns_mul_i32 s{sT1}, s{sT1}, 4224\nv_add_u32 v{vXC}, s{sT1}, v{vXB}")
                st.wait_vm(("wq", j))
                w, x = WR + 4 * (j % 4), XR + 4 * (j % 4)
                o = (j % NWQ) * 1024
                st.ds(f"ds_read_b64_tr_b16 {vr(w,2)}, v{vTR} offset:{o}")
                st.ds(f"ds_read_b64_tr_b16 {vr(w+2,2)}, v{vTR} offset:{o+256}")
                st.ds(f"ds_read_b128 {vr(x,4)}, v{vXC} offset:{(j % 4)*1056}", ("rd", j))
            m = j - LA
            if m >= 0:
                st.wait_ds(("rd", m))
                st(mfma32(ACC, WR + 4 * (m % 4), XR + 4 * (m % 4), "0" if m == 0 else None))
                if m + NWQ < 32: dma(m + NWQ)
        st.nop(12)
        sc = f32(0.25 * 1.4426950408889634)
        for r in range(16): st(f"v_mul_f32 v{ACC+r}, {sc}, v{ACC+r}")
        for r in range(8): st(f"v_cvt_pk_bf16_f32 v{self.Q + r}, v{ACC+2*r}, v{ACC+2*r+1}")
        self.stamp(st, "m", "Qdone")

    S, Q, O, KVB, vIDX, vK, vV0, vV1 = (16, 32), 48, (56, 72), (88, 100), 6, 7, 8, 9

    def attn_setup(self, st):
        st(f"v_mov_b32 v{self.vIDX}, 0xdddddddd")
        st(f"v_lshlrev_b32 v{self.vK}, 4, v0")
        st("v_and_b32 v12, 31, v0\nv_lshrrev_b32 v13, 5, v0\nv_lshl_add_u32 v13, v13, 4, v12\nv_lshlrev_b32 v13, 4, v13")
        st("v_and_b32 v14, 27, v0\nv_cmp_eq_u32 vcc, 16, v14\nv_mov_b32 v14, 2064\nv_mov_b32 v15, 2048")
        st("v_cndmask_b32 v14, v14, v15, vcc")
        st("v_cmp_gt_u32 vcc, 16, v12\nv_add_u32 v15, 1024, v13\nv_add_u32 v13, 1536, v13")
        st(f"v_cndmask_b32 v{self.vV0}, v14, v15, vcc\nv_cndmask_b32 v{self.vV1}, v14, v13, vcc")
        st(f"v_mov_b32 v10, {MISC}")
        for r in range(32): st(f"v_mov_b32 v{self.O[0]+r}, 0")
        for r in range(8): st(f"v_mov_b32 v{self.S[1]+8+r}, 0")
        for r in range(4): st(f"v_mov_b32 v{self.KVB[1]+8+r}, 0")

    def colo_reduce(self, st, r):
        st(f"v_and_b32 v{r}, v{r}, v{r+1}\ns_nop 0")
        st(f"v_readfirstlane_b32 s{sCOLO}, v{r}")

    def main_attention(self, st):
        S, Q, O, KVB = self.S, self.Q, self.O, self.KVB
        buf = lambda t: KVB[t % 2]
        off = lambda t: (t % 16) * TILE
        rdK = lambda t: f"ds_read_b128 {vr(buf(t),4)}, v{self.vK} offset:{off(t)}"
        rdV0 = lambda t: f"ds_read_b128 {vr(buf(t)+4,4)}, v{self.vV0} offset:{off(t)}"
        rdV1 = lambda t: f"ds_read_b128 {vr(buf(t)+8,4)}, v{self.vV1} offset:{off(t)}"
        body = []
        for t in range(16):
            for q in range(2):
                cur, nxt = S[q], S[1 - q]
                e = [f"v_exp_f32 v{cur+i}, v{cur+i}" for i in range(16)]
                tp = t - 1 if q == 0 else t
                pv1 = smf(O[1 - q], buf(tp) + 8, nxt + 8, self.vIDX)
                qk = mfma32(nxt, buf(t + q), Q + 4 * (1 - q), "0")
                pv0 = smf(O[q], buf(t) + 4, cur, self.vIDX)
                if q == 0:
                    f0, f1, f2 = [rdV1(t + 1)], [], []
                    if t == 1: f2 = [f"s_sub_u32 s{sA}, s{sA}, 1"]
                else:
                    f0, f1, f2 = ["s_waitcnt lgkmcnt(0)"], [rdK(t + 2)], [rdV0(t + 2)]
                    if t % 8 == 6: f0.append("s_barrier                ; BA")
                body += e[0:2] + [pv1] + f0 + e[2:5] + [qk] + f1 + e[5:11] + [pv0] + f2 + e[11:16]
        nhead = 2 + 1 + 1 + 3 + 1
        head, rest = body[:nhead], body[nhead:]
        st.bar("B2")
        self.stamp(st, "m", "B2", 3)
        self.stamp(st, "m", "cyc0")
        for s in (rdK(0), rdV0(0), rdV1(0), rdK(1), rdV0(1)): st(s)
        st("ds_read_b64 v[12:13], v10")
        st(f"s_mov_b32 s{sA}, 3")
        st("s_waitcnt lgkmcnt(0)")
        st(mfma32(S[0], buf(0), Q, "0"))
        self.colo_reduce(st, 12)
        st.nop(9)
        st("\n".join(head))
        st(".p2align 6")
        st.label("L_attn")
        st("\n".join(rest + head))
        st("s_cbranch_scc0 L_attn")
        st.nbar += 8
        self.stamp(st, "m", "attn_end", 3)
        self.stamp(st, "m", "cyc1")
        st("s_waitcnt lgkmcnt(0)")
        st(f"s_lshl_b32 s{sT0}, s{sRB}, 15\ns_lshl_b32 s{sT1}, s{sCB}, 13\ns_add_u32 s{sT0}, s{sT0}, s{sT1}")
        st(f"s_lshl_b32 s{sT1}, s{sW}, 11\ns_add_u32 s{sT0}, s{sT0}, s{sT1}\ns_add_u32 s{sB}, s{sT0}, {WS_O}")
        T = 88
        st(f"v_pk_add_f32 {vr(T,2)}, {vr(O[0],2)}, {vr(O[0]+2,2)}")
        st(f"v_pk_add_f32 {vr(T+2,2)}, {vr(O[0]+4,2)}, {vr(O[0]+6,2)}")
        st(f"v_pk_add_f32 {vr(T+4,2)}, {vr(O[1],2)}, {vr(O[1]+2,2)}")
        st(f"v_pk_add_f32 {vr(T+6,2)}, {vr(O[1]+4,2)}, {vr(O[1]+6,2)}")
        st(f"v_pk_add_f32 {vr(T,2)}, {vr(T,2)}, {vr(T+2,2)}")
        st(f"v_pk_add_f32 {vr(T+4,2)}, {vr(T+4,2)}, {vr(T+6,2)}")
        st(f"v_min_f32 v{T+8}, v{O[0]+8}, v{O[1]+8}\nv_add_f32 v{T+9}, v{O[0]+8}, v{O[1]+8}")
        st(f"v_pk_add_f32 {vr(T,2)}, {vr(T,2)}, {vr(T+4,2)}")
        st(f"v_cmp_nle_f32 vcc, {f32(2.0**-64)}, v{T+8}")
        st(f"v_add_f32 v{T}, v{T}, v{T+1}")
        st(f"s_mov_b64 {sr(sT2,2)}, vcc")
        st(f"v_cmp_nge_f32 vcc, {f32(2.0**64)}, v{T+9}")
        st(f"s_movk_i32 s{sT0}, 0x207")
        st(f"s_or_b64 {sr(sT2,2)}, {sr(sT2,2)}, vcc")
        st(f"v_cmp_class_f32 vcc, v{T}, s{sT0}".replace("v_cmp_class_f32", "v_cmp_class_f32_e64"))
        st(f"s_or_b64 {sr(sT2,2)}, {sr(sT2,2)}, vcc")
        if self.c.force_fallback: st("s_branch L_fallback")
        st("s_cbranch_scc1 L_fallback")
        st.label("L_norm")
        st(f"s_cmp_eq_u32 s{sCOLO}, {2 if self.c.force_slow else 1}\ns_cbranch_scc0 L_main_slow")
        self.fallback()

    def main_publish_o(self, st):
        O, T, sc = self.O, 88, self.sc
        st(f"v_rcp_f32 v{T}, v{O[0]+8}\nv_rcp_f32 v{T+2}, v{O[1]+8}")
        st(f"v_cmp_eq_u32 vcc, 0, v0\nv_mov_b32 v10, 0x80000000\nv_mov_b32 v11, s{sEP1}")
        for q in range(2):
            for r in range(0, 8, 2):
                st(f"v_pk_mul_f32 {vr(O[q]+r,2)}, {vr(O[q]+r,2)}, {vr(T+2*q,2)} op_sel_hi:[1,0]")
            for r in range(4):
                st(f"v_cvt_pk_bf16_f32 v{T+4+4*q+r}, v{O[q]+2*r}, v{O[q]+2*r+1}")
            st.vm(f"buffer_store_dwordx4 {vr(T+4+4*q,4)}, v{self.vK}, {srd(WS)}, s{sB} offen offset:{1024*q}{sc}")
        st("v_cndmask_b32 v10, v10, 0, vcc".replace("v_cndmask_b32", "v_cndmask_b32_e64"))
        st(f"s_lshl_b32 s{sT0}, s{sRB}, 7\ns_lshl_b32 s{sT1}, s{sCB}, 4\ns_add_u32 s{sT0}, s{sT0}, s{sT1}")
        st(f"s_lshl_b32 s{sT1}, s{sW}, 2\ns_add_u32 s{sT0}, s{sT0}, s{sT1}\ns_add_u32 s{sT0}, s{sT0}, {WS_FLG2}")
        st.wait_vm()
        st.vm(f"buffer_store_dword v11, v10, {srd(WS)}, s{sT0} offen{sc}")
        self.stamp(st, "m", "Oflag")

    def fallback(self):
        st = self.tailcode
        S, Q, O, KVB = self.S, self.Q, self.O, self.KVB
        K, V0, V1, NM = KVB[0], KVB[0] + 4, KVB[0] + 8, (112, 128)
        st.label("L_fallback")
        st("v_mov_b32 v10, 0xff800000\nv_mov_b32 v11, 0xff800000")
        st(f"s_mov_b32 s{sT0}, {WS_KV}")
        st.label("L_fb1")
        st(f"buffer_load_dwordx4 {vr(K,4)}, v{self.vK}, {srd(WS)}, s{sT0} offen sc1\ns_waitcnt vmcnt(0)")
        st(mfma32(S[0], K, Q, "0")); st(mfma32(S[1], K, Q + 4, "0"))
        st.nop(12)
        for q in range(2):
            for r in range(0, 16, 2): st(f"v_max3_f32 v{10+q}, v{S[q]+r}, v{S[q]+r+1}, v{10+q}")
        st(f"s_add_u32 s{sT0}, s{sT0}, 2048\ns_cmp_lt_u32 s{sT0}, {WS_KV + 131072}\ns_cbranch_scc1 L_fb1")
        st("v_mov_b32 v12, v10\nv_mov_b32 v13, v11\ns_nop 1")
        st("v_permlane32_swap_b32 v10, v12\nv_permlane32_swap_b32 v11, v13")
        st("v_max_f32 v10, v10, v12\nv_max_f32 v11, v11, v13")
        for q in range(2):
            for r in range(16):
                st(f"v_sub_f32 v{NM[q]+r}, 0, v{10+q}\nv_mov_b32 v{O[q]+r}, 0")
        st(f"v_and_b32 v12, 27, v0\nv_cmp_eq_u32 vcc, 16, v12\nv_mov_b32 v13, s{sONE}\ns_nop 0\nv_cndmask_b32 v13, 0, v13, vcc")
        for r in range(8): st(f"v_mov_b32 v{V0+r}, v13")
        st(f"s_mov_b32 s{sT0}, {WS_KV}\ns_mov_b32 s{sT2}, 0xffff\ns_mov_b32 s{sT3}, 0xffff")
        st.label("L_fb2")
        st(f"buffer_load_dwordx4 {vr(K,4)}, v{self.vK}, {srd(WS)}, s{sT0} offen sc1")
        st(f"s_mov_b64 exec, {sr(sT2,2)}")
        st(f"buffer_load_dwordx4 {vr(V0,4)}, v{self.vV0}, {srd(WS)}, s{sT0} offen sc1")
        st(f"buffer_load_dwordx4 {vr(V1,4)}, v{self.vV1}, {srd(WS)}, s{sT0} offen sc1")
        st("s_mov_b64 exec, -1\ns_waitcnt vmcnt(0)")
        st(mfma32(S[0], K, Q, vr(NM[0], 16))); st(mfma32(S[1], K, Q + 4, vr(NM[1], 16)))
        st.nop(12)
        for q in range(2):
            for r in range(16): st(f"v_exp_f32 v{S[q]+r}, v{S[q]+r}")
        st.nop(2)
        for q in range(2):
            st(smf(O[q], V0, S[q], self.vIDX)); st(smf(O[q], V1, S[q] + 8, self.vIDX))
        st(f"s_add_u32 s{sT0}, s{sT0}, 2048\ns_cmp_lt_u32 s{sT0}, {WS_KV + 131072}\ns_cbranch_scc1 L_fb2")
        st.nop(12)
        st("s_branch L_norm")

    BD = (1, 3, 5, 7, 9, 11)

    def main_phase_d(self, st):
        T, sc = self.c.tail, self.sc
        ACC, BR, AR, AC = 144, 112, 80, 16
        NAC = 2 * T + 2
        TMP = AC + 4 * NAC
        assert TMP + 8 <= 64
        STT = 64
        vL, vFZ, vB, vNM, vC1, vSD, vPOLL, vVAL = self.vK, 10, (2, 3, 4), 5, 8, 9, 12, 11
        NBR, LA, NAR = 8, 5, 8
        st(f"s_lshr_b32 s{sT0}, s{sIDX}, 4\ns_lshl_b32 s{sT1}, s{sG}, 1\ns_add_u32 s{sT1}, s{sT1}, s{sT0}")
        st(f"s_lshl_b32 s{sT1}, s{sT1}, 2\ns_add_u32 s{sA}, s{sT1}, s{sW}")
        st(f"s_lshl_b32 s{sT1}, s{sA}, 15\ns_add_u32 s{sT1}, s{sT1}, {WS_H}")
        for i in range(8): st(f"s_xor_b32 s{sP+i}, s{sT1}, {4096*i}")
        st(f"s_lshl_b32 s{sB}, s{sA}, 12\ns_add_u32 s{sB}, s{sB}, {WS_ST}")
        st(f"s_and_b32 s{sT0}, s{sIDX}, 15\ns_mul_i32 s{sC}, s{sA}, 114688\ns_mul_i32 s{sT1}, s{sT0}, 7168")
        st(f"s_add_u32 s{sC}, s{sC}, s{sT1}\ns_add_u32 s{sC}, s{sC}, {WS_HH}\ns_add_u32 s{sD}, s{sC}, 4096")
        st(f"s_lshl_b32 s{sT1}, s{sA}, 7\ns_lshl_b32 s{sT0}, s{sT0}, 2\ns_add_u32 s{sE}, s{sT1}, s{sT0}\ns_add_u32 s{sE}, s{sE}, {WS_FLG4}")
        st(f"s_add_u32 s{sF}, s{sT1}, {WS_FLG3}")
        st("v_lshrrev_b32 v13, 5, v0\nv_bfe_u32 v14, v0, 2, 2\nv_lshl_add_u32 v13, v13, 2, v14\nv_mul_u32_u24 v13, 224, v13")
        st(f"v_and_b32 v14, 3, v0\nv_lshl_add_u32 v13, v14, 3, v13\nv_bfe_u32 v14, v0, 4, 1\nv_mul_u32_u24 v14, {UOFF}, v14")
        st(f"v_add_u32 v{vB[0]}, v13, v14\nv_add_u32 v{vB[1]}, 0x10000, v{vB[0]}\nv_add_u32 v{vB[2]}, 0x20000, v{vB[0]}")
        st(f"v_and_b32 v{vPOLL}, 15, v0\nv_lshlrev_b32 v{vPOLL}, 2, v{vPOLL}")
        st.bar("BC1")
        st.bar("BC2")
        self.stamp(st, "m", "BC2")
        nk = 32 - 2 * T
        order = [(k, n) for k in range(nk) for n in range(7)] + [(k, n) for n in range(7) for k in range(nk, 32)]
        def rdB(m):
            k, n = order[m]
            b = BR + 4 * (m % NBR)
            for t in range(2):
                o = slot_addr(unit_slot(k // 2)) + (16 * (k % 2) + 8 * t) * 224 + 32 * n
                st.ds(f"ds_read_b64_tr_b16 {vr(b+2*t,2)}, v{vB[o >> 16]} offset:{o & 0xffff}", ("b", m))
        for m in range(LA): rdB(m)
        self.poll(st, "L_x3" + self.sfx, vPOLL, f"s{sF}", 13, 1, exact=True)
        self.stamp(st, "m", "x3ok", 5)
        for i in range(4):
            st.vm(f"buffer_load_dwordx4 {vr(STT+4*i,4)}, v{vL}, {srd(WS)}, s{sB} offen offset:{1024*i} sc1", "st")
        def ldA(k):
            st.vm(f"buffer_load_dwordx4 {vr(AR+4*(k % NAR),4)}, v{vL}, {srd(WS)}, s{sP + k//4} offen offset:{1024*(k % 4)} sc1", ("a", k))
        for k in range(NAR): ldA(k)
        st.bar("BD0")
        st(f"s_mov_b32 s{sT1}, 0xffff0000")
        st.wait_vm("st")
        for i in range(4): st(f"v_pk_add_f32 {vr(STT+2*i,2)}, {vr(STT+2*i,2)}, {vr(STT+8+2*i,2)}")
        for i in range(2): st(f"v_pk_add_f32 {vr(STT+2*i,2)}, {vr(STT+2*i,2)}, {vr(STT+4+2*i,2)}")
        st(f"v_pk_add_f32 {vr(STT,2)}, {vr(STT,2)}, {vr(STT+2,2)}")
        st(f"v_add_f32 v{STT}, v{STT}, v{STT+1}")
        st(f"v_mov_b32 v{STT+1}, v{STT}\ns_nop 1")
        st(f"v_permlane32_swap_b32 v{STT}, v{STT+1}")
        st(f"v_mul_f32 v{vNM}, {f32(-1.0/512)}, v{STT}")
        acslot = lambda k: AC + 4 * (k % 2 if k < nk else 2 + k - nk)
        def center(k):
            a, d = AR + 4 * (k % NAR), acslot(k)
            ops = [lambda k=k: st.wait_vm(("a", k))]
            for r in range(4):
                ops.append(f"v_lshlrev_b32 v{TMP+2*r}, 16, v{a+r}")
                ops.append(f"v_and_b32 v{TMP+2*r+1}, s{sT1}, v{a+r}")
            for r in range(8): ops.append(f"v_add_f32 v{TMP+r}, v{vNM}, v{TMP+r}")
            for r in range(4): ops.append(f"v_cvt_pk_bf16_f32 v{d+r}, v{TMP+2*r}, v{TMP+2*r+1}")
            return ops
        def run(op): op() if callable(op) else st(op)
        for op in center(0): run(op)
        stats = [f"v_mul_f32 v{STT+2}, v{vNM}, v{vNM}",
                 f"v_fma_f32 v{STT+2}, v{STT+1}, s{sT0}, -v{STT+2}",
                 f"v_max_f32 v{STT+2}, 0, v{STT+2}",
                 f"v_add_f32 v{STT+2}, {f32(1e-5)}, v{STT+2}",
                 f"v_rsq_f32 v{STT+3}, v{STT+2}",
                 "s_nop 0",
                 f"v_mul_f32 v{vSD}, v{STT+2}, v{STT+3}",
                 f"v_mul_f32 v{vC1}, {f32(-1.4426950408889634)}, v{STT+3}"]
        st(f"s_mov_b32 s{sT0}, {f32(1.0/512)}")
        st("s_nop 0")
        def epilogue(n):
            a = ACC + 16 * n
            ops = [f"v_mul_f32 v{a+j}, v{vC1}, v{a+j}" for j in range(8)]
            ops += [f"v_exp_f32 v{a+j}, v{a+j}" for j in range(8)]
            ops += [f"v_fma_f32 v{a+j}, v{a+j}, v{vSD}, v{vSD}" for j in range(8)]
            ops += [f"v_rcp_f32 v{a+j}, v{a+j}" for j in range(8)]
            if n >= self.c.flag0:
                ops.append(f"v_add_u32 v{vVAL}, {n - 1 if n == self.c.flag0 else 1}, v{vVAL}")
                ops.append(lambda n=n: st.wait_vm(("hh", n - 1)))
                ops.append(lambda: st.vm(f"buffer_store_dword v{vVAL}, v{vFZ}, {srd(WS)}, s{sE} offen{sc}"))
            ops += [f"v_mul_f32 v{a+j}, v{a+j}, v{a+8+j}" for j in range(8)]
            ops += [f"v_cvt_pk_bf16_f32 v{a+8+j}, v{a+2*j}, v{a+2*j+1}" for j in range(4)]
            ops.append(lambda n=n, a=a: st.vm(f"buffer_store_dwordx4 {vr(a+8,4)}, v{vL}, {srd(WS)}, s{sC if n < 4 else sD} offen offset:{1024*(n % 4)}{' sc1' if self.c.hhsc else sc}", ("hh", n)))
            return ops
        fill = {m: [] for m in range(224)}
        extra = list(range(nk, 32))
        per = -(-len(extra) // 1) if extra else 0
        for k in range(nk):
            ops = []
            if k + 1 < nk: ops += center(k + 1)
            if k == 0: ops += stats
            j = k - (nk - 1 - len(extra))
            if k == nk - 1:
                ops += center(nk) if extra else []
            for i, op in enumerate(ops): fill[7 * k + min(5, i * 6 // len(ops))].append(op)
        base = 7 * nk
        for i, k in enumerate(extra[1:]):
            fill[base + i] += center(k)
        for n in range(1, 7):
            ops = epilogue(n - 1)
            g0 = base + 2 * T * n
            lo = 0 if T == 0 else min(2, 2 * T - 1)
            ng = max(1, 2 * T - lo)
            if T == 0: continue
            if 2 * T < 4: ops = ["s_nop 7"] + ops
            for i, op in enumerate(ops): fill[g0 + lo + i * ng // len(ops)].append(op)
        for m in range(224):
            k, n = order[m]
            if m % 2 == 0: st.wait_ds(("b", min(m + 1, 223)))
            st(mfma32(ACC + 16 * n, BR + 4 * (m % NBR), acslot(k), "0" if k == 0 else None))
            if m == 0: self.stamp(st, "m", "mfma0", 4)
            if m < 7 * nk and n == 6 and k % 2 == 1 and k // 2 in self.BD:
                self.stamp(st, "m", f"arrBD{k//2}", 4)
                st.bar(f"BD{k//2}")
            if m == 7 * nk + 2 * T * self.c.etile: st.bar("BDE")
            if m == 7 * nk: self.stamp(st, "m", "tail0", 4)
            if m == 7 * nk + 2 * T: self.stamp(st, "m", "tail1", 4)
            if m < 7 * nk and n == 6 and k + NAR < 32: ldA(k + NAR)
            if m + LA < 224: rdB(m + LA)
            for op in fill[m]: run(op)
            if base <= m < base + len(extra) - 1: st("s_nop 1")
        self.stamp(st, "m", "Dmfma_end", 13)
        st.nop(12)
        for n in (range(7) if T == 0 else [6]):
            for op in epilogue(n): run(op)
        st(f"v_add_u32 v{vVAL}, 1, v{vVAL}")
        st.wait_vm()
        st(f"buffer_store_dword v{vVAL}, v{vFZ}, {srd(WS)}, s{sE} offen{sc}")
        self.stamp(st, "m", "end", 13)
        self.dump_stamps(st, "m")
        st("s_endpgm")

    def helper_phase_a(self, st):
        self.stamp(st, "h", "start", 15)
        XP, XF, AC = 128, 160, 224
        st("s_setprio 2")
        st(f"s_getpc_b64 {sr(CODE,2)}")
        st.label("L_pc")
        st(f"s_sub_u32 s{CODE}, s{CODE}, L_pc-{NAME}_kernel\ns_subb_u32 s{CODE+1}, s{CODE+1}, 0")
        st(f"s_mov_b32 s{CODE+2}, L_codeend-{NAME}_kernel\ns_mov_b32 s{CODE+3}, 0x20000")
        st(f"s_lshl_b32 s{sT0}, s{sIDX}, 2\ns_add_u32 s{sT0}, s{sT0}, s{sW}\ns_lshl_b32 s{sT0}, s{sT0}, 9")
        st(f"v_and_b32 v2, 3, v0\nv_lshlrev_b32 v2, 7, v2")
        st.vm(f"buffer_load_dword v120, v2, {srd(CODE)}, s{sT0} offen")
        st(f"v_lshrrev_b32 v2, 3, v0\nv_and_b32 v3, 7, v0\nv_lshlrev_b32 v4, 10, v2\nv_lshl_add_u32 v4, v3, 4, v4")
        st(f"s_lshl_b32 s{sT0}, s{sRB}, 15\ns_lshl_b32 s{sT1}, s{sW}, 13\ns_add_u32 s{sA}, s{sT0}, s{sT1}")
        st(f"v_lshlrev_b32 v1, 4, v0")
        st("s_waitcnt lgkmcnt(0)")
        for i in range(8):
            st.vm(f"buffer_load_dwordx4 {vr(XP+4*i,4)}, v4, {srd(X)}, s{sA} offen offset:{128*i}", ("x", i))
        st(f"s_cmp_ge_u32 s{sCB}, 2\ns_cselect_b32 s{WKVS}, s{sP}, s{WKVS}\ns_cselect_b32 s{WKVS+1}, s{sP+1}, s{WKVS+1}")
        st(f"s_lshl_b32 s{sT0}, s{sW}, 12\ns_add_u32 m0, s{sT0}, {WKV}")
        self.epoch_load(st)
        for b, off in ((WG, 48), (WU, 56), (WD, 64), (OUT, 72)):
            st(f"s_load_dwordx2 {sr(b,2)}, s[0:1], {off}")
        for i in range(4):
            st.vm(f"buffer_load_dwordx4 v1, {srd(WKVS)}, s{sT0} offen offset:{1024*i} lds", "wkv")
        st.bar("B0")
        st(f"s_getreg_b32 s{sXCC}, hwreg(HW_REG_XCC_ID, 0, 4)")
        st(f"v_bfe_u32 v5, v0, 1, 3\nv_mul_u32_u24 v5, {TILE}, v5\nv_and_b32 v6, 1, v0\nv_lshl_add_u32 v7, v6, 4, v5")
        st(f"v_cmp_eq_u32 vcc, 0, v6\nv_mov_b32 v8, s{sONE}\ns_nop 0\nv_cndmask_b32 v8, 0, v8, vcc\nv_mov_b32 v9, v8\nv_mov_b32 v10, v8\nv_mov_b32 v11, v8")
        st.ds("ds_write_b128 v7, v[8:11] offset:2048")
        st(f"v_mul_u32_u24 v5, 528, v3\ns_lshl_b32 s{sT0}, s{sW}, 7\ns_add_u32 s{sT0}, s{sT0}, {XN}\nv_lshl_add_u32 v5, v2, 4, v5\nv_add_u32 v27, s{sT0}, v5")
        self.helper_setup(st)
        for i in range(8):
            st.wait_vm(("x", i))
            for r in range(4):
                st(f"v_dot2_f32_bf16 v{AC+r}, v{XP+4*i+r}, s{sONE}, {'0' if i == 0 else 'v%d' % (AC+r)}")
        self.stamp(st, "h", "xland")
        def red8(a):
            for m in ("quad_perm:[1,0,3,2]", "quad_perm:[2,3,0,1]", "row_half_mirror"):
                st(f"s_nop 1\nv_add_f32_dpp v{a}, v{a}, v{a} {m} row_mask:0xf bank_mask:0xf")
        st("s_nop 2")
        st(f"v_pk_add_f32 {vr(AC,2)}, {vr(AC,2)}, {vr(AC+2,2)}\nv_add_f32 v{AC}, v{AC}, v{AC+1}")
        red8(AC)
        st(f"v_mul_f32 v{AC}, {f32(-1.0/512)}, v{AC}")
        for r in range(32):
            st(f"v_dot2_f32_bf16 v{XF+2*r}, v{XP+r}, s{sLO}, v{AC}\nv_dot2_f32_bf16 v{XF+2*r+1}, v{XP+r}, s{sHI}, v{AC}")
        for r in range(32):
            d = AC + 2 + 2 * (r % 2)
            if r < 2: st(f"v_pk_mul_f32 {vr(d,2)}, {vr(XF+2*r,2)}, {vr(XF+2*r,2)}")
            else: st(f"v_pk_fma_f32 {vr(d,2)}, {vr(XF+2*r,2)}, {vr(XF+2*r,2)}, {vr(d,2)}")
        st(f"v_pk_add_f32 {vr(AC+2,2)}, {vr(AC+2,2)}, {vr(AC+4,2)}\nv_add_f32 v{AC+2}, v{AC+2}, v{AC+3}")
        red8(AC + 2)
        st(f"v_mov_b32 v{AC+3}, {f32(1e-5)}\nv_fmac_f32 v{AC+3}, {f32(1.0/512)}, v{AC+2}\nv_rsq_f32 v{AC+2}, v{AC+3}\ns_nop 0")
        for i in range(8):
            for r in range(4):
                st(f"v_pk_mul_f32 {vr(XF+8*i+2*r,2)}, {vr(XF+8*i+2*r,2)}, {vr(AC+2,2)} op_sel_hi:[1,0]")
            for r in range(4):
                st(f"v_cvt_pk_bf16_f32 v{XP+4*i+r}, v{XF+8*i+2*r}, v{XF+8*i+2*r+1}")
            st.ds(f"ds_write_b128 v27, {vr(XP+4*i,4)} offset:{4224*i}")
        st.wait_vm()
        st.wait_ds()
        st.bar("B1")
        self.stamp(st, "h", "B1")
        self.epoch_make(st)
        st(f"s_add_u32 s{sXCC}, s{sXCC}, s{sEP}")
        st("v_lshrrev_b32 v27, 4, v0\nv_lshlrev_b32 v27, 14, v27\nv_and_b32 v14, 15, v0\nv_lshl_add_u32 v27, v14, 7, v27")
        st(f"s_cmp_lg_u32 s{sW}, 0\ns_cbranch_scc1 L_nokv")
        self.kv_job(st)
        st.label("L_nokv")

    def kv_job(self, st):
        WR, XR, AC = 160, 176, 192
        st(f"v_lshrrev_b32 v12, 4, v0\nv_and_b32 v13, 15, v0\nv_lshlrev_b32 v14, 8, v12\nv_lshl_add_u32 v14, v13, 3, v14")
        st(f"s_and_b32 s{sT0}, s{sCB}, 1\ns_lshl_b32 s{sT1}, s{sT0}, 8\ns_add_u32 s{sT2}, s{sT1}, {XN}")
        st(f"v_mul_u32_u24 v15, 528, v12\nv_lshl_add_u32 v15, v13, 4, v15\nv_add_u32 v15, s{sT2}, v15")
        st(f"s_cmp_ge_u32 s{sCB}, 2\ns_cbranch_scc1 L_vjob")
        for job in ("k", "v"):
            if job == "v": st.label("L_vjob")
            LA = 3
            for j in range(16 + LA):
                if j < 16:
                    w, x = WR + 4 * (j % 4), XR + 4 * (j % 4)
                    st.ds(f"ds_read_b64_tr_b16 {vr(w,2)}, v14 offset:{WKV + 1024*j}")
                    st.ds(f"ds_read_b64_tr_b16 {vr(w+2,2)}, v14 offset:{WKV + 1024*j + 128}")
                    st.ds(f"ds_read_b128 {vr(x,4)}, v15 offset:{2112*j}", ("rd", j))
                m = j - LA
                if m >= 0:
                    st.wait_ds(("rd", m))
                    w, x = WR + 4 * (m % 4), XR + 4 * (m % 4)
                    a, b = (w, x) if job == "k" else (x, w)
                    st(mfma16(AC, a, b, "0" if m == 0 else None))
            if job == "k":
                st(f"v_and_b32 v14, 1, v12\nv_lshlrev_b32 v14, 9, v14\nv_lshl_add_u32 v14, v13, 4, v14\nv_lshrrev_b32 v15, 1, v12")
                st(f"v_lshl_add_u32 v14, v15, 3, v14\nv_add_u32 v14, s{sT1}, v14")
                st("s_branch L_kvst")
            else:
                st(f"v_lshrrev_b32 v14, 1, v12\nv_lshlrev_b32 v14, 8, v14\nv_lshl_add_u32 v14, v13, 4, v14\nv_and_b32 v15, 1, v12")
                st(f"s_lshl_b32 s{sT1}, s{sT0}, 9\ns_add_u32 s{sT1}, s{sT1}, 1024")
                st(f"v_lshl_add_u32 v14, v15, 3, v14\nv_add_u32 v14, s{sT1}, v14")
        st.label("L_kvst")
        st(f"s_lshl_b32 s{sT0}, s{sRB}, 11\ns_add_u32 s{sT0}, s{sT0}, {WS_KV}")
        st(f"v_cvt_pk_bf16_f32 v{AC+4}, v{AC}, v{AC+1}\nv_cvt_pk_bf16_f32 v{AC+5}, v{AC+2}, v{AC+3}")
        st(f"s_add_u32 s{sT1}, s{sT0}, {WS_KVL - WS_KV}")
        st(f"buffer_store_dwordx2 {vr(AC+4,2)}, v14, {srd(WS)}, s{sT1} offen")
        st(f"buffer_store_dwordx2 {vr(AC+4,2)}, v14, {srd(WS)}, s{sT0} offen sc1")
        st(f"s_lshl_b32 s{sT0}, s{sG}, 5\ns_add_u32 s{sT0}, s{sT0}, s{sIDX}\ns_lshl_b32 s{sT1}, s{sT0}, 2\ns_add_u32 s{sT1}, s{sT1}, {WS_FLGL}")
        st(f"s_lshl_b32 s{sT0}, s{sT0}, 7\ns_add_u32 s{sT0}, s{sT0}, {WS_FLG1}")
        st(f"v_mov_b32 v15, s{sXCC}\nv_mov_b32 v13, s{sEP1}\ns_mov_b64 exec, 1")
        st("s_waitcnt vmcnt(1)")
        st(f"buffer_store_dword v15, off, {srd(WS)}, s{sT1}")
        st("s_waitcnt vmcnt(1)")
        st(f"buffer_store_dword v13, off, {srd(WS)}, s{sT0} sc1")
        st("s_mov_b64 exec, -1")

    WOR, WDR = 128, 48

    def gu_voffsets(self, st, base, tmp):
        st(f"s_and_b32 s{sT0}, s{sIDX}, 15\ns_mul_i32 s{sT0}, s{sT0}, 224")
        for p in range(7):
            st(f"v_add_u32 v{tmp}, {64*p}, v0\nv_mul_u32_u24 v{tmp+1}, 4682, v{tmp}\nv_lshrrev_b32 v{tmp+1}, 16, v{tmp+1}")
            st(f"v_mul_u32_u24 v{tmp+1}, 3360, v{tmp+1}\nv_lshlrev_b32 v{tmp}, 4, v{tmp}\nv_add3_u32 v{base+p}, v{tmp}, v{tmp+1}, s{sT0}")

    pace = None

    def paced(self, st):
        if self.pace is not None: st(f"s_waitcnt vmcnt({self.pace})")

    def gu_pair(self, st, u0, vbase, single=False):
        a0 = slot_addr(unit_slot(u0))
        lab = f"L_gu{u0}"
        if single:
            st(f"s_cmp_ge_u32 s{sW}, 2\ns_cbranch_scc1 {lab}")
        else:
            assert slot_addr(unit_slot(u0 + 1)) == a0 + SLOT
        if u0 < 8:
            st(f"s_xor_b32 s{sT2}, s{sP+4}, {u0}\ns_mul_i32 s{sT1}, s{sT2}, 114688\ns_add_u32 s{sT1}, s{sT1}, s{sP+5}")
            st(f"s_mul_i32 s{sT2}, s{sT2}, {SLOT}\ns_add_u32 s{sT2}, s{sT2}, s{sP+6}")
            sb, a0 = sT2, SLOT0
        else:
            st(f"s_add_u32 s{sT1}, s{sP+5}, {u0 * 114688}")
            sb = sP + 6
        for p in range(7):
            st(f"s_add_u32 m0, s{sb}, {a0 + 1024*p}")
            if self.pace is None: st("s_nop 0")
            self.paced(st)
            st.vm(f"buffer_load_dwordx4 v{vbase+p}, {srd(WG)}, s{sT1} offen lds", ("gu", u0), cond=single)
        if single: st.label(lab)

    def wd_dma(self, st, j, addr, vD, sbase):
        p, t = j % 4, j // 4
        st(f"s_add_u32 m0, s{sbase}, {addr}\ns_add_u32 s{sT1}, s{sP+7}, {(7*p + t) * 16384}")
        self.paced(st)
        st.vm(f"buffer_load_dwordx4 v{vD}, {srd(WD)}, s{sT1} offen lds")
        st(f"s_add_u32 m0, s{sbase}, {addr + 1024}\ns_add_u32 s{sT1}, s{sT1}, 8192")
        self.paced(st)
        st.vm(f"buffer_load_dwordx4 v{vD}, {srd(WD)}, s{sT1} offen lds", ("wd", j))

    def wd_read(self, st, j, reg, va, off):
        for nt in range(2):
            for t in range(2):
                st.ds(f"ds_read_b64_tr_b16 {vr(reg+4*nt+2*t,2)}, v{va[nt]} offset:{off + 1024*t}", ("wdr", j))

    def wd_addr(self, st, vD, va, t0):
        st(f"v_lshrrev_b32 v{t0}, 3, v0\nv_bfe_u32 v{t0+1}, v0, 4, 1\nv_lshlrev_b32 v{t0+1}, 2, v{t0+1}\nv_and_b32 v{vD}, 7, v0")
        st(f"v_xor_b32 v{vD}, v{vD}, v{t0+1}\nv_lshlrev_b32 v{vD}, 4, v{vD}\nv_lshl_add_u32 v{vD}, v{t0}, 10, v{vD}")
        st(f"v_lshrrev_b32 v{t0}, 5, v0\nv_bfe_u32 v{t0+1}, v0, 2, 2\nv_lshl_add_u32 v{t0}, v{t0}, 2, v{t0+1}\nv_lshlrev_b32 v{t0}, 7, v{t0}")
        st(f"v_bfe_u32 v{t0+1}, v0, 3, 1\ns_and_b32 s{sT0}, s{sW}, 1\nv_xor_b32 v{t0+1}, s{sT0}, v{t0+1}\nv_lshl_add_u32 v{t0}, v{t0+1}, 6, v{t0}")
        st(f"v_bfe_u32 v{t0+1}, v0, 4, 1\nv_lshl_add_u32 v{t0}, v{t0+1}, 5, v{t0}\nv_and_b32 v{t0+1}, 3, v0\nv_lshl_add_u32 v{va[0]}, v{t0+1}, 3, v{t0}")
        st(f"v_xor_b32 v{va[1]}, 64, v{va[0]}")

    def helper_setup(self, st):
        vL, vP, vR = 1, 2, 3
        st(f"v_and_b32 v{vP}, 7, v0\ns_lshl_b32 s{sT0}, s{sW}, 3\nv_add_u32 v{vP}, s{sT0}, v{vP}\nv_lshlrev_b32 v{vP}, 7, v{vP}")
        st(f"v_lshrrev_b32 v{vR}, 3, v0\nv_lshl_add_u32 v{vP}, v{vR}, 12, v{vP}")
        vWO, vTR, vWD, vWA, GU = 4, 5, 6, (12, 13), 16
        st(f"v_lshrrev_b32 v14, 2, v0\nv_lshlrev_b32 v14, 10, v14\nv_and_b32 v15, 3, v0\nv_lshlrev_b32 v15, 4, v15")
        st(f"s_lshl_b32 s{sT0}, s{sCB}, 8\ns_lshl_b32 s{sT1}, s{sW}, 6\ns_add_u32 s{sT0}, s{sT0}, s{sT1}")
        st(f"v_add3_u32 v{vWO}, v14, v15, s{sT0}")
        st(f"s_mul_i32 s{sE}, s{sW}, {STGW}\ns_add_u32 s{sE}, s{sE}, {STG}")
        st(f"v_lshrrev_b32 v14, 5, v0\nv_lshlrev_b32 v14, 8, v14\nv_bfe_u32 v15, v0, 2, 2\nv_lshl_add_u32 v14, v15, 6, v14")
        st(f"v_bfe_u32 v15, v0, 4, 1\nv_lshl_add_u32 v14, v15, 5, v14\nv_and_b32 v15, 3, v0\nv_lshl_add_u32 v14, v15, 3, v14")
        st(f"v_add_u32 v{vTR}, s{sE}, v14")
        self.wd_addr(st, vWD, vWA, 14)
        st(f"v_add_u32 v24, s{sE}, v{vWA[0]}\nv_add_u32 v25, s{sE}, v{vWA[1]}")
        self.gu_voffsets(st, GU, 14)
        st(f"s_lshr_b32 s{sT0}, s{sW}, 1\ns_mul_i32 s{sP+5}, s{sT0}, 114688\ns_lshr_b32 s{sP+4}, s{sIDX}, 4\ns_lshl_b32 s{sP+4}, s{sP+4}, 1")
        st(f"s_mul_i32 s{sT0}, s{sT0}, {SLOT}\ns_and_b32 s{sT1}, s{sW}, 1\ns_mul_i32 s{sT1}, s{sT1}, {UOFF}\ns_add_u32 s{sP+6}, s{sT0}, s{sT1}")
        st(f"s_mul_i32 s{sT0}, s{sW}, {28*16384}\ns_and_b32 s{sT1}, s{sIDX}, 7\ns_lshl_b32 s{sT1}, s{sT1}, 7\ns_add_u32 s{sP+7}, s{sT0}, s{sT1}")
        st(f"v_mov_b32 v26, {MISC}\nv_lshlrev_b32 v23, 7, v0")

    def helper_attention(self, st):
        vL, vP, vR = 1, 2, 3
        st(f"s_lshl_b32 s{sT1}, s{sG}, 12\ns_add_u32 s{sB}, s{sT1}, {WS_FLG1}")
        st(f"s_mul_i32 s{sC}, s{sW}, {2*TILE}\ns_lshl_b32 s{sD}, s{sW}, 12\ns_add_u32 s{sD}, s{sD}, {WS_KV}")
        st(f"s_bitcmp1_b32 s{sW}, 0\ns_cselect_b32 s{WG}, s{WU}, s{WG}\ns_cselect_b32 s{WG+1}, s{WU+1}, s{WG+1}")
        st(f"s_cmp_lt_u32 s{sW}, 2\ns_cbranch_scc1 L_x1skip")
        st(f"s_and_b32 s{sT2}, s{sW}, 1\ns_lshl_b32 s{sT0}, s{sT2}, 4\nv_and_b32 v12, 15, v0\nv_add_u32 v12, s{sT0}, v12")
        st(f"v_lshlrev_b32 v14, 7, v12\nv_lshlrev_b32 v12, 2, v12\ns_lshl_b32 s{sT1}, s{sG}, 7\ns_add_u32 s{sT1}, s{sT1}, {WS_FLGL}")
        st(f"s_lshl_b32 s{sE}, s{sG}, 14\ns_lshl_b32 s{sT0}, s{sT2}, 13\ns_add_u32 s{sE}, s{sE}, s{sT0}\ns_add_u32 s{sE}, s{sE}, {WS_KVL}")
        st(f"s_mul_i32 s{sT0}, s{sT2}, {4*TILE}\ns_add_u32 m0, s{sT0}, {RING}")
        st(f"s_lshl_b32 s{sT0}, s{sT2}, 2\ns_add_u32 s{sT0}, s{sT0}, {MISC}\nv_mov_b32 v15, s{sT0}")
        st(f"v_mov_b32 v13, 1\ns_mov_b32 s{sCNT}, {SPINL}")
        st.label("L_x1l")
        st(f"buffer_load_dword v{vR}, v12, {srd(WS)}, s{sT1} offen sc1")
        st.wait_vm()
        st(f"v_cmp_ne_u32 vcc, s{sXCC}, v{vR}\ns_cbranch_vccz L_x1a_ok")
        st(f"s_sub_u32 s{sCNT}, s{sCNT}, 1\ns_cbranch_scc0 L_x1l")
        st(f"s_sub_u32 s{sE}, s{sE}, {WS_KVL - WS_KV}\nv_mov_b32 v13, 0")
        self.poll(st, "L_x1a", 14, f"s{sB}", vR, 1, exact=True)
        for i in range(8):
            if i in (2, 6): st("s_add_u32 m0, m0, 32\ns_nop 0")
            if i == 4: st(f"s_add_u32 m0, m0, {2*TILE - 32}\ns_add_u32 s{sE}, s{sE}, 4096")
            st(f"buffer_load_dwordx4 v{vL}, {srd(WS)}, s{sE} offen offset:{1024*(i % 4)} sc1 lds")
        st("ds_write_b32 v15, v13")
        st.label("L_x1skip")
        self.stamp(st, "h", "x1own")
        def chunk(c):
            st(f"s_add_u32 s{sT0}, s{sG}, {c}\ns_and_b32 s{sT0}, s{sT0}, 7\ns_lshl_b32 s{sT0}, s{sT0}, 14")
            st(f"s_add_u32 m0, s{sC}, {RING + (c % 2) * 8 * TILE}\ns_add_u32 s{sT0}, s{sT0}, s{sD}")
            for i in range(4):
                if i == 2: st("s_add_u32 m0, m0, 32\ns_nop 0")
                st.vm(f"buffer_load_dwordx4 v{vL}, {srd(WS)}, s{sT0} offen offset:{1024*i} sc1 lds", ("kv", c))
        vWO, vTR, vWD, GU = 4, 5, 6, 16
        st(f"s_mul_i32 s{sE}, s{sW}, {STGW}\ns_add_u32 s{sE}, s{sE}, {STG}")
        st(f"s_cmp_lt_u32 s{sW}, 2\ns_cbranch_scc1 L_x1skip2")
        st.wait_vm()
        st.wait_ds()
        st.label("L_x1skip2")
        st.bar("B2")
        st.ds(f"ds_write_b128 v7, v[8:11] offset:{8*TILE + 2048}")
        st.ds("ds_read_b64 v[28:29], v26")
        st(f"s_mov_b32 s{sB}, {WS_FLG1}")
        self.poll(st, "L_x1b", vP, f"s{sB}", vR, 1, exact=True)
        self.stamp(st, "h", "x1all")
        st.wait_ds()
        self.colo_reduce(st, 28)
        def wo_dma(j, pos):
            st(f"s_add_u32 m0, s{sE}, {1024*pos}\ns_mov_b32 s{sT1}, {j*16384}")
            st.vm(f"buffer_load_dwordx4 v{vWO}, {srd(WO)}, s{sT1} offen lds", ("wo", j))
        def wo_read(j, pos):
            for t in range(2):
                st.ds(f"ds_read_b64_tr_b16 {vr(self.WOR+4*j+2*t,2)}, v{vTR} offset:{1024*pos + 512*t}")
        def endint(c):
            if c == self.c.hhint and not self.c.hhsc:
                st(f"s_lshr_b32 s{sT0}, s{sIDX}, 4\ns_lshl_b32 s{sT1}, s{sG}, 1\ns_add_u32 s{sT0}, s{sT0}, s{sT1}\ns_lshl_b32 s{sT0}, s{sT0}, 2\ns_add_u32 s{sT0}, s{sT0}, s{sW}")
                st(f"s_mul_i32 s{sT0}, s{sT0}, 114688\ns_and_b32 s{sT1}, s{sIDX}, 15\ns_mul_i32 s{sT1}, s{sT1}, 7168\ns_add_u32 s{sT0}, s{sT0}, s{sT1}\ns_add_u32 s{sT0}, s{sT0}, {WS_HH}")
                touch(WS, vT, f"s{sT0}", 56)
            st.wait_vm(("kv", c + 1))
            st.wait_ds()
            self.stamp(st, "h", f"arrBA{c}", 2)
            st.bar(f"BA{c}")
            if c + 2 < 8: chunk(c + 2)
        vT, vTD, vJ = 23, 27, 30
        def touch(buf, v, soff, lanes=64):
            if lanes < 64: st(f"s_bfm_b64 exec, {lanes}, 0")
            st.vm(f"buffer_load_dword v{vJ}, v{v}, {srd(buf)}, {soff} offen{' sc1' if buf == WS else ''}")
            if lanes < 64: st("s_mov_b64 exec, -1")
        chunk(1)
        st(f"s_lshl_b32 s{sT0}, s{sIDX}, 2\ns_add_u32 s{sT0}, s{sT0}, s{sW}\ns_lshl_b32 s{sT1}, s{sT0}, 10\ns_add_u32 s{sT1}, s{sT1}, {WS_KV}")
        touch(WS, vT, f"s{sT1}", 8)
        for j in range(14): wo_dma(j, j)
        endint(0)
        st(f"s_lshl_b32 s{sT0}, s2, 2\ns_add_u32 s{sT0}, s{sT0}, s{sW}\ns_cmp_lg_u32 s{sT0}, 0\ns_cbranch_scc1 L_noep")
        st(f"v_mov_b32 v31, s{sEP}\ns_mov_b32 s{sT1}, {WS_EPOCH}\ns_mov_b64 exec, 1")
        st.vm(f"buffer_store_dword v31, off, {srd(WS)}, s{sT1} sc1", cond=True)
        st("s_mov_b64 exec, -1")
        st.label("L_noep")
        st.wait_vm(("wo", 13))
        for j in range(14): wo_read(j, j)
        st.wait_ds()
        for j in range(14, 28): wo_dma(j, j - 14)
        st(f"s_mul_i32 s{sT1}, s{sT0}, {14*128}")
        touch(WD, vT, f"s{sT1}", 14)
        st(f"s_lshr_b32 s{sT0}, s{sT0}, 1\ns_mul_i32 s{sT1}, s{sT0}, {28*128}")
        touch(WG, vT, f"s{sT1}", 28)
        endint(1)
        st.wait_vm(("wo", 27))
        for j in range(14, 28): wo_read(j, j - 14)
        st.wait_ds()
        for j in range(28, 32): wo_dma(j, j - 28)
        for j in range(5): self.wd_dma(st, j, 4096 + 2048 * j, vWD, sE)
        endint(2)
        st.wait_vm(("wd", 4))
        for j in range(28, 32): wo_read(j, j - 28)
        for j in range(5): self.wd_read(st, j, self.WDR + 8 * j, (24, 25), 4096 + 2048 * j)
        st.wait_ds()
        for j in range(5, 10): self.wd_dma(st, j, 2048 * (j - 5), vWD, sE)
        self.gu_pair(st, 0, GU)
        endint(3)
        self.gu_pair(st, 2, GU)
        st.wait_vm(("wd", 9))
        for j in range(5, 10): self.wd_read(st, j, self.WDR + 8 * j, (24, 25), 2048 * (j - 5))
        st(f"s_lshl_b32 s{sT0}, s{sIDX}, 1\ns_lshr_b32 s{sT1}, s{sW}, 1\ns_add_u32 s{sT0}, s{sT0}, s{sT1}\ns_mul_i32 s{sA}, s{sT0}, {49*128}\ns_add_u32 s{sA}, s{sA}, {9*114688}")
        if self.c.tch & 1: touch(WG, vT, f"s{sA}", 49)
        endint(4)
        self.gu_pair(st, 4, GU)
        self.gu_pair(st, 8, GU, single=True)
        st(f"s_lshl_b32 s{sT0}, s{sRB}, 15\ns_lshl_b32 s{sT1}, s{sCB}, 13\ns_add_u32 s{sT0}, s{sT0}, s{sT1}\ns_lshl_b32 s{sT1}, s{sW}, 11\ns_add_u32 s{sT0}, s{sT0}, s{sT1}")
        st(f"s_add_u32 s{sT1}, s{sT0}, {WS_O}")
        touch(WS, vT, f"s{sT1}", 16)
        st(f"s_add_u32 s{sT1}, s{sT0}, {WS_H}")
        touch(WS, vT, f"s{sT1}", 16)
        st(f"s_lshr_b32 s{sT1}, s{sT0}, 3\ns_add_u32 s{sT1}, s{sT1}, {WS_ST}")
        touch(WS, vT, f"s{sT1}", 2)
        st(f"s_min_u32 s{sT0}, s{sW}, 2\ns_lshl_b32 s{sT0}, s{sT0}, 13\ns_lshl_b32 s{sT1}, s{sRB}, 7\ns_add_u32 s{sT1}, s{sT1}, s{sT0}\ns_add_u32 s{sT1}, s{sT1}, {WS_FLG2}")
        touch(WS, vT, f"s{sT1}", 1)
        endint(5)
        self.gu_pair(st, 6, GU)
        st(f"s_add_u32 s{sA}, s{sA}, {64*49*128}")
        if self.c.tch & 2: touch(WG, vT, f"s{sA}", 49)
        st(f"s_lshl_b32 s{sT0}, s{sIDX}, 2\ns_add_u32 s{sT0}, s{sT0}, s{sW}\ns_lshr_b32 s{sT1}, s{sT0}, 3\ns_mul_i32 s{sT1}, s{sT1}, 114688")
        st(f"s_and_b32 s{sT0}, s{sT0}, 7\ns_lshl_b32 s{sT0}, s{sT0}, 11\ns_add_u32 s{sA}, s{sT0}, s{sT1}\ns_add_u32 s{sA}, s{sA}, {2*16384}")
        if self.c.tch & 4: touch(WD, vTD, f"s{sA}", 32)
        endint(6)
        st(f"s_add_u32 s{sA}, s{sA}, {2*16384}")
        if self.c.tch & 8: touch(WD, vTD, f"s{sA}", 48)
        st(f"v_and_b32 v14, 31, v0\nv_lshlrev_b32 v14, 10, v14\nv_lshrrev_b32 v15, 5, v0\nv_lshl_add_u32 v14, v15, 3, v14")
        st(f"s_lshl_b32 s{sT0}, s{sRB}, 15\ns_lshl_b32 s{sT1}, s{sCB}, 8\ns_add_u32 s{sT0}, s{sT0}, s{sT1}\ns_lshl_b32 s{sT1}, s{sW}, 6\ns_add_u32 s{sT0}, s{sT0}, s{sT1}")
        for q in range(4):
            st.vm(f"buffer_load_dwordx2 {vr(4+2*q,2)}, v14, {srd(X)}, s{sT0} offen offset:{16*q}")
        self.stamp(st, "h", "arrBA7", 2)
        st.bar("BA7")
        self.stamp(st, "h", "BA7")

    def helper_phase_c(self, st):
        vL, vP, vR, XR, ACC, BRG = 1, 2, 3, 4, 16, 32
        st(f"v_and_b32 v{vP}, 3, v0\nv_lshlrev_b32 v{vP}, 2, v{vP}")
        st(f"s_lshl_b32 s{sT0}, s{sRB}, 7\ns_lshl_b32 s{sT1}, s{sW}, 4\ns_add_u32 s{sB}, s{sT0}, s{sT1}\ns_add_u32 s{sB}, s{sB}, {WS_FLG2}")
        st(f"s_lshl_b32 s{sT1}, s{sCB}, 4\ns_add_u32 s{sT0}, s{sT0}, s{sT1}\ns_lshl_b32 s{sT1}, s{sW}, 2\ns_add_u32 s{sT0}, s{sT0}, s{sT1}\ns_add_u32 s{sF}, s{sT0}, {WS_FLG3}")
        st(f"s_lshl_b32 s{sT0}, s{sRB}, 15\ns_lshl_b32 s{sT2}, s{sW}, 13\ns_add_u32 s{sC}, s{sT0}, s{sT2}\ns_add_u32 s{sC}, s{sC}, {WS_O}\ns_add_u32 s{sD}, s{sC}, 4096")
        st(f"s_lshl_b32 s{sT1}, s{sCB}, 13\ns_add_u32 s{sT0}, s{sT0}, s{sT1}\ns_lshl_b32 s{sT1}, s{sW}, 11\ns_add_u32 s{sT0}, s{sT0}, s{sT1}\ns_add_u32 s{sA}, s{sT0}, {WS_H}")
        st(f"s_lshl_b32 s{sT0}, s{sRB}, 12\ns_lshl_b32 s{sT1}, s{sCB}, 10\ns_add_u32 s{sT0}, s{sT0}, s{sT1}\ns_lshl_b32 s{sT1}, s{sW}, 2\ns_add_u32 s{sT0}, s{sT0}, s{sT1}\ns_add_u32 s{sE}, s{sT0}, {WS_ST}")
        st(f"s_add_u32 m0, s{sT2}, {RING}")
        self.poll(st, "L_x2", vP, f"s{sB}", vR, 1, exact=True)
        self.stamp(st, "h", "x2ok", 3)
        for i in range(8):
            if i == 4: st("s_add_u32 m0, m0, 4096\ns_nop 0")
            st.vm(f"buffer_load_dwordx4 v{vL}, {srd(WS)}, s{sC if i < 4 else sD} offen offset:{1024*(i % 4)} sc1 lds")
        st(f"v_cmp_eq_u32 vcc, 0, v0\nv_mov_b32 v14, 0x80000000\nv_mov_b32 v15, s{sEP1}\nv_cndmask_b32_e64 v14, v14, 0, vcc")
        st.wait_vm()
        st.bar("BC1")
        LA = 3
        for j in range(32 + LA):
            if j < 32: st.ds(f"ds_read_b128 {vr(BRG+4*(j % 4),4)}, v{vL} offset:{RING + 1024*j}", ("o", j))
            m = j - LA
            if m >= 0:
                st.wait_ds(("o", m))
                st(mfma32(ACC, self.WOR + 4 * m, BRG + 4 * (m % 4), "0" if m == 0 else None))
        st.bar("BC2")
        st(f"s_cmp_eq_u32 s{sCOLO}, {2 if self.c.force_slow else 1}\ns_cbranch_scc0 L_c_slow")
        self.c_epilogue(st, "")
        st.label("L_c_done")
        self.stamp(st, "h", "hflag")
        tc = self.tailcode
        tc.label("L_c_slow")
        self.c_epilogue(tc, " sc1")
        tc("s_branch L_c_done")

    def c_epilogue(self, st, sc):
        vL, XR, ACC, BRG = 1, 4, 16, 32
        st.nop(9)
        for r in range(8):
            st(f"v_dot2_f32_bf16 v{ACC+2*r}, v{XR+r}, s{sLO}, v{ACC+2*r}\nv_dot2_f32_bf16 v{ACC+2*r+1}, v{XR+r}, s{sHI}, v{ACC+2*r+1}")
        for r in range(8):
            st(f"v_cvt_pk_bf16_f32 v{BRG+r}, v{ACC+2*r}, v{ACC+2*r+1}")
            if r % 4 == 3:
                st.vm(f"buffer_store_dwordx4 {vr(BRG+r-3,4)}, v{vL}, {srd(WS)}, s{sA} offen offset:{1024*(r//4)}{sc}")
        for r in range(8):
            st(f"v_dot2_f32_bf16 v{ACC}, v{BRG+r}, s{sONE}, {'0' if r == 0 else 'v%d' % ACC}")
            st(f"v_dot2_f32_bf16 v{ACC+1}, v{BRG+r}, v{BRG+r}, {'0' if r == 0 else 'v%d' % (ACC+1)}")
        st("s_nop 2")
        st(f"v_permlane32_swap_b32 v{ACC}, v{ACC+1}\nv_add_f32 v{ACC}, v{ACC}, v{ACC+1}")
        st.vm(f"buffer_store_dword v{ACC}, v{vL}, {srd(WS)}, s{sE} offen{sc}")
        st.wait_vm()
        st.vm(f"buffer_store_dword v15, v14, {srd(WS)}, s{sF} offen{sc}")

    def helper_phase_de(self, st):
        vL, vP, vR = 1, 2, 3
        vWD, vWA, vWH, GU = 4, (12, 13), (5, 6), 192
        self.gu_voffsets(st, GU, 14)
        self.wd_addr(st, vWD, vWA, 14)
        st(f"s_lshl_b32 s{sE}, s{sW}, 11")
        st(f"v_add_u32 v{vWA[0]}, s{sE}, v{vWA[0]}\nv_add_u32 v{vWA[1]}, s{sE}, v{vWA[1]}")
        st(f"v_add_u32 v{vWH[0]}, {STG}, v{vWA[0]}\nv_add_u32 v{vWH[1]}, {STG}, v{vWA[1]}")
        place = lambda i: STG + 8192 * i if i < 7 else RING + 8192 * (i - 7)
        where = {}
        def dma(j, i):
            where[j] = i
            self.wd_dma(st, j, place(i), vWD, sE)
        def read(j, reg):
            i = where[j]
            if i < 7: self.wd_read(st, j, reg, vWH, 8192 * i)
            else: self.wd_read(st, j, reg, vWA, place(i))
        wreg = {j: self.WDR + 8 * j for j in range(18)}
        st.bar("BD0")
        self.pace = self.c.pace
        self.gu_pair(st, 9, GU)
        self.stamp(st, "h", "arrBD1", 4)
        st.bar("BD1")
        self.gu_pair(st, 11, GU)
        self.stamp(st, "h", "arrBD3", 4)
        st.bar("BD3")
        self.gu_pair(st, 13, GU)
        self.stamp(st, "h", "arrBD5", 4)
        st.bar("BD5")
        self.gu_pair(st, 15, GU, single=True)
        dma(10, 0)
        st.wait_vm(("gu", 9))
        self.stamp(st, "h", "arrBD7", 4)
        st.bar("BD7")
        for j in range(11, 15): dma(j, j - 10)
        st.wait_vm(("wd", 10))
        read(10, wreg[10]); st.wait_ds()
        dma(15, 0)
        self.stamp(st, "h", "arrBD9", 4)
        st.bar("BD9")
        dma(16, 5); dma(17, 6); dma(18, 7)
        st.wait_vm(("wd", 15))
        for j in range(11, 16): read(j, wreg[j])
        st.wait_ds()
        for j in range(19, 24): dma(j, j - 19)
        self.stamp(st, "h", "arrBD11", 4)
        st.bar("BD11")
        dma(26, 8); dma(27, 9)
        st.wait_vm(("wd", 17))
        read(16, wreg[16]); read(17, wreg[17]); st.wait_ds()
        dma(24, 5); dma(25, 6)
        self.stamp(st, "h", "Dhelp_end", 5)
        ACC = 192
        vA = (7, 8, 9, 10)
        st(f"s_lshr_b32 s{sT0}, s{sIDX}, 3\ns_lshl_b32 s{sT1}, s{sG}, 2\ns_add_u32 s{sT0}, s{sT0}, s{sT1}\ns_lshl_b32 s{sA}, s{sT0}, 1")
        st(f"s_mul_i32 s{sT0}, s{sA}, 114688\ns_mul_i32 s{sT1}, s{sW}, {28*1024}\ns_add_u32 s{sT0}, s{sT0}, s{sT1}")
        for p in range(4): st(f"s_add_u32 s{sP+p}, s{sT0}, {WS_HH + 7168*p}")
        st(f"s_lshr_b32 s{sT2}, s{sW}, 1\ns_mul_i32 s{sT0}, s{sT2}, 114688\ns_sub_u32 s{sT1}, 114688, s{sT0}")
        st(f"v_add_u32 v{vA[0]}, s{sT0}, v{vL}\nv_add_u32 v{vA[1]}, s{sT1}, v{vL}\nv_add_u32 v{vA[2]}, 4096, v{vA[0]}\nv_add_u32 v{vA[3]}, 4096, v{vA[1]}")
        st(f"v_bfe_u32 v{vP}, v0, 2, 1\nv_lshlrev_b32 v{vP}, 7, v{vP}\nv_and_b32 v14, 3, v0\nv_lshl_add_u32 v{vP}, v14, 2, v{vP}")
        st(f"s_lshl_b32 s{sT0}, s{sA}, 7\ns_lshl_b32 s{sT1}, s{sW}, 4\ns_add_u32 s{sB}, s{sT0}, s{sT1}\ns_add_u32 s{sB}, s{sB}, {WS_FLG4}")
        st(f"s_add_u32 s{sA}, s{sA}, s{sT2}")
        st(f"s_and_b32 s{sT0}, s{sIDX}, 7\ns_lshl_b32 s{sT0}, s{sT0}, 1\ns_and_b32 s{sT1}, s{sW}, 1\ns_add_u32 s{sT0}, s{sT0}, s{sT1}")
        st(f"s_lshl_b32 s{sT1}, s{sA}, 15\ns_lshl_b32 s{sC}, s{sT0}, 11\ns_add_u32 s{sC}, s{sC}, s{sT1}\ns_add_u32 s{sC}, s{sC}, {WS_H}")
        st(f"s_lshl_b32 s{sD}, s{sT0}, 6\ns_add_u32 s{sD}, s{sD}, s{sT1}")
        free = [16, 24, 32, 40]
        areg = {}
        def ldA(j):
            p, t = j % 4, j // 4
            areg[j] = r = free.pop(0)
            for mt in range(2):
                st.vm(f"buffer_load_dwordx4 {vr(r+4*mt,4)}, v{vA[mt + (2 if t >= 4 else 0)]}, {srd(WS)}, s{sP+p} offen offset:{1024*(t % 4)} sc1", ("a", j))
        def gate(t):
            tc = self.tailcode
            st.wait_vm(("poll", t))
            self.notready(st, vR, t + 1)
            st(f"s_cbranch_vccnz L_x4s{t}")
            st.label(f"L_x4r{t}")
            tc.label(f"L_x4s{t}")
            self.poll(tc, f"L_x4p{t}", vP, f"s{sB}", vR, t + 1)
            tc(f"s_branch L_x4r{t}")
        f0 = self.c.flag0
        st.bar("BDE")
        self.poll(st, "L_x4", vP, f"s{sB}", vR, f0)
        st("s_setprio 0")
        self.stamp(st, "h", "x4ok", 13)
        for j in range(4): ldA(j)
        nextA, nextW, DEPTH = 4, 18, 7
        hres = None
        for j in range(28):
            st.wait_vm(("a", j))
            if j >= 18: st.wait_ds(("wdr", j))
            w, a = wreg[j], areg[j]
            if j % 4 == 0: self.stamp(st, "h", f"Et{j//4}", 8)
            acts = []
            def more():
                nonlocal nextA, nextW, hres
                if nextW < 28 and nextW <= j + 3 and free:
                    wreg[nextW] = free.pop(0); read(nextW, wreg[nextW]); nextW += 1
                elif nextA < 28 and nextA <= j + DEPTH and free:
                    if nextA % 4 == 0 and nextA // 4 >= f0: gate(nextA // 4)
                    if nextA % 4 == 1 and f0 <= nextA // 4 + 1 < 7:
                        st.vm(f"buffer_load_dword v{vR}, v{vP}, {srd(WS)}, s{sB} offen sc1", ("poll", nextA // 4 + 1))
                    ldA(nextA); nextA += 1
                elif nextA == 28 and hres is None and len(free) > 1:
                    hres = free.pop(0)
                    for i in range(2):
                        st.vm(f"buffer_load_dwordx4 {vr(hres+4*i,4)}, v{vL}, {srd(WS)}, s{sC} offen offset:{1024*i} sc1", "h")
            for i, (nt, mt) in enumerate(((0, 0), (0, 1), (1, 1), (1, 0))):
                st(mfma32(ACC + 16 * (nt + 2 * mt), w + 4 * nt, a + 4 * mt, "0" if j == 0 else None))
                if i < 3: more()
            free += [w, a]
            more()
        assert nextA == 28 and nextW == 28 and hres is not None
        self.stamp(st, "h", "Emfma_end", 13)
        RD = 64 if hres < 64 or hres >= 112 else 112
        assert not (RD <= hres < RD + 48)
        for a in range(1, 4):
            st(f"s_xor_b32 s{sT0}, s{sW}, {a}\ns_mul_i32 s{sT0}, s{sT0}, 12288\nv_add_u32 v{6+a}, s{sT0}, v{vL}")
        st(f"s_mul_i32 s{sT0}, s{sW}, 12288\nv_add_u32 v6, s{sT0}, v{vL}")
        st.bar("BE1")
        for a in (2, 3, 1):
            for q in range(4):
                st.ds(f"ds_write_b128 v{6+a}, {vr(ACC+16*a+4*q,4)} offset:{4096*(a-1) + 1024*q}")
        st(f"v_and_b32 v14, 31, v0\nv_lshlrev_b32 v14, 10, v14\nv_lshrrev_b32 v15, 5, v0\nv_lshl_add_u32 v14, v15, 4, v14")
        st.wait_vm("h")
        for r in range(8):
            st(f"v_dot2_f32_bf16 v{ACC+2*r}, v{hres+r}, s{sLO}, v{ACC+2*r}\nv_dot2_f32_bf16 v{ACC+2*r+1}, v{hres+r}, s{sHI}, v{ACC+2*r+1}")
        st.wait_ds()
        st.bar("BE2")
        self.stamp(st, "h", "BE2", 8)
        for q in range(4):
            for a in range(3):
                st.ds(f"ds_read_b128 {vr(RD+16*a+4*q,4)}, v6 offset:{4096*a + 1024*q}", ("r", q))
        P = ACC + 16
        for q in range(4):
            st.wait_ds(("r", q))
            for hlf in range(2):
                d = ACC + 4 * q + 2 * hlf
                s0 = RD + 4 * q + 2 * hlf
                st(f"v_pk_add_f32 {vr(s0,2)}, {vr(s0,2)}, {vr(s0+16,2)}\nv_pk_add_f32 {vr(d,2)}, {vr(d,2)}, {vr(s0+32,2)}")
            for hlf in range(2):
                d = ACC + 4 * q + 2 * hlf
                s0 = RD + 4 * q + 2 * hlf
                st(f"v_pk_add_f32 {vr(d,2)}, {vr(d,2)}, {vr(s0,2)}")
            for hlf in range(2):
                d = ACC + 4 * q + 2 * hlf
                st(f"v_cvt_pk_bf16_f32 v{P+2*q+hlf}, v{d}, v{d+1}")
            if q % 2 == 1:
                b = P + 2 * q - 2
                st(f"s_nop 1\nv_permlane32_swap_b32 v{b}, v{b+2}\nv_permlane32_swap_b32 v{b+1}, v{b+3}")
                st.vm(f"buffer_store_dwordx4 {vr(b,4)}, v14, {srd(OUT)}, s{sD} offen offset:{32*(q//2)}")
        self.stamp(st, "h", "end", 9)
        self.dump_stamps(st, "h")

    def build(self):
        p, m, h = Stream(), Stream(), Stream()
        self.prologue(p)
        m.label("L_main")
        self.main_phase_a(m); self.main_attention(m); self.main_publish_o(m); self.main_phase_d(m)
        ms = Stream()
        self.sc, self.sfx = " sc1", "_s"
        ms.label("L_main_slow")
        self.main_publish_o(ms); self.main_phase_d(ms)
        self.sc, self.sfx = "", ""
        self.helper_phase_a(h); self.helper_attention(h); self.helper_phase_c(h); self.helper_phase_de(h)
        assert m.nbar + 2 == h.nbar, (m.nbar, h.nbar)
        ref = open(f"cdna_kernels/{NAME}.s.ref").read().splitlines()
        hdr = [l for l in ref if l.startswith(";") and "@launch" not in l]
        o = "\n".join(hdr) + f"\n; @launch grid=(256,1,1) block=(512,1,1) lds={LDS_BYTES}\n"
        o += f'.amdgcn_target "amdgcn-amd-amdhsa--gfx950"\n.text\n.globl {NAME}_kernel\n.p2align 8\n.type {NAME}_kernel,@function\n{NAME}_kernel:\n'
        o += p.text() + "\n" + h.text() + "\nL_end:\n    s_endpgm\n" + m.text() + "\nL_codeend:\n" + self.tailcode.text() + "\n" + ms.text() + "\n"
        o += f""".section .rodata,"a"
.p2align 6
.amdhsa_kernel {NAME}_kernel
  .amdhsa_next_free_vgpr 256
  .amdhsa_next_free_sgpr 102
  .amdhsa_accum_offset 256
  .amdhsa_group_segment_fixed_size 0
  .amdhsa_kernarg_size 96
  .amdhsa_user_sgpr_count 2
  .amdhsa_user_sgpr_kernarg_segment_ptr 1
  .amdhsa_system_sgpr_workgroup_id_x 1
.end_amdhsa_kernel
"""
        return o

if __name__ == "__main__":
    import hazcheck, json
    cfg = Cfg()
    out = sys.argv[1]
    for a in sys.argv[2:]:
        k, v = a.split("=")
        setattr(cfg, k, int(v))
    g = Gen(cfg)
    txt = g.build()
    open(out, "w").write(txt)
    json.dump(g.nstamp, open(out + ".stamps.json", "w"))
    errs = hazcheck.check(txt)
    for e in errs[:40]: print(e)
    print(len(errs), "hazard findings;", len(txt.splitlines()), "lines")
```

```python
import sys, struct
from emit import Stream, vr, sr

NAME = "sequential_preLN__grouped_kv_mqa__glu_gated_glu__prompt"

def f32(x): return hex(struct.unpack("<I", struct.pack("<f", x))[0])

WS_KV, WS_KVL, WS_FLG1, WS_FLGL, WS_FLG2, WS_FLG3, WS_FLG4 = 0x0, 0x20000, 0x40000, 0x48000, 0x50000, 0x52000, 0x54000
WS_ST, WS_DIAG, WS_O, WS_H, WS_HH, WS_SIZE = 0x60000, 0xA0000, 0x100000, 0x300000, 0x500000, 0xC00000
TILE, RING, SLOT0, SLOT, UOFF = 2080, 0, 33280, 14464, 7296
XN, WKV, WQST, NWQ = 33280, 16640, 67072, 23
STG, STGW = SLOT0 + 5 * SLOT, 14336
LDS_BYTES = 163840
MISC = SLOT0 + 9 * SLOT
def slot_addr(s): return SLOT0 + s * SLOT if s <= 8 else RING + (s - 9) * SLOT
def unit_slot(u): return u if u <= 10 else u - 11
X, WQ, WKVS, WO, WG, WU, WD, OUT, DBG, WS = 4, 8, 12, 16, 20, 24, 28, 32, 36, 40
sG, sIDX, sRB, sCB, sW, sXCC = 44, 45, 46, 47, 48, 49
sT0, sT1, sT2, sT3, sCNT = 50, 51, 52, 53, 54
sA, sB, sC, sD, sE = 55, 56, 57, 58, 59
sONE, sLO, sHI = 60, 61, 62
sF = 63
CODE = 64
sP = 68
sSTAMP = 76
SPIN = 1 << 17
SPINL = 96
sCOLO = 3
WS_EPOCH = 0x48400
sEP = DBG
sEP1 = DBG + 1
def srd(b): return sr(b, 4)

class Cfg:
    diag = False
    tail = 3
    force_fallback = False
    force_slow = False
    npre = 12
    pace = 3
    flag0 = 4
    etile = 6
    tch = 5
    padto = 0
    padat = 0
    padwg = -1
    hhsc = 1
    hhint = 3

def mfma32(d, a, b, c=None):
    return f"v_mfma_f32_32x32x16_bf16 {vr(d,16)}, {vr(a,4)}, {vr(b,4)}, {vr(d,16) if c is None else c}"
def mfma16(d, a, b, c=None):
    return f"v_mfma_f32_16x16x32_bf16 {vr(d,4)}, {vr(a,4)}, {vr(b,4)}, {vr(d,4) if c is None else c}"
def smf(d, a, b, idx):
    return f"v_smfmac_f32_32x32x32_bf16 {vr(d,16)}, {vr(a,4)}, {vr(b,8)}, v{idx}"

class Gen:
    def __init__(self, cfg):
        self.c = cfg
        self.tailcode = Stream()
        self.nstamp = {}

    sc, sfx = "", ""

    def stamp(self, st, role, name, level=1):
        if not (self.c.diag & level) or self.sc: return
        l = self.nstamp.setdefault(role, [])
        i = len(l); l.append(name)
        assert i < 13
        st(f"{'s_memtime' if name.startswith('cyc') else 's_memrealtime'} {sr(sSTAMP + 2*i, 2)}")

    def dump_stamps(self, st, role):
        if not self.c.diag or self.sc: return
        n = len(self.nstamp[role])
        st("s_waitcnt lgkmcnt(0)")
        st(f"s_lshl_b32 s{sT0}, s2, 3\ns_add_u32 s{sT0}, s{sT0}, s{sW}")
        st(f"s_add_u32 s{sT0}, s{sT0}, {4 if role == 'h' else 0}\ns_lshl_b32 s{sT0}, s{sT0}, 6\ns_add_u32 s{sT0}, s{sT0}, {WS_DIAG}")
        for i in range(n):
            st(f"v_mov_b32 v1, s{sSTAMP + 2*i}")
            st(f"buffer_store_dword v1, off, {srd(WS)}, s{sT0} offset:{4*i}")
        st("s_waitcnt vmcnt(0)")

    def notready(self, st, vdst, need):
        st(f"v_subrev_u32 v{vdst}, s{sEP}, v{vdst}")
        st(f"v_subrev_u32 v{vdst}, {need}, v{vdst}")
        st(f"v_cmp_lt_u32 vcc, {15 - need}, v{vdst}")

    def poll(self, st, name, vaddr, soff, vdst, need, exact=False):
        st(f"s_mov_b32 s{sCNT}, {SPIN}")
        st.label(name)
        st(f"buffer_load_dword v{vdst}, v{vaddr}, {srd(WS)}, {soff} offen sc1")
        st.wait_vm()
        if exact: st(f"v_cmp_ne_u32 vcc, s{sEP1}, v{vdst}")
        else: self.notready(st, vdst, need)
        st(f"s_cbranch_vccz {name}_ok")
        st(f"s_sub_u32 s{sCNT}, s{sCNT}, 1")
        st(f"s_cbranch_scc0 {name}")
        st.label(name + "_ok")

    def pad(self, st, at):
        if not self.c.padto or self.c.padat != at: return
        if self.c.padwg >= 0: st(f"s_cmp_lg_u32 s2, {self.c.padwg}\ns_cbranch_scc1 L_padx")
        st.label("L_pad")
        st("s_memrealtime s[98:99]\ns_waitcnt lgkmcnt(0)\ns_sub_u32 s98, s98, s100")
        st(f"s_cmp_lt_u32 s98, {self.c.padto * 100}\ns_cbranch_scc1 L_pad")
        st.label("L_padx")

    def epoch_load(self, st):
        st(f"s_load_dword s{sEP}, {sr(WS,2)}, {WS_EPOCH}")

    def epoch_make(self, st):
        st(f"s_and_b32 s{sEP}, s{sEP}, 0xfffffff0\ns_add_u32 s{sEP}, s{sEP}, 0x9e3779b0\ns_add_u32 s{sEP1}, s{sEP}, 1")

    def prologue(self, st):
        st("s_cmp_ge_u32 s2, 256\ns_cbranch_scc1 L_end")
        for b, off in ((X, 0), (WQ, 8), (WKVS, 16), (sP, 24), (WO, 32), (WS, 88)):
            st(f"s_load_dwordx2 {sr(b,2)}, s[0:1], {off}")
        st("v_lshrrev_b32 v1, 6, v0\nv_and_b32 v0, 63, v0")
        st(f"s_and_b32 s{sG}, s2, 7")
        st(f"v_readfirstlane_b32 s{sT0}, v1")
        st(f"s_lshr_b32 s{sIDX}, s2, 3")
        st(f"s_lshr_b32 s{sT1}, s{sIDX}, 2\ns_lshl_b32 s{sRB}, s{sG}, 3\ns_add_u32 s{sRB}, s{sRB}, s{sT1}")
        st(f"s_and_b32 s{sCB}, s{sIDX}, 3\ns_and_b32 s{sW}, s{sT0}, 3")
        for b, n in ((X, 2097152), (WQ, 524288), (WKVS, 16384), (WO, 524288), (WG, 1835008), (WU, 1835008),
                     (WD, 1835008), (OUT, 2097152), (WS, WS_SIZE)):
            st(f"s_mov_b32 s{b+2}, {n}\ns_mov_b32 s{b+3}, 0x20000")
        st(f"s_mov_b32 s{sONE}, 0x3f803f80\ns_mov_b32 s{sLO}, 0x3f80\ns_mov_b32 s{sHI}, 0x3f800000")
        st(f"s_cmp_lt_u32 s{sT0}, 4\ns_cbranch_scc1 L_main")

    def main_phase_a(self, st):
        self.stamp(st, "m", "start", 15)
        vD, vTR, vXB, vXC = 2, 3, 4, 5
        WR, XR, ACC = 112, 128, 144
        st(f"v_lshrrev_b32 v10, 2, v0\nv_lshlrev_b32 v10, 10, v10\nv_and_b32 v11, 3, v0\nv_lshlrev_b32 v11, 4, v11")
        st(f"s_lshl_b32 s{sT0}, s{sCB}, 8\ns_lshl_b32 s{sT1}, s{sW}, 6\ns_add_u32 s{sT0}, s{sT0}, s{sT1}")
        st(f"v_add3_u32 v{vD}, v10, v11, s{sT0}")
        st(f"s_mul_i32 s{sA}, s{sW}, {NWQ*1024}\ns_add_u32 s{sA}, s{sA}, {WQST}")
        st(f"s_lshr_b32 s{sB}, s{sIDX}, 2\ns_lshl_b32 s{sC}, s{sB}, 16")
        st("s_waitcnt lgkmcnt(0)")
        self.epoch_load(st)
        st(f"s_lshl_b32 s{sT0}, s2, 2\ns_add_u32 s{sT0}, s{sT0}, s{sW}\ns_lshl_b32 s{sT1}, s{sT0}, 9\nv_and_b32 v12, 3, v0\nv_lshlrev_b32 v12, 7, v12")
        st.bar("B0")
        st.vm(f"buffer_load_dword v160, v12, {srd(WO)}, s{sT1} offen")
        st(f"s_cmp_lg_u32 s{sW}, 0\ns_cbranch_scc1 L_nokvt")
        st(f"s_lshl_b32 s{sT0}, s{sRB}, 11\ns_lshl_b32 s{sT1}, s{sCB}, 9\ns_add_u32 s{sT0}, s{sT0}, s{sT1}\ns_add_u32 s{sT0}, s{sT0}, {WS_KVL}")
        st.vm(f"buffer_load_dword v161, v12, {srd(WS)}, s{sT0} offen sc1", cond=True)
        st(f"s_lshl_b32 s{sT0}, s{sG}, 7\ns_add_u32 s{sT0}, s{sT0}, {WS_FLGL}")
        st.vm(f"buffer_load_dword v162, off, {srd(WS)}, s{sT0} sc1", cond=True)
        st.label("L_nokvt")
        def dma(j):
            st(f"s_add_u32 m0, s{sA}, {(j % NWQ)*1024}")
            st(f"s_xor_b32 s{sT1}, s{sC}, {j*16384}")
            st.vm(f"buffer_load_dwordx4 v{vD}, {srd(WQ)}, s{sT1} offen lds", ("wq", j))
        for j in range(self.c.npre): dma(j)
        st(f"v_lshrrev_b32 v10, 5, v0\nv_lshlrev_b32 v11, 9, v10\nv_bfe_u32 v12, v0, 2, 2\nv_lshl_add_u32 v11, v12, 6, v11")
        st(f"v_bfe_u32 v12, v0, 4, 1\nv_lshl_add_u32 v11, v12, 5, v11\nv_and_b32 v12, 3, v0\nv_lshl_add_u32 v11, v12, 3, v11")
        st(f"v_add_u32 v{vTR}, s{sA}, v11")
        st(f"v_mul_u32_u24 v11, 528, v10\nv_and_b32 v12, 31, v0\nv_lshl_add_u32 v11, v12, 4, v11\nv_add_u32 v{vXB}, {XN}, v11")
        self.attn_setup(st)
        st("s_waitcnt lgkmcnt(0)")
        self.epoch_make(st)
        st.bar("B1")
        self.stamp(st, "m", "B1")
        for j in range(self.c.npre, NWQ): dma(j)
        LA = 3
        for j in range(32 + LA):
            if j < 32:
                if j % 4 == 0:
                    st(f"s_xor_b32 s{sT1}, s{sB}, {j//4}\ns_mul_i32 s{sT1}, s{sT1}, 4224\nv_add_u32 v{vXC}, s{sT1}, v{vXB}")
                st.wait_vm(("wq", j))
                w, x = WR + 4 * (j % 4), XR + 4 * (j % 4)
                o = (j % NWQ) * 1024
                st.ds(f"ds_read_b64_tr_b16 {vr(w,2)}, v{vTR} offset:{o}")
                st.ds(f"ds_read_b64_tr_b16 {vr(w+2,2)}, v{vTR} offset:{o+256}")
                st.ds(f"ds_read_b128 {vr(x,4)}, v{vXC} offset:{(j % 4)*1056}", ("rd", j))
            m = j - LA
            if m >= 0:
                st.wait_ds(("rd", m))
                st(mfma32(ACC, WR + 4 * (m % 4), XR + 4 * (m % 4), "0" if m == 0 else None))
                if m + NWQ < 32: dma(m + NWQ)
        st.nop(12)
        sc = f32(0.25 * 1.4426950408889634)
        for r in range(16): st(f"v_mul_f32 v{ACC+r}, {sc}, v{ACC+r}")
        for r in range(8): st(f"v_cvt_pk_bf16_f32 v{self.Q + r}, v{ACC+2*r}, v{ACC+2*r+1}")
        self.stamp(st, "m", "Qdone")

    S, Q, O, KVB, vIDX, vK, vV0, vV1 = (16, 32), 48, (56, 72), (88, 100), 6, 7, 8, 9

    def attn_setup(self, st):
        st(f"v_mov_b32 v{self.vIDX}, 0xdddddddd")
        st(f"v_lshlrev_b32 v{self.vK}, 4, v0")
        st("v_and_b32 v12, 31, v0\nv_lshrrev_b32 v13, 5, v0\nv_lshl_add_u32 v13, v13, 4, v12\nv_lshlrev_b32 v13, 4, v13")
        st("v_and_b32 v14, 27, v0\nv_cmp_eq_u32 vcc, 16, v14\nv_mov_b32 v14, 2064\nv_mov_b32 v15, 2048")
        st("v_cndmask_b32 v14, v14, v15, vcc")
        st("v_cmp_gt_u32 vcc, 16, v12\nv_add_u32 v15, 1024, v13\nv_add_u32 v13, 1536, v13")
        st(f"v_cndmask_b32 v{self.vV0}, v14, v15, vcc\nv_cndmask_b32 v{self.vV1}, v14, v13, vcc")
        st(f"v_mov_b32 v10, {MISC}")
        for r in range(32): st(f"v_mov_b32 v{self.O[0]+r}, 0")
        for r in range(8): st(f"v_mov_b32 v{self.S[1]+8+r}, 0")
        for r in range(4): st(f"v_mov_b32 v{self.KVB[1]+8+r}, 0")

    def colo_reduce(self, st, r):
        st(f"v_and_b32 v{r}, v{r}, v{r+1}\ns_nop 0")
        st(f"v_readfirstlane_b32 s{sCOLO}, v{r}")

    def main_attention(self, st):
        S, Q, O, KVB = self.S, self.Q, self.O, self.KVB
        buf = lambda t: KVB[t % 2]
        off = lambda t: (t % 16) * TILE
        rdK = lambda t: f"ds_read_b128 {vr(buf(t),4)}, v{self.vK} offset:{off(t)}"
        rdV0 = lambda t: f"ds_read_b128 {vr(buf(t)+4,4)}, v{self.vV0} offset:{off(t)}"
        rdV1 = lambda t: f"ds_read_b128 {vr(buf(t)+8,4)}, v{self.vV1} offset:{off(t)}"
        body = []
        for t in range(16):
            for q in range(2):
                cur, nxt = S[q], S[1 - q]
                e = [f"v_exp_f32 v{cur+i}, v{cur+i}" for i in range(16)]
                tp = t - 1 if q == 0 else t
                pv1 = smf(O[1 - q], buf(tp) + 8, nxt + 8, self.vIDX)
                qk = mfma32(nxt, buf(t + q), Q + 4 * (1 - q), "0")
                pv0 = smf(O[q], buf(t) + 4, cur, self.vIDX)
                if q == 0:
                    f0, f1, f2 = [rdV1(t + 1)], [], []
                    if t == 1: f2 = [f"s_sub_u32 s{sA}, s{sA}, 1"]
                else:
                    f0, f1, f2 = ["s_waitcnt lgkmcnt(0)"], [rdK(t + 2)], [rdV0(t + 2)]
                    if t % 8 == 6: f0.append("s_barrier                ; BA")
                body += e[0:2] + [pv1] + f0 + e[2:5] + [qk] + f1 + e[5:11] + [pv0] + f2 + e[11:16]
        nhead = 2 + 1 + 1 + 3 + 1
        head, rest = body[:nhead], body[nhead:]
        st.bar("B2")
        self.stamp(st, "m", "B2", 3)
        self.stamp(st, "m", "cyc0")
        for s in (rdK(0), rdV0(0), rdV1(0), rdK(1), rdV0(1)): st(s)
        st("ds_read_b64 v[12:13], v10")
        st(f"s_mov_b32 s{sA}, 3")
        st("s_waitcnt lgkmcnt(0)")
        st(mfma32(S[0], buf(0), Q, "0"))
        self.colo_reduce(st, 12)
        st.nop(9)
        st("\n".join(head))
        st(".p2align 6")
        st.label("L_attn")
        st("\n".join(rest + head))
        st("s_cbranch_scc0 L_attn")
        st.nbar += 8
        self.stamp(st, "m", "attn_end", 3)
        self.stamp(st, "m", "cyc1")
        st("s_waitcnt lgkmcnt(0)")
        st(f"s_lshl_b32 s{sT0}, s{sRB}, 15\ns_lshl_b32 s{sT1}, s{sCB}, 13\ns_add_u32 s{sT0}, s{sT0}, s{sT1}")
        st(f"s_lshl_b32 s{sT1}, s{sW}, 11\ns_add_u32 s{sT0}, s{sT0}, s{sT1}\ns_add_u32 s{sB}, s{sT0}, {WS_O}")
        T = 88
        st(f"v_pk_add_f32 {vr(T,2)}, {vr(O[0],2)}, {vr(O[0]+2,2)}")
        st(f"v_pk_add_f32 {vr(T+2,2)}, {vr(O[0]+4,2)}, {vr(O[0]+6,2)}")
        st(f"v_pk_add_f32 {vr(T+4,2)}, {vr(O[1],2)}, {vr(O[1]+2,2)}")
        st(f"v_pk_add_f32 {vr(T+6,2)}, {vr(O[1]+4,2)}, {vr(O[1]+6,2)}")
        st(f"v_pk_add_f32 {vr(T,2)}, {vr(T,2)}, {vr(T+2,2)}")
        st(f"v_pk_add_f32 {vr(T+4,2)}, {vr(T+4,2)}, {vr(T+6,2)}")
        st(f"v_min_f32 v{T+8}, v{O[0]+8}, v{O[1]+8}\nv_add_f32 v{T+9}, v{O[0]+8}, v{O[1]+8}")
        st(f"v_pk_add_f32 {vr(T,2)}, {vr(T,2)}, {vr(T+4,2)}")
        st(f"v_cmp_nle_f32 vcc, {f32(2.0**-64)}, v{T+8}")
        st(f"v_add_f32 v{T}, v{T}, v{T+1}")
        st(f"s_mov_b64 {sr(sT2,2)}, vcc")
        st(f"v_cmp_nge_f32 vcc, {f32(2.0**64)}, v{T+9}")
        st(f"s_movk_i32 s{sT0}, 0x207")
        st(f"s_or_b64 {sr(sT2,2)}, {sr(sT2,2)}, vcc")
        st(f"v_cmp_class_f32 vcc, v{T}, s{sT0}".replace("v_cmp_class_f32", "v_cmp_class_f32_e64"))
        st(f"s_or_b64 {sr(sT2,2)}, {sr(sT2,2)}, vcc")
        if self.c.force_fallback: st("s_branch L_fallback")
        st("s_cbranch_scc1 L_fallback")
        st.label("L_norm")
        st(f"s_cmp_eq_u32 s{sCOLO}, {2 if self.c.force_slow else 1}\ns_cbranch_scc0 L_main_slow")
        self.fallback()

    def main_publish_o(self, st):
        O, T, sc = self.O, 88, self.sc
        st(f"v_rcp_f32 v{T}, v{O[0]+8}\nv_rcp_f32 v{T+2}, v{O[1]+8}")
        st(f"v_cmp_eq_u32 vcc, 0, v0\nv_mov_b32 v10, 0x80000000\nv_mov_b32 v11, s{sEP1}")
        for q in range(2):
            for r in range(0, 8, 2):
                st(f"v_pk_mul_f32 {vr(O[q]+r,2)}, {vr(O[q]+r,2)}, {vr(T+2*q,2)} op_sel_hi:[1,0]")
            for r in range(4):
                st(f"v_cvt_pk_bf16_f32 v{T+4+4*q+r}, v{O[q]+2*r}, v{O[q]+2*r+1}")
            st.vm(f"buffer_store_dwordx4 {vr(T+4+4*q,4)}, v{self.vK}, {srd(WS)}, s{sB} offen offset:{1024*q}{sc}")
        st("v_cndmask_b32 v10, v10, 0, vcc".replace("v_cndmask_b32", "v_cndmask_b32_e64"))
        st(f"s_lshl_b32 s{sT0}, s{sRB}, 7\ns_lshl_b32 s{sT1}, s{sCB}, 4\ns_add_u32 s{sT0}, s{sT0}, s{sT1}")
        st(f"s_lshl_b32 s{sT1}, s{sW}, 2\ns_add_u32 s{sT0}, s{sT0}, s{sT1}\ns_add_u32 s{sT0}, s{sT0}, {WS_FLG2}")
        st.wait_vm()
        st.vm(f"buffer_store_dword v11, v10, {srd(WS)}, s{sT0} offen{sc}")
        self.stamp(st, "m", "Oflag")

    def fallback(self):
        st = self.tailcode
        S, Q, O, KVB = self.S, self.Q, self.O, self.KVB
        K, V0, V1, NM = KVB[0], KVB[0] + 4, KVB[0] + 8, (112, 128)
        st.label("L_fallback")
        st("v_mov_b32 v10, 0xff800000\nv_mov_b32 v11, 0xff800000")
        st(f"s_mov_b32 s{sT0}, {WS_KV}")
        st.label("L_fb1")
        st(f"buffer_load_dwordx4 {vr(K,4)}, v{self.vK}, {srd(WS)}, s{sT0} offen sc1\ns_waitcnt vmcnt(0)")
        st(mfma32(S[0], K, Q, "0")); st(mfma32(S[1], K, Q + 4, "0"))
        st.nop(12)
        for q in range(2):
            for r in range(0, 16, 2): st(f"v_max3_f32 v{10+q}, v{S[q]+r}, v{S[q]+r+1}, v{10+q}")
        st(f"s_add_u32 s{sT0}, s{sT0}, 2048\ns_cmp_lt_u32 s{sT0}, {WS_KV + 131072}\ns_cbranch_scc1 L_fb1")
        st("v_mov_b32 v12, v10\nv_mov_b32 v13, v11\ns_nop 1")
        st("v_permlane32_swap_b32 v10, v12\nv_permlane32_swap_b32 v11, v13")
        st("v_max_f32 v10, v10, v12\nv_max_f32 v11, v11, v13")
        for q in range(2):
            for r in range(16):
                st(f"v_sub_f32 v{NM[q]+r}, 0, v{10+q}\nv_mov_b32 v{O[q]+r}, 0")
        st(f"v_and_b32 v12, 27, v0\nv_cmp_eq_u32 vcc, 16, v12\nv_mov_b32 v13, s{sONE}\ns_nop 0\nv_cndmask_b32 v13, 0, v13, vcc")
        for r in range(8): st(f"v_mov_b32 v{V0+r}, v13")
        st(f"s_mov_b32 s{sT0}, {WS_KV}\ns_mov_b32 s{sT2}, 0xffff\ns_mov_b32 s{sT3}, 0xffff")
        st.label("L_fb2")
        st(f"buffer_load_dwordx4 {vr(K,4)}, v{self.vK}, {srd(WS)}, s{sT0} offen sc1")
        st(f"s_mov_b64 exec, {sr(sT2,2)}")
        st(f"buffer_load_dwordx4 {vr(V0,4)}, v{self.vV0}, {srd(WS)}, s{sT0} offen sc1")
        st(f"buffer_load_dwordx4 {vr(V1,4)}, v{self.vV1}, {srd(WS)}, s{sT0} offen sc1")
        st("s_mov_b64 exec, -1\ns_waitcnt vmcnt(0)")
        st(mfma32(S[0], K, Q, vr(NM[0], 16))); st(mfma32(S[1], K, Q + 4, vr(NM[1], 16)))
        st.nop(12)
        for q in range(2):
            for r in range(16): st(f"v_exp_f32 v{S[q]+r}, v{S[q]+r}")
        st.nop(2)
        for q in range(2):
            st(smf(O[q], V0, S[q], self.vIDX)); st(smf(O[q], V1, S[q] + 8, self.vIDX))
        st(f"s_add_u32 s{sT0}, s{sT0}, 2048\ns_cmp_lt_u32 s{sT0}, {WS_KV + 131072}\ns_cbranch_scc1 L_fb2")
        st.nop(12)
        st("s_branch L_norm")

    BD = (1, 3, 5, 7, 9, 11)

    def main_phase_d(self, st):
        T, sc = self.c.tail, self.sc
        ACC, BR, AR, AC = 144, 112, 80, 16
        NAC = 2 * T + 2
        TMP = AC + 4 * NAC
        assert TMP + 8 <= 64
        STT = 64
        vL, vFZ, vB, vNM, vC1, vSD, vPOLL, vVAL = self.vK, 10, (2, 3, 4), 5, 8, 9, 12, 11
        NBR, LA, NAR = 8, 5, 8
        st(f"s_lshr_b32 s{sT0}, s{sIDX}, 4\ns_lshl_b32 s{sT1}, s{sG}, 1\ns_add_u32 s{sT1}, s{sT1}, s{sT0}")
        st(f"s_lshl_b32 s{sT1}, s{sT1}, 2\ns_add_u32 s{sA}, s{sT1}, s{sW}")
        st(f"s_lshl_b32 s{sT1}, s{sA}, 15\ns_add_u32 s{sT1}, s{sT1}, {WS_H}")
        for i in range(8): st(f"s_xor_b32 s{sP+i}, s{sT1}, {4096*i}")
        st(f"s_lshl_b32 s{sB}, s{sA}, 12\ns_add_u32 s{sB}, s{sB}, {WS_ST}")
        st(f"s_and_b32 s{sT0}, s{sIDX}, 15\ns_mul_i32 s{sC}, s{sA}, 114688\ns_mul_i32 s{sT1}, s{sT0}, 7168")
        st(f"s_add_u32 s{sC}, s{sC}, s{sT1}\ns_add_u32 s{sC}, s{sC}, {WS_HH}\ns_add_u32 s{sD}, s{sC}, 4096")
        st(f"s_lshl_b32 s{sT1}, s{sA}, 7\ns_lshl_b32 s{sT0}, s{sT0}, 2\ns_add_u32 s{sE}, s{sT1}, s{sT0}\ns_add_u32 s{sE}, s{sE}, {WS_FLG4}")
        st(f"s_add_u32 s{sF}, s{sT1}, {WS_FLG3}")
        st("v_lshrrev_b32 v13, 5, v0\nv_bfe_u32 v14, v0, 2, 2\nv_lshl_add_u32 v13, v13, 2, v14\nv_mul_u32_u24 v13, 224, v13")
        st(f"v_and_b32 v14, 3, v0\nv_lshl_add_u32 v13, v14, 3, v13\nv_bfe_u32 v14, v0, 4, 1\nv_mul_u32_u24 v14, {UOFF}, v14")
        st(f"v_add_u32 v{vB[0]}, v13, v14\nv_add_u32 v{vB[1]}, 0x10000, v{vB[0]}\nv_add_u32 v{vB[2]}, 0x20000, v{vB[0]}")
        st(f"v_and_b32 v{vPOLL}, 15, v0\nv_lshlrev_b32 v{vPOLL}, 2, v{vPOLL}")
        st.bar("BC1")
        st.bar("BC2")
        self.stamp(st, "m", "BC2")
        nk = 32 - 2 * T
        order = [(k, n) for k in range(nk) for n in range(7)] + [(k, n) for n in range(7) for k in range(nk, 32)]
        def rdB(m):
            k, n = order[m]
            b = BR + 4 * (m % NBR)
            for t in range(2):
                o = slot_addr(unit_slot(k // 2)) + (16 * (k % 2) + 8 * t) * 224 + 32 * n
                st.ds(f"ds_read_b64_tr_b16 {vr(b+2*t,2)}, v{vB[o >> 16]} offset:{o & 0xffff}", ("b", m))
        for m in range(LA): rdB(m)
        self.poll(st, "L_x3" + self.sfx, vPOLL, f"s{sF}", 13, 1, exact=True)
        self.stamp(st, "m", "x3ok", 5)
        for i in range(4):
            st.vm(f"buffer_load_dwordx4 {vr(STT+4*i,4)}, v{vL}, {srd(WS)}, s{sB} offen offset:{1024*i} sc1", "st")
        def ldA(k):
            st.vm(f"buffer_load_dwordx4 {vr(AR+4*(k % NAR),4)}, v{vL}, {srd(WS)}, s{sP + k//4} offen offset:{1024*(k % 4)} sc1", ("a", k))
        for k in range(NAR): ldA(k)
        st.bar("BD0")
        st(f"s_mov_b32 s{sT1}, 0xffff0000")
        st.wait_vm("st")
        for i in range(4): st(f"v_pk_add_f32 {vr(STT+2*i,2)}, {vr(STT+2*i,2)}, {vr(STT+8+2*i,2)}")
        for i in range(2): st(f"v_pk_add_f32 {vr(STT+2*i,2)}, {vr(STT+2*i,2)}, {vr(STT+4+2*i,2)}")
        st(f"v_pk_add_f32 {vr(STT,2)}, {vr(STT,2)}, {vr(STT+2,2)}")
        st(f"v_add_f32 v{STT}, v{STT}, v{STT+1}")
        st(f"v_mov_b32 v{STT+1}, v{STT}\ns_nop 1")
        st(f"v_permlane32_swap_b32 v{STT}, v{STT+1}")
        st(f"v_mul_f32 v{vNM}, {f32(-1.0/512)}, v{STT}")
        acslot = lambda k: AC + 4 * (k % 2 if k < nk else 2 + k - nk)
        def center(k):
            a, d = AR + 4 * (k % NAR), acslot(k)
            ops = [lambda k=k: st.wait_vm(("a", k))]
            for r in range(4):
                ops.append(f"v_lshlrev_b32 v{TMP+2*r}, 16, v{a+r}")
                ops.append(f"v_and_b32 v{TMP+2*r+1}, s{sT1}, v{a+r}")
            for r in range(8): ops.append(f"v_add_f32 v{TMP+r}, v{vNM}, v{TMP+r}")
            for r in range(4): ops.append(f"v_cvt_pk_bf16_f32 v{d+r}, v{TMP+2*r}, v{TMP+2*r+1}")
            return ops
        def run(op): op() if callable(op) else st(op)
        for op in center(0): run(op)
        stats = [f"v_mul_f32 v{STT+2}, v{vNM}, v{vNM}",
                 f"v_fma_f32 v{STT+2}, v{STT+1}, s{sT0}, -v{STT+2}",
                 f"v_max_f32 v{STT+2}, 0, v{STT+2}",
                 f"v_add_f32 v{STT+2}, {f32(1e-5)}, v{STT+2}",
                 f"v_rsq_f32 v{STT+3}, v{STT+2}",
                 "s_nop 0",
                 f"v_mul_f32 v{vSD}, v{STT+2}, v{STT+3}",
                 f"v_mul_f32 v{vC1}, {f32(-1.4426950408889634)}, v{STT+3}"]
        st(f"s_mov_b32 s{sT0}, {f32(1.0/512)}")
        st("s_nop 0")
        def epilogue(n):
            a = ACC + 16 * n
            ops = [f"v_mul_f32 v{a+j}, v{vC1}, v{a+j}" for j in range(8)]
            ops += [f"v_exp_f32 v{a+j}, v{a+j}" for j in range(8)]
            ops += [f"v_fma_f32 v{a+j}, v{a+j}, v{vSD}, v{vSD}" for j in range(8)]
            ops += [f"v_rcp_f32 v{a+j}, v{a+j}" for j in range(8)]
            if n >= self.c.flag0:
                ops.append(f"v_add_u32 v{vVAL}, {n - 1 if n == self.c.flag0 else 1}, v{vVAL}")
                ops.append(lambda n=n: st.wait_vm(("hh", n - 1)))
                ops.append(lambda: st.vm(f"buffer_store_dword v{vVAL}, v{vFZ}, {srd(WS)}, s{sE} offen{sc}"))
            ops += [f"v_mul_f32 v{a+j}, v{a+j}, v{a+8+j}" for j in range(8)]
            ops += [f"v_cvt_pk_bf16_f32 v{a+8+j}, v{a+2*j}, v{a+2*j+1}" for j in range(4)]
            ops.append(lambda n=n, a=a: st.vm(f"buffer_store_dwordx4 {vr(a+8,4)}, v{vL}, {srd(WS)}, s{sC if n < 4 else sD} offen offset:{1024*(n % 4)}{' sc1' if self.c.hhsc else sc}", ("hh", n)))
            return ops
        fill = {m: [] for m in range(224)}
        extra = list(range(nk, 32))
        per = -(-len(extra) // 1) if extra else 0
        for k in range(nk):
            ops = []
            if k + 1 < nk: ops += center(k + 1)
            if k == 0: ops += stats
            j = k - (nk - 1 - len(extra))
            if k == nk - 1:
                ops += center(nk) if extra else []
            for i, op in enumerate(ops): fill[7 * k + min(5, i * 6 // len(ops))].append(op)
        base = 7 * nk
        for i, k in enumerate(extra[1:]):
            fill[base + i] += center(k)
        for n in range(1, 7):
            ops = epilogue(n - 1)
            g0 = base + 2 * T * n
            lo = 0 if T == 0 else min(2, 2 * T - 1)
            ng = max(1, 2 * T - lo)
            if T == 0: continue
            if 2 * T < 4: ops = ["s_nop 7"] + ops
            for i, op in enumerate(ops): fill[g0 + lo + i * ng // len(ops)].append(op)
        for m in range(224):
            k, n = order[m]
            if m % 2 == 0: st.wait_ds(("b", min(m + 1, 223)))
            st(mfma32(ACC + 16 * n, BR + 4 * (m % NBR), acslot(k), "0" if k == 0 else None))
            if m == 0: self.stamp(st, "m", "mfma0", 4)
            if m < 7 * nk and n == 6 and k % 2 == 1 and k // 2 in self.BD:
                self.stamp(st, "m", f"arrBD{k//2}", 4)
                st.bar(f"BD{k//2}")
            if m == 7 * nk + 2 * T * self.c.etile: st.bar("BDE")
            if m == 7 * nk: self.stamp(st, "m", "tail0", 4)
            if m == 7 * nk + 2 * T: self.stamp(st, "m", "tail1", 4)
            if m < 7 * nk and n == 6 and k + NAR < 32: ldA(k + NAR)
            if m + LA < 224: rdB(m + LA)
            for op in fill[m]: run(op)
            if base <= m < base + len(extra) - 1: st("s_nop 1")
        self.stamp(st, "m", "Dmfma_end", 13)
        st.nop(12)
        for n in (range(7) if T == 0 else [6]):
            for op in epilogue(n): run(op)
        st(f"v_add_u32 v{vVAL}, 1, v{vVAL}")
        st.wait_vm()
        st(f"buffer_store_dword v{vVAL}, v{vFZ}, {srd(WS)}, s{sE} offen{sc}")
        self.stamp(st, "m", "end", 13)
        self.dump_stamps(st, "m")
        st("s_endpgm")

    def helper_phase_a(self, st):
        self.stamp(st, "h", "start", 15)
        XP, XF, AC = 128, 160, 224
        st("s_setprio 2")
        if self.c.padto: st("s_memrealtime s[100:101]")
        st(f"s_getpc_b64 {sr(CODE,2)}")
        st.label("L_pc")
        st(f"s_sub_u32 s{CODE}, s{CODE}, L_pc-{NAME}_kernel\ns_subb_u32 s{CODE+1}, s{CODE+1}, 0")
        st(f"s_mov_b32 s{CODE+2}, L_codeend-{NAME}_kernel\ns_mov_b32 s{CODE+3}, 0x20000")
        st(f"s_lshl_b32 s{sT0}, s{sIDX}, 2\ns_add_u32 s{sT0}, s{sT0}, s{sW}\ns_lshl_b32 s{sT0}, s{sT0}, 9")
        st(f"v_and_b32 v2, 3, v0\nv_lshlrev_b32 v2, 7, v2")
        st.vm(f"buffer_load_dword v120, v2, {srd(CODE)}, s{sT0} offen")
        st(f"v_lshrrev_b32 v2, 3, v0\nv_and_b32 v3, 7, v0\nv_lshlrev_b32 v4, 10, v2\nv_lshl_add_u32 v4, v3, 4, v4")
        st(f"s_lshl_b32 s{sT0}, s{sRB}, 15\ns_lshl_b32 s{sT1}, s{sW}, 13\ns_add_u32 s{sA}, s{sT0}, s{sT1}")
        st(f"v_lshlrev_b32 v1, 4, v0")
        st("s_waitcnt lgkmcnt(0)")
        for i in range(8):
            st.vm(f"buffer_load_dwordx4 {vr(XP+4*i,4)}, v4, {srd(X)}, s{sA} offen offset:{128*i}", ("x", i))
        st(f"s_cmp_ge_u32 s{sCB}, 2\ns_cselect_b32 s{WKVS}, s{sP}, s{WKVS}\ns_cselect_b32 s{WKVS+1}, s{sP+1}, s{WKVS+1}")
        st(f"s_lshl_b32 s{sT0}, s{sW}, 12\ns_add_u32 m0, s{sT0}, {WKV}")
        self.epoch_load(st)
        for b, off in ((WG, 48), (WU, 56), (WD, 64), (OUT, 72)):
            st(f"s_load_dwordx2 {sr(b,2)}, s[0:1], {off}")
        for i in range(4):
            st.vm(f"buffer_load_dwordx4 v1, {srd(WKVS)}, s{sT0} offen offset:{1024*i} lds", "wkv")
        st.bar("B0")
        st(f"s_getreg_b32 s{sXCC}, hwreg(HW_REG_XCC_ID, 0, 4)")
        st(f"v_bfe_u32 v5, v0, 1, 3\nv_mul_u32_u24 v5, {TILE}, v5\nv_and_b32 v6, 1, v0\nv_lshl_add_u32 v7, v6, 4, v5")
        st(f"v_cmp_eq_u32 vcc, 0, v6\nv_mov_b32 v8, s{sONE}\ns_nop 0\nv_cndmask_b32 v8, 0, v8, vcc\nv_mov_b32 v9, v8\nv_mov_b32 v10, v8\nv_mov_b32 v11, v8")
        st.ds("ds_write_b128 v7, v[8:11] offset:2048")
        st(f"v_mul_u32_u24 v5, 528, v3\ns_lshl_b32 s{sT0}, s{sW}, 7\ns_add_u32 s{sT0}, s{sT0}, {XN}\nv_lshl_add_u32 v5, v2, 4, v5\nv_add_u32 v27, s{sT0}, v5")
        self.helper_setup(st)
        for i in range(8):
            st.wait_vm(("x", i))
            for r in range(4):
                st(f"v_dot2_f32_bf16 v{AC+r}, v{XP+4*i+r}, s{sONE}, {'0' if i == 0 else 'v%d' % (AC+r)}")
        self.stamp(st, "h", "xland")
        def red8(a):
            for m in ("quad_perm:[1,0,3,2]", "quad_perm:[2,3,0,1]", "row_half_mirror"):
                st(f"s_nop 1\nv_add_f32_dpp v{a}, v{a}, v{a} {m} row_mask:0xf bank_mask:0xf")
        st("s_nop 2")
        st(f"v_pk_add_f32 {vr(AC,2)}, {vr(AC,2)}, {vr(AC+2,2)}\nv_add_f32 v{AC}, v{AC}, v{AC+1}")
        red8(AC)
        st(f"v_mul_f32 v{AC}, {f32(-1.0/512)}, v{AC}")
        for r in range(32):
            st(f"v_dot2_f32_bf16 v{XF+2*r}, v{XP+r}, s{sLO}, v{AC}\nv_dot2_f32_bf16 v{XF+2*r+1}, v{XP+r}, s{sHI}, v{AC}")
        for r in range(32):
            d = AC + 2 + 2 * (r % 2)
            if r < 2: st(f"v_pk_mul_f32 {vr(d,2)}, {vr(XF+2*r,2)}, {vr(XF+2*r,2)}")
            else: st(f"v_pk_fma_f32 {vr(d,2)}, {vr(XF+2*r,2)}, {vr(XF+2*r,2)}, {vr(d,2)}")
        st(f"v_pk_add_f32 {vr(AC+2,2)}, {vr(AC+2,2)}, {vr(AC+4,2)}\nv_add_f32 v{AC+2}, v{AC+2}, v{AC+3}")
        red8(AC + 2)
        st(f"v_mov_b32 v{AC+3}, {f32(1e-5)}\nv_fmac_f32 v{AC+3}, {f32(1.0/512)}, v{AC+2}\nv_rsq_f32 v{AC+2}, v{AC+3}\ns_nop 0")
        for i in range(8):
            for r in range(4):
                st(f"v_pk_mul_f32 {vr(XF+8*i+2*r,2)}, {vr(XF+8*i+2*r,2)}, {vr(AC+2,2)} op_sel_hi:[1,0]")
            for r in range(4):
                st(f"v_cvt_pk_bf16_f32 v{XP+4*i+r}, v{XF+8*i+2*r}, v{XF+8*i+2*r+1}")
            st.ds(f"ds_write_b128 v27, {vr(XP+4*i,4)} offset:{4224*i}")
        st.wait_vm()
        st.wait_ds()
        st.bar("B1")
        self.stamp(st, "h", "B1")
        self.epoch_make(st)
        st(f"s_add_u32 s{sXCC}, s{sXCC}, s{sEP}")
        st("v_lshrrev_b32 v27, 4, v0\nv_lshlrev_b32 v27, 14, v27\nv_and_b32 v14, 15, v0\nv_lshl_add_u32 v27, v14, 7, v27")
        st(f"s_cmp_lg_u32 s{sW}, 0\ns_cbranch_scc1 L_nokv")
        self.kv_job(st)
        st.label("L_nokv")

    def kv_job(self, st):
        WR, XR, AC = 160, 176, 192
        st(f"v_lshrrev_b32 v12, 4, v0\nv_and_b32 v13, 15, v0\nv_lshlrev_b32 v14, 8, v12\nv_lshl_add_u32 v14, v13, 3, v14")
        st(f"s_and_b32 s{sT0}, s{sCB}, 1\ns_lshl_b32 s{sT1}, s{sT0}, 8\ns_add_u32 s{sT2}, s{sT1}, {XN}")
        st(f"v_mul_u32_u24 v15, 528, v12\nv_lshl_add_u32 v15, v13, 4, v15\nv_add_u32 v15, s{sT2}, v15")
        st(f"s_cmp_ge_u32 s{sCB}, 2\ns_cbranch_scc1 L_vjob")
        for job in ("k", "v"):
            if job == "v": st.label("L_vjob")
            LA = 3
            for j in range(16 + LA):
                if j < 16:
                    w, x = WR + 4 * (j % 4), XR + 4 * (j % 4)
                    st.ds(f"ds_read_b64_tr_b16 {vr(w,2)}, v14 offset:{WKV + 1024*j}")
                    st.ds(f"ds_read_b64_tr_b16 {vr(w+2,2)}, v14 offset:{WKV + 1024*j + 128}")
                    st.ds(f"ds_read_b128 {vr(x,4)}, v15 offset:{2112*j}", ("rd", j))
                m = j - LA
                if m >= 0:
                    st.wait_ds(("rd", m))
                    w, x = WR + 4 * (m % 4), XR + 4 * (m % 4)
                    a, b = (w, x) if job == "k" else (x, w)
                    st(mfma16(AC, a, b, "0" if m == 0 else None))
            if job == "k":
                st(f"v_and_b32 v14, 1, v12\nv_lshlrev_b32 v14, 9, v14\nv_lshl_add_u32 v14, v13, 4, v14\nv_lshrrev_b32 v15, 1, v12")
                st(f"v_lshl_add_u32 v14, v15, 3, v14\nv_add_u32 v14, s{sT1}, v14")
                st("s_branch L_kvst")
            else:
                st(f"v_lshrrev_b32 v14, 1, v12\nv_lshlrev_b32 v14, 8, v14\nv_lshl_add_u32 v14, v13, 4, v14\nv_and_b32 v15, 1, v12")
                st(f"s_lshl_b32 s{sT1}, s{sT0}, 9\ns_add_u32 s{sT1}, s{sT1}, 1024")
                st(f"v_lshl_add_u32 v14, v15, 3, v14\nv_add_u32 v14, s{sT1}, v14")
        st.label("L_kvst")
        st(f"s_lshl_b32 s{sT0}, s{sRB}, 11\ns_add_u32 s{sT0}, s{sT0}, {WS_KV}")
        st(f"v_cvt_pk_bf16_f32 v{AC+4}, v{AC}, v{AC+1}\nv_cvt_pk_bf16_f32 v{AC+5}, v{AC+2}, v{AC+3}")
        st(f"s_add_u32 s{sT1}, s{sT0}, {WS_KVL - WS_KV}")
        st(f"buffer_store_dwordx2 {vr(AC+4,2)}, v14, {srd(WS)}, s{sT1} offen")
        st(f"buffer_store_dwordx2 {vr(AC+4,2)}, v14, {srd(WS)}, s{sT0} offen sc1")
        st(f"s_lshl_b32 s{sT0}, s{sG}, 5\ns_add_u32 s{sT0}, s{sT0}, s{sIDX}\ns_lshl_b32 s{sT1}, s{sT0}, 2\ns_add_u32 s{sT1}, s{sT1}, {WS_FLGL}")
        st(f"s_lshl_b32 s{sT0}, s{sT0}, 7\ns_add_u32 s{sT0}, s{sT0}, {WS_FLG1}")
        st(f"v_mov_b32 v15, s{sXCC}\nv_mov_b32 v13, s{sEP1}\ns_mov_b64 exec, 1")
        st("s_waitcnt vmcnt(1)")
        st(f"buffer_store_dword v15, off, {srd(WS)}, s{sT1}")
        st("s_waitcnt vmcnt(1)")
        st(f"buffer_store_dword v13, off, {srd(WS)}, s{sT0} sc1")
        st("s_mov_b64 exec, -1")

    WOR, WDR = 128, 48

    def gu_voffsets(self, st, base, tmp):
        st(f"s_and_b32 s{sT0}, s{sIDX}, 15\ns_mul_i32 s{sT0}, s{sT0}, 224")
        for p in range(7):
            st(f"v_add_u32 v{tmp}, {64*p}, v0\nv_mul_u32_u24 v{tmp+1}, 4682, v{tmp}\nv_lshrrev_b32 v{tmp+1}, 16, v{tmp+1}")
            st(f"v_mul_u32_u24 v{tmp+1}, 3360, v{tmp+1}\nv_lshlrev_b32 v{tmp}, 4, v{tmp}\nv_add3_u32 v{base+p}, v{tmp}, v{tmp+1}, s{sT0}")

    pace = None

    def paced(self, st):
        if self.pace is not None: st(f"s_waitcnt vmcnt({self.pace})")

    def gu_pair(self, st, u0, vbase, single=False):
        a0 = slot_addr(unit_slot(u0))
        lab = f"L_gu{u0}"
        if single:
            st(f"s_cmp_ge_u32 s{sW}, 2\ns_cbranch_scc1 {lab}")
        else:
            assert slot_addr(unit_slot(u0 + 1)) == a0 + SLOT
        if u0 < 8:
            st(f"s_xor_b32 s{sT2}, s{sP+4}, {u0}\ns_mul_i32 s{sT1}, s{sT2}, 114688\ns_add_u32 s{sT1}, s{sT1}, s{sP+5}")
            st(f"s_mul_i32 s{sT2}, s{sT2}, {SLOT}\ns_add_u32 s{sT2}, s{sT2}, s{sP+6}")
            sb, a0 = sT2, SLOT0
        else:
            st(f"s_add_u32 s{sT1}, s{sP+5}, {u0 * 114688}")
            sb = sP + 6
        for p in range(7):
            st(f"s_add_u32 m0, s{sb}, {a0 + 1024*p}")
            if self.pace is None: st("s_nop 0")
            self.paced(st)
            st.vm(f"buffer_load_dwordx4 v{vbase+p}, {srd(WG)}, s{sT1} offen lds", ("gu", u0), cond=single)
        if single: st.label(lab)

    def wd_dma(self, st, j, addr, vD, sbase):
        p, t = j % 4, j // 4
        st(f"s_add_u32 m0, s{sbase}, {addr}\ns_add_u32 s{sT1}, s{sP+7}, {(7*p + t) * 16384}")
        self.paced(st)
        st.vm(f"buffer_load_dwordx4 v{vD}, {srd(WD)}, s{sT1} offen lds")
        st(f"s_add_u32 m0, s{sbase}, {addr + 1024}\ns_add_u32 s{sT1}, s{sT1}, 8192")
        self.paced(st)
        st.vm(f"buffer_load_dwordx4 v{vD}, {srd(WD)}, s{sT1} offen lds", ("wd", j))

    def wd_read(self, st, j, reg, va, off):
        for nt in range(2):
            for t in range(2):
                st.ds(f"ds_read_b64_tr_b16 {vr(reg+4*nt+2*t,2)}, v{va[nt]} offset:{off + 1024*t}", ("wdr", j))

    def wd_addr(self, st, vD, va, t0):
        st(f"v_lshrrev_b32 v{t0}, 3, v0\nv_bfe_u32 v{t0+1}, v0, 4, 1\nv_lshlrev_b32 v{t0+1}, 2, v{t0+1}\nv_and_b32 v{vD}, 7, v0")
        st(f"v_xor_b32 v{vD}, v{vD}, v{t0+1}\nv_lshlrev_b32 v{vD}, 4, v{vD}\nv_lshl_add_u32 v{vD}, v{t0}, 10, v{vD}")
        st(f"v_lshrrev_b32 v{t0}, 5, v0\nv_bfe_u32 v{t0+1}, v0, 2, 2\nv_lshl_add_u32 v{t0}, v{t0}, 2, v{t0+1}\nv_lshlrev_b32 v{t0}, 7, v{t0}")
        st(f"v_bfe_u32 v{t0+1}, v0, 3, 1\ns_and_b32 s{sT0}, s{sW}, 1\nv_xor_b32 v{t0+1}, s{sT0}, v{t0+1}\nv_lshl_add_u32 v{t0}, v{t0+1}, 6, v{t0}")
        st(f"v_bfe_u32 v{t0+1}, v0, 4, 1\nv_lshl_add_u32 v{t0}, v{t0+1}, 5, v{t0}\nv_and_b32 v{t0+1}, 3, v0\nv_lshl_add_u32 v{va[0]}, v{t0+1}, 3, v{t0}")
        st(f"v_xor_b32 v{va[1]}, 64, v{va[0]}")

    def helper_setup(self, st):
        vL, vP, vR = 1, 2, 3
        st(f"v_and_b32 v{vP}, 7, v0\ns_lshl_b32 s{sT0}, s{sW}, 3\nv_add_u32 v{vP}, s{sT0}, v{vP}\nv_lshlrev_b32 v{vP}, 7, v{vP}")
        st(f"v_lshrrev_b32 v{vR}, 3, v0\nv_lshl_add_u32 v{vP}, v{vR}, 12, v{vP}")
        vWO, vTR, vWD, vWA, GU = 4, 5, 6, (12, 13), 16
        st(f"v_lshrrev_b32 v14, 2, v0\nv_lshlrev_b32 v14, 10, v14\nv_and_b32 v15, 3, v0\nv_lshlrev_b32 v15, 4, v15")
        st(f"s_lshl_b32 s{sT0}, s{sCB}, 8\ns_lshl_b32 s{sT1}, s{sW}, 6\ns_add_u32 s{sT0}, s{sT0}, s{sT1}")
        st(f"v_add3_u32 v{vWO}, v14, v15, s{sT0}")
        st(f"s_mul_i32 s{sE}, s{sW}, {STGW}\ns_add_u32 s{sE}, s{sE}, {STG}")
        st(f"v_lshrrev_b32 v14, 5, v0\nv_lshlrev_b32 v14, 8, v14\nv_bfe_u32 v15, v0, 2, 2\nv_lshl_add_u32 v14, v15, 6, v14")
        st(f"v_bfe_u32 v15, v0, 4, 1\nv_lshl_add_u32 v14, v15, 5, v14\nv_and_b32 v15, 3, v0\nv_lshl_add_u32 v14, v15, 3, v14")
        st(f"v_add_u32 v{vTR}, s{sE}, v14")
        self.wd_addr(st, vWD, vWA, 14)
        st(f"v_add_u32 v24, s{sE}, v{vWA[0]}\nv_add_u32 v25, s{sE}, v{vWA[1]}")
        self.gu_voffsets(st, GU, 14)
        st(f"s_lshr_b32 s{sT0}, s{sW}, 1\ns_mul_i32 s{sP+5}, s{sT0}, 114688\ns_lshr_b32 s{sP+4}, s{sIDX}, 4\ns_lshl_b32 s{sP+4}, s{sP+4}, 1")
        st(f"s_mul_i32 s{sT0}, s{sT0}, {SLOT}\ns_and_b32 s{sT1}, s{sW}, 1\ns_mul_i32 s{sT1}, s{sT1}, {UOFF}\ns_add_u32 s{sP+6}, s{sT0}, s{sT1}")
        st(f"s_mul_i32 s{sT0}, s{sW}, {28*16384}\ns_and_b32 s{sT1}, s{sIDX}, 7\ns_lshl_b32 s{sT1}, s{sT1}, 7\ns_add_u32 s{sP+7}, s{sT0}, s{sT1}")
        st(f"v_mov_b32 v26, {MISC}\nv_lshlrev_b32 v23, 7, v0")

    def helper_attention(self, st):
        vL, vP, vR = 1, 2, 3
        st(f"s_lshl_b32 s{sT1}, s{sG}, 12\ns_add_u32 s{sB}, s{sT1}, {WS_FLG1}")
        st(f"s_mul_i32 s{sC}, s{sW}, {2*TILE}\ns_lshl_b32 s{sD}, s{sW}, 12\ns_add_u32 s{sD}, s{sD}, {WS_KV}")
        st(f"s_bitcmp1_b32 s{sW}, 0\ns_cselect_b32 s{WG}, s{WU}, s{WG}\ns_cselect_b32 s{WG+1}, s{WU+1}, s{WG+1}")
        st(f"s_cmp_lt_u32 s{sW}, 2\ns_cbranch_scc1 L_x1skip")
        st(f"s_and_b32 s{sT2}, s{sW}, 1\ns_lshl_b32 s{sT0}, s{sT2}, 4\nv_and_b32 v12, 15, v0\nv_add_u32 v12, s{sT0}, v12")
        st(f"v_lshlrev_b32 v14, 7, v12\nv_lshlrev_b32 v12, 2, v12\ns_lshl_b32 s{sT1}, s{sG}, 7\ns_add_u32 s{sT1}, s{sT1}, {WS_FLGL}")
        st(f"s_lshl_b32 s{sE}, s{sG}, 14\ns_lshl_b32 s{sT0}, s{sT2}, 13\ns_add_u32 s{sE}, s{sE}, s{sT0}\ns_add_u32 s{sE}, s{sE}, {WS_KVL}")
        st(f"s_mul_i32 s{sT0}, s{sT2}, {4*TILE}\ns_add_u32 m0, s{sT0}, {RING}")
        st(f"s_lshl_b32 s{sT0}, s{sT2}, 2\ns_add_u32 s{sT0}, s{sT0}, {MISC}\nv_mov_b32 v15, s{sT0}")
        st(f"v_mov_b32 v13, 1\ns_mov_b32 s{sCNT}, {SPINL}")
        st.label("L_x1l")
        st(f"buffer_load_dword v{vR}, v12, {srd(WS)}, s{sT1} offen sc1")
        st.wait_vm()
        st(f"v_cmp_ne_u32 vcc, s{sXCC}, v{vR}\ns_cbranch_vccz L_x1a_ok")
        st(f"s_sub_u32 s{sCNT}, s{sCNT}, 1\ns_cbranch_scc0 L_x1l")
        st(f"s_sub_u32 s{sE}, s{sE}, {WS_KVL - WS_KV}\nv_mov_b32 v13, 0")
        self.poll(st, "L_x1a", 14, f"s{sB}", vR, 1, exact=True)
        for i in range(8):
            if i in (2, 6): st("s_add_u32 m0, m0, 32\ns_nop 0")
            if i == 4: st(f"s_add_u32 m0, m0, {2*TILE - 32}\ns_add_u32 s{sE}, s{sE}, 4096")
            st(f"buffer_load_dwordx4 v{vL}, {srd(WS)}, s{sE} offen offset:{1024*(i % 4)} sc1 lds")
        st("ds_write_b32 v15, v13")
        st.label("L_x1skip")
        self.stamp(st, "h", "x1own")
        def chunk(c):
            st(f"s_add_u32 s{sT0}, s{sG}, {c}\ns_and_b32 s{sT0}, s{sT0}, 7\ns_lshl_b32 s{sT0}, s{sT0}, 14")
            st(f"s_add_u32 m0, s{sC}, {RING + (c % 2) * 8 * TILE}\ns_add_u32 s{sT0}, s{sT0}, s{sD}")
            for i in range(4):
                if i == 2: st("s_add_u32 m0, m0, 32\ns_nop 0")
                st.vm(f"buffer_load_dwordx4 v{vL}, {srd(WS)}, s{sT0} offen offset:{1024*i} sc1 lds", ("kv", c))
        vWO, vTR, vWD, GU = 4, 5, 6, 16
        st(f"s_mul_i32 s{sE}, s{sW}, {STGW}\ns_add_u32 s{sE}, s{sE}, {STG}")
        st(f"s_cmp_lt_u32 s{sW}, 2\ns_cbranch_scc1 L_x1skip2")
        st.wait_vm()
        st.wait_ds()
        st.label("L_x1skip2")
        self.pad(st, 1)
        st.bar("B2")
        st.ds(f"ds_write_b128 v7, v[8:11] offset:{8*TILE + 2048}")
        st.ds("ds_read_b64 v[28:29], v26")
        st(f"s_mov_b32 s{sB}, {WS_FLG1}")
        self.poll(st, "L_x1b", vP, f"s{sB}", vR, 1, exact=True)
        self.stamp(st, "h", "x1all")
        st.wait_ds()
        self.colo_reduce(st, 28)
        def wo_dma(j, pos):
            st(f"s_add_u32 m0, s{sE}, {1024*pos}\ns_mov_b32 s{sT1}, {j*16384}")
            st.vm(f"buffer_load_dwordx4 v{vWO}, {srd(WO)}, s{sT1} offen lds", ("wo", j))
        def wo_read(j, pos):
            for t in range(2):
                st.ds(f"ds_read_b64_tr_b16 {vr(self.WOR+4*j+2*t,2)}, v{vTR} offset:{1024*pos + 512*t}")
        def endint(c):
            if c == self.c.hhint and not self.c.hhsc:
                st(f"s_lshr_b32 s{sT0}, s{sIDX}, 4\ns_lshl_b32 s{sT1}, s{sG}, 1\ns_add_u32 s{sT0}, s{sT0}, s{sT1}\ns_lshl_b32 s{sT0}, s{sT0}, 2\ns_add_u32 s{sT0}, s{sT0}, s{sW}")
                st(f"s_mul_i32 s{sT0}, s{sT0}, 114688\ns_and_b32 s{sT1}, s{sIDX}, 15\ns_mul_i32 s{sT1}, s{sT1}, 7168\ns_add_u32 s{sT0}, s{sT0}, s{sT1}\ns_add_u32 s{sT0}, s{sT0}, {WS_HH}")
                touch(WS, vT, f"s{sT0}", 56)
            st.wait_vm(("kv", c + 1))
            st.wait_ds()
            self.stamp(st, "h", f"arrBA{c}", 2)
            st.bar(f"BA{c}")
            if c + 2 < 8: chunk(c + 2)
        vT, vTD, vJ = 23, 27, 30
        def touch(buf, v, soff, lanes=64):
            if lanes < 64: st(f"s_bfm_b64 exec, {lanes}, 0")
            st.vm(f"buffer_load_dword v{vJ}, v{v}, {srd(buf)}, {soff} offen{' sc1' if buf == WS else ''}")
            if lanes < 64: st("s_mov_b64 exec, -1")
        chunk(1)
        st(f"s_lshl_b32 s{sT0}, s{sIDX}, 2\ns_add_u32 s{sT0}, s{sT0}, s{sW}\ns_lshl_b32 s{sT1}, s{sT0}, 10\ns_add_u32 s{sT1}, s{sT1}, {WS_KV}")
        touch(WS, vT, f"s{sT1}", 8)
        for j in range(14): wo_dma(j, j)
        endint(0)
        st(f"s_lshl_b32 s{sT0}, s2, 2\ns_add_u32 s{sT0}, s{sT0}, s{sW}\ns_cmp_lg_u32 s{sT0}, 0\ns_cbranch_scc1 L_noep")
        st(f"v_mov_b32 v31, s{sEP}\ns_mov_b32 s{sT1}, {WS_EPOCH}\ns_mov_b64 exec, 1")
        st.vm(f"buffer_store_dword v31, off, {srd(WS)}, s{sT1} sc1", cond=True)
        st("s_mov_b64 exec, -1")
        st.label("L_noep")
        st.wait_vm(("wo", 13))
        for j in range(14): wo_read(j, j)
        st.wait_ds()
        for j in range(14, 28): wo_dma(j, j - 14)
        st(f"s_mul_i32 s{sT1}, s{sT0}, {14*128}")
        touch(WD, vT, f"s{sT1}", 14)
        st(f"s_lshr_b32 s{sT0}, s{sT0}, 1\ns_mul_i32 s{sT1}, s{sT0}, {28*128}")
        touch(WG, vT, f"s{sT1}", 28)
        endint(1)
        st.wait_vm(("wo", 27))
        for j in range(14, 28): wo_read(j, j - 14)
        st.wait_ds()
        for j in range(28, 32): wo_dma(j, j - 28)
        for j in range(5): self.wd_dma(st, j, 4096 + 2048 * j, vWD, sE)
        endint(2)
        st.wait_vm(("wd", 4))
        for j in range(28, 32): wo_read(j, j - 28)
        for j in range(5): self.wd_read(st, j, self.WDR + 8 * j, (24, 25), 4096 + 2048 * j)
        st.wait_ds()
        for j in range(5, 10): self.wd_dma(st, j, 2048 * (j - 5), vWD, sE)
        self.gu_pair(st, 0, GU)
        endint(3)
        self.gu_pair(st, 2, GU)
        st.wait_vm(("wd", 9))
        for j in range(5, 10): self.wd_read(st, j, self.WDR + 8 * j, (24, 25), 2048 * (j - 5))
        st(f"s_lshl_b32 s{sT0}, s{sIDX}, 1\ns_lshr_b32 s{sT1}, s{sW}, 1\ns_add_u32 s{sT0}, s{sT0}, s{sT1}\ns_mul_i32 s{sA}, s{sT0}, {49*128}\ns_add_u32 s{sA}, s{sA}, {9*114688}")
        if self.c.tch & 1: touch(WG, vT, f"s{sA}", 49)
        endint(4)
        self.gu_pair(st, 4, GU)
        self.gu_pair(st, 8, GU, single=True)
        st(f"s_lshl_b32 s{sT0}, s{sRB}, 15\ns_lshl_b32 s{sT1}, s{sCB}, 13\ns_add_u32 s{sT0}, s{sT0}, s{sT1}\ns_lshl_b32 s{sT1}, s{sW}, 11\ns_add_u32 s{sT0}, s{sT0}, s{sT1}")
        st(f"s_add_u32 s{sT1}, s{sT0}, {WS_O}")
        touch(WS, vT, f"s{sT1}", 16)
        st(f"s_add_u32 s{sT1}, s{sT0}, {WS_H}")
        touch(WS, vT, f"s{sT1}", 16)
        st(f"s_lshr_b32 s{sT1}, s{sT0}, 3\ns_add_u32 s{sT1}, s{sT1}, {WS_ST}")
        touch(WS, vT, f"s{sT1}", 2)
        st(f"s_min_u32 s{sT0}, s{sW}, 2\ns_lshl_b32 s{sT0}, s{sT0}, 13\ns_lshl_b32 s{sT1}, s{sRB}, 7\ns_add_u32 s{sT1}, s{sT1}, s{sT0}\ns_add_u32 s{sT1}, s{sT1}, {WS_FLG2}")
        touch(WS, vT, f"s{sT1}", 1)
        endint(5)
        self.gu_pair(st, 6, GU)
        st(f"s_add_u32 s{sA}, s{sA}, {64*49*128}")
        if self.c.tch & 2: touch(WG, vT, f"s{sA}", 49)
        st(f"s_lshl_b32 s{sT0}, s{sIDX}, 2\ns_add_u32 s{sT0}, s{sT0}, s{sW}\ns_lshr_b32 s{sT1}, s{sT0}, 3\ns_mul_i32 s{sT1}, s{sT1}, 114688")
        st(f"s_and_b32 s{sT0}, s{sT0}, 7\ns_lshl_b32 s{sT0}, s{sT0}, 11\ns_add_u32 s{sA}, s{sT0}, s{sT1}\ns_add_u32 s{sA}, s{sA}, {2*16384}")
        if self.c.tch & 4: touch(WD, vTD, f"s{sA}", 32)
        endint(6)
        st(f"s_add_u32 s{sA}, s{sA}, {2*16384}")
        if self.c.tch & 8: touch(WD, vTD, f"s{sA}", 48)
        st(f"v_and_b32 v14, 31, v0\nv_lshlrev_b32 v14, 10, v14\nv_lshrrev_b32 v15, 5, v0\nv_lshl_add_u32 v14, v15, 3, v14")
        st(f"s_lshl_b32 s{sT0}, s{sRB}, 15\ns_lshl_b32 s{sT1}, s{sCB}, 8\ns_add_u32 s{sT0}, s{sT0}, s{sT1}\ns_lshl_b32 s{sT1}, s{sW}, 6\ns_add_u32 s{sT0}, s{sT0}, s{sT1}")
        for q in range(4):
            st.vm(f"buffer_load_dwordx2 {vr(4+2*q,2)}, v14, {srd(X)}, s{sT0} offen offset:{16*q}")
        self.stamp(st, "h", "arrBA7", 2)
        st.bar("BA7")
        self.stamp(st, "h", "BA7")

    def helper_phase_c(self, st):
        vL, vP, vR, XR, ACC, BRG = 1, 2, 3, 4, 16, 32
        st(f"v_and_b32 v{vP}, 3, v0\nv_lshlrev_b32 v{vP}, 2, v{vP}")
        st(f"s_lshl_b32 s{sT0}, s{sRB}, 7\ns_lshl_b32 s{sT1}, s{sW}, 4\ns_add_u32 s{sB}, s{sT0}, s{sT1}\ns_add_u32 s{sB}, s{sB}, {WS_FLG2}")
        st(f"s_lshl_b32 s{sT1}, s{sCB}, 4\ns_add_u32 s{sT0}, s{sT0}, s{sT1}\ns_lshl_b32 s{sT1}, s{sW}, 2\ns_add_u32 s{sT0}, s{sT0}, s{sT1}\ns_add_u32 s{sF}, s{sT0}, {WS_FLG3}")
        st(f"s_lshl_b32 s{sT0}, s{sRB}, 15\ns_lshl_b32 s{sT2}, s{sW}, 13\ns_add_u32 s{sC}, s{sT0}, s{sT2}\ns_add_u32 s{sC}, s{sC}, {WS_O}\ns_add_u32 s{sD}, s{sC}, 4096")
        st(f"s_lshl_b32 s{sT1}, s{sCB}, 13\ns_add_u32 s{sT0}, s{sT0}, s{sT1}\ns_lshl_b32 s{sT1}, s{sW}, 11\ns_add_u32 s{sT0}, s{sT0}, s{sT1}\ns_add_u32 s{sA}, s{sT0}, {WS_H}")
        st(f"s_lshl_b32 s{sT0}, s{sRB}, 12\ns_lshl_b32 s{sT1}, s{sCB}, 10\ns_add_u32 s{sT0}, s{sT0}, s{sT1}\ns_lshl_b32 s{sT1}, s{sW}, 2\ns_add_u32 s{sT0}, s{sT0}, s{sT1}\ns_add_u32 s{sE}, s{sT0}, {WS_ST}")
        st(f"s_add_u32 m0, s{sT2}, {RING}")
        self.poll(st, "L_x2", vP, f"s{sB}", vR, 1, exact=True)
        self.pad(st, 2)
        self.stamp(st, "h", "x2ok", 3)
        for i in range(8):
            if i == 4: st("s_add_u32 m0, m0, 4096\ns_nop 0")
            st.vm(f"buffer_load_dwordx4 v{vL}, {srd(WS)}, s{sC if i < 4 else sD} offen offset:{1024*(i % 4)} sc1 lds")
        st(f"v_cmp_eq_u32 vcc, 0, v0\nv_mov_b32 v14, 0x80000000\nv_mov_b32 v15, s{sEP1}\nv_cndmask_b32_e64 v14, v14, 0, vcc")
        st.wait_vm()
        st.bar("BC1")
        LA = 3
        for j in range(32 + LA):
            if j < 32: st.ds(f"ds_read_b128 {vr(BRG+4*(j % 4),4)}, v{vL} offset:{RING + 1024*j}", ("o", j))
            m = j - LA
            if m >= 0:
                st.wait_ds(("o", m))
                st(mfma32(ACC, self.WOR + 4 * m, BRG + 4 * (m % 4), "0" if m == 0 else None))
        st.bar("BC2")
        st(f"s_cmp_eq_u32 s{sCOLO}, {2 if self.c.force_slow else 1}\ns_cbranch_scc0 L_c_slow")
        self.c_epilogue(st, "")
        st.label("L_c_done")
        self.stamp(st, "h", "hflag")
        tc = self.tailcode
        tc.label("L_c_slow")
        self.c_epilogue(tc, " sc1")
        tc("s_branch L_c_done")

    def c_epilogue(self, st, sc):
        vL, XR, ACC, BRG = 1, 4, 16, 32
        st.nop(9)
        for r in range(8):
            st(f"v_dot2_f32_bf16 v{ACC+2*r}, v{XR+r}, s{sLO}, v{ACC+2*r}\nv_dot2_f32_bf16 v{ACC+2*r+1}, v{XR+r}, s{sHI}, v{ACC+2*r+1}")
        for r in range(8):
            st(f"v_cvt_pk_bf16_f32 v{BRG+r}, v{ACC+2*r}, v{ACC+2*r+1}")
            if r % 4 == 3:
                st.vm(f"buffer_store_dwordx4 {vr(BRG+r-3,4)}, v{vL}, {srd(WS)}, s{sA} offen offset:{1024*(r//4)}{sc}")
        for r in range(8):
            st(f"v_dot2_f32_bf16 v{ACC}, v{BRG+r}, s{sONE}, {'0' if r == 0 else 'v%d' % ACC}")
            st(f"v_dot2_f32_bf16 v{ACC+1}, v{BRG+r}, v{BRG+r}, {'0' if r == 0 else 'v%d' % (ACC+1)}")
        st("s_nop 2")
        st(f"v_permlane32_swap_b32 v{ACC}, v{ACC+1}\nv_add_f32 v{ACC}, v{ACC}, v{ACC+1}")
        st.vm(f"buffer_store_dword v{ACC}, v{vL}, {srd(WS)}, s{sE} offen{sc}")
        st.wait_vm()
        st.vm(f"buffer_store_dword v15, v14, {srd(WS)}, s{sF} offen{sc}")

    def helper_phase_de(self, st):
        vL, vP, vR = 1, 2, 3
        vWD, vWA, vWH, GU = 4, (12, 13), (5, 6), 192
        self.gu_voffsets(st, GU, 14)
        self.wd_addr(st, vWD, vWA, 14)
        st(f"s_lshl_b32 s{sE}, s{sW}, 11")
        st(f"v_add_u32 v{vWA[0]}, s{sE}, v{vWA[0]}\nv_add_u32 v{vWA[1]}, s{sE}, v{vWA[1]}")
        st(f"v_add_u32 v{vWH[0]}, {STG}, v{vWA[0]}\nv_add_u32 v{vWH[1]}, {STG}, v{vWA[1]}")
        place = lambda i: STG + 8192 * i if i < 7 else RING + 8192 * (i - 7)
        where = {}
        def dma(j, i):
            where[j] = i
            self.wd_dma(st, j, place(i), vWD, sE)
        def read(j, reg):
            i = where[j]
            if i < 7: self.wd_read(st, j, reg, vWH, 8192 * i)
            else: self.wd_read(st, j, reg, vWA, place(i))
        wreg = {j: self.WDR + 8 * j for j in range(18)}
        st.bar("BD0")
        self.pace = self.c.pace
        self.gu_pair(st, 9, GU)
        self.stamp(st, "h", "arrBD1", 4)
        st.bar("BD1")
        self.gu_pair(st, 11, GU)
        self.stamp(st, "h", "arrBD3", 4)
        st.bar("BD3")
        self.gu_pair(st, 13, GU)
        self.stamp(st, "h", "arrBD5", 4)
        st.bar("BD5")
        self.gu_pair(st, 15, GU, single=True)
        dma(10, 0)
        st.wait_vm(("gu", 9))
        self.stamp(st, "h", "arrBD7", 4)
        st.bar("BD7")
        for j in range(11, 15): dma(j, j - 10)
        st.wait_vm(("wd", 10))
        read(10, wreg[10]); st.wait_ds()
        dma(15, 0)
        self.stamp(st, "h", "arrBD9", 4)
        st.bar("BD9")
        dma(16, 5); dma(17, 6); dma(18, 7)
        st.wait_vm(("wd", 15))
        for j in range(11, 16): read(j, wreg[j])
        st.wait_ds()
        for j in range(19, 24): dma(j, j - 19)
        self.stamp(st, "h", "arrBD11", 4)
        st.bar("BD11")
        dma(26, 8); dma(27, 9)
        st.wait_vm(("wd", 17))
        read(16, wreg[16]); read(17, wreg[17]); st.wait_ds()
        dma(24, 5); dma(25, 6)
        self.stamp(st, "h", "Dhelp_end", 5)
        ACC = 192
        vA = (7, 8, 9, 10)
        st(f"s_lshr_b32 s{sT0}, s{sIDX}, 3\ns_lshl_b32 s{sT1}, s{sG}, 2\ns_add_u32 s{sT0}, s{sT0}, s{sT1}\ns_lshl_b32 s{sA}, s{sT0}, 1")
        st(f"s_mul_i32 s{sT0}, s{sA}, 114688\ns_mul_i32 s{sT1}, s{sW}, {28*1024}\ns_add_u32 s{sT0}, s{sT0}, s{sT1}")
        for p in range(4): st(f"s_add_u32 s{sP+p}, s{sT0}, {WS_HH + 7168*p}")
        st(f"s_lshr_b32 s{sT2}, s{sW}, 1\ns_mul_i32 s{sT0}, s{sT2}, 114688\ns_sub_u32 s{sT1}, 114688, s{sT0}")
        st(f"v_add_u32 v{vA[0]}, s{sT0}, v{vL}\nv_add_u32 v{vA[1]}, s{sT1}, v{vL}\nv_add_u32 v{vA[2]}, 4096, v{vA[0]}\nv_add_u32 v{vA[3]}, 4096, v{vA[1]}")
        st(f"v_bfe_u32 v{vP}, v0, 2, 1\nv_lshlrev_b32 v{vP}, 7, v{vP}\nv_and_b32 v14, 3, v0\nv_lshl_add_u32 v{vP}, v14, 2, v{vP}")
        st(f"s_lshl_b32 s{sT0}, s{sA}, 7\ns_lshl_b32 s{sT1}, s{sW}, 4\ns_add_u32 s{sB}, s{sT0}, s{sT1}\ns_add_u32 s{sB}, s{sB}, {WS_FLG4}")
        st(f"s_add_u32 s{sA}, s{sA}, s{sT2}")
        st(f"s_and_b32 s{sT0}, s{sIDX}, 7\ns_lshl_b32 s{sT0}, s{sT0}, 1\ns_and_b32 s{sT1}, s{sW}, 1\ns_add_u32 s{sT0}, s{sT0}, s{sT1}")
        st(f"s_lshl_b32 s{sT1}, s{sA}, 15\ns_lshl_b32 s{sC}, s{sT0}, 11\ns_add_u32 s{sC}, s{sC}, s{sT1}\ns_add_u32 s{sC}, s{sC}, {WS_H}")
        st(f"s_lshl_b32 s{sD}, s{sT0}, 6\ns_add_u32 s{sD}, s{sD}, s{sT1}")
        free = [16, 24, 32, 40]
        areg = {}
        def ldA(j):
            p, t = j % 4, j // 4
            areg[j] = r = free.pop(0)
            for mt in range(2):
                st.vm(f"buffer_load_dwordx4 {vr(r+4*mt,4)}, v{vA[mt + (2 if t >= 4 else 0)]}, {srd(WS)}, s{sP+p} offen offset:{1024*(t % 4)} sc1", ("a", j))
        def gate(t):
            tc = self.tailcode
            st.wait_vm(("poll", t))
            self.notready(st, vR, t + 1)
            st(f"s_cbranch_vccnz L_x4s{t}")
            st.label(f"L_x4r{t}")
            tc.label(f"L_x4s{t}")
            self.poll(tc, f"L_x4p{t}", vP, f"s{sB}", vR, t + 1)
            tc(f"s_branch L_x4r{t}")
        f0 = self.c.flag0
        st.bar("BDE")
        self.poll(st, "L_x4", vP, f"s{sB}", vR, f0)
        st("s_setprio 0")
        self.stamp(st, "h", "x4ok", 13)
        for j in range(4): ldA(j)
        nextA, nextW, DEPTH = 4, 18, 7
        hres = None
        for j in range(28):
            st.wait_vm(("a", j))
            if j >= 18: st.wait_ds(("wdr", j))
            w, a = wreg[j], areg[j]
            if j % 4 == 0: self.stamp(st, "h", f"Et{j//4}", 8)
            acts = []
            def more():
                nonlocal nextA, nextW, hres
                if nextW < 28 and nextW <= j + 3 and free:
                    wreg[nextW] = free.pop(0); read(nextW, wreg[nextW]); nextW += 1
                elif nextA < 28 and nextA <= j + DEPTH and free:
                    if nextA % 4 == 0 and nextA // 4 >= f0: gate(nextA // 4)
                    if nextA % 4 == 1 and f0 <= nextA // 4 + 1 < 7:
                        st.vm(f"buffer_load_dword v{vR}, v{vP}, {srd(WS)}, s{sB} offen sc1", ("poll", nextA // 4 + 1))
                    ldA(nextA); nextA += 1
                elif nextA == 28 and hres is None and len(free) > 1:
                    hres = free.pop(0)
                    for i in range(2):
                        st.vm(f"buffer_load_dwordx4 {vr(hres+4*i,4)}, v{vL}, {srd(WS)}, s{sC} offen offset:{1024*i} sc1", "h")
            for i, (nt, mt) in enumerate(((0, 0), (0, 1), (1, 1), (1, 0))):
                st(mfma32(ACC + 16 * (nt + 2 * mt), w + 4 * nt, a + 4 * mt, "0" if j == 0 else None))
                if i < 3: more()
            free += [w, a]
            more()
        assert nextA == 28 and nextW == 28 and hres is not None
        self.stamp(st, "h", "Emfma_end", 13)
        RD = 64 if hres < 64 or hres >= 112 else 112
        assert not (RD <= hres < RD + 48)
        for a in range(1, 4):
            st(f"s_xor_b32 s{sT0}, s{sW}, {a}\ns_mul_i32 s{sT0}, s{sT0}, 12288\nv_add_u32 v{6+a}, s{sT0}, v{vL}")
        st(f"s_mul_i32 s{sT0}, s{sW}, 12288\nv_add_u32 v6, s{sT0}, v{vL}")
        st.bar("BE1")
        for a in (2, 3, 1):
            for q in range(4):
                st.ds(f"ds_write_b128 v{6+a}, {vr(ACC+16*a+4*q,4)} offset:{4096*(a-1) + 1024*q}")
        st(f"v_and_b32 v14, 31, v0\nv_lshlrev_b32 v14, 10, v14\nv_lshrrev_b32 v15, 5, v0\nv_lshl_add_u32 v14, v15, 4, v14")
        st.wait_vm("h")
        for r in range(8):
            st(f"v_dot2_f32_bf16 v{ACC+2*r}, v{hres+r}, s{sLO}, v{ACC+2*r}\nv_dot2_f32_bf16 v{ACC+2*r+1}, v{hres+r}, s{sHI}, v{ACC+2*r+1}")
        st.wait_ds()
        st.bar("BE2")
        self.stamp(st, "h", "BE2", 8)
        for q in range(4):
            for a in range(3):
                st.ds(f"ds_read_b128 {vr(RD+16*a+4*q,4)}, v6 offset:{4096*a + 1024*q}", ("r", q))
        P = ACC + 16
        for q in range(4):
            st.wait_ds(("r", q))
            for hlf in range(2):
                d = ACC + 4 * q + 2 * hlf
                s0 = RD + 4 * q + 2 * hlf
                st(f"v_pk_add_f32 {vr(s0,2)}, {vr(s0,2)}, {vr(s0+16,2)}\nv_pk_add_f32 {vr(d,2)}, {vr(d,2)}, {vr(s0+32,2)}")
            for hlf in range(2):
                d = ACC + 4 * q + 2 * hlf
                s0 = RD + 4 * q + 2 * hlf
                st(f"v_pk_add_f32 {vr(d,2)}, {vr(d,2)}, {vr(s0,2)}")
            for hlf in range(2):
                d = ACC + 4 * q + 2 * hlf
                st(f"v_cvt_pk_bf16_f32 v{P+2*q+hlf}, v{d}, v{d+1}")
            if q % 2 == 1:
                b = P + 2 * q - 2
                st(f"s_nop 1\nv_permlane32_swap_b32 v{b}, v{b+2}\nv_permlane32_swap_b32 v{b+1}, v{b+3}")
                st.vm(f"buffer_store_dwordx4 {vr(b,4)}, v14, {srd(OUT)}, s{sD} offen offset:{32*(q//2)}")
        self.pad(st, 0)
        self.stamp(st, "h", "end", 9)
        self.dump_stamps(st, "h")

    def build(self):
        p, m, h = Stream(), Stream(), Stream()
        self.prologue(p)
        m.label("L_main")
        self.main_phase_a(m); self.main_attention(m); self.main_publish_o(m); self.main_phase_d(m)
        ms = Stream()
        self.sc, self.sfx = " sc1", "_s"
        ms.label("L_main_slow")
        self.main_publish_o(ms); self.main_phase_d(ms)
        self.sc, self.sfx = "", ""
        self.helper_phase_a(h); self.helper_attention(h); self.helper_phase_c(h); self.helper_phase_de(h)
        assert m.nbar + 2 == h.nbar, (m.nbar, h.nbar)
        ref = open(f"cdna_kernels/{NAME}.s.ref").read().splitlines()
        hdr = [l for l in ref if l.startswith(";") and "@launch" not in l]
        o = "\n".join(hdr) + f"\n; @launch grid=(256,1,1) block=(512,1,1) lds={LDS_BYTES}\n"
        o += f'.amdgcn_target "amdgcn-amd-amdhsa--gfx950"\n.text\n.globl {NAME}_kernel\n.p2align 8\n.type {NAME}_kernel,@function\n{NAME}_kernel:\n'
        o += p.text() + "\n" + h.text() + "\nL_end:\n    s_endpgm\n" + m.text() + "\nL_codeend:\n" + self.tailcode.text() + "\n" + ms.text() + "\n"
        o += f""".section .rodata,"a"
.p2align 6
.amdhsa_kernel {NAME}_kernel
  .amdhsa_next_free_vgpr 256
  .amdhsa_next_free_sgpr 102
  .amdhsa_accum_offset 256
  .amdhsa_group_segment_fixed_size 0
  .amdhsa_kernarg_size 96
  .amdhsa_user_sgpr_count 2
  .amdhsa_user_sgpr_kernarg_segment_ptr 1
  .amdhsa_system_sgpr_workgroup_id_x 1
.end_amdhsa_kernel
"""
        return o

if __name__ == "__main__":
    import hazcheck, json
    cfg = Cfg()
    out = sys.argv[1]
    for a in sys.argv[2:]:
        k, v = a.split("=")
        setattr(cfg, k, int(v))
    g = Gen(cfg)
    txt = g.build()
    open(out, "w").write(txt)
    json.dump(g.nstamp, open(out + ".stamps.json", "w"))
    errs = hazcheck.check(txt)
    for e in errs[:40]: print(e)
    print(len(errs), "hazard findings;", len(txt.splitlines()), "lines")
```

```python
import sys, struct
from emit import Stream, vr, sr

NAME = "sequential_preLN__grouped_kv_mqa__glu_gated_glu__prompt"

def f32(x): return hex(struct.unpack("<I", struct.pack("<f", x))[0])

WS_KV, WS_KVL, WS_FLG1, WS_FLGL, WS_FLG2, WS_FLG3, WS_FLG4 = 0x0, 0x20000, 0x40000, 0x48000, 0x50000, 0x52000, 0x54000
WS_WB, WS_ST, WS_DIAG, WS_PM, WS_O, WS_H, WS_HH, WS_SIZE = 0x58000, 0x60000, 0xA0000, 0xC0000, 0x100000, 0x300000, 0x500000, 0xC00000
TILE, RING, FS, ODD = 2080, 0, 33280, 57856
XN, WKV, WQST, NWQ = 33280, 16640, 67072, 23
LDS_BYTES = 163840
WBL, MISC = 163072, 163584
PROG, LAND, XC, WC = MISC + 160, MISC + 176, MISC + 192, MISC + 208
STGW = 14336
STG = WBL - 4 * STGW
def slot8(i): return RING + 8192 * i if i < 4 else FS + 8192 * (i - 4)
FSLOT = (4, 5, 6, 0, 1, 2, 3, 4, 5, 7, 6, 0, 1, 2, 3, 4)
def tile_of(c, i): return (i if i < c else i + 4) if i < 3 else c + i - 3
X, WQ, WKVS, WO, WG, WU, WD, OUT, DBG, WS = 4, 8, 12, 16, 20, 24, 28, 32, 36, 40
sG, sIDX, sRB, sCB, sW, sXCC = 44, 45, 46, 47, 48, 49
sT0, sT1, sT2, sT3, sCNT = 50, 51, 52, 53, 54
sA, sB, sC, sD, sE = 55, 56, 57, 58, 59
sONE, sLO, sHI = 60, 61, 62
sF = 63
CODE = 64
sP = 68
mO, mPM, mF2, mF3, mF4, mST, mHH0, mHH1, mRB, mCHK, mHO, mKG, mKL, mFG, mFL = range(20, 35)
eO = WQ
sSTAMP = 76
SPIN = 1 << 17
SPINL = 96
sCOLO = 3
WS_EPOCH = 0x48400
sEP = DBG
sEP1 = DBG + 1
def srd(b): return sr(b, 4)

class Cfg:
    diag = False
    tail = 7
    force_fallback = False
    force_slow = False
    npre = 8
    nearly = 80
    tq = 8
    ndeep = 12
    sec = 2
    wo_early = 1
    lfat = 6
    gfat = 7
    jx = 10
    pace = 5
    lag = 24
    pprio = 2
    fexec = 0
    dplan = ("F3 F4 F5 F6 L5 P2 F7 P3 F8 L7 F9 P4 F10 L9 W10>8 P5 F11 W11>9 P6 F12 P7 F13 W12>10 R10,11 W13>8 W14>9 P8 F14 W15>11 "
             "P9 F15 T W16>12 R12,13,14 W17>8 L16 W18>9 W19>10 R15,16 W20>11 W21>12 R17 W22>8 P20 W23>13 W24>14 W25>15 W26>16 W27>17")
    gates = "2:0,4:6,7:12"
    lagp = 10
    tprio = 0
    eprio = 0
    fake = 0
    cyc = 0
    dprio = 0
    pace2 = 7
    loose = 0
    hprio = 0
    nt = 0
    swap = 1
    abatch = 1
    edepth = 7
    etile = 5
    sched = "Tkv To|S14 X Tmd Tmg0 Tmg1|R S14 F0|R S14 O0^2 F1|R S10 O2^2 O4 R|B O8^6 O10^6 F2|O12^6 O14^6 O6 Tx Tz|Tf0"
    padto = 0
    padat = 0
    padwg = -1
    probe = ''
    outf = ''
    hhplain = 2

def mfma32(d, a, b, c=None):
    return f"v_mfma_f32_32x32x16_bf16 {vr(d,16)}, {vr(a,4)}, {vr(b,4)}, {vr(d,16) if c is None else c}"
def mfma16(d, a, b, c=None):
    return f"v_mfma_f32_16x16x32_bf16 {vr(d,4)}, {vr(a,4)}, {vr(b,4)}, {vr(d,4) if c is None else c}"
def smf(d, a, b, idx):
    return f"v_smfmac_f32_32x32x32_bf16 {vr(d,16)}, {vr(a,4)}, {vr(b,8)}, v{idx}"

class Gen:
    def __init__(self, cfg):
        self.c = cfg
        self.tailcode = Stream()
        self.near = Stream()
        self.nstamp = {}

    sc, sfx = "", ""

    def stamp(self, st, role, name, level=1):
        if self.c.probe and not self.sc:
            r, a, b, kind = self.c.probe.split(",")
            op = "s_memtime" if kind == "c" else "s_memrealtime"
            if role == r and name == "start": st("s_memrealtime s[100:101]")
            if role == r and name == a: st(f"{op} s[96:97]")
            if role == r and name == b: st(f"{op} s[94:95]")
            if role == r and name == "end":
                if self.c.padwg >= 0: st(f"s_cmp_lg_u32 s2, {self.c.padwg}\ns_cbranch_scc1 L_prbx")
                st("s_waitcnt lgkmcnt(0)\ns_sub_u32 s94, s94, s96")
                st("s_lshr_b32 s94, s94, 1" if kind == "c" else "s_mul_i32 s94, s94, 10")
                st("s_add_u32 s94, s94, 6000")
                st.label("L_prb")
                st("s_memrealtime s[98:99]\ns_waitcnt lgkmcnt(0)\ns_sub_u32 s98, s98, s100\ns_cmp_lt_u32 s98, s94\ns_cbranch_scc1 L_prb")
                st.label("L_prbx")
        if not (self.c.diag & level) or self.sc: return
        l = self.nstamp.setdefault(role, [])
        i = len(l); l.append(name)
        assert i < 13
        st(f"{'s_memtime' if name.startswith('cyc') or self.c.cyc else 's_memrealtime'} {sr(sSTAMP + 2*i, 2)}")

    def dump_stamps(self, st, role):
        if not self.c.diag or self.sc: return
        n = len(self.nstamp[role])
        st("s_waitcnt lgkmcnt(0)")
        st(f"s_lshl_b32 s{sT0}, s2, 3\ns_add_u32 s{sT0}, s{sT0}, s{sW}")
        st(f"s_add_u32 s{sT0}, s{sT0}, {4 if role == 'h' else 0}\ns_lshl_b32 s{sT0}, s{sT0}, 6\ns_add_u32 s{sT0}, s{sT0}, {WS_DIAG}")
        for i in range(n):
            st(f"v_mov_b32 v1, s{sSTAMP + 2*i}")
            st(f"buffer_store_dword v1, off, {srd(WS)}, s{sT0} offset:{4*i}")
        st("s_waitcnt vmcnt(0)")

    def notready(self, st, vdst, need):
        st(f"v_subrev_u32 v{vdst}, s{sEP}, v{vdst}")
        st(f"v_subrev_u32 v{vdst}, {need}, v{vdst}")
        st(f"v_cmp_lt_u32 vcc, {15 - need}, v{vdst}")

    def poll(self, st, name, vaddr, soff, vdst, need, exact=False, lanes=64):
        st(f"s_mov_b32 s{sCNT}, {SPIN}")
        if lanes < 64: st(f"s_bfm_b64 exec, {lanes}, 0")
        st.label(name)
        st(f"buffer_load_dword v{vdst}, v{vaddr}, {srd(WS)}, {soff} offen sc1")
        st.wait_vm()
        if exact: st(f"v_cmp_ne_u32 vcc, s{sEP1}, v{vdst}")
        else: self.notready(st, vdst, need)
        st(f"s_cbranch_vccz {name}_ok")
        st(f"s_sub_u32 s{sCNT}, s{sCNT}, 1")
        st(f"s_cbranch_scc0 {name}")
        st.label(name + "_ok")
        if lanes < 64: st("s_mov_b64 exec, -1")

    def pad(self, st, at):
        if not self.c.padto or self.c.padat != at: return
        if self.c.padwg >= 0: st(f"s_cmp_lg_u32 s2, {self.c.padwg}\ns_cbranch_scc1 L_padx")
        st.label("L_pad")
        st("s_memrealtime s[98:99]\ns_waitcnt lgkmcnt(0)\ns_sub_u32 s98, s98, s100")
        st(f"s_cmp_lt_u32 s98, {self.c.padto * 100}\ns_cbranch_scc1 L_pad")
        st.label("L_padx")

    def lds_min(self, st, r, need):
        st(f"v_min3_u32 v{r}, v{r}, v{r+1}, v{r+2}\nv_min_u32 v{r}, v{r}, v{r+3}\nv_cmp_gt_u32 vcc, {need}, v{r}")

    def lds_spin(self, st, name, va, r, need, sleep=0):
        st(f"s_mov_b32 s{sCNT}, {SPIN * 16}")
        st.label(name)
        st(f"ds_read_b128 {vr(r,4)}, v{va}")
        st.wait_ds()
        self.lds_min(st, r, need)
        st(f"s_cbranch_vccz {name}_ok")
        if sleep: st(f"s_sleep {sleep}")
        st(f"s_sub_u32 s{sCNT}, s{sCNT}, 1\ns_cbranch_scc0 {name}")
        st.label(name + "_ok")

    def epoch_load(self, st):
        st(f"s_load_dword s{sEP}, {sr(WS,2)}, {WS_EPOCH}")

    def epoch_make(self, st):
        st(f"s_and_b32 s{sEP}, s{sEP}, 0xfffffff0\ns_add_u32 s{sEP}, s{sEP}, 0x9e3779b0\ns_add_u32 s{sEP1}, s{sEP}, 1")

    def srds(self, st, lst):
        for b, n in lst: st(f"s_mov_b32 s{b+2}, {n}\ns_mov_b32 s{b+3}, 0x20000")

    def prologue(self, st):
        st(f"s_load_dwordx2 {sr(X,2)}, s[0:1], 0\ns_lshr_b32 s{sT2}, s2, 1\ns_and_b32 s{sT2}, s{sT2}, 8\ns_add_u32 s{sT2}, s{sT2}, 16")
        st(f"s_load_dwordx2 {sr(WKVS,2)}, s[0:1], s{sT2}\ns_load_dwordx2 {sr(WS,2)}, s[0:1], 88")
        st("s_cmpk_ge_u32 s2, 256\ns_cbranch_scc1 L_end")
        st(f"s_getpc_b64 {sr(CODE,2)}")
        st.label("L_pc")
        st(f"v_readfirstlane_b32 s{sT0}, v0\ns_lshr_b32 s{sIDX}, s2, 3\ns_lshl_b32 s{sT1}, s{sIDX}, 11")
        st(f"s_mov_b32 s{CODE+2}, L_codeend-L_pc\ns_mov_b32 s{CODE+3}, 0x20000\nv_lshrrev_b32 v1, 5, v0\nv_lshlrev_b32 v1, 7, v1")
        st(f"buffer_load_dword v255, v1, {srd(CODE)}, s{sT1} offen")
        st(f"s_and_b32 s{sG}, s2, 7\ns_lshr_b32 s{sT1}, s{sIDX}, 2\ns_lshl_b32 s{sRB}, s{sG}, 3\ns_add_u32 s{sRB}, s{sRB}, s{sT1}")
        st(f"s_and_b32 s{sCB}, s{sIDX}, 3\ns_bfe_u32 s{sW}, s{sT0}, 0x20006\nv_and_b32 v0, 63, v0")
        st(f"s_cmpk_lt_u32 s{sT0}, 256\ns_cbranch_scc1 L_main")

    def main_phase_a(self, st):
        self.stamp(st, "m", "start", 255)
        vD, vTR, vXB, vXC = 2, 3, 4, 5
        XR, ACC = 112, 144
        st.vq.append((None, False))
        st(f"s_load_dwordx2 {sr(WQ,2)}, s[0:1], 8")
        st(f"v_and_b32 v12, 15, v0\nv_lshlrev_b32 v12, 2, v12\nv_add_u32 v12, {PROG}, v12\nv_mov_b32 v13, 0\nds_write_b32 v12, v13")
        self.srds(st, ((WQ, 524288), (WKVS, 16384), (WS, WS_SIZE)))
        st(f"s_mov_b32 s{sONE}, 0x3f803f80")
        st(f"v_lshrrev_b32 v10, 2, v0\nv_lshlrev_b32 v10, 10, v10\nv_and_b32 v11, 3, v0\nv_lshlrev_b32 v17, 7, v0\nv_lshlrev_b32 v11, 4, v11")
        st(f"s_lshl_b32 s{sT0}, s{sCB}, 8\ns_lshl_b32 s{sT1}, s{sW}, 6\ns_add_u32 s{sT0}, s{sT0}, s{sT1}")
        st(f"v_add3_u32 v{vD}, v10, v11, s{sT0}\nv_lshlrev_b32 v{self.vK}, 4, v0")
        st(f"s_mul_i32 s{sA}, s{sW}, {NWQ*1024}\ns_add_u32 s{sA}, s{sA}, {WQST}")
        st(f"s_lshr_b32 s{sB}, s{sIDX}, 2\ns_lshl_b32 s{sC}, s{sB}, 16")
        st(f"s_lshl_b32 s{sT0}, s{sB}, 1\ns_and_b32 s{sT1}, s{sCB}, 1\ns_add_u32 s{sT0}, s{sT0}, s{sT1}\ns_lshl_b32 s{sT0}, s{sT0}, 2\ns_add_u32 s{sT0}, s{sT0}, s{sW}\ns_lshl_b32 s{sT0}, s{sT0}, 8")
        st(f"s_lshl_b32 s{sT1}, s{sIDX}, 2\ns_add_u32 s{sT1}, s{sT1}, s{sW}\ns_lshl_b32 s{sT2}, s{sT1}, 7\ns_lshl_b32 s{sT1}, s{sT1}, 12")
        st(f"s_lshl_b32 s{sT3}, s{sG}, 14\ns_add_u32 s{sT2}, s{sT2}, s{sT3}\ns_add_u32 s{sT2}, s{sT2}, {WS_KVL}\ns_lshl_b32 s{sT3}, s{sG}, 7\ns_add_u32 s{sT3}, s{sT3}, {WS_FLGL}")
        st("s_waitcnt lgkmcnt(0)")
        self.epoch_load(st)
        st.bar("B00")
        st("s_mov_b64 exec, 3")
        st.vm(f"buffer_load_dword v254, v17, {srd(WKVS)}, s{sT0} offen")
        st("s_mov_b64 exec, 1")
        st.vm(f"buffer_load_dword v253, off, {srd(WS)}, s{sT2} sc1")
        st.vm(f"buffer_load_dword v252, off, {srd(WS)}, s{sT3} sc1")
        st(f"s_bfm_b64 exec, {self.c.tq}, 0")
        st.vm(f"buffer_load_dword v248, v17, {srd(WQ)}, s{sT1} offen")
        st("s_mov_b64 exec, -1")
        st(f"v_lshrrev_b32 v10, 5, v0\nv_lshlrev_b32 v11, 9, v10\nv_bfe_u32 v13, v0, 2, 2\nv_lshl_add_u32 v11, v13, 6, v11")
        st(f"v_bfe_u32 v13, v0, 4, 1\nv_lshl_add_u32 v11, v13, 5, v11\nv_and_b32 v13, 3, v0\nv_lshl_add_u32 v11, v13, 3, v11")
        st(f"v_add_u32 v{vTR}, s{sA}, v11")
        st(f"v_mul_u32_u24 v11, 528, v10\nv_and_b32 v13, 31, v0\nv_lshl_add_u32 v11, v13, 4, v11\nv_add_u32 v{vXB}, {XN}, v11")
        st(f"v_mov_b32 v18, {XC}")
        self.kv_addr(st)
        late = Stream()
        self.main_scalars(st, late)
        self.attn_setup(late)
        for l in late.lines[:self.c.nearly]: st(l)
        late.lines = late.lines[self.c.nearly:]
        st("s_waitcnt lgkmcnt(0)")
        self.epoch_make(st)
        st(f"s_getreg_b32 s{sXCC}, hwreg(HW_REG_XCC_ID, 0, 4)\ns_add_u32 s{sXCC}, s{sXCC}, s{sEP}")
        st.bar("B0")
        self.stamp(st, "m", "B0", 64)
        def dma(j):
            st(f"s_add_u32 m0, s{sA}, {(j % NWQ)*1024}")
            st(f"s_xor_b32 s{sT1}, s{sC}, {j*16384}")
            st.vm(f"buffer_load_dwordx4 v{vD}, {srd(WQ)}, s{sT1} offen lds", ("wq", j))
        nd = self.c.npre
        for j in range(nd): dma(j)
        self.stamp(st, "m", "pre", 64)
        st(f"s_cmp_lg_u32 s{sW}, 0\ns_cbranch_scc1 L_nokv")
        self.kv_job(st)
        st.label("L_nokv")
        st.vq += [(None, True)] * 2
        fill = [f"v_mov_b32 v{self.vVAL}, s{sEP1}"] + late.lines
        JX, NWR = self.c.jx, 20
        wreg = lambda j: 168 + 4 * (j % NWR)
        nx = nm = 0
        def rdx():
            nonlocal nx
            if nx % 4 == 0:
                st(f"s_xor_b32 s{sT1}, s{sB}, {nx//4}\ns_mul_i32 s{sT1}, s{sT1}, 4224\nv_add_u32 v{vXC}, s{sT1}, v{vXB}")
            st.ds(f"ds_read_b128 {vr(XR+4*(nx % 8),4)}, v{vXC} offset:{(nx % 4)*1056}", ("x", nx)); nx += 1
        def mm():
            nonlocal nm
            st.wait_ds(("x", nm)); st.wait_ds(("w", nm))
            st(mfma32(ACC, wreg(nm), XR + 4 * (nm % 8), "0" if nm == 0 else None))
            nm += 1
            if nx < 32: rdx()
            for _ in range(2):
                if fill: st(fill.pop(0))
            if nm in (9, 20): self.stamp(st, "m", f"q{nm}", 64)
        for j in range(32):
            if j == JX:
                self.lds_spin(st, "L_xc", 18, 20, 2, sleep=1)
                self.stamp(st, "m", "B1m", 65)
                for _ in range(4): rdx()
            assert j - nm < NWR
            if j == self.c.lfat: self.kv_flag(st, 0, nd - self.c.npre + 1)
            if j == self.c.gfat: self.kv_flag(st, 1, nd - self.c.npre + 1)
            st.wait_vm(("wq", j))
            o = (j % NWQ) * 1024
            st.ds(f"ds_read_b64_tr_b16 {vr(wreg(j),2)}, v{vTR} offset:{o}")
            st.ds(f"ds_read_b64_tr_b16 {vr(wreg(j)+2,2)}, v{vTR} offset:{o+256}", ("w", j))
            if nd < 32 and nd - NWQ <= j - 2:
                if nd >= NWQ: st.wait_ds(("w", nd - NWQ))
                dma(nd); nd += 1
                if j >= self.c.gfat and nd < min(NWQ, j + self.c.ndeep): dma(nd); nd += 1
            if j >= JX:
                for _ in range(2):
                    if nm < j - 1: mm()
        while nm < 32: mm()
        assert nd == 32
        pad = 12 - len(fill)
        for l in fill: st(l)
        st.nop(pad)
        sc = f32(0.25 * 1.4426950408889634)
        for r in range(16): st(f"v_mul_f32 v{ACC+r}, {sc}, v{ACC+r}")
        for r in range(8): st(f"v_cvt_pk_bf16_f32 v{self.Q + r}, v{ACC+2*r}, v{ACC+2*r+1}")
        self.stamp(st, "m", "Qdone", 65)

    S, Q, O, KVB, vIDX, vK, vV0, vV1 = (16, 32), 48, (56, 72), (88, 100), 6, 7, 8, 9

    def attn_setup(self, st):
        st(f"v_mov_b32 v{self.vIDX}, 0xdddddddd")
        st("v_and_b32 v12, 31, v0\nv_lshrrev_b32 v13, 5, v0\nv_lshl_add_u32 v13, v13, 4, v12\nv_lshlrev_b32 v13, 4, v13")
        st("v_and_b32 v14, 27, v0\nv_cmp_eq_u32 vcc, 16, v14\nv_mov_b32 v14, 2064\nv_mov_b32 v15, 2048")
        st("v_cndmask_b32 v14, v14, v15, vcc")
        st("v_cmp_gt_u32 vcc, 16, v12\nv_add_u32 v15, 1024, v13\nv_add_u32 v13, 1536, v13")
        st(f"v_cndmask_b32 v{self.vV0}, v14, v15, vcc\nv_cndmask_b32 v{self.vV1}, v14, v13, vcc")
        st(f"v_mov_b32 v10, {MISC}")
        for r in range(32): st(f"v_mov_b32 v{self.O[0]+r}, 0")
        for r in range(8): st(f"v_mov_b32 v{self.S[1]+8+r}, 0")
        for r in range(4): st(f"v_mov_b32 v{self.KVB[1]+8+r}, 0")

    vFZ, vVAL, vOW, vWB, vB, vPOLL = 160, 161, 162, 163, (164, 165, 166), 167

    def main_scalars(self, st, late):
        st(f"s_lshl_b32 s{sT0}, s{sRB}, 4\ns_lshl_b32 s{sT1}, s{sCB}, 2\ns_add_u32 s{sT0}, s{sT0}, s{sT1}\ns_add_u32 s{sT2}, s{sT0}, s{sW}")
        st(f"s_lshl_b32 s{mO}, s{sT2}, 11\ns_add_u32 s{mO}, s{mO}, {WS_O}")
        st(f"s_lshl_b32 s{mPM}, s{sT0}, 8\ns_lshl_b32 s{sT3}, s{sW}, 2\ns_add_u32 s{mPM}, s{mPM}, s{sT3}\ns_add_u32 s{mPM}, s{mPM}, {WS_PM}")
        st(f"s_lshl_b32 s{mF2}, s{sRB}, 7\ns_lshl_b32 s{sT1}, s{sT1}, 2\ns_add_u32 s{mF2}, s{mF2}, s{sT1}\ns_add_u32 s{mF2}, s{mF2}, s{sT3}\ns_add_u32 s{mF2}, s{mF2}, {WS_FLG2}")
        st(f"s_lshr_b32 s{sT0}, s{sIDX}, 4\ns_lshl_b32 s{sT1}, s{sG}, 1\ns_add_u32 s{sT1}, s{sT1}, s{sT0}\ns_lshl_b32 s{sT1}, s{sT1}, 2\ns_add_u32 s{mRB}, s{sT1}, s{sW}")
        st(f"s_lshl_b32 s{sT1}, s{mRB}, 15")
        for i in range(8): st(f"s_add_u32 s{sP+i}, s{sT1}, {WS_H + 4096*i}")
        st(f"s_lshl_b32 s{mST}, s{mRB}, 12\ns_add_u32 s{mST}, s{mST}, {WS_ST}")
        st(f"s_and_b32 s{sT0}, s{sIDX}, 15\ns_mul_i32 s{mHH0}, s{mRB}, 114688\ns_mul_i32 s{sT1}, s{sT0}, 7168")
        st(f"s_add_u32 s{mHH0}, s{mHH0}, s{sT1}\ns_add_u32 s{mHH0}, s{mHH0}, {WS_HH}\ns_add_u32 s{mHH1}, s{mHH0}, 4096")
        st(f"s_lshl_b32 s{mHO}, s{sT0}, 11\ns_add_u32 s{mHO}, s{mHO}, s{sP}\ns_sub_u32 s{mHO}, s{mHO}, {WS_H - WS_O}")
        st(f"s_lshl_b32 s{sT1}, s{mRB}, 7\ns_lshl_b32 s{sT0}, s{sT0}, 2\ns_add_u32 s{mF4}, s{sT1}, s{sT0}\ns_add_u32 s{mF4}, s{mF4}, {WS_FLG4}")
        st(f"s_add_u32 s{mF3}, s{sT1}, {WS_FLG3}\ns_mov_b32 s{mCHK}, 0")
        st(f"s_lshl_b32 s{sD}, s{sW}, 11\ns_lshl_b32 s{sE}, s{sW}, 7\ns_add_u32 s{sE}, s{sE}, {WBL}")
        late(f"v_cmp_eq_u32 vcc, 0, v0\nv_mov_b32 v{self.vFZ}, 0x80000000\nv_add_u32 v{self.vOW}, s{sD}, v{self.vK}\nv_cndmask_b32_e64 v{self.vFZ}, v{self.vFZ}, 0, vcc")
        late(f"v_lshrrev_b32 v13, 5, v0\nv_lshlrev_b32 v14, 6, v13\nv_add_u32 v{self.vWB}, s{sE}, v14")

    def colo_reduce(self, st, r):
        st(f"v_and_b32 v{r}, v{r}, v{r+1}\ns_nop 0")
        st(f"v_readfirstlane_b32 s{sCOLO}, v{r}")

    def main_attention(self, st):
        S, Q, O, KVB = self.S, self.Q, self.O, self.KVB
        buf = lambda t: KVB[t % 2]
        off = lambda t: (t % 16) * TILE
        rdK = lambda t: f"ds_read_b128 {vr(buf(t),4)}, v{self.vK} offset:{off(t)}"
        rdV0 = lambda t: f"ds_read_b128 {vr(buf(t)+4,4)}, v{self.vV0} offset:{off(t)}"
        rdV1 = lambda t: f"ds_read_b128 {vr(buf(t)+8,4)}, v{self.vV1} offset:{off(t)}"
        body = []
        for t in range(16):
            for q in range(2):
                cur, nxt = S[q], S[1 - q]
                e = [f"v_exp_f32 v{cur+i}, v{cur+i}" for i in range(16)]
                tp = t - 1 if q == 0 else t
                pv1 = smf(O[1 - q], buf(tp) + 8, nxt + 8, self.vIDX)
                qk = mfma32(nxt, buf(t + q), Q + 4 * (1 - q), "0")
                pv0 = smf(O[q], buf(t) + 4, cur, self.vIDX)
                if q == 0:
                    f0, f1, f2 = [rdV1(t + 1)], [], []
                    if t == 1: f2 = [f"s_sub_u32 s{sA}, s{sA}, 1"]
                else:
                    f0, f1, f2 = ["s_waitcnt lgkmcnt(0)"], [rdK(t + 2)], [rdV0(t + 2)]
                    if t % 8 == 6: f0.append("s_barrier                ; BA")
                body += e[0:2] + [pv1] + f0 + e[2:5] + [qk] + f1 + e[5:11] + [pv0] + f2 + e[11:16]
        nhead = 2 + 1 + 1 + 3 + 1
        head, rest = body[:nhead], body[nhead:]
        st.bar("B2")
        self.stamp(st, "m", "B2", 83)
        self.stamp(st, "m", "cyc0", 33)
        for s in (rdK(0), rdV0(0), rdV1(0), rdK(1), rdV0(1)): st(s)
        st("ds_read_b64 v[12:13], v10")
        st(f"s_mov_b32 s{sA}, 3")
        st("s_waitcnt lgkmcnt(0)")
        st(mfma32(S[0], buf(0), Q, "0"))
        self.colo_reduce(st, 12)
        st.nop(9)
        st("\n".join(head))
        st(".p2align 6")
        st.label("L_attn")
        st("\n".join(rest + head))
        st("s_cbranch_scc0 L_attn")
        st.nbar += 8
        self.stamp(st, "m", "attn_end", 19)
        self.stamp(st, "m", "cyc1", 33)
        for i in range(4): st(f"ds_read_b128 {vr(176+4*i,4)}, v{self.vWB} offset:{16*i}")
        st.label("L_norm")
        st(f"s_cmp_eq_u32 s{sCOLO}, {2 if self.c.force_slow else 1}\ns_cbranch_scc0 L_main_slow")
        self.fallback()

    def main_publish_o(self, st):
        O, T, WB, sc = self.O, 192, 176, self.sc
        for q in range(2):
            st(f"v_rcp_f32 v{T+8+q}, v{O[q]+8}\ns_nop 0")
            for r in range(8): st(f"v_mul_f32 v{O[q]+r}, v{T+8+q}, v{O[q]+r}")
            for r in range(4): st(f"v_cvt_pk_bf16_f32 v{T+4*q+r}, v{O[q]+2*r}, v{O[q]+2*r+1}")
            st.vm(f"buffer_store_dwordx4 {vr(T+4*q,4)}, v{self.vK}, {srd(WS)}, s{mO} offen offset:{1024*q}{sc}")
        st("s_waitcnt lgkmcnt(0)")
        for r in range(8):
            for hl in range(2):
                st(f"v_dot2_f32_bf16 v{T+10+hl}, v{T+r}, v{WB+8*hl+r}, {'0' if r == 0 else 'v%d' % (T+10+hl)}")
        for q in range(2): st(f"ds_write_b128 v{self.vOW}, {vr(T+4*q,4)} offset:{RING + 1024*q}")
        st(f"v_min_f32 v{T+12}, v{O[0]+8}, v{O[1]+8}")
        st(f"v_add_f32 v{T+10}, v{T+10}, v{T+11}")
        st.vm(f"buffer_store_dword v{T+10}, v{self.vK}, {srd(WS)}, s{mPM} offen{sc}")
        st(f"v_add_f32 v{T+13}, v{O[0]+8}, v{O[1]+8}\ns_movk_i32 s{sT0}, 0x207")
        st(f"v_cmp_nle_f32 vcc, {f32(2.0**-64)}, v{T+12}")
        st(f"v_cmp_class_f32_e64 {sr(sT2,2)}, v{T+10}, s{sT0}")
        st(f"s_or_b64 {sr(sT2,2)}, {sr(sT2,2)}, vcc")
        st(f"v_cmp_nge_f32 vcc, {f32(2.0**64)}, v{T+13}")
        st(f"s_or_b64 {sr(sT2,2)}, {sr(sT2,2)}, vcc")
        if self.c.force_fallback: st(f"s_or_b64 {sr(sT2,2)}, {sr(sT2,2)}, 1")
        st(f"s_cbranch_scc0 L_safe{self.sfx}")
        st(f"s_cmp_eq_u32 s{mCHK}, 0\ns_cbranch_scc1 L_fallback")
        st.label("L_safe" + self.sfx)
        st.wait_vm()
        st.vm(f"buffer_store_dword v{self.vVAL}, v{self.vFZ}, {srd(WS)}, s{mF2} offen{sc}")
        self.stamp(st, "m", "Oflag")
        st("s_waitcnt lgkmcnt(0)")
        st.bar("BC0")

    def fallback(self):
        st = self.tailcode
        S, Q, O, KVB = self.S, self.Q, self.O, self.KVB
        K, V0, V1, NM = KVB[0], KVB[0] + 4, KVB[0] + 8, (112, 128)
        st.label("L_fallback")
        st(f"s_mov_b32 s{mCHK}, 1")
        st("v_mov_b32 v10, 0xff800000\nv_mov_b32 v11, 0xff800000")
        st(f"s_mov_b32 s{sT0}, {WS_KV}")
        st.label("L_fb1")
        st(f"buffer_load_dwordx4 {vr(K,4)}, v{self.vK}, {srd(WS)}, s{sT0} offen sc1\ns_waitcnt vmcnt(0)")
        st(mfma32(S[0], K, Q, "0")); st(mfma32(S[1], K, Q + 4, "0"))
        st.nop(12)
        for q in range(2):
            for r in range(0, 16, 2): st(f"v_max3_f32 v{10+q}, v{S[q]+r}, v{S[q]+r+1}, v{10+q}")
        st(f"s_add_u32 s{sT0}, s{sT0}, 2048\ns_cmp_lt_u32 s{sT0}, {WS_KV + 131072}\ns_cbranch_scc1 L_fb1")
        st("v_mov_b32 v12, v10\nv_mov_b32 v13, v11\ns_nop 1")
        st("v_permlane32_swap_b32 v10, v12\nv_permlane32_swap_b32 v11, v13")
        st("v_max_f32 v10, v10, v12\nv_max_f32 v11, v11, v13")
        for q in range(2):
            for r in range(16):
                st(f"v_sub_f32 v{NM[q]+r}, 0, v{10+q}\nv_mov_b32 v{O[q]+r}, 0")
        st(f"v_and_b32 v12, 27, v0\nv_cmp_eq_u32 vcc, 16, v12\nv_mov_b32 v13, s{sONE}\ns_nop 0\nv_cndmask_b32 v13, 0, v13, vcc")
        for r in range(8): st(f"v_mov_b32 v{V0+r}, v13")
        st(f"s_mov_b32 s{sT0}, {WS_KV}\ns_mov_b32 s{sT2}, 0xffff\ns_mov_b32 s{sT3}, 0xffff")
        st.label("L_fb2")
        st(f"buffer_load_dwordx4 {vr(K,4)}, v{self.vK}, {srd(WS)}, s{sT0} offen sc1")
        st(f"s_mov_b64 exec, {sr(sT2,2)}")
        st(f"buffer_load_dwordx4 {vr(V0,4)}, v{self.vV0}, {srd(WS)}, s{sT0} offen sc1")
        st(f"buffer_load_dwordx4 {vr(V1,4)}, v{self.vV1}, {srd(WS)}, s{sT0} offen sc1")
        st("s_mov_b64 exec, -1\ns_waitcnt vmcnt(0)")
        st(mfma32(S[0], K, Q, vr(NM[0], 16))); st(mfma32(S[1], K, Q + 4, vr(NM[1], 16)))
        st.nop(12)
        for q in range(2):
            for r in range(16): st(f"v_exp_f32 v{S[q]+r}, v{S[q]+r}")
        st.nop(2)
        for q in range(2):
            st(smf(O[q], V0, S[q], self.vIDX)); st(smf(O[q], V1, S[q] + 8, self.vIDX))
        st(f"s_add_u32 s{sT0}, s{sT0}, 2048\ns_cmp_lt_u32 s{sT0}, {WS_KV + 131072}\ns_cbranch_scc1 L_fb2")
        st.nop(12)
        st("s_branch L_norm")

    def stages(self):
        return [tuple(map(int, x.split(":"))) for x in self.c.gates.split(",")]

    def main_phase_d(self, st):
        T, sc = self.c.tail, self.sc
        ACC, BR, AR, STT = 144, 112, 48, 32
        NBR, LA, NAR = 8, 5, 16
        vL, vFZ, vVAL, vO, vF, vC1, vSD, vPOLL = self.vK, 10, 11, (2, 3), (24, 25, 26, 27), 8, 9, 12
        st(f"v_mov_b32 v{vFZ}, v{self.vFZ}\nv_mov_b32 v{vVAL}, v{self.vVAL}")
        st("v_lshrrev_b32 v13, 5, v0\nv_bfe_u32 v14, v0, 4, 1\nv_bfe_u32 v15, v0, 2, 2\nv_and_b32 v16, 3, v0\nv_lshlrev_b32 v16, 3, v16")
        st("v_xor_b32 v17, v13, v14\nv_lshl_add_u32 v17, v17, 2, v15\nv_mul_u32_u24 v17, 96, v17\nv_mul_u32_u24 v18, 3072, v14\nv_add3_u32 v17, v17, v18, v16")
        st(f"v_add_u32 v{vO[0]}, {ODD}, v17\nv_add_u32 v{vO[1]}, {ODD + 49152}, v17")
        st("v_lshl_add_u32 v17, v13, 2, v15\nv_lshlrev_b32 v17, 7, v17\nv_lshl_add_u32 v17, v14, 12, v17\nv_bfe_u32 v18, v0, 3, 2")
        st(f"v_lshlrev_b32 v18, 5, v18\nv_add3_u32 v{vF[0]}, v17, v18, v16")
        for i in range(1, 4): st(f"v_xor_b32 v{vF[i]}, {32*i}, v{vF[0]}")
        st(f"v_and_b32 v{vPOLL}, 15, v0\nv_lshlrev_b32 v{vPOLL}, 2, v{vPOLL}")
        st(f"v_and_b32 v5, 31, v0\nv_lshlrev_b32 v5, 4, v5\nv_lshrrev_b32 v13, 5, v0\nv_lshl_add_u32 v5, v13, 11, v5")
        vPG, vLD, vN, CK = 14, 15, 16, 20
        st(f"s_lshl_b32 s{sT0}, s{sW}, 2\ns_add_u32 s{sT0}, s{sT0}, {PROG}\nv_mov_b32 v{vPG}, s{sT0}\nv_mov_b32 v{vLD}, {LAND}")
        nk = 32 - 2 * T
        order = [(k, n) for k in range(nk) for n in range(7)] + [(k, n) for n in range(7) for k in range(nk, 32)]
        def rdB(m):
            k, n = order[m]
            b = BR + 4 * (m % NBR)
            for t in range(2):
                u, row = k // 2, 16 * (k % 2) + 8 * t
                if n < 3: va, o = vO[u // 8], (u % 8) * 6144 + row * 96 + 32 * n
                else: va, o = vF[n - 3], slot8(FSLOT[u]) + row * 128
                st.ds(f"ds_read_b64_tr_b16 {vr(b+2*t,2)}, v{va} offset:{o}", ("b", m))
        for m in range(LA): rdB(m)
        st.bar("BC1")
        st.bar("BC2")
        self.stamp(st, "m", "BC2")
        self.poll(st, "L_x3" + self.sfx, vPOLL, f"s{mF3}", 13, 1, exact=True, lanes=16)
        self.stamp(st, "m", "x3ok", 5)
        nxt = [0]
        def ldA(upto):
            while nxt[0] < min(32, upto):
                k = nxt[0]; nxt[0] += 1
                st.vm(f"buffer_load_dwordx4 {vr(AR+4*(k % NAR),4)}, v{vL}, {srd(WS)}, s{sP + k//4} offen offset:{1024*(k % 4)} sc1", ("a", k))
        ldA(2)
        def run(op): op() if callable(op) else st(op)
        def ldst():
            for i in range(2):
                st.vm(f"buffer_load_dwordx4 {vr(STT+4*i,4)}, v5, {srd(WS)}, s{mST} offen offset:{512 + 1024*i} sc1", "st")
        stats = [lambda: st.wait_vm("st")]
        stats += [f"v_add_f32 v{STT+i}, v{STT+i}, v{STT+4+i}" for i in range(4)]
        stats += [f"v_add_f32 v{STT}, v{STT}, v{STT+2}", f"v_add_f32 v{STT+1}, v{STT+1}, v{STT+3}", f"v_add_f32 v{STT}, v{STT}, v{STT+1}",
                  f"v_mov_b32 v{STT+1}, v{STT}", f"v_mov_b32 v{STT+2}, {f32(1e-5)}", "s_nop 0",
                  f"v_permlane32_swap_b32 v{STT}, v{STT+1}", f"v_add_f32 v{STT}, v{STT}, v{STT+1}",
                  f"v_fmac_f32 v{STT+2}, {f32(1.0/512)}, v{STT}", f"v_rsq_f32 v{STT+3}, v{STT+2}", "s_nop 0",
                  f"v_mul_f32 v{vSD}, v{STT+2}, v{STT+3}", f"v_mul_f32 v{vC1}, {f32(-1.4426950408889634)}, v{STT+3}"]
        pub = [1]
        def publish(cnt):
            ops = [f"v_add_u32 v{vVAL}, {cnt - pub[0]}, v{vVAL}"] if cnt > pub[0] else []
            pub[0] = cnt
            ops.append(lambda: st.wait_vm(("hh", cnt - 1)))
            if self.c.fexec: ops.append("s_mov_b64 exec, 1")
            ops.append(lambda: st.vm(f"buffer_store_dword v{vVAL}, v{vFZ}, {srd(WS)}, s{mF4} offen{sc}"))
            if self.c.fexec: ops.append("s_mov_b64 exec, -1")
            ops.append(lambda: self.stamp(st, "m", f"pub{cnt}", 8))
            return ops
        def epilogue(n):
            a = ACC + 16 * n
            ops = [f"v_mul_f32 v{a+j}, v{vC1}, v{a+j}" for j in range(8)]
            ops += [f"v_exp_f32 v{a+j}, v{a+j}" for j in range(8)]
            ops += [f"v_fma_f32 v{a+j}, v{a+j}, v{vSD}, v{vSD}" for j in range(8)]
            ops += [f"v_rcp_f32 v{a+j}, v{a+j}" for j in range(8)]
            ops += [f"v_mul_f32 v{a+j}, v{a+j}, v{a+8+j}" for j in range(8)]
            ops += [f"v_cvt_pk_bf16_f32 v{a+8+j}, v{a+2*j}, v{a+2*j+1}" for j in range(4)]
            return ops
        def store(n):
            a = ACC + 16 * n
            st.vm(f"buffer_store_dwordx4 {vr(a+8,4)}, v{vL}, {srd(WS)}, s{mHO if n < 2 else mHH0 if n < 4 else mHH1} offen offset:{1024*(n % 4)}{sc if n < self.c.hhplain else ' sc1'}", ("hh", n))
        cost = lambda op: 8 if op.startswith(("v_exp", "v_rcp")) else 4
        fill = {m: [] for m in range(224)}
        first = {m: [] for m in range(224)}
        first[0].append(lambda: ldA(4)); first[2].append(lambda: ldA(6))
        for k in range(1, nk):
            for n, d in ((1, 1), (4, 2)):
                first[7 * k + n].append(lambda u=min(k + NAR, 4 + 2 * k + d): ldA(u))
        first[7 * 14 + 4].append(ldst)
        for i, op in enumerate(stats): fill[7 * (nk - 1) + i // 2].append(op)
        base = 7 * nk
        stages, nst = [c for c, _ in self.stages()], 0
        for n in range(1, 7):
            ops = epilogue(n - 1)
            g0, ng = base + 2 * T * n + 2, 2 * T - 1
            tot, acc = sum(map(cost, ops)), 0
            for op in ops:
                fill.setdefault(g0 + acc * ng // tot, []).append(op); acc += cost(op)
            if n - 1 < self.c.hhplain or n in stages:
                for i in range(nst, n): first.setdefault(g0 + ng, []).append(lambda i=i: store(i))
                nst = n
            if n in stages:
                lag = self.c.lagp if n <= self.c.hhplain else self.c.lag
                for op in publish(n): first.setdefault(min(g0 + ng + lag, 226), []).append(op)
        assert T == 7
        posts = {2: 1, base + 6 * T - 1: 20}
        posts.update({14 * u + 13: u + 2 for u in range(8)})
        checks = {14 * 3 + 3 - LA: 5, 14 * 5 + 3 - LA: 7, 14 * 7 + 3 - LA: 9, base + 6 * T - LA: 16}
        near = self.near if not sc else self.tailcode
        for m in range(224):
            k, n = order[m]
            if m in posts: st(f"v_mov_b32 v{vN}, {posts[m]}")
            if n == 0: st.wait_vm(("a", k))
            if m % 2 == 0: st.wait_ds(("b", min(m + 1, 223)))
            st(mfma32(ACC + 16 * n, BR + 4 * (m % NBR), AR + 4 * (k % NAR), "0" if k == 0 else None))
            if m == 0: self.stamp(st, "m", "mfma0", 4)
            for op in first[m]: run(op)
            if m in posts: st.ds(f"ds_write_b32 v{vPG}, v{vN}")
            if m < base and m % 28 == 27: self.stamp(st, "m", f"u{m // 14}", 4)
            if m == base: self.stamp(st, "m", "tail0", 4)
            if m == base + 2 * T: self.stamp(st, "m", "tail1", 4)
            if m + 5 in checks: st.ds(f"ds_read_b128 {vr(CK,4)}, v{vLD}", "ck")
            if m in checks:
                lab = f"L_ld{checks[m]}{self.sfx}"
                st(f"s_cbranch_vccnz {lab}s")
                st.label(lab + "r")
                near.label(lab + "s")
                self.lds_spin(near, lab, vLD, CK, checks[m])
                near(f"s_branch {lab}r")
            if m + LA < 224: rdB(m + LA)
            if m + 1 in checks:
                st.wait_ds("ck")
                self.lds_min(st, CK, checks[m + 1])
            for op in fill[m]: run(op)
        assert nxt[0] == 32
        self.stamp(st, "m", "Dmfma_end", 13)
        for m in (224, 225):
            for op in first.get(m, []) + fill.get(m, []): run(op)
        for i in range(nst, 6): store(i)
        st.nop(8)
        ep = epilogue(6)
        for op in ep[:32] + first.get(226, []) + ep[32:]: run(op)
        store(6)
        for op in publish(7): run(op)
        self.stamp(st, "m", "end", 13)
        self.dump_stamps(st, "m")
        st("s_endpgm")

    def helper_phase_a(self, st):
        self.stamp(st, "h", "start", 255)
        XP, XF, AC = 48, 80, 112
        st("s_setprio 2")
        if self.c.padto: st("s_memrealtime s[100:101]")
        st.vq.append((None, False))
        st(f"v_lshrrev_b32 v2, 4, v0\nv_and_b32 v3, 15, v0\nv_lshlrev_b32 v4, 10, v2\nv_lshl_add_u32 v4, v3, 4, v4")
        st(f"s_and_b32 s{sT2}, s{sCB}, 1\ns_lshl_b32 s{sC}, s{sT2}, 2\ns_add_u32 s{sC}, s{sC}, s{sW}\ns_lshl_b32 s{sT0}, s{sRB}, 3\ns_add_u32 s{sA}, s{sT0}, s{sC}")
        st(f"s_lshl_b32 s{sA}, s{sA}, 12\ns_xor_b32 s{sB}, s{sA}, 0x4000")
        self.srds(st, ((X, 2097152), (WKVS, 16384)))
        st(f"v_lshlrev_b32 v1, 4, v0\ns_lshl_b32 s{sD}, s{sW}, 12\ns_add_u32 m0, s{sD}, {WKV}\nv_mov_b32 v124, v4")
        st("s_waitcnt lgkmcnt(0)")
        ldx = lambda i: st.vm(f"buffer_load_dwordx4 {vr(XP+4*i,4)}, v124, {srd(X)}, s{sA if i < 4 else sB} offen offset:{256*(i % 4)}", ("x", i))
        for i in range(4): ldx(i)
        st.bar("B00")
        ldw = lambda: [st.vm(f"buffer_load_dwordx4 v1, {srd(WKVS)}, s{sD} offen offset:{1024*i} lds", "wkv") for i in range(4)]
        if self.c.sec & 2: ldw()
        st(f"s_and_b32 s{sT0}, s{sW}, 1\ns_lshl_b32 s{sT0}, s{sT0}, 3\ns_add_u32 s{sT0}, s{sT0}, 48\ns_load_dwordx2 {sr(WG,2)}, s[0:1], s{sT0}")
        for b, off in ((WO, 32), (WD, 64), (OUT, 72)):
            st(f"s_load_dwordx2 {sr(b,2)}, s[0:1], {off}")
        self.srds(st, ((WO, 524288), (WG, 1835008), (WD, 1835008), (OUT, 2097152), (WS, WS_SIZE)))
        st(f"s_mov_b32 s{sONE}, 0x3f803f80\ns_mov_b32 s{sLO}, 0x3f80\ns_mov_b32 s{sHI}, 0x3f800000")
        st(f"s_getreg_b32 s{sXCC}, hwreg(HW_REG_XCC_ID, 0, 4)")
        st(f"v_bfe_u32 v5, v0, 1, 3\nv_mul_u32_u24 v5, {TILE}, v5\nv_and_b32 v6, 1, v0\nv_lshl_add_u32 v7, v6, 4, v5")
        st(f"v_cmp_eq_u32 vcc, 0, v6\nv_mov_b32 v8, s{sONE}\ns_nop 0\nv_cndmask_b32 v8, 0, v8, vcc\nv_mov_b32 v9, v8\nv_mov_b32 v10, v8\nv_mov_b32 v11, v8")
        st.ds("ds_write_b128 v7, v[8:11] offset:2048")
        st(f"v_mul_u32_u24 v5, 528, v3\nv_lshl_add_u32 v5, v2, 4, v5\ns_lshl_b32 s{sT0}, s{sC}, 6\ns_xor_b32 s{sT1}, s{sT0}, 256")
        st(f"s_add_u32 s{sT2}, s{sT0}, {XN}\ns_add_u32 s{sT3}, s{sT1}, {XN}\nv_add_u32 v120, s{sT2}, v5\nv_add_u32 v121, s{sT3}, v5")
        st(f"s_lshr_b32 s{sT0}, s{sT0}, 2\ns_lshr_b32 s{sT1}, s{sT1}, 2\ns_add_u32 s{sT0}, s{sT0}, {MISC + 16}\ns_add_u32 s{sT1}, s{sT1}, {MISC + 16}")
        st(f"v_lshl_add_u32 v122, v2, 2, s{sT0}\nv_lshl_add_u32 v123, v2, 2, s{sT1}")
        st.wait_ds()
        self.epoch_load(st)
        self.helper_setup(st)
        st(f"s_lshl_b32 s{sT0}, s{sW}, 2\ns_add_u32 s{sT0}, s{sT0}, {XC}\nv_mov_b32 v230, s{sT0}")
        st(f"v_and_b32 v41, 31, v0\nv_lshlrev_b32 v41, 2, v41\nv_add_u32 v41, {MISC + 16}, v41")
        st("v_lshrrev_b32 v27, 4, v0\nv_lshlrev_b32 v27, 14, v27\nv_and_b32 v14, 15, v0\nv_lshl_add_u32 v27, v14, 7, v27")
        st(f"v_lshrrev_b32 v14, 5, v0\nv_lshl_add_u32 v14, v14, 9, v1\ns_lshl_b32 s{sT0}, s2, 11\ns_cmp_eq_u32 s{sW}, 1\ns_cselect_b32 s{sT0}, s{sT0}, 0x100000")
        self.stamp(st, "h", "setup", 64)
        def second():
            if not self.c.sec & 2: ldw()
            for i in range(4, 8): ldx(i)
            st.bar("B0")
        if self.c.wo_early:
            for i in range(2): st.vm(f"buffer_load_dwordx4 {vr(232+4*i,4)}, v14, {srd(WO)}, s{sT0} offen offset:{512*i}")
        if not self.c.sec & 1: second()
        def red16(a):
            for m in ("quad_perm:[1,0,3,2]", "quad_perm:[2,3,0,1]", "row_half_mirror", "row_mirror"):
                st(f"s_nop 1\nv_add_f32_dpp v{a}, v{a}, v{a} {m} row_mask:0xf bank_mask:0xf")
        for ps in range(2):
            P = XP + 16 * ps
            for i in range(4):
                if ps == 0: st.wait_vm(("x", i))
                for r in range(4):
                    st(f"v_dot2_f32_bf16 v{AC+r%2}, v{P+4*i+r}, s{sONE}, {'0' if i == 0 and r < 2 else 'v%d' % (AC+r%2)}")
            if ps == 0: self.stamp(st, "h", "xland", 193)
            if ps == 0 and self.c.sec & 1: second()
            st(f"s_nop 2\nv_add_f32 v{AC}, v{AC}, v{AC+1}")
            red16(AC)
            st(f"v_mul_f32 v{AC}, {f32(-1.0/512)}, v{AC}")
            st.ds(f"ds_write_b32 v{122+ps}, v{AC}")
            self.stamp(st, "h", f"mean{ps}", 128)
            for r in range(16):
                st(f"v_dot2_f32_bf16 v{XF+2*r}, v{P+r}, s{sLO}, v{AC}\nv_dot2_f32_bf16 v{XF+2*r+1}, v{P+r}, s{sHI}, v{AC}")
            for r in range(16):
                d = AC + 2 + 2 * (r % 2)
                if r < 2: st(f"v_pk_mul_f32 {vr(d,2)}, {vr(XF+2*r,2)}, {vr(XF+2*r,2)}")
                else: st(f"v_pk_fma_f32 {vr(d,2)}, {vr(XF+2*r,2)}, {vr(XF+2*r,2)}, {vr(d,2)}")
            st(f"v_pk_add_f32 {vr(AC+2,2)}, {vr(AC+2,2)}, {vr(AC+4,2)}\nv_add_f32 v{AC+2}, v{AC+2}, v{AC+3}")
            red16(AC + 2)
            self.stamp(st, "h", f"var{ps}", 128)
            st(f"v_mov_b32 v{AC+3}, {f32(1e-5)}\nv_fmac_f32 v{AC+3}, {f32(1.0/512)}, v{AC+2}\nv_rsq_f32 v{AC+2}, v{AC+3}\nv_mov_b32 v231, {ps+1}")
            for i in range(4):
                for r in range(4):
                    st(f"v_pk_mul_f32 {vr(XF+8*i+2*r,2)}, {vr(XF+8*i+2*r,2)}, {vr(AC+2,2)} op_sel_hi:[1,0]")
                for r in range(4):
                    st(f"v_cvt_pk_bf16_f32 v{P+4*i+r}, v{XF+8*i+2*r}, v{XF+8*i+2*r+1}")
                st.ds(f"ds_write_b128 v{120+ps}, {vr(P+4*i,4)} offset:{8448*i}")
            self.stamp(st, "h", f"wr{ps}", 128)
            st.wait_vm("wkv")
            st.wait_ds()
            st("ds_write_b32 v230, v231")
            self.stamp(st, "h", f"ln{ps}", 192)
            if ps == 0:
                self.epoch_make(st)
                st(f"s_add_u32 s{sXCC}, s{sXCC}, s{sEP}\nv_mov_b32 v31, s{sEP}")
                st.wait_vm(("x", 7))
                self.stamp(st, "h", "p2start", 128)
        st(f"s_cmp_lg_u32 s{sW}, 1\ns_cbranch_scc1 L_nowb1")
        a = 240
        if not self.c.wo_early:
            for i in range(2): st(f"buffer_load_dwordx4 {vr(232+4*i,4)}, v14, {srd(WO)}, s{sT0} offen offset:{512*i}")
        st("s_waitcnt vmcnt(0)")
        for r in range(8): st(f"v_dot2_f32_bf16 v{a}, v{232+r}, s{sONE}, {'0' if r == 0 else 'v%d' % a}")
        st("s_nop 0")
        for m in ("quad_perm:[1,0,3,2]", "quad_perm:[2,3,0,1]", "row_half_mirror", "row_mirror"):
            st(f"s_nop 1\nv_add_f32_dpp v{a}, v{a}, v{a} {m} row_mask:0xf bank_mask:0xf")
        st(f"v_mov_b32 v{a+1}, v{a}\ns_nop 1\nv_permlane16_swap_b32 v{a}, v{a+1}\nv_add_f32 v{a}, v{a}, v{a+1}")
        st(f"v_mul_f32 v{a}, {f32(1.0/512)}, v{a}\nv_mov_b32 v{a+1}, v{a}\ns_nop 1\nv_permlane32_swap_b32 v{a}, v{a+1}")
        st(f"v_cvt_pk_bf16_f32 v{a+4}, v{a}, v{a+1}\nv_lshlrev_b32 v{a+2}, 16, v{a+4}\nv_and_b32 v{a+3}, 0xffff0000, v{a+4}")
        st(f"v_sub_f32 v{a}, v{a}, v{a+2}\nv_sub_f32 v{a+1}, v{a+1}, v{a+3}\nv_cvt_pk_bf16_f32 v{a+5}, v{a}, v{a+1}")
        st(f"v_mov_b32 v{a+6}, s{sEP1}\ns_lshl_b32 s{sT0}, s2, 7\ns_add_u32 s{sF}, s{sT0}, {WS_WB}")
        st.label("L_nowb1")

    def kv_addr(self, st):
        st(f"v_lshrrev_b32 v20, 4, v0\nv_and_b32 v13, 15, v0\nv_lshlrev_b32 v14, 8, v20\nv_lshl_add_u32 v249, v13, 3, v14")
        st(f"s_and_b32 s{sT0}, s{sCB}, 1\ns_lshl_b32 s{sT1}, s{sT0}, 8\ns_add_u32 s{sT2}, s{sT1}, {XN}")
        st(f"v_mul_u32_u24 v15, 528, v20\nv_lshl_add_u32 v15, v13, 4, v15\nv_add_u32 v250, s{sT2}, v15")
        st(f"s_lshl_b32 s{sT2}, s{sT0}, 9\ns_add_u32 s{sT2}, s{sT2}, 1024\ns_cmp_ge_u32 s{sCB}, 2")
        st(f"s_cselect_b32 s{sT1}, s{sT2}, s{sT1}\ns_cselect_b32 s{sT2}, 3, 9\ns_cselect_b32 s{sT3}, 8, 3")
        st(f"v_and_b32 v14, 1, v20\nv_lshlrev_b32 v14, s{sT2}, v14\nv_lshrrev_b32 v15, 1, v20\nv_lshlrev_b32 v15, s{sT3}, v15")
        st(f"v_lshl_add_u32 v14, v13, 4, v14\nv_add3_u32 v251, v14, v15, s{sT1}")
        st(f"s_lshl_b32 s{mKG}, s{sRB}, 11\ns_add_u32 s{mKL}, s{mKG}, {WS_KVL}\ns_add_u32 s{mKG}, s{mKG}, {WS_KV}")
        st(f"s_lshl_b32 s{sT0}, s{sG}, 5\ns_add_u32 s{sT0}, s{sT0}, s{sIDX}\ns_lshl_b32 s{mFL}, s{sT0}, 2\ns_add_u32 s{mFL}, s{mFL}, {WS_FLGL}")
        st(f"s_lshl_b32 s{mFG}, s{sT0}, 7\ns_add_u32 s{mFG}, s{mFG}, {WS_FLG1}")

    def kv_job(self, st):
        WR, XR, AC = 168, 112, 144
        st("s_setprio 3")
        self.lds_spin(st, "L_xc0", 18, 20, 1, sleep=1)
        self.stamp(st, "m", "m0xc", 64)
        st(f"s_cmp_ge_u32 s{sCB}, 2\ns_cbranch_scc1 L_vjob")
        for job in ("k", "v"):
            if job == "v": st.label("L_vjob")
            LA = 4
            for j in range(16 + LA):
                if j < 16:
                    for t in range(2): st.ds(f"ds_read_b64_tr_b16 {vr(WR+4*j+2*t,2)}, v249 offset:{WKV + 1024*j + 128*t}")
                    st.ds(f"ds_read_b128 {vr(XR+4*(j % 8),4)}, v250 offset:{2112*j}", ("rd", j))
                m = j - LA
                if m >= 0:
                    st.wait_ds(("rd", m))
                    w, x = WR + 4 * m, XR + 4 * (m % 8)
                    a, b = (w, x) if job == "k" else (x, w)
                    st(mfma16(AC, a, b, "0" if m == 0 else None))
            if job == "k": st("s_branch L_kvst")
        st.label("L_kvst")
        self.stamp(st, "m", "m0kvmf", 64)
        st.nop(8)
        st(f"v_cvt_pk_bf16_f32 v{AC+4}, v{AC}, v{AC+1}\nv_cvt_pk_bf16_f32 v{AC+5}, v{AC+2}, v{AC+3}")
        st(f"buffer_store_dwordx2 {vr(AC+4,2)}, v251, {srd(WS)}, s{mKL} offen")
        st(f"buffer_store_dwordx2 {vr(AC+4,2)}, v251, {srd(WS)}, s{mKG} offen sc1")
        st("s_setprio 0")

    def kv_flag(self, st, glob, younger):
        st(f"s_cmp_lg_u32 s{sW}, 0\ns_cbranch_scc1 L_nofl{glob}")
        st(f"v_mov_b32 v19, s{sEP1 if glob else sXCC}\ns_mov_b64 exec, 1\ns_waitcnt vmcnt({younger})")
        self.stamp(st, "m", "m0GF" if glob else "m0LF", 64)
        st.vm(f"buffer_store_dword v19, off, {srd(WS)}, s{mFG if glob else mFL}{' sc1' if glob else ''}", cond=True)
        st("s_mov_b64 exec, -1")
        st.label(f"L_nofl{glob}")

    WOR, WDR = 128, 48

    def odd_voffsets(self, st, base, t):
        st(f"s_and_b32 s{sT0}, s{sIDX}, 15\ns_mul_i32 s{sT0}, s{sT0}, 224\ns_and_b32 s{sT1}, s{sW}, 1\ns_lshl_b32 s{sT1}, s{sT1}, 2\ns_lshl_b32 s{sT2}, s{sCB}, 1")
        for p in range(3):
            d = base + p
            st(f"v_add_u32 v{t}, {64*p}, v0\nv_mul_u32_u24 v{t+1}, 10923, v{t}\nv_lshrrev_b32 v{t+1}, 16, v{t+1}\nv_mul_u32_u24 v{d}, 6, v{t+1}")
            st(f"v_sub_u32 v{t}, v{t}, v{d}\nv_cmp_gt_u32 vcc, s{sT2}, v{t}\nv_xor_b32 v{t+1}, s{sT1}, v{t+1}\nv_add_u32 v{d}, 8, v{t}")
            st(f"v_cndmask_b32 v{t}, v{d}, v{t}, vcc\nv_mul_u32_u24 v{t+1}, 3584, v{t+1}\nv_lshlrev_b32 v{t}, 4, v{t}\nv_add3_u32 v{d}, v{t}, v{t+1}, s{sT0}")

    def full_voffset(self, st, d, t):
        st(f"s_and_b32 s{sT0}, s{sIDX}, 15\ns_mul_i32 s{sT0}, s{sT0}, 224\ns_lshl_b32 s{sT1}, s{sCB}, 5\ns_add_u32 s{sT0}, s{sT0}, s{sT1}")
        st(f"s_and_b32 s{sT1}, s{sW}, 1\ns_lshl_b32 s{sT1}, s{sT1}, 2")
        st(f"v_bfe_u32 v{t}, v0, 4, 1\nv_lshlrev_b32 v{t}, 1, v{t}\nv_or_b32 v{t}, s{sT1}, v{t}\nv_and_b32 v{t+1}, 7, v0\nv_xor_b32 v{t}, v{t}, v{t+1}")
        st(f"v_lshlrev_b32 v{t}, 4, v{t}\nv_lshrrev_b32 v{t+1}, 3, v0\nv_mul_u32_u24 v{t+1}, 3584, v{t+1}\nv_add3_u32 v{d}, v{t}, v{t+1}, s{sT0}")

    pace = None

    def paced(self, st):
        if self.pace is not None: st(f"s_waitcnt vmcnt({self.pace})")

    def odd_pair(self, st, u0, mask, vbase):
        st(f"s_and_b32 s{sT2}, s{sP+4}, {mask | 1}\ns_xor_b32 s{sT2}, s{sT2}, {u0}\ns_mul_i32 s{sT1}, s{sT2}, 114688")
        st(f"s_lshl_b32 s{sT2}, s{sT2}, 1\ns_and_b32 s{sT3}, s{sW}, 1\ns_add_u32 s{sT2}, s{sT2}, s{sT3}\ns_mul_i32 s{sT2}, s{sT2}, 3072")
        for p in range(3):
            st(f"s_add_u32 m0, s{sT2}, {ODD + 1024*p}\ns_nop 0")
            st.vm(f"buffer_load_dwordx4 v{vbase+p}, {srd(WG)}, s{sT1} offen lds", ("odd", u0))

    def full_unit(self, st, u, v):
        for q in range(2):
            st(f"s_add_u32 m0, s{sP+6}, {slot8(FSLOT[u]) + 1024*q}\ns_add_u32 s{sT1}, s{sP+5}, {(32*u + 8*q) * 3584}")
            self.paced(st)
            st.vm(f"buffer_load_dwordx4 v{v}, {srd(WG)}, s{sT1} offen lds", ("full", u))

    def wd_dma(self, st, j, addr, vD, sbase):
        p = j % 4
        t = tile_of(p, j // 4)
        if self.c.fake & 4 and j >= 10:
            for q in range(2):
                st(f"s_add_u32 m0, s{sbase}, {addr + 1024*q}\ns_lshl_b32 s{sT1}, s{sG}, 18\ns_add_u32 s{sT1}, s{sT1}, s{sbase}\ns_add_u32 s{sT1}, s{sT1}, {WS_H + (j-10)*8192 + 1024*q}")
                self.paced(st)
                st.vm(f"buffer_load_dwordx4 v1, {srd(WS)}, s{sT1} offen lds", ("wd", j))
            return
        st(f"s_add_u32 m0, s{sbase}, {addr}\ns_add_u32 s{sT1}, s{sP+7}, {(7*p + t) * 16384}")
        self.paced(st)
        st.vm(f"buffer_load_dwordx4 v{vD}, {srd(WD)}, s{sT1} offen lds")
        st(f"s_add_u32 m0, s{sbase}, {addr + 1024}\ns_add_u32 s{sT1}, s{sT1}, 8192")
        self.paced(st)
        st.vm(f"buffer_load_dwordx4 v{vD}, {srd(WD)}, s{sT1} offen lds", ("wd", j))

    def wd_read(self, st, j, reg, va, off):
        for nt in range(2):
            for t in range(2):
                st.ds(f"ds_read_b64_tr_b16 {vr(reg+4*nt+2*t,2)}, v{va[nt]} offset:{off + 1024*t}", ("wdr", j))

    def wd_addr(self, st, vD, va, t0):
        st(f"v_lshrrev_b32 v{t0}, 3, v0\nv_bfe_u32 v{t0+1}, v0, 4, 1\nv_lshlrev_b32 v{t0+1}, 2, v{t0+1}\nv_and_b32 v{vD}, 7, v0")
        st(f"v_xor_b32 v{vD}, v{vD}, v{t0+1}\nv_lshlrev_b32 v{vD}, 4, v{vD}\nv_lshl_add_u32 v{vD}, v{t0}, 10, v{vD}")
        st(f"v_lshrrev_b32 v{t0}, 5, v0\nv_bfe_u32 v{t0+1}, v0, 2, 2\nv_lshl_add_u32 v{t0}, v{t0}, 2, v{t0+1}\nv_lshlrev_b32 v{t0}, 7, v{t0}")
        st(f"v_bfe_u32 v{t0+1}, v0, 3, 1\ns_and_b32 s{sT0}, s{sW}, 1\nv_xor_b32 v{t0+1}, s{sT0}, v{t0+1}\nv_lshl_add_u32 v{t0}, v{t0+1}, 6, v{t0}")
        st(f"v_bfe_u32 v{t0+1}, v0, 4, 1\nv_lshl_add_u32 v{t0}, v{t0+1}, 5, v{t0}\nv_and_b32 v{t0+1}, 3, v0\nv_lshl_add_u32 v{va[0]}, v{t0+1}, 3, v{t0}")
        st(f"v_xor_b32 v{va[1]}, 64, v{va[0]}")

    def helper_setup(self, st):
        vL, vP, vR = 1, 2, 3
        st(f"v_and_b32 v{vP}, 7, v0\ns_lshl_b32 s{sT0}, s{sW}, 3\nv_add_u32 v{vP}, s{sT0}, v{vP}\nv_lshlrev_b32 v{vP}, 7, v{vP}")
        st(f"v_lshrrev_b32 v{vR}, 3, v0\nv_lshl_add_u32 v{vP}, v{vR}, 12, v{vP}")
        vWO, vTR, vWD, vWA, GU = 4, 5, 6, (12, 13), 16
        st(f"v_lshrrev_b32 v14, 2, v0\nv_lshlrev_b32 v14, 10, v14\nv_and_b32 v15, 3, v0\nv_lshlrev_b32 v15, 4, v15")
        st(f"s_lshl_b32 s{sT0}, s{sCB}, 8\ns_lshl_b32 s{sT1}, s{sW}, 6\ns_add_u32 s{sT0}, s{sT0}, s{sT1}")
        st(f"v_add3_u32 v{vWO}, v14, v15, s{sT0}")
        st(f"s_mul_i32 s{sE}, s{sW}, {STGW}\ns_add_u32 s{sE}, s{sE}, {STG}")
        st(f"v_lshrrev_b32 v14, 5, v0\nv_lshlrev_b32 v14, 8, v14\nv_bfe_u32 v15, v0, 2, 2\nv_lshl_add_u32 v14, v15, 6, v14")
        st(f"v_bfe_u32 v15, v0, 4, 1\nv_lshl_add_u32 v14, v15, 5, v14\nv_and_b32 v15, 3, v0\nv_lshl_add_u32 v14, v15, 3, v14")
        st(f"v_add_u32 v{vTR}, s{sE}, v14")
        self.wd_addr(st, vWD, vWA, 14)
        st(f"v_add_u32 v24, s{sE}, v{vWA[0]}\nv_add_u32 v25, s{sE}, v{vWA[1]}")
        self.odd_voffsets(st, GU, 14)
        self.full_voffset(st, GU + 3, 14)
        st(f"s_lshr_b32 s{sT0}, s{sW}, 1\ns_mul_i32 s{sP+5}, s{sT0}, {16*3584}\ns_lshr_b32 s{sT1}, s{sIDX}, 4\ns_lshl_b32 s{sT1}, s{sT1}, 1\ns_or_b32 s{sT1}, s{sT1}, s{sT0}")
        st(f"s_and_b32 s{sT2}, s{sIDX}, 1\ns_lshl_b32 s{sT2}, s{sT2}, 2\ns_or_b32 s{sP+4}, s{sT1}, s{sT2}")
        st(f"s_lshl_b32 s{sT0}, s{sT0}, 11\ns_and_b32 s{sT1}, s{sW}, 1\ns_lshl_b32 s{sT1}, s{sT1}, 12\ns_add_u32 s{sP+6}, s{sT0}, s{sT1}")
        st(f"v_lshrrev_b32 v14, 4, v0\nv_mul_u32_u24 v14, 3584, v14\nv_bfe_u32 v15, v0, 2, 2\nv_mul_u32_u24 v15, 896, v15\nv_and_b32 v{GU+4}, 3, v0")
        st(f"v_lshlrev_b32 v{GU+4}, 8, v{GU+4}\nv_add3_u32 v{GU+4}, v{GU+4}, v14, v15")
        st(f"s_mul_i32 s{sT0}, s{sW}, {28*16384}\ns_and_b32 s{sT1}, s{sIDX}, 7\ns_lshl_b32 s{sT1}, s{sT1}, 7\ns_add_u32 s{sP+7}, s{sT0}, s{sT1}")
        st(f"v_mov_b32 v26, {MISC}\nv_lshlrev_b32 v23, 7, v0")
        st(f"v_and_b32 v14, 31, v0\nv_lshlrev_b32 v14, 10, v14\nv_lshrrev_b32 v15, 5, v0\nv_lshl_add_u32 v40, v15, 4, v14")
        st(f"v_lshrrev_b32 v14, 4, v0\nv_lshlrev_b32 v14, 7, v14\nv_bfe_u32 v15, v0, 1, 1\nv_lshl_add_u32 v14, v15, 6, v14")
        st(f"v_bfe_u32 v15, v0, 2, 2\nv_lshl_add_u32 v14, v15, 3, v14\nv_and_b32 v15, 1, v0\nv_lshl_add_u32 v14, v15, 2, v14\nv_add_u32 v42, {WBL}, v14")

    def helper_attention(self, st):
        vL, vP, vR = 1, 2, 3
        st(f"s_lshl_b32 s{sT1}, s{sG}, 12\ns_add_u32 s{sB}, s{sT1}, {WS_FLG1}")
        st(f"s_mul_i32 s{sC}, s{sW}, {2*TILE}\ns_lshl_b32 s{sD}, s{sW}, 12\ns_add_u32 s{sD}, s{sD}, {WS_KV}")
        st(f"s_cmp_lt_u32 s{sW}, 2\ns_cbranch_scc1 L_x1skip")
        st(f"s_and_b32 s{sT2}, s{sW}, 1\ns_lshl_b32 s{sT0}, s{sT2}, 4\nv_and_b32 v12, 15, v0\nv_add_u32 v12, s{sT0}, v12")
        st(f"v_lshlrev_b32 v14, 7, v12\nv_lshlrev_b32 v12, 2, v12\ns_lshl_b32 s{sT1}, s{sG}, 7\ns_add_u32 s{sT1}, s{sT1}, {WS_FLGL}")
        st(f"s_lshl_b32 s{sE}, s{sG}, 14\ns_lshl_b32 s{sT0}, s{sT2}, 13\ns_add_u32 s{sE}, s{sE}, s{sT0}\ns_add_u32 s{sE}, s{sE}, {WS_KVL}")
        st(f"s_mul_i32 s{sT0}, s{sT2}, {4*TILE}\ns_add_u32 m0, s{sT0}, {RING}")
        st(f"s_lshl_b32 s{sT0}, s{sT2}, 2\ns_add_u32 s{sT0}, s{sT0}, {MISC}\nv_mov_b32 v15, s{sT0}")
        st(f"v_mov_b32 v13, 1\ns_mov_b32 s{sCNT}, {SPINL}\ns_bfm_b64 exec, 16, 0")
        st.label("L_x1l")
        st(f"buffer_load_dword v{vR}, v12, {srd(WS)}, s{sT1} offen sc1")
        st.wait_vm()
        st(f"v_cmp_ne_u32 vcc, s{sXCC}, v{vR}\ns_cbranch_vccz L_x1a_ok")
        st(f"s_sub_u32 s{sCNT}, s{sCNT}, 1\ns_cbranch_scc0 L_x1l")
        st(f"s_mov_b64 exec, -1\ns_sub_u32 s{sE}, s{sE}, {WS_KVL - WS_KV}\nv_mov_b32 v13, 0")
        self.poll(st, "L_x1a", 14, f"s{sB}", vR, 1, exact=True, lanes=16)
        for i in range(8):
            if i in (2, 6): st("s_add_u32 m0, m0, 32\ns_nop 0")
            if i == 4: st(f"s_add_u32 m0, m0, {2*TILE - 32}\ns_add_u32 s{sE}, s{sE}, 4096")
            st(f"buffer_load_dwordx4 v{vL}, {srd(WS)}, s{sE} offen offset:{1024*(i % 4)} sc1 lds")
        self.stamp(st, "h", "w2poll", 64)
        st("ds_write_b32 v15, v13")
        st.label("L_x1skip")
        self.stamp(st, "h", "x1own")
        def chunk(c):
            st(f"s_add_u32 s{sT0}, s{sG}, {c}\ns_and_b32 s{sT0}, s{sT0}, 7\ns_lshl_b32 s{sT0}, s{sT0}, 14")
            st(f"s_add_u32 m0, s{sC}, {RING + (c % 2) * 8 * TILE}\ns_add_u32 s{sT0}, s{sT0}, s{sD}")
            for i in range(4):
                if i == 2: st("s_add_u32 m0, m0, 32\ns_nop 0")
                st.vm(f"buffer_load_dwordx4 v{vL}, {srd(WS)}, s{sT0} offen offset:{1024*i} sc1 lds", ("kv", c))
        vWO, vTR, vWD, GU = 4, 5, 6, 16
        st(f"s_mul_i32 s{sE}, s{sW}, {STGW}\ns_add_u32 s{sE}, s{sE}, {STG}")
        st(f"s_cmp_lt_u32 s{sW}, 2\ns_cbranch_scc1 L_x1skip2")
        st.wait_vm()
        st.wait_ds()
        st.label("L_x1skip2")
        self.pad(st, 1)
        st.bar("B2")
        self.stamp(st, "h", "cycB2", 32)
        st.ds(f"ds_write_b128 v7, v[8:11] offset:{8*TILE + 2048}")
        st.ds("ds_read_b64 v[28:29], v26")
        st.ds("ds_read_b32 v12, v41")
        st(f"s_mov_b32 s{sB}, {WS_FLG1}")
        self.poll(st, "L_x1b", vP, f"s{sB}", vR, 1, exact=True)
        self.stamp(st, "h", "x1a", 81)
        st.wait_ds()
        self.colo_reduce(st, 28)
        st(f"s_setprio {self.c.hprio}")
        st(f"s_lshl_b32 s{sA}, s{sCB}, 17")
        def wo_dma(j, pos):
            st(f"s_add_u32 m0, s{sE}, {1024*pos}\ns_xor_b32 s{sT1}, s{sA}, {j*16384}")
            st.vm(f"buffer_load_dwordx4 v{vWO}, {srd(WO)}, s{sT1} offen lds", ("wo", j))
        def wo_read(j, pos):
            for t in range(2):
                st.ds(f"ds_read_b64_tr_b16 {vr(self.WOR+4*j+2*t,2)}, v{vTR} offset:{1024*pos + 512*t}")
        vT, vTD, vJ = 23, 27, 30
        incond = [False]
        def touch(buf, v, soff, lanes=64):
            if lanes < 64: st(f"s_bfm_b64 exec, {lanes}, 0")
            st.vm(f"buffer_load_dword v{vJ}, v{v}, {srd(buf)}, {soff} offen{' sc1' if buf == WS else ''}", cond=incond[0])
            if lanes < 64: st("s_mov_b64 exec, -1")
        def lines(name, soff, n):
            if name[0] == "T": return touch(WS, vT, soff, n)
            if n < 8: st(f"s_bfm_b64 exec, {8*n}, 0")
            for i in range(-(-n // 8)):
                if i == 4: st(f"s_add_u32 {soff}, {soff}, 4096")
                st.vm(f"buffer_store_dwordx4 v[8:11], v{vL}, {srd(WS)}, {soff} offen offset:{1024*(i % 4)} sc1")
            if n < 8: st("s_mov_b64 exec, -1")
        items = [("o", j) for j in range(32)] + [("d", j) for j in range(10)]
        staged = []
        def stage(n):
            assert not staged
            pos = 0
            while items and pos + (1 if items[0][0] == "o" else 2) <= n:
                kind, j = items.pop(0)
                if kind == "o": wo_dma(j, pos)
                else: self.wd_dma(st, j, 1024 * pos, vWD, sE)
                staged.append((kind, j, pos))
                pos += 1 if kind == "o" else 2
        def unstage():
            st.wait_vm(("w" + staged[-1][0], staged[-1][1]))
            for kind, j, pos in staged:
                if kind == "o": wo_read(j, pos)
                else: self.wd_read(st, j, self.WDR + 8 * j, (24, 25), 1024 * pos)
            st.wait_ds()
            staged.clear()
        gid = f"s_lshl_b32 s{sT0}, s{sIDX}, 2\ns_add_u32 s{sT0}, s{sT0}, s{sW}"
        cid = f"s_lshl_b32 s{sT0}, s2, 2\ns_add_u32 s{sT0}, s{sT0}, s{sW}"
        free_hi = [False]
        def op(name):
            if name[0] == "S": stage(int(name[1:]))
            elif name == "R": unstage()
            elif name[0] == "O":
                u, _, mask = name[1:].partition("^")
                assert int(u) < 6 or free_hi[0] or self.c.loose
                self.odd_pair(st, int(u), int(mask or 0), GU)
            elif name[0] == "F": self.full_unit(st, int(name[1:]), GU + 3)
            elif name == "Tkv":
                st(f"{gid}\ns_lshl_b32 s{sT1}, s{sT0}, 10\ns_add_u32 s{sT1}, s{sT1}, {WS_KV}")
                touch(WS, vT, f"s{sT1}", 8)
            elif name == "Tmd":
                st(f"{cid}\ns_mul_i32 s{sT1}, s{sT0}, {14*128}")
                touch(WD, vT, f"s{sT1}", 14)
            elif name in ("Tmg0", "Tmg1"):
                st(f"{cid}\ns_lshr_b32 s{sT0}, s{sT0}, 1\ns_mul_i32 s{sT1}, s{sT0}, {14*128}\ns_add_u32 s{sT1}, s{sT1}, {917504*int(name[3])}")
                touch(WG, vT, f"s{sT1}", 14)
            elif name == "To":
                st(f"{gid}\ns_lshl_b32 s{sT1}, s{sT0}, 12")
                touch(WO, vT, f"s{sT1}", 32)
            elif name[:2] in ("Tf", "Tq"):
                row0 = (96 if name[1] == "f" else 0) + 256 * int(name[2:])
                st(f"{gid}\ns_lshr_b32 s{sT0}, s{sT0}, 1\ns_mul_i32 s{sT1}, s{sT0}, {4*3584}\ns_add_u32 s{sT1}, s{sT1}, {row0*3584 + (0 if name[1] == 'f' else 128)}")
                if name[1] == "q": st("s_mov_b32 exec_lo, 0x77777777\ns_mov_b32 exec_hi, 0x77777777")
                touch(WG, GU + 4, f"s{sT1}")
                if name[1] == "q": st("s_mov_b64 exec, -1")
            elif name[:2] == "Td":
                st(f"{gid}\ns_lshr_b32 s{sT1}, s{sT0}, 3\ns_and_b32 s{sT2}, s{sT1}, 3\ns_mul_i32 s{sT1}, s{sT1}, 114688\ns_and_b32 s{sT0}, s{sT0}, 7\ns_lshl_b32 s{sT0}, s{sT0}, 11")
                st(f"s_add_u32 s{sT1}, s{sT0}, s{sT1}")
                if name == "Tdf":
                    st(f"s_lshl_b32 s{sT2}, s{sT2}, 14\ns_add_u32 s{sT1}, s{sT1}, s{sT2}")
                    touch(WD, vTD, f"s{sT1}")
                else:
                    for i in range(3):
                        st(f"s_cmp_gt_u32 s{sT2}, {i}\ns_cselect_b32 s{sT0}, {i*16384}, {(i+4)*16384}\ns_add_u32 s{sT0}, s{sT0}, s{sT1}".replace(f"s_cselect_b32 s{sT0}, {i*16384}, {(i+4)*16384}", f"s_cselect_b32 s{sT0}, 0, 0x10000\ns_add_u32 s{sT0}, s{sT0}, {i*16384}"))
                        touch(WD, vT, f"s{sT0}", 16)
            elif name[:2] in ("Th", "Ph"):
                a, b = map(int, name[2:].split("-"))
                st(f"s_lshr_b32 s{sT0}, s{sIDX}, 4\ns_lshl_b32 s{sT1}, s{sG}, 1\ns_add_u32 s{sT0}, s{sT0}, s{sT1}\ns_lshl_b32 s{sT0}, s{sT0}, 2\ns_add_u32 s{sT0}, s{sT0}, s{sW}")
                st(f"s_mul_i32 s{sT0}, s{sT0}, 114688\ns_and_b32 s{sT1}, s{sIDX}, 15\ns_mul_i32 s{sT1}, s{sT1}, 7168\ns_add_u32 s{sT0}, s{sT0}, s{sT1}\ns_add_u32 s{sT0}, s{sT0}, {WS_HH + 1024*a}")
                lines(name, f"s{sT0}", 8 * (b - a))
            elif name in ("Tx", "Px"):
                st(f"s_lshl_b32 s{sT0}, s{sRB}, 15\ns_lshl_b32 s{sT1}, s{sCB}, 13\ns_add_u32 s{sT0}, s{sT0}, s{sT1}\ns_lshl_b32 s{sT1}, s{sW}, 11\ns_add_u32 s{sT0}, s{sT0}, s{sT1}")
                st(f"s_add_u32 s{sT1}, s{sT0}, {WS_O}")
                lines(name, f"s{sT1}", 16)
                st(f"s_add_u32 s{sT1}, s{sT0}, {WS_H}")
                lines(name, f"s{sT1}", 16)
                st(f"s_lshr_b32 s{sT1}, s{sT0}, 3\ns_add_u32 s{sT1}, s{sT1}, {WS_ST}")
                lines(name, f"s{sT1}", 2)
                st(f"s_add_u32 s{sT1}, s{sT1}, {WS_PM - WS_ST}")
                lines(name, f"s{sT1}", 2)
            elif name == "Tz":
                st(f"s_min_u32 s{sT0}, s{sW}, 2\ns_lshl_b32 s{sT0}, s{sT0}, 13\ns_lshl_b32 s{sT1}, s{sRB}, 7\ns_add_u32 s{sT1}, s{sT1}, s{sT0}\ns_add_u32 s{sT1}, s{sT1}, {WS_FLG2}")
                touch(WS, vT, f"s{sT1}", 1)
            elif name == "X":
                st(f"s_lshl_b32 s{sT0}, s{sRB}, 15\ns_lshl_b32 s{sT1}, s{sCB}, 8\ns_add_u32 s{sT0}, s{sT0}, s{sT1}\ns_lshl_b32 s{sT1}, s{sW}, 6\ns_add_u32 s{sT0}, s{sT0}, s{sT1}")
                for q in range(2):
                    st.vm(f"buffer_load_dwordx4 {vr(32+4*q,4)}, v40, {srd(X)}, s{sT0} offen offset:{32*q}")
            elif name == "B":
                st(f"s_cmp_lg_u32 s{sW}, 3\ns_cbranch_scc1 L_nowb2")
                st(f"s_lshl_b32 s{sT0}, s{sCB}, 13\ns_add_u32 s{sT0}, s{sT0}, {WS_WB}\ns_mov_b32 s{sCNT}, {SPIN}\ns_setprio 2")
                st.label("L_wb")
                st(f"buffer_load_dwordx3 v[44:46], v{vT}, {srd(WS)}, s{sT0} offen sc1\ns_waitcnt vmcnt(0)")
                st(f"v_cmp_ne_u32 vcc, s{sEP1}, v46\ns_cbranch_vccz L_wb_ok\ns_sub_u32 s{sCNT}, s{sCNT}, 1\ns_cbranch_scc0 L_wb")
                st.label("L_wb_ok")
                st(f"s_setprio {self.c.hprio}\nds_write2_b32 v42, v44, v45 offset0:0 offset1:8\ns_waitcnt lgkmcnt(0)")
                st.label("L_nowb2")
            elif name == "W":
                st.wait_vm()
                self.stamp(st, "h", "drain", 16)
            else: raise KeyError(name)
        chunk(1)
        st(f"s_cmp_lg_u32 s{sW}, 1\ns_cbranch_scc1 L_nopub\ns_mov_b64 exec, 1")
        st.vm(f"buffer_store_dwordx3 v[244:246], off, {srd(WS)}, s{sF} sc1", cond=True)
        st("s_mov_b64 exec, -1")
        st.label("L_nopub")
        ints = self.c.sched.split("|")
        assert len(ints) == 8
        for c, ops in enumerate(ints):
            if c == 1:
                st(f"{cid}\ns_cmp_lg_u32 s{sT0}, 0\ns_cbranch_scc1 L_noep")
                st(f"s_mov_b32 s{sT1}, {WS_EPOCH}\ns_mov_b64 exec, 1")
                st.vm(f"buffer_store_dword v31, off, {srd(WS)}, s{sT1} sc1", cond=True)
                st("s_mov_b64 exec, -1")
                st.label("L_noep")
            plain, _, stag = ops.partition("[")
            def staggered(par):
                if not stag: return
                st(f"s_xor_b32 s{sT0}, s{sIDX}, s{sG}\ns_bitcmp1_b32 s{sT0}, 0\ns_cbranch_scc{par} L_st{c}_{par}")
                incond[0] = True
                for name in stag.rstrip("]").split(): op(name)
                incond[0] = False
                st.label(f"L_st{c}_{par}")
            staggered(0)
            for name in plain.split(): op(name)
            st.wait_vm(("kv", c + 1))
            staggered(1)
            self.stamp(st, "h", f"arrBA{c}", 2)
            st.bar(f"BA{c}")
            self.stamp(st, "h", f"cycBA{c}", 32)
            if not items and not staged: free_hi[0] = True
            if c + 2 < 8: chunk(c + 2)
        assert self.c.loose or (not items and not staged)
        st("s_setprio 2")
        self.stamp(st, "h", "BA7")

    def helper_phase_c(self, st):
        vL, vP, vR, XR, ACC, BRG, PM = 1, 2, 3, 32, 16, (4, 8, 40, 44), self.WOR
        st(f"s_lshl_b32 s{sT0}, s{sRB}, 7\ns_lshl_b32 s{sT1}, s{sW}, 2\ns_add_u32 s{sT0}, s{sT0}, s{sT1}\ns_add_u32 s{sB}, s{sT0}, {WS_FLG2}")
        st(f"s_lshl_b32 s{sT2}, s{sCB}, 4\ns_add_u32 s{sT0}, s{sT0}, s{sT2}\ns_add_u32 s{sF}, s{sT0}, {WS_FLG3}")
        st(f"v_and_b32 v{vP}, 3, v0\nv_max_u32 v{vP}, 1, v{vP}\nv_lshlrev_b32 v{vP}, 4, v{vP}\nv_xor_b32 v{vP}, s{sT2}, v{vP}")
        st(f"s_lshl_b32 s{sT0}, s{sRB}, 15\ns_lshl_b32 s{sT2}, s{sCB}, 13\ns_add_u32 s{sT0}, s{sT0}, s{sT2}\ns_lshl_b32 s{sD}, s{sW}, 11\ns_add_u32 s{sT0}, s{sT0}, s{sD}")
        st(f"s_add_u32 s{sC}, s{sT0}, {WS_O}\ns_add_u32 s{sA}, s{sT0}, {WS_H}")
        st(f"s_lshl_b32 s{sT0}, s{sRB}, 12\ns_add_u32 s{sP}, s{sT0}, {WS_PM}\ns_lshl_b32 s{sT2}, s{sCB}, 10\ns_add_u32 s{sT0}, s{sT0}, s{sT2}\ns_add_u32 s{sT0}, s{sT0}, s{sT1}\ns_add_u32 s{sE}, s{sT0}, {WS_ST}")
        self.poll(st, "L_x2", vP, f"s{sB}", vR, 1, exact=True, lanes=4)
        self.pad(st, 2)
        self.stamp(st, "h", "x2ok", 3)
        for a in range(1, 4):
            st(f"s_add_u32 m0, s{sD}, {RING + 8192*a}\ns_xor_b32 s{sT0}, s{sC}, {8192*a}")
            for q in range(2):
                st.vm(f"buffer_load_dwordx4 v{vL}, {srd(WS)}, s{sT0} offen offset:{1024*q} sc1 lds")
        for b in (XR, XR + 4): st(f"v_permlane32_swap_b32 v{b}, v{b+2}\nv_permlane32_swap_b32 v{b+1}, v{b+3}")
        st.bar("BC0")
        rd = lambda j: st.ds(f"ds_read_b128 {vr(BRG[j % 4],4)}, v{vL} offset:{RING + 1024*j}", ("o", j))
        for j in range(3): rd(j)
        for r in range(8): st(f"v_lshlrev_b32 v{ACC+2*r}, 16, v{XR+r}\nv_and_b32 v{ACC+2*r+1}, 0xffff0000, v{XR+r}")
        st("s_nop 0")
        red = [lambda: st.wait_vm("pm")]
        for n in (8, 4, 2, 1): red += [f"v_add_f32 v{PM+i}, v{PM+i}, v{PM+n+i}" for i in range(n)]
        red += [f"v_mov_b32 v{PM+1}, v{PM}", f"v_cmp_eq_u32 vcc, 0, v0", "v_mov_b32 v14, 0x80000000", f"v_permlane32_swap_b32 v{PM}, v{PM+1}",
                "v_cndmask_b32_e64 v14, v14, 0, vcc", f"v_add_f32 v{PM}, v{PM}, v{PM+1}", f"v_mov_b32 v15, s{sEP1}", f"v_sub_f32 v12, v12, v{PM}"]
        for m in range(32):
            if m == 8:
                st.wait_vm()
                st.bar("BC1")
                for j in range(8, 11): rd(j)
                for i in range(4):
                    st.vm(f"buffer_load_dwordx4 {vr(PM+4*i,4)}, v{vL}, {srd(WS)}, s{sP} offen offset:{1024*i} sc1", "pm")
            st.wait_ds(("o", m))
            st(mfma32(ACC, self.WOR + 4 * m, BRG[m % 4]))
            if m + 3 < 32 and not 8 <= m + 3 < 11: rd(m + 3)
            if m >= 24:
                for op in red[3 * (m - 24):3 * (m - 23)]: op() if callable(op) else st(op)
        assert len(red) == 24
        st.bar("BC2")
        st(f"s_cmp_eq_u32 s{sCOLO}, {2 if self.c.force_slow else 1}\ns_cbranch_scc0 L_c_slow")
        self.c_epilogue(st, "")
        st.label("L_c_done")
        self.stamp(st, "h", "hflag")
        tc = self.tailcode
        tc.label("L_c_slow")
        self.c_epilogue(tc, " sc1")
        tc("s_branch L_c_done")

    def c_epilogue(self, st, sc):
        vL, ACC, P = 1, 16, 40
        st.nop(6)
        for r in range(8):
            st(f"v_pk_add_f32 {vr(ACC+2*r,2)}, {vr(ACC+2*r,2)}, v[12:13] op_sel_hi:[1,0]")
            if r % 4 == 3:
                for i in range(r - 3, r + 1): st(f"v_cvt_pk_bf16_f32 v{P+i}, v{ACC+2*i}, v{ACC+2*i+1}")
                st.vm(f"buffer_store_dwordx4 {vr(P+r-3,4)}, v{vL}, {srd(WS)}, s{sA} offen offset:{1024*(r//4)}{sc}")
        for r in range(8):
            st(f"v_dot2_f32_bf16 v{ACC+1}, v{P+r}, v{P+r}, {'0' if r == 0 else 'v%d' % (ACC+1)}")
        st(f"v_mul_f32 v{ACC}, -0.5, v12\ns_nop 1")
        st(f"v_permlane32_swap_b32 v{ACC}, v{ACC+1}\nv_add_f32 v{ACC}, v{ACC}, v{ACC+1}")
        st.vm(f"buffer_store_dword v{ACC}, v{vL}, {srd(WS)}, s{sE} offen{sc}")
        st.wait_vm()
        st.vm(f"buffer_store_dword v15, v14, {srd(WS)}, s{sF} offen{sc}")

    def e_setup(self, st):
        vL, vP, vA = 1, 2, (7, 8, 9, 10)
        st(f"s_lshr_b32 s{sT0}, s{sIDX}, 3\ns_lshl_b32 s{sT1}, s{sG}, 2\ns_add_u32 s{sT0}, s{sT0}, s{sT1}\ns_lshl_b32 s{sA}, s{sT0}, 1")
        st(f"s_mul_i32 s{sT0}, s{sA}, 114688\ns_mul_i32 s{sT1}, s{sW}, {28*1024}\ns_add_u32 s{sT0}, s{sT0}, s{sT1}")
        for p in range(4): st(f"s_add_u32 s{sP+p}, s{sT0}, {WS_HH + 7168*p}")
        st(f"s_lshr_b32 s{sT2}, s{sW}, 1\ns_mul_i32 s{sT0}, s{sT2}, 114688\ns_sub_u32 s{sT1}, 114688, s{sT0}")
        st(f"v_add_u32 v{vA[0]}, s{sT0}, v{vL}\nv_add_u32 v{vA[1]}, s{sT1}, v{vL}\nv_add_u32 v{vA[2]}, 4096, v{vA[0]}\nv_add_u32 v{vA[3]}, 4096, v{vA[1]}")
        st(f"v_bfe_u32 v{vP}, v0, 2, 1\nv_lshlrev_b32 v{vP}, 7, v{vP}\nv_and_b32 v14, 3, v0\nv_lshl_add_u32 v{vP}, v14, 2, v{vP}")
        st(f"v_lshrrev_b32 v14, 3, v0\nv_lshl_add_u32 v{vP}, v14, 28, v{vP}")
        st(f"s_lshl_b32 s{sT0}, s{sA}, 7\ns_lshl_b32 s{sT1}, s{sW}, 4\ns_add_u32 s{sB}, s{sT0}, s{sT1}\ns_add_u32 s{sB}, s{sB}, {WS_FLG4}")
        st(f"s_add_u32 s{sA}, s{sA}, s{sT2}")
        st(f"s_lshl_b32 s{sT0}, s{sA}, 15\ns_lshl_b32 s{sT1}, s{sW}, 13\ns_add_u32 s{sT0}, s{sT0}, s{sT1}\ns_add_u32 s{eO}, s{sT0}, {WS_O}")
        st(f"s_add_u32 s{eO+1}, s{eO}, 4096\ns_xor_b32 s{eO+2}, s{eO}, 0x8000\ns_xor_b32 s{eO+3}, s{eO+1}, 0x8000")
        st(f"s_and_b32 s{sT0}, s{sIDX}, 7\ns_lshl_b32 s{sT0}, s{sT0}, 1\ns_and_b32 s{sT1}, s{sW}, 1\ns_add_u32 s{sT0}, s{sT0}, s{sT1}")
        st(f"s_lshl_b32 s{sT1}, s{sA}, 15\ns_lshl_b32 s{sC}, s{sT0}, 11\ns_add_u32 s{sC}, s{sC}, s{sT1}\ns_add_u32 s{sC}, s{sC}, {WS_H}")
        st(f"s_lshl_b32 s{sD}, s{sT0}, 6\ns_add_u32 s{sD}, s{sD}, s{sT1}")
        st(f"s_lshl_b32 s{sF}, s{sA}, 12\ns_add_u32 s{sF}, s{sF}, {WS_ST}")
        st(f"v_and_b32 v15, 31, v0\nv_lshlrev_b32 v11, 4, v15\nv_lshlrev_b32 v14, 10, v15\nv_lshrrev_b32 v15, 5, v0\nv_lshl_add_u32 v14, v15, 4, v14")

    def helper_phase_de(self, st):
        vL, vP, vR = 1, 2, 3
        vWD, vWA, vWH, GU = 4, (12, 13), (5, 6), 192
        self.full_voffset(st, GU, 14)
        self.wd_addr(st, vWD, vWA, 14)
        LO, HI = slot8(5), slot8(12)
        st(f"s_lshl_b32 s{sE}, s{sW}, 11\ns_add_u32 s{sT0}, s{sE}, {LO}")
        st(f"v_add_u32 v{vWA[0]}, s{sT0}, v{vWA[0]}\nv_add_u32 v{vWA[1]}, s{sT0}, v{vWA[1]}")
        st(f"v_add_u32 v{vWH[0]}, {HI - LO}, v{vWA[0]}\nv_add_u32 v{vWH[1]}, {HI - LO}, v{vWA[1]}")
        where = {}
        def dma(j, i):
            where[j] = i
            self.wd_dma(st, j, slot8(i), vWD, sE)
        def read(j, reg):
            i = where[j]
            if i < 12: self.wd_read(st, j, reg, vWA, slot8(i) - LO)
            else: self.wd_read(st, j, reg, vWH, slot8(i) - HI)
        wreg = {j: self.WDR + 8 * j for j in range(18)}
        def rd(js):
            st.wait_vm(("wd", js[-1]))
            for j in js: read(j, wreg[j])
            st.wait_ds()
        vPG, vLD, vN, CK = 200, 201, 202, 204
        st(f"s_lshl_b32 s{sT0}, s{sW}, 2\ns_add_u32 s{sT0}, s{sT0}, {LAND}\nv_mov_b32 v{vLD}, s{sT0}\nv_mov_b32 v{vPG}, {PROG}")
        def prog(n):
            if n in (3, 5, 7, 9, 20): self.stamp(st, "h", f"arr{n}", 4)
            self.lds_spin(st, f"L_pg{n}", vPG, CK, n)
        def land(tag, n):
            st(f"v_mov_b32 v{vN}, {n}")
            st.wait_vm(tag)
            st.ds(f"ds_write_b32 v{vLD}, v{vN}")
        self.e_setup(st)
        st(f"s_setprio {self.c.dprio}")
        self.pace = self.c.pace
        full = lambda u: self.full_unit(st, u, GU)
        self.lds_spin(st, "L_pg1", vPG, CK, 1)
        for op in self.c.dplan.split():
            a = op[1:]
            if op[0] == "F": full(int(a))
            elif op[0] == "W": dma(*map(int, a.split(">")))
            elif op[0] == "P": prog(int(a))
            elif op[0] == "L": land(("full", int(a) - 1), int(a))
            elif op[0] == "R": rd(list(map(int, a.split(","))))
            elif op == "T":
                st(f"s_setprio {self.c.tprio}")
                self.pace = self.c.pace2
        self.stamp(st, "h", "Dhelp_end", 13)
        ACC, vA = 192, (7, 8, 9, 10)
        free = [16, 24, 32, 40]
        areg = {}
        def ldA(j):
            p, t = j % 4, j // 4
            if self.c.fake & 2: t = 0
            areg[j] = r = free.pop(0)
            for mt in range(2):
                if t < 2:
                    st.vm(f"buffer_load_dwordx4 {vr(r+4*mt,4)}, v{vL}, {srd(WS)}, s{eO + 2*mt + p//2} offen offset:{2048*(p % 2) + 1024*t} sc1", ("a", j))
                    continue
                st.vm(f"buffer_load_dwordx4 {vr(r+4*mt,4)}, v{vA[mt + (2 if t >= 4 else 0)]}, {srd(WS)}, s{sP+p} offen offset:{1024*(t % 4)} sc1", ("a", j))
        def gate(t):
            tc = self.near
            st.wait_vm(("poll", t))
            self.notready(st, vR, t + 1)
            st(f"s_and_b64 vcc, vcc, 0xff\ns_cbranch_scc1 L_x4s{t}")
            st.label(f"L_x4r{t}")
            tc.label(f"L_x4s{t}")
            if self.c.diag & 8: tc(f"s_bitset1_b32 s{CODE}, {t}")
            self.poll(tc, f"L_x4p{t}", vP, f"s{sB}", vR, t + 1, lanes=8)
            tc(f"s_branch L_x4r{t}")
        stg = self.stages()
        f0 = stg[0][0]
        pollat = {p: c for c, p in stg[1:]}
        gateat = {4 * stg[i][0]: stg[i + 1][0] for i in range(len(stg) - 1)}
        if self.c.diag & 8: st(f"s_mov_b32 s{CODE}, 0")
        st(f"s_setprio {self.c.pprio}")
        self.poll(st, "L_x4", vP, f"s{sB}", vR, f0, lanes=8)
        if self.c.diag & 8: st(f"s_sub_u32 s{CODE}, {SPIN}, s{sCNT}\ns_lshl_b32 s{CODE}, s{CODE}, 8")
        st(f"s_setprio {self.c.eprio}")
        self.stamp(st, "h", "x4ok", 13)
        for j in range(4): ldA(j)
        nextA, nextW, DEPTH = 4, 18, self.c.edepth
        hres = None
        DEF0, LASTG = 20, 24
        mm = lambda j, a: st(mfma32(ACC + 16 * a, wreg[j] + 4 * (a & 1), areg[j] + 4 * (a >> 1), "0" if j == 0 else None))
        def more(j):
            nonlocal nextA, nextW, hres
            if nextW < 28 and nextW <= j + 4 and free:
                wreg[nextW] = free.pop(0); read(nextW, wreg[nextW]); nextW += 1
            elif nextA < 28 and nextA <= j + DEPTH and free:
                if nextA in gateat: gate(gateat[nextA] - 1)
                if nextA in pollat: st.vm(f"buffer_load_dword v{vR}, v{vP}, {srd(WS)}, s{sB} offen sc1", ("poll", pollat[nextA] - 1))
                ldA(nextA); nextA += 1
            elif j >= 8 and hres is None and len(free) > 3:
                hres = [free.pop(0) for _ in range(3)]
                for i in range(2):
                    st.vm(f"buffer_load_dwordx4 {vr(hres[0]+4*i,4)}, v{vL}, {srd(WS)}, s{sC} offen offset:{1024*i} sc1")
                st.vm(f"buffer_load_dword v15, v11, {srd(WS)}, s{sF} offen sc1", "h")
        resops = []
        for j in range(LASTG):
            st.wait_vm(("a", j))
            if j >= 18: st.wait_ds(("wdr", j))
            if j % 4 == 0: self.stamp(st, "h", f"Et{j//4}", 8)
            if j == 16:
                st.wait_vm("h")
                res = lambda r: hres[1 + r // 8] + r % 8
                for r in range(8):
                    resops += [f"v_lshlrev_b32 v{res(2*r)}, 16, v{hres[0]+r}", f"v_and_b32 v{res(2*r+1)}, 0xffff0000, v{hres[0]+r}"]
                resops += [f"v_add_f32 v{res(r)}, v15, v{res(r)}" for r in range(16)]
            for a in ((0, 2, 3, 1) if j < DEF0 else (2, 3, 1)):
                mm(j, a)
                if j == DEF0 and a == 2: st.bar("BE1")
                if a != 1: more(j)
                for _ in range(2):
                    if resops: st(resops.pop(0))
            if j < DEF0: free += [wreg[j], areg[j]]
            if j == DEF0 - 1: free.append(hres[0])
            more(j)
        assert nextA == 28 and nextW == 28 and not resops, (nextA, nextW, len(resops))
        BUF = RING
        vX = (5, 6, 12, 13)
        xaddr = [f"s_xor_b32 s{sT0}, s{sW}, {a}\ns_mul_i32 s{sT0}, s{sT0}, 12288\ns_add_u32 s{sT0}, s{sT0}, {BUF}\nv_add_u32 v{vX[a]}, s{sT0}, v{vL}" for a in range(4)]
        st.wait_ds(("wdr", 27))
        self.stamp(st, "h", "Et6", 8)
        wr = lambda a, q: st.ds(f"ds_write_b128 v{vX[a]}, {vr(ACC+16*a+4*q,4)} offset:{4096*(a-1) + 1024*q}")
        seq = [(j, 1) for j in range(LASTG, 28)] + [(j, 2) for j in range(LASTG, 28)] + [(j, 3) for j in range(LASTG, 28)] + [(j, 0) for j in range(DEF0, 28)]
        after = {0: [xaddr[1]], 1: [xaddr[2]], 2: [xaddr[3]], 3: [xaddr[0]], 6: ["s_nop 7"],
                 7: [(1, 0), (1, 1)], 8: [(1, 2), (1, 3)], 10: ["s_nop 3"], 11: [(2, 0), (2, 1)], 12: [(2, 2), (2, 3)],
                 14: ["s_nop 4", (3, 0), (3, 1)], 15: [(3, 2), (3, 3)]}
        RD = ACC + 16
        for i, (j, a) in enumerate(seq):
            if a == 1: st.wait_vm(("a", j))
            mm(j, a)
            for op in after.get(i, []): st(op) if isinstance(op, str) else wr(*op)
            if i == 17:
                st.wait_ds()
                st.bar("BE2")
                for q in range(4):
                    for b in range(3):
                        st.ds(f"ds_read_b128 {vr(RD+16*b+4*q,4)}, v{vX[0]} offset:{4096*b + 1024*q}", ("r", q))
        self.stamp(st, "h", "Emfma_end", 13)
        for q in range(4):
            st.wait_ds(("r", q))
            for r in range(4 * q, 4 * q + 4):
                st(f"v_add_f32 v{RD+r}, v{RD+r}, v{RD+16+r}\nv_add_f32 v{res(r)}, v{res(r)}, v{RD+32+r}")
            for r in range(4 * q, 4 * q + 4, 2):
                st(f"v_pk_add_f32 {vr(RD+r,2)}, {vr(RD+r,2)}, {vr(res(r),2)}")
            if q % 2 == 1:
                b = RD + 16 + 4 * (q // 2)
                for r in range(4 * q - 4, 4 * q + 4, 2):
                    st(f"v_pk_add_f32 {vr(RD+r,2)}, {vr(RD+r,2)}, {vr(ACC+r,2)}")
                for r in range(4):
                    st(f"v_cvt_pk_bf16_f32 v{b+r}, v{RD+4*q-4+2*r}, v{RD+4*q-3+2*r}")
                st(f"s_nop 1\nv_permlane32_swap_b32 v{b}, v{b+2}\nv_permlane32_swap_b32 v{b+1}, v{b+3}")
                st.vm(f"buffer_store_dwordx4 {vr(b,4)}, v14, {srd(OUT)}, s{sD} offen offset:{32*(q//2)} {self.c.outf}")
        self.pad(st, 0)
        self.stamp(st, "h", "end", 9)
        if self.c.diag & 8:
            self.nstamp["h"].append("gates")
            st(f"s_waitcnt lgkmcnt(0)\ns_mov_b32 s{sSTAMP + 2*(len(self.nstamp['h'])-1)}, s{CODE}")
        self.dump_stamps(st, "h")

    def build(self):
        p, m, h = Stream(), Stream(), Stream()
        self.prologue(p)
        m.label("L_main")
        self.main_phase_a(m); self.main_attention(m); self.main_publish_o(m); self.main_phase_d(m)
        ms = Stream()
        self.sc, self.sfx = " sc1", "_s"
        ms.label("L_main_slow")
        self.main_publish_o(ms); self.main_phase_d(ms)
        self.sc, self.sfx = "", ""
        self.helper_phase_a(h); self.helper_attention(h); self.helper_phase_c(h); self.helper_phase_de(h)
        assert m.nbar + 2 == h.nbar, (m.nbar, h.nbar)
        ref = open("hdr.ref").read().splitlines()
        hdr = [l for l in ref if l.startswith(";") and "@launch" not in l]
        o = "\n".join(hdr) + f"\n; @launch grid=(256,1,1) block=(512,1,1) lds={LDS_BYTES}\n"
        o += f'.amdgcn_target "amdgcn-amd-amdhsa--gfx950"\n.text\n.globl {NAME}_kernel\n.p2align 8\n.type {NAME}_kernel,@function\n{NAME}_kernel:\n'
        o += p.text() + "\n" + h.text() + "\nL_end:\n    s_endpgm\n" + self.near.text() + "\n" + m.text() + "\nL_codeend:\n" + self.tailcode.text() + "\n" + ms.text() + "\n"
        o += f""".section .rodata,"a"
.p2align 6
.amdhsa_kernel {NAME}_kernel
  .amdhsa_next_free_vgpr 256
  .amdhsa_next_free_sgpr 102
  .amdhsa_accum_offset 256
  .amdhsa_group_segment_fixed_size 0
  .amdhsa_kernarg_size 96
  .amdhsa_user_sgpr_count 2
  .amdhsa_user_sgpr_kernarg_segment_ptr 1
  .amdhsa_system_sgpr_workgroup_id_x 1
.end_amdhsa_kernel
"""
        return o

if __name__ == "__main__":
    import hazcheck, json
    cfg = Cfg()
    out = sys.argv[1]
    for a in sys.argv[2:]:
        k, v = a.split("=")
        setattr(cfg, k, v if k in ("sched", "dplan", "gates", "probe", "outf") else int(v))
    g = Gen(cfg)
    txt = g.build()
    open(out, "w").write(txt)
    json.dump(dict(g.nstamp, cyc=cfg.cyc) if g.nstamp else {}, open(out + ".stamps.json", "w"))
    errs = hazcheck.check(txt)
    for e in errs[:40]: print(e)
    print(len(errs), "hazard findings;", len(txt.splitlines()), "lines")
```

```python
import sys, struct
from emit import Stream, vr, sr

NAME = "sequential_preLN__grouped_kv_mqa__glu_gated_glu__prompt"

def f32(x): return hex(struct.unpack("<I", struct.pack("<f", x))[0])

WS_KV, WS_KVL, WS_FLG1, WS_FLGL, WS_FLG2, WS_FLG3, WS_FLG4 = 0x0, 0x20000, 0x40000, 0x48000, 0x50000, 0x52000, 0x54000
WS_WB, WS_ST, WS_DIAG, WS_PM, WS_O, WS_H, WS_HH, WS_SIZE = 0x58000, 0x60000, 0xA0000, 0xC0000, 0x100000, 0x300000, 0x500000, 0xC00000
TILE, RING, FS, ODD = 2080, 0, 33280, 57856
XN, WKV, WQST, NWQ = 33280, 16640, 67072, 23
LDS_BYTES = 163840
WBL, MISC = 163072, 163584
PROG, LAND, XC, WC = MISC + 160, MISC + 176, MISC + 192, MISC + 208
STGW = 14336
STG = WBL - 4 * STGW
def slot8(i): return RING + 8192 * i if i < 4 else FS + 8192 * (i - 4)
FSLOT = (4, 5, 6, 0, 1, 2, 3, 4, 5, 7, 6, 0, 1, 2, 3, 4)
def tile_of(c, i): return (i if i < c else i + 4) if i < 3 else c + i - 3
X, WQ, WKVS, WO, WG, WU, WD, OUT, DBG, WS = 4, 8, 12, 16, 20, 24, 28, 32, 36, 40
sG, sIDX, sRB, sCB, sW, sXCC = 44, 45, 46, 47, 48, 49
sT0, sT1, sT2, sT3, sCNT = 50, 51, 52, 53, 54
sA, sB, sC, sD, sE = 55, 56, 57, 58, 59
sONE, sLO, sHI = 60, 61, 62
sF = 63
CODE = 64
sP = 68
mO, mPM, mF2, mF3, mF4, mST, mHH0, mHH1, mRB, mCHK, mHO, mKG, mKL, mFG, mFL = range(20, 35)
eO = WQ
sSTAMP = 76
SPIN = 1 << 17
SPINL = 96
sCOLO = 3
WS_EPOCH = 0x48400
sEP = DBG
sEP1 = DBG + 1
def srd(b): return sr(b, 4)

class Cfg:
    diag = False
    tail = 7
    force_fallback = False
    force_slow = False
    npre = 8
    nearly = 80
    tq = 8
    ndeep = 12
    sec = 2
    wo_early = 1
    lfat = 6
    gfat = 7
    jx = 10
    pace = 5
    lag = 24
    pprio = 2
    fexec = 0
    dplan = ("F3 F4 F5 F6 L5 P2 F7 P3 F8 L7 F9 P4 F10 L9 W10>8 P5 F11 W11>9 P6 F12 P7 F13 W12>10 R10,11 W13>8 W14>9 P8 F14 W15>11 "
             "P9 F15 T W16>12 R12,13,14 W17>8 L16 W18>9 W19>10 R15,16 W20>11 W21>12 R17 W22>8 P20 W23>13 W24>14 W25>15 W26>16 W27>17")
    gates = "2:0,4:6,7:12"
    lagp = 10
    tprio = 0
    eprio = 0
    fake = 0
    cyc = 0
    dprio = 0
    pace2 = 7
    loose = 0
    hprio = 0
    nt = 0
    swap = 1
    abatch = 1
    edepth = 7
    etile = 5
    sched = "Tkv To|S14 X Tmd Tmg0 Tmg1|R S14 F0|R S14 O0^2 F1|R S10 O2^2 O4 R|B O8^6 O10^6 F2|O12^6 O14^6 O6 Tx Tz|Tf0"
    padto = 0
    padat = 0
    padwg = -1
    hhplain = 2

def mfma32(d, a, b, c=None):
    return f"v_mfma_f32_32x32x16_bf16 {vr(d,16)}, {vr(a,4)}, {vr(b,4)}, {vr(d,16) if c is None else c}"
def mfma16(d, a, b, c=None):
    return f"v_mfma_f32_16x16x32_bf16 {vr(d,4)}, {vr(a,4)}, {vr(b,4)}, {vr(d,4) if c is None else c}"
def smf(d, a, b, idx):
    return f"v_smfmac_f32_32x32x32_bf16 {vr(d,16)}, {vr(a,4)}, {vr(b,8)}, v{idx}"

class Gen:
    def __init__(self, cfg):
        self.c = cfg
        self.tailcode = Stream()
        self.near = Stream()
        self.nstamp = {}

    sc, sfx = "", ""

    def stamp(self, st, role, name, level=1):
        if not (self.c.diag & level) or self.sc: return
        l = self.nstamp.setdefault(role, [])
        i = len(l); l.append(name)
        assert i < 13
        st(f"{'s_memtime' if name.startswith('cyc') or self.c.cyc else 's_memrealtime'} {sr(sSTAMP + 2*i, 2)}")

    def dump_stamps(self, st, role):
        if not self.c.diag or self.sc: return
        n = len(self.nstamp[role])
        st("s_waitcnt lgkmcnt(0)")
        st(f"s_lshl_b32 s{sT0}, s2, 3\ns_add_u32 s{sT0}, s{sT0}, s{sW}")
        st(f"s_add_u32 s{sT0}, s{sT0}, {4 if role == 'h' else 0}\ns_lshl_b32 s{sT0}, s{sT0}, 6\ns_add_u32 s{sT0}, s{sT0}, {WS_DIAG}")
        for i in range(n):
            st(f"v_mov_b32 v1, s{sSTAMP + 2*i}")
            st(f"buffer_store_dword v1, off, {srd(WS)}, s{sT0} offset:{4*i}")
        st("s_waitcnt vmcnt(0)")

    def notready(self, st, vdst, need):
        st(f"v_subrev_u32 v{vdst}, s{sEP}, v{vdst}")
        st(f"v_subrev_u32 v{vdst}, {need}, v{vdst}")
        st(f"v_cmp_lt_u32 vcc, {15 - need}, v{vdst}")

    def poll(self, st, name, vaddr, soff, vdst, need, exact=False, lanes=64):
        st(f"s_mov_b32 s{sCNT}, {SPIN}")
        if lanes < 64: st(f"s_bfm_b64 exec, {lanes}, 0")
        st.label(name)
        st(f"buffer_load_dword v{vdst}, v{vaddr}, {srd(WS)}, {soff} offen sc1")
        st.wait_vm()
        if exact: st(f"v_cmp_ne_u32 vcc, s{sEP1}, v{vdst}")
        else: self.notready(st, vdst, need)
        st(f"s_cbranch_vccz {name}_ok")
        st(f"s_sub_u32 s{sCNT}, s{sCNT}, 1")
        st(f"s_cbranch_scc0 {name}")
        st.label(name + "_ok")
        if lanes < 64: st("s_mov_b64 exec, -1")

    def pad(self, st, at):
        if not self.c.padto or self.c.padat != at: return
        if self.c.padwg >= 0: st(f"s_cmp_lg_u32 s2, {self.c.padwg}\ns_cbranch_scc1 L_padx")
        st.label("L_pad")
        st("s_memrealtime s[98:99]\ns_waitcnt lgkmcnt(0)\ns_sub_u32 s98, s98, s100")
        st(f"s_cmp_lt_u32 s98, {self.c.padto * 100}\ns_cbranch_scc1 L_pad")
        st.label("L_padx")

    def lds_min(self, st, r, need):
        st(f"v_min3_u32 v{r}, v{r}, v{r+1}, v{r+2}\nv_min_u32 v{r}, v{r}, v{r+3}\nv_cmp_gt_u32 vcc, {need}, v{r}")

    def lds_spin(self, st, name, va, r, need, sleep=0):
        st(f"s_mov_b32 s{sCNT}, {SPIN * 16}")
        st.label(name)
        st(f"ds_read_b128 {vr(r,4)}, v{va}")
        st.wait_ds()
        self.lds_min(st, r, need)
        st(f"s_cbranch_vccz {name}_ok")
        if sleep: st(f"s_sleep {sleep}")
        st(f"s_sub_u32 s{sCNT}, s{sCNT}, 1\ns_cbranch_scc0 {name}")
        st.label(name + "_ok")

    def epoch_load(self, st):
        st(f"s_load_dword s{sEP}, {sr(WS,2)}, {WS_EPOCH}")

    def epoch_make(self, st):
        st(f"s_and_b32 s{sEP}, s{sEP}, 0xfffffff0\ns_add_u32 s{sEP}, s{sEP}, 0x9e3779b0\ns_add_u32 s{sEP1}, s{sEP}, 1")

    def srds(self, st, lst):
        for b, n in lst: st(f"s_mov_b32 s{b+2}, {n}\ns_mov_b32 s{b+3}, 0x20000")

    def prologue(self, st):
        st(f"s_load_dwordx2 {sr(X,2)}, s[0:1], 0\ns_lshr_b32 s{sT2}, s2, 1\ns_and_b32 s{sT2}, s{sT2}, 8\ns_add_u32 s{sT2}, s{sT2}, 16")
        st(f"s_load_dwordx2 {sr(WKVS,2)}, s[0:1], s{sT2}\ns_load_dwordx2 {sr(WS,2)}, s[0:1], 88")
        st("s_cmpk_ge_u32 s2, 256\ns_cbranch_scc1 L_end")
        st(f"s_getpc_b64 {sr(CODE,2)}")
        st.label("L_pc")
        st(f"v_readfirstlane_b32 s{sT0}, v0\ns_lshr_b32 s{sIDX}, s2, 3\ns_lshl_b32 s{sT1}, s{sIDX}, 11")
        st(f"s_mov_b32 s{CODE+2}, L_codeend-L_pc\ns_mov_b32 s{CODE+3}, 0x20000\nv_lshrrev_b32 v1, 5, v0\nv_lshlrev_b32 v1, 7, v1")
        st(f"buffer_load_dword v255, v1, {srd(CODE)}, s{sT1} offen")
        st(f"s_and_b32 s{sG}, s2, 7\ns_lshr_b32 s{sT1}, s{sIDX}, 2\ns_lshl_b32 s{sRB}, s{sG}, 3\ns_add_u32 s{sRB}, s{sRB}, s{sT1}")
        st(f"s_and_b32 s{sCB}, s{sIDX}, 3\ns_bfe_u32 s{sW}, s{sT0}, 0x20006\nv_and_b32 v0, 63, v0")
        st(f"s_cmpk_lt_u32 s{sT0}, 256\ns_cbranch_scc1 L_main")

    def main_phase_a(self, st):
        self.stamp(st, "m", "start", 255)
        vD, vTR, vXB, vXC = 2, 3, 4, 5
        XR, ACC = 112, 144
        st.vq.append((None, False))
        st(f"s_load_dwordx2 {sr(WQ,2)}, s[0:1], 8")
        st(f"v_and_b32 v12, 15, v0\nv_lshlrev_b32 v12, 2, v12\nv_add_u32 v12, {PROG}, v12\nv_mov_b32 v13, 0\nds_write_b32 v12, v13")
        self.srds(st, ((WQ, 524288), (WKVS, 16384), (WS, WS_SIZE)))
        st(f"s_mov_b32 s{sONE}, 0x3f803f80")
        st(f"v_lshrrev_b32 v10, 2, v0\nv_lshlrev_b32 v10, 10, v10\nv_and_b32 v11, 3, v0\nv_lshlrev_b32 v17, 7, v0\nv_lshlrev_b32 v11, 4, v11")
        st(f"s_lshl_b32 s{sT0}, s{sCB}, 8\ns_lshl_b32 s{sT1}, s{sW}, 6\ns_add_u32 s{sT0}, s{sT0}, s{sT1}")
        st(f"v_add3_u32 v{vD}, v10, v11, s{sT0}\nv_lshlrev_b32 v{self.vK}, 4, v0")
        st(f"s_mul_i32 s{sA}, s{sW}, {NWQ*1024}\ns_add_u32 s{sA}, s{sA}, {WQST}")
        st(f"s_lshr_b32 s{sB}, s{sIDX}, 2\ns_lshl_b32 s{sC}, s{sB}, 16")
        st(f"s_lshl_b32 s{sT0}, s{sB}, 1\ns_and_b32 s{sT1}, s{sCB}, 1\ns_add_u32 s{sT0}, s{sT0}, s{sT1}\ns_lshl_b32 s{sT0}, s{sT0}, 2\ns_add_u32 s{sT0}, s{sT0}, s{sW}\ns_lshl_b32 s{sT0}, s{sT0}, 8")
        st(f"s_lshl_b32 s{sT1}, s{sIDX}, 2\ns_add_u32 s{sT1}, s{sT1}, s{sW}\ns_lshl_b32 s{sT2}, s{sT1}, 7\ns_lshl_b32 s{sT1}, s{sT1}, 12")
        st(f"s_lshl_b32 s{sT3}, s{sG}, 14\ns_add_u32 s{sT2}, s{sT2}, s{sT3}\ns_add_u32 s{sT2}, s{sT2}, {WS_KVL}\ns_lshl_b32 s{sT3}, s{sG}, 7\ns_add_u32 s{sT3}, s{sT3}, {WS_FLGL}")
        st("s_waitcnt lgkmcnt(0)")
        self.epoch_load(st)
        st.bar("B00")
        st("s_mov_b64 exec, 3")
        st.vm(f"buffer_load_dword v254, v17, {srd(WKVS)}, s{sT0} offen")
        st("s_mov_b64 exec, 1")
        st.vm(f"buffer_load_dword v253, off, {srd(WS)}, s{sT2} sc1")
        st.vm(f"buffer_load_dword v252, off, {srd(WS)}, s{sT3} sc1")
        st(f"s_bfm_b64 exec, {self.c.tq}, 0")
        st.vm(f"buffer_load_dword v248, v17, {srd(WQ)}, s{sT1} offen")
        st("s_mov_b64 exec, -1")
        st(f"v_lshrrev_b32 v10, 5, v0\nv_lshlrev_b32 v11, 9, v10\nv_bfe_u32 v13, v0, 2, 2\nv_lshl_add_u32 v11, v13, 6, v11")
        st(f"v_bfe_u32 v13, v0, 4, 1\nv_lshl_add_u32 v11, v13, 5, v11\nv_and_b32 v13, 3, v0\nv_lshl_add_u32 v11, v13, 3, v11")
        st(f"v_add_u32 v{vTR}, s{sA}, v11")
        st(f"v_mul_u32_u24 v11, 528, v10\nv_and_b32 v13, 31, v0\nv_lshl_add_u32 v11, v13, 4, v11\nv_add_u32 v{vXB}, {XN}, v11")
        st(f"v_mov_b32 v18, {XC}")
        self.kv_addr(st)
        late = Stream()
        self.main_scalars(st, late)
        self.attn_setup(late)
        for l in late.lines[:self.c.nearly]: st(l)
        late.lines = late.lines[self.c.nearly:]
        st("s_waitcnt lgkmcnt(0)")
        self.epoch_make(st)
        st(f"s_getreg_b32 s{sXCC}, hwreg(HW_REG_XCC_ID, 0, 4)\ns_add_u32 s{sXCC}, s{sXCC}, s{sEP}")
        st.bar("B0")
        self.stamp(st, "m", "B0", 64)
        def dma(j):
            st(f"s_add_u32 m0, s{sA}, {(j % NWQ)*1024}")
            st(f"s_xor_b32 s{sT1}, s{sC}, {j*16384}")
            st.vm(f"buffer_load_dwordx4 v{vD}, {srd(WQ)}, s{sT1} offen lds", ("wq", j))
        nd = self.c.npre
        for j in range(nd): dma(j)
        self.stamp(st, "m", "pre", 64)
        st(f"s_cmp_lg_u32 s{sW}, 0\ns_cbranch_scc1 L_nokv")
        self.kv_job(st)
        st.label("L_nokv")
        st.vq += [(None, True)] * 2
        fill = [f"v_mov_b32 v{self.vVAL}, s{sEP1}"] + late.lines
        JX, NWR = self.c.jx, 20
        wreg = lambda j: 168 + 4 * (j % NWR)
        nx = nm = 0
        def rdx():
            nonlocal nx
            if nx % 4 == 0:
                st(f"s_xor_b32 s{sT1}, s{sB}, {nx//4}\ns_mul_i32 s{sT1}, s{sT1}, 4224\nv_add_u32 v{vXC}, s{sT1}, v{vXB}")
            st.ds(f"ds_read_b128 {vr(XR+4*(nx % 8),4)}, v{vXC} offset:{(nx % 4)*1056}", ("x", nx)); nx += 1
        def mm():
            nonlocal nm
            st.wait_ds(("x", nm)); st.wait_ds(("w", nm))
            st(mfma32(ACC, wreg(nm), XR + 4 * (nm % 8), "0" if nm == 0 else None))
            nm += 1
            if nx < 32: rdx()
            for _ in range(2):
                if fill: st(fill.pop(0))
            if nm in (9, 20): self.stamp(st, "m", f"q{nm}", 64)
        for j in range(32):
            if j == JX:
                self.lds_spin(st, "L_xc", 18, 20, 2, sleep=1)
                self.stamp(st, "m", "B1m", 65)
                for _ in range(4): rdx()
            assert j - nm < NWR
            if j == self.c.lfat: self.kv_flag(st, 0, nd - self.c.npre + 1)
            if j == self.c.gfat: self.kv_flag(st, 1, nd - self.c.npre + 1)
            st.wait_vm(("wq", j))
            o = (j % NWQ) * 1024
            st.ds(f"ds_read_b64_tr_b16 {vr(wreg(j),2)}, v{vTR} offset:{o}")
            st.ds(f"ds_read_b64_tr_b16 {vr(wreg(j)+2,2)}, v{vTR} offset:{o+256}", ("w", j))
            if nd < 32 and nd - NWQ <= j - 2:
                if nd >= NWQ: st.wait_ds(("w", nd - NWQ))
                dma(nd); nd += 1
                if j >= self.c.gfat and nd < min(NWQ, j + self.c.ndeep): dma(nd); nd += 1
            if j >= JX:
                for _ in range(2):
                    if nm < j - 1: mm()
        while nm < 32: mm()
        assert nd == 32
        pad = 12 - len(fill)
        for l in fill: st(l)
        st.nop(pad)
        sc = f32(0.25 * 1.4426950408889634)
        for r in range(16): st(f"v_mul_f32 v{ACC+r}, {sc}, v{ACC+r}")
        for r in range(8): st(f"v_cvt_pk_bf16_f32 v{self.Q + r}, v{ACC+2*r}, v{ACC+2*r+1}")
        self.stamp(st, "m", "Qdone", 65)

    S, Q, O, KVB, vIDX, vK, vV0, vV1 = (16, 32), 48, (56, 72), (88, 100), 6, 7, 8, 9

    def attn_setup(self, st):
        st(f"v_mov_b32 v{self.vIDX}, 0xdddddddd")
        st("v_and_b32 v12, 31, v0\nv_lshrrev_b32 v13, 5, v0\nv_lshl_add_u32 v13, v13, 4, v12\nv_lshlrev_b32 v13, 4, v13")
        st("v_and_b32 v14, 27, v0\nv_cmp_eq_u32 vcc, 16, v14\nv_mov_b32 v14, 2064\nv_mov_b32 v15, 2048")
        st("v_cndmask_b32 v14, v14, v15, vcc")
        st("v_cmp_gt_u32 vcc, 16, v12\nv_add_u32 v15, 1024, v13\nv_add_u32 v13, 1536, v13")
        st(f"v_cndmask_b32 v{self.vV0}, v14, v15, vcc\nv_cndmask_b32 v{self.vV1}, v14, v13, vcc")
        st(f"v_mov_b32 v10, {MISC}")
        for r in range(32): st(f"v_mov_b32 v{self.O[0]+r}, 0")
        for r in range(8): st(f"v_mov_b32 v{self.S[1]+8+r}, 0")
        for r in range(4): st(f"v_mov_b32 v{self.KVB[1]+8+r}, 0")

    vFZ, vVAL, vOW, vWB, vB, vPOLL = 160, 161, 162, 163, (164, 165, 166), 167

    def main_scalars(self, st, late):
        st(f"s_lshl_b32 s{sT0}, s{sRB}, 4\ns_lshl_b32 s{sT1}, s{sCB}, 2\ns_add_u32 s{sT0}, s{sT0}, s{sT1}\ns_add_u32 s{sT2}, s{sT0}, s{sW}")
        st(f"s_lshl_b32 s{mO}, s{sT2}, 11\ns_add_u32 s{mO}, s{mO}, {WS_O}")
        st(f"s_lshl_b32 s{mPM}, s{sT0}, 8\ns_lshl_b32 s{sT3}, s{sW}, 2\ns_add_u32 s{mPM}, s{mPM}, s{sT3}\ns_add_u32 s{mPM}, s{mPM}, {WS_PM}")
        st(f"s_lshl_b32 s{mF2}, s{sRB}, 7\ns_lshl_b32 s{sT1}, s{sT1}, 2\ns_add_u32 s{mF2}, s{mF2}, s{sT1}\ns_add_u32 s{mF2}, s{mF2}, s{sT3}\ns_add_u32 s{mF2}, s{mF2}, {WS_FLG2}")
        st(f"s_lshr_b32 s{sT0}, s{sIDX}, 4\ns_lshl_b32 s{sT1}, s{sG}, 1\ns_add_u32 s{sT1}, s{sT1}, s{sT0}\ns_lshl_b32 s{sT1}, s{sT1}, 2\ns_add_u32 s{mRB}, s{sT1}, s{sW}")
        st(f"s_lshl_b32 s{sT1}, s{mRB}, 15")
        for i in range(8): st(f"s_add_u32 s{sP+i}, s{sT1}, {WS_H + 4096*i}")
        st(f"s_lshl_b32 s{mST}, s{mRB}, 12\ns_add_u32 s{mST}, s{mST}, {WS_ST}")
        st(f"s_and_b32 s{sT0}, s{sIDX}, 15\ns_mul_i32 s{mHH0}, s{mRB}, 114688\ns_mul_i32 s{sT1}, s{sT0}, 7168")
        st(f"s_add_u32 s{mHH0}, s{mHH0}, s{sT1}\ns_add_u32 s{mHH0}, s{mHH0}, {WS_HH}\ns_add_u32 s{mHH1}, s{mHH0}, 4096")
        st(f"s_lshl_b32 s{mHO}, s{sT0}, 11\ns_add_u32 s{mHO}, s{mHO}, s{sP}\ns_sub_u32 s{mHO}, s{mHO}, {WS_H - WS_O}")
        st(f"s_lshl_b32 s{sT1}, s{mRB}, 7\ns_lshl_b32 s{sT0}, s{sT0}, 2\ns_add_u32 s{mF4}, s{sT1}, s{sT0}\ns_add_u32 s{mF4}, s{mF4}, {WS_FLG4}")
        st(f"s_add_u32 s{mF3}, s{sT1}, {WS_FLG3}\ns_mov_b32 s{mCHK}, 0")
        st(f"s_lshl_b32 s{sD}, s{sW}, 11\ns_lshl_b32 s{sE}, s{sW}, 7\ns_add_u32 s{sE}, s{sE}, {WBL}")
        late(f"v_cmp_eq_u32 vcc, 0, v0\nv_mov_b32 v{self.vFZ}, 0x80000000\nv_add_u32 v{self.vOW}, s{sD}, v{self.vK}\nv_cndmask_b32_e64 v{self.vFZ}, v{self.vFZ}, 0, vcc")
        late(f"v_lshrrev_b32 v13, 5, v0\nv_lshlrev_b32 v14, 6, v13\nv_add_u32 v{self.vWB}, s{sE}, v14")

    def colo_reduce(self, st, r):
        st(f"v_and_b32 v{r}, v{r}, v{r+1}\ns_nop 0")
        st(f"v_readfirstlane_b32 s{sCOLO}, v{r}")

    def main_attention(self, st):
        S, Q, O, KVB = self.S, self.Q, self.O, self.KVB
        buf = lambda t: KVB[t % 2]
        off = lambda t: (t % 16) * TILE
        rdK = lambda t: f"ds_read_b128 {vr(buf(t),4)}, v{self.vK} offset:{off(t)}"
        rdV0 = lambda t: f"ds_read_b128 {vr(buf(t)+4,4)}, v{self.vV0} offset:{off(t)}"
        rdV1 = lambda t: f"ds_read_b128 {vr(buf(t)+8,4)}, v{self.vV1} offset:{off(t)}"
        body = []
        for t in range(16):
            for q in range(2):
                cur, nxt = S[q], S[1 - q]
                e = [f"v_exp_f32 v{cur+i}, v{cur+i}" for i in range(16)]
                tp = t - 1 if q == 0 else t
                pv1 = smf(O[1 - q], buf(tp) + 8, nxt + 8, self.vIDX)
                qk = mfma32(nxt, buf(t + q), Q + 4 * (1 - q), "0")
                pv0 = smf(O[q], buf(t) + 4, cur, self.vIDX)
                if q == 0:
                    f0, f1, f2 = [rdV1(t + 1)], [], []
                    if t == 1: f2 = [f"s_sub_u32 s{sA}, s{sA}, 1"]
                else:
                    f0, f1, f2 = ["s_waitcnt lgkmcnt(0)"], [rdK(t + 2)], [rdV0(t + 2)]
                    if t % 8 == 6: f0.append("s_barrier                ; BA")
                body += e[0:2] + [pv1] + f0 + e[2:5] + [qk] + f1 + e[5:11] + [pv0] + f2 + e[11:16]
        nhead = 2 + 1 + 1 + 3 + 1
        head, rest = body[:nhead], body[nhead:]
        st.bar("B2")
        self.stamp(st, "m", "B2", 83)
        self.stamp(st, "m", "cyc0", 33)
        for s in (rdK(0), rdV0(0), rdV1(0), rdK(1), rdV0(1)): st(s)
        st("ds_read_b64 v[12:13], v10")
        st(f"s_mov_b32 s{sA}, 3")
        st("s_waitcnt lgkmcnt(0)")
        st(mfma32(S[0], buf(0), Q, "0"))
        self.colo_reduce(st, 12)
        st.nop(9)
        st("\n".join(head))
        st(".p2align 6")
        st.label("L_attn")
        st("\n".join(rest + head))
        st("s_cbranch_scc0 L_attn")
        st.nbar += 8
        self.stamp(st, "m", "attn_end", 19)
        self.stamp(st, "m", "cyc1", 33)
        for i in range(4): st(f"ds_read_b128 {vr(176+4*i,4)}, v{self.vWB} offset:{16*i}")
        st.label("L_norm")
        st(f"s_cmp_eq_u32 s{sCOLO}, {2 if self.c.force_slow else 1}\ns_cbranch_scc0 L_main_slow")
        self.fallback()

    def main_publish_o(self, st):
        O, T, WB, sc = self.O, 192, 176, self.sc
        for q in range(2):
            st(f"v_rcp_f32 v{T+8+q}, v{O[q]+8}\ns_nop 0")
            for r in range(8): st(f"v_mul_f32 v{O[q]+r}, v{T+8+q}, v{O[q]+r}")
            for r in range(4): st(f"v_cvt_pk_bf16_f32 v{T+4*q+r}, v{O[q]+2*r}, v{O[q]+2*r+1}")
            st.vm(f"buffer_store_dwordx4 {vr(T+4*q,4)}, v{self.vK}, {srd(WS)}, s{mO} offen offset:{1024*q}{sc}")
        st("s_waitcnt lgkmcnt(0)")
        for r in range(8):
            for hl in range(2):
                st(f"v_dot2_f32_bf16 v{T+10+hl}, v{T+r}, v{WB+8*hl+r}, {'0' if r == 0 else 'v%d' % (T+10+hl)}")
        for q in range(2): st(f"ds_write_b128 v{self.vOW}, {vr(T+4*q,4)} offset:{RING + 1024*q}")
        st(f"v_min_f32 v{T+12}, v{O[0]+8}, v{O[1]+8}")
        st(f"v_add_f32 v{T+10}, v{T+10}, v{T+11}")
        st.vm(f"buffer_store_dword v{T+10}, v{self.vK}, {srd(WS)}, s{mPM} offen{sc}")
        st(f"v_add_f32 v{T+13}, v{O[0]+8}, v{O[1]+8}\ns_movk_i32 s{sT0}, 0x207")
        st(f"v_cmp_nle_f32 vcc, {f32(2.0**-64)}, v{T+12}")
        st(f"v_cmp_class_f32_e64 {sr(sT2,2)}, v{T+10}, s{sT0}")
        st(f"s_or_b64 {sr(sT2,2)}, {sr(sT2,2)}, vcc")
        st(f"v_cmp_nge_f32 vcc, {f32(2.0**64)}, v{T+13}")
        st(f"s_or_b64 {sr(sT2,2)}, {sr(sT2,2)}, vcc")
        if self.c.force_fallback: st(f"s_or_b64 {sr(sT2,2)}, {sr(sT2,2)}, 1")
        st(f"s_cbranch_scc0 L_safe{self.sfx}")
        st(f"s_cmp_eq_u32 s{mCHK}, 0\ns_cbranch_scc1 L_fallback")
        st.label("L_safe" + self.sfx)
        st.wait_vm()
        st.vm(f"buffer_store_dword v{self.vVAL}, v{self.vFZ}, {srd(WS)}, s{mF2} offen{sc}")
        self.stamp(st, "m", "Oflag")
        st("s_waitcnt lgkmcnt(0)")
        st.bar("BC0")

    def fallback(self):
        st = self.tailcode
        S, Q, O, KVB = self.S, self.Q, self.O, self.KVB
        K, V0, V1, NM = KVB[0], KVB[0] + 4, KVB[0] + 8, (112, 128)
        st.label("L_fallback")
        st(f"s_mov_b32 s{mCHK}, 1")
        st("v_mov_b32 v10, 0xff800000\nv_mov_b32 v11, 0xff800000")
        st(f"s_mov_b32 s{sT0}, {WS_KV}")
        st.label("L_fb1")
        st(f"buffer_load_dwordx4 {vr(K,4)}, v{self.vK}, {srd(WS)}, s{sT0} offen sc1\ns_waitcnt vmcnt(0)")
        st(mfma32(S[0], K, Q, "0")); st(mfma32(S[1], K, Q + 4, "0"))
        st.nop(12)
        for q in range(2):
            for r in range(0, 16, 2): st(f"v_max3_f32 v{10+q}, v{S[q]+r}, v{S[q]+r+1}, v{10+q}")
        st(f"s_add_u32 s{sT0}, s{sT0}, 2048\ns_cmp_lt_u32 s{sT0}, {WS_KV + 131072}\ns_cbranch_scc1 L_fb1")
        st("v_mov_b32 v12, v10\nv_mov_b32 v13, v11\ns_nop 1")
        st("v_permlane32_swap_b32 v10, v12\nv_permlane32_swap_b32 v11, v13")
        st("v_max_f32 v10, v10, v12\nv_max_f32 v11, v11, v13")
        for q in range(2):
            for r in range(16):
                st(f"v_sub_f32 v{NM[q]+r}, 0, v{10+q}\nv_mov_b32 v{O[q]+r}, 0")
        st(f"v_and_b32 v12, 27, v0\nv_cmp_eq_u32 vcc, 16, v12\nv_mov_b32 v13, s{sONE}\ns_nop 0\nv_cndmask_b32 v13, 0, v13, vcc")
        for r in range(8): st(f"v_mov_b32 v{V0+r}, v13")
        st(f"s_mov_b32 s{sT0}, {WS_KV}\ns_mov_b32 s{sT2}, 0xffff\ns_mov_b32 s{sT3}, 0xffff")
        st.label("L_fb2")
        st(f"buffer_load_dwordx4 {vr(K,4)}, v{self.vK}, {srd(WS)}, s{sT0} offen sc1")
        st(f"s_mov_b64 exec, {sr(sT2,2)}")
        st(f"buffer_load_dwordx4 {vr(V0,4)}, v{self.vV0}, {srd(WS)}, s{sT0} offen sc1")
        st(f"buffer_load_dwordx4 {vr(V1,4)}, v{self.vV1}, {srd(WS)}, s{sT0} offen sc1")
        st("s_mov_b64 exec, -1\ns_waitcnt vmcnt(0)")
        st(mfma32(S[0], K, Q, vr(NM[0], 16))); st(mfma32(S[1], K, Q + 4, vr(NM[1], 16)))
        st.nop(12)
        for q in range(2):
            for r in range(16): st(f"v_exp_f32 v{S[q]+r}, v{S[q]+r}")
        st.nop(2)
        for q in range(2):
            st(smf(O[q], V0, S[q], self.vIDX)); st(smf(O[q], V1, S[q] + 8, self.vIDX))
        st(f"s_add_u32 s{sT0}, s{sT0}, 2048\ns_cmp_lt_u32 s{sT0}, {WS_KV + 131072}\ns_cbranch_scc1 L_fb2")
        st.nop(12)
        st("s_branch L_norm")

    def stages(self):
        return [tuple(map(int, x.split(":"))) for x in self.c.gates.split(",")]

    def main_phase_d(self, st):
        T, sc = self.c.tail, self.sc
        ACC, BR, AR, STT = 144, 112, 48, 32
        NBR, LA, NAR = 8, 5, 16
        vL, vFZ, vVAL, vO, vF, vC1, vSD, vPOLL = self.vK, 10, 11, (2, 3), (24, 25, 26, 27), 8, 9, 12
        st(f"v_mov_b32 v{vFZ}, v{self.vFZ}\nv_mov_b32 v{vVAL}, v{self.vVAL}")
        st("v_lshrrev_b32 v13, 5, v0\nv_bfe_u32 v14, v0, 4, 1\nv_bfe_u32 v15, v0, 2, 2\nv_and_b32 v16, 3, v0\nv_lshlrev_b32 v16, 3, v16")
        st("v_xor_b32 v17, v13, v14\nv_lshl_add_u32 v17, v17, 2, v15\nv_mul_u32_u24 v17, 96, v17\nv_mul_u32_u24 v18, 3072, v14\nv_add3_u32 v17, v17, v18, v16")
        st(f"v_add_u32 v{vO[0]}, {ODD}, v17\nv_add_u32 v{vO[1]}, {ODD + 49152}, v17")
        st("v_lshl_add_u32 v17, v13, 2, v15\nv_lshlrev_b32 v17, 7, v17\nv_lshl_add_u32 v17, v14, 12, v17\nv_bfe_u32 v18, v0, 3, 2")
        st(f"v_lshlrev_b32 v18, 5, v18\nv_add3_u32 v{vF[0]}, v17, v18, v16")
        for i in range(1, 4): st(f"v_xor_b32 v{vF[i]}, {32*i}, v{vF[0]}")
        st(f"v_and_b32 v{vPOLL}, 15, v0\nv_lshlrev_b32 v{vPOLL}, 2, v{vPOLL}")
        st(f"v_and_b32 v5, 31, v0\nv_lshlrev_b32 v5, 4, v5\nv_lshrrev_b32 v13, 5, v0\nv_lshl_add_u32 v5, v13, 11, v5")
        vPG, vLD, vN, CK = 14, 15, 16, 20
        st(f"s_lshl_b32 s{sT0}, s{sW}, 2\ns_add_u32 s{sT0}, s{sT0}, {PROG}\nv_mov_b32 v{vPG}, s{sT0}\nv_mov_b32 v{vLD}, {LAND}")
        nk = 32 - 2 * T
        order = [(k, n) for k in range(nk) for n in range(7)] + [(k, n) for n in range(7) for k in range(nk, 32)]
        def rdB(m):
            k, n = order[m]
            b = BR + 4 * (m % NBR)
            for t in range(2):
                u, row = k // 2, 16 * (k % 2) + 8 * t
                if n < 3: va, o = vO[u // 8], (u % 8) * 6144 + row * 96 + 32 * n
                else: va, o = vF[n - 3], slot8(FSLOT[u]) + row * 128
                st.ds(f"ds_read_b64_tr_b16 {vr(b+2*t,2)}, v{va} offset:{o}", ("b", m))
        for m in range(LA): rdB(m)
        st.bar("BC1")
        st.bar("BC2")
        self.stamp(st, "m", "BC2")
        self.poll(st, "L_x3" + self.sfx, vPOLL, f"s{mF3}", 13, 1, exact=True, lanes=16)
        self.stamp(st, "m", "x3ok", 5)
        nxt = [0]
        def ldA(upto):
            while nxt[0] < min(32, upto):
                k = nxt[0]; nxt[0] += 1
                st.vm(f"buffer_load_dwordx4 {vr(AR+4*(k % NAR),4)}, v{vL}, {srd(WS)}, s{sP + k//4} offen offset:{1024*(k % 4)} sc1", ("a", k))
        ldA(2)
        def run(op): op() if callable(op) else st(op)
        def ldst():
            for i in range(2):
                st.vm(f"buffer_load_dwordx4 {vr(STT+4*i,4)}, v5, {srd(WS)}, s{mST} offen offset:{512 + 1024*i} sc1", "st")
        stats = [lambda: st.wait_vm("st")]
        stats += [f"v_add_f32 v{STT+i}, v{STT+i}, v{STT+4+i}" for i in range(4)]
        stats += [f"v_add_f32 v{STT}, v{STT}, v{STT+2}", f"v_add_f32 v{STT+1}, v{STT+1}, v{STT+3}", f"v_add_f32 v{STT}, v{STT}, v{STT+1}",
                  f"v_mov_b32 v{STT+1}, v{STT}", f"v_mov_b32 v{STT+2}, {f32(1e-5)}", "s_nop 0",
                  f"v_permlane32_swap_b32 v{STT}, v{STT+1}", f"v_add_f32 v{STT}, v{STT}, v{STT+1}",
                  f"v_fmac_f32 v{STT+2}, {f32(1.0/512)}, v{STT}", f"v_rsq_f32 v{STT+3}, v{STT+2}", "s_nop 0",
                  f"v_mul_f32 v{vSD}, v{STT+2}, v{STT+3}", f"v_mul_f32 v{vC1}, {f32(-1.4426950408889634)}, v{STT+3}"]
        pub = [1]
        def publish(cnt):
            ops = [f"v_add_u32 v{vVAL}, {cnt - pub[0]}, v{vVAL}"] if cnt > pub[0] else []
            pub[0] = cnt
            ops.append(lambda: st.wait_vm(("hh", cnt - 1)))
            if self.c.fexec: ops.append("s_mov_b64 exec, 1")
            ops.append(lambda: st.vm(f"buffer_store_dword v{vVAL}, v{vFZ}, {srd(WS)}, s{mF4} offen{sc}"))
            if self.c.fexec: ops.append("s_mov_b64 exec, -1")
            ops.append(lambda: self.stamp(st, "m", f"pub{cnt}", 8))
            return ops
        def epilogue(n):
            a = ACC + 16 * n
            ops = [f"v_mul_f32 v{a+j}, v{vC1}, v{a+j}" for j in range(8)]
            ops += [f"v_exp_f32 v{a+j}, v{a+j}" for j in range(8)]
            ops += [f"v_fma_f32 v{a+j}, v{a+j}, v{vSD}, v{vSD}" for j in range(8)]
            ops += [f"v_rcp_f32 v{a+j}, v{a+j}" for j in range(8)]
            ops += [f"v_mul_f32 v{a+j}, v{a+j}, v{a+8+j}" for j in range(8)]
            ops += [f"v_cvt_pk_bf16_f32 v{a+8+j}, v{a+2*j}, v{a+2*j+1}" for j in range(4)]
            return ops
        def store(n):
            a = ACC + 16 * n
            st.vm(f"buffer_store_dwordx4 {vr(a+8,4)}, v{vL}, {srd(WS)}, s{mHO if n < 2 else mHH0 if n < 4 else mHH1} offen offset:{1024*(n % 4)}{sc if n < self.c.hhplain else ' sc1'}", ("hh", n))
        cost = lambda op: 8 if op.startswith(("v_exp", "v_rcp")) else 4
        fill = {m: [] for m in range(224)}
        first = {m: [] for m in range(224)}
        first[0].append(lambda: ldA(4)); first[2].append(lambda: ldA(6))
        for k in range(1, nk):
            for n, d in ((1, 1), (4, 2)):
                first[7 * k + n].append(lambda u=min(k + NAR, 4 + 2 * k + d): ldA(u))
        first[7 * 14 + 4].append(ldst)
        for i, op in enumerate(stats): fill[7 * (nk - 1) + i // 2].append(op)
        base = 7 * nk
        stages, nst = [c for c, _ in self.stages()], 0
        for n in range(1, 7):
            ops = epilogue(n - 1)
            g0, ng = base + 2 * T * n + 2, 2 * T - 1
            tot, acc = sum(map(cost, ops)), 0
            for op in ops:
                fill.setdefault(g0 + acc * ng // tot, []).append(op); acc += cost(op)
            if n - 1 < self.c.hhplain or n in stages:
                for i in range(nst, n): first.setdefault(g0 + ng, []).append(lambda i=i: store(i))
                nst = n
            if n in stages:
                lag = self.c.lagp if n <= self.c.hhplain else self.c.lag
                for op in publish(n): first.setdefault(min(g0 + ng + lag, 226), []).append(op)
        assert T == 7
        posts = {2: 1, base + 6 * T - 1: 20}
        posts.update({14 * u + 13: u + 2 for u in range(8)})
        checks = {14 * 3 + 3 - LA: 5, 14 * 5 + 3 - LA: 7, 14 * 7 + 3 - LA: 9, base + 6 * T - LA: 16}
        near = self.near if not sc else self.tailcode
        for m in range(224):
            k, n = order[m]
            if m in posts: st(f"v_mov_b32 v{vN}, {posts[m]}")
            if n == 0: st.wait_vm(("a", k))
            if m % 2 == 0: st.wait_ds(("b", min(m + 1, 223)))
            st(mfma32(ACC + 16 * n, BR + 4 * (m % NBR), AR + 4 * (k % NAR), "0" if k == 0 else None))
            if m == 0: self.stamp(st, "m", "mfma0", 4)
            for op in first[m]: run(op)
            if m in posts: st.ds(f"ds_write_b32 v{vPG}, v{vN}")
            if m < base and m % 28 == 27: self.stamp(st, "m", f"u{m // 14}", 4)
            if m == base: self.stamp(st, "m", "tail0", 4)
            if m == base + 2 * T: self.stamp(st, "m", "tail1", 4)
            if m + 5 in checks: st.ds(f"ds_read_b128 {vr(CK,4)}, v{vLD}", "ck")
            if m in checks:
                lab = f"L_ld{checks[m]}{self.sfx}"
                st(f"s_cbranch_vccnz {lab}s")
                st.label(lab + "r")
                near.label(lab + "s")
                self.lds_spin(near, lab, vLD, CK, checks[m])
                near(f"s_branch {lab}r")
            if m + LA < 224: rdB(m + LA)
            if m + 1 in checks:
                st.wait_ds("ck")
                self.lds_min(st, CK, checks[m + 1])
            for op in fill[m]: run(op)
        assert nxt[0] == 32
        self.stamp(st, "m", "Dmfma_end", 13)
        for m in (224, 225):
            for op in first.get(m, []) + fill.get(m, []): run(op)
        for i in range(nst, 6): store(i)
        st.nop(8)
        ep = epilogue(6)
        for op in ep[:32] + first.get(226, []) + ep[32:]: run(op)
        store(6)
        for op in publish(7): run(op)
        self.stamp(st, "m", "end", 13)
        self.dump_stamps(st, "m")
        st("s_endpgm")

    def helper_phase_a(self, st):
        self.stamp(st, "h", "start", 255)
        XP, XF, AC = 48, 80, 112
        st("s_setprio 2")
        if self.c.padto: st("s_memrealtime s[100:101]")
        st.vq.append((None, False))
        st(f"v_lshrrev_b32 v2, 4, v0\nv_and_b32 v3, 15, v0\nv_lshlrev_b32 v4, 10, v2\nv_lshl_add_u32 v4, v3, 4, v4")
        st(f"s_and_b32 s{sT2}, s{sCB}, 1\ns_lshl_b32 s{sC}, s{sT2}, 2\ns_add_u32 s{sC}, s{sC}, s{sW}\ns_lshl_b32 s{sT0}, s{sRB}, 3\ns_add_u32 s{sA}, s{sT0}, s{sC}")
        st(f"s_lshl_b32 s{sA}, s{sA}, 12\ns_xor_b32 s{sB}, s{sA}, 0x4000")
        self.srds(st, ((X, 2097152), (WKVS, 16384)))
        st(f"v_lshlrev_b32 v1, 4, v0\ns_lshl_b32 s{sD}, s{sW}, 12\ns_add_u32 m0, s{sD}, {WKV}\nv_mov_b32 v124, v4")
        st("s_waitcnt lgkmcnt(0)")
        ldx = lambda i: st.vm(f"buffer_load_dwordx4 {vr(XP+4*i,4)}, v124, {srd(X)}, s{sA if i < 4 else sB} offen offset:{256*(i % 4)}", ("x", i))
        for i in range(4): ldx(i)
        st.bar("B00")
        ldw = lambda: [st.vm(f"buffer_load_dwordx4 v1, {srd(WKVS)}, s{sD} offen offset:{1024*i} lds", "wkv") for i in range(4)]
        if self.c.sec & 2: ldw()
        st(f"s_and_b32 s{sT0}, s{sW}, 1\ns_lshl_b32 s{sT0}, s{sT0}, 3\ns_add_u32 s{sT0}, s{sT0}, 48\ns_load_dwordx2 {sr(WG,2)}, s[0:1], s{sT0}")
        for b, off in ((WO, 32), (WD, 64), (OUT, 72)):
            st(f"s_load_dwordx2 {sr(b,2)}, s[0:1], {off}")
        self.srds(st, ((WO, 524288), (WG, 1835008), (WD, 1835008), (OUT, 2097152), (WS, WS_SIZE)))
        st(f"s_mov_b32 s{sONE}, 0x3f803f80\ns_mov_b32 s{sLO}, 0x3f80\ns_mov_b32 s{sHI}, 0x3f800000")
        st(f"s_getreg_b32 s{sXCC}, hwreg(HW_REG_XCC_ID, 0, 4)")
        st(f"v_bfe_u32 v5, v0, 1, 3\nv_mul_u32_u24 v5, {TILE}, v5\nv_and_b32 v6, 1, v0\nv_lshl_add_u32 v7, v6, 4, v5")
        st(f"v_cmp_eq_u32 vcc, 0, v6\nv_mov_b32 v8, s{sONE}\ns_nop 0\nv_cndmask_b32 v8, 0, v8, vcc\nv_mov_b32 v9, v8\nv_mov_b32 v10, v8\nv_mov_b32 v11, v8")
        st.ds("ds_write_b128 v7, v[8:11] offset:2048")
        st(f"v_mul_u32_u24 v5, 528, v3\nv_lshl_add_u32 v5, v2, 4, v5\ns_lshl_b32 s{sT0}, s{sC}, 6\ns_xor_b32 s{sT1}, s{sT0}, 256")
        st(f"s_add_u32 s{sT2}, s{sT0}, {XN}\ns_add_u32 s{sT3}, s{sT1}, {XN}\nv_add_u32 v120, s{sT2}, v5\nv_add_u32 v121, s{sT3}, v5")
        st(f"s_lshr_b32 s{sT0}, s{sT0}, 2\ns_lshr_b32 s{sT1}, s{sT1}, 2\ns_add_u32 s{sT0}, s{sT0}, {MISC + 16}\ns_add_u32 s{sT1}, s{sT1}, {MISC + 16}")
        st(f"v_lshl_add_u32 v122, v2, 2, s{sT0}\nv_lshl_add_u32 v123, v2, 2, s{sT1}")
        st.wait_ds()
        self.epoch_load(st)
        self.helper_setup(st)
        st(f"s_lshl_b32 s{sT0}, s{sW}, 2\ns_add_u32 s{sT0}, s{sT0}, {XC}\nv_mov_b32 v230, s{sT0}")
        st(f"v_and_b32 v41, 31, v0\nv_lshlrev_b32 v41, 2, v41\nv_add_u32 v41, {MISC + 16}, v41")
        st("v_lshrrev_b32 v27, 4, v0\nv_lshlrev_b32 v27, 14, v27\nv_and_b32 v14, 15, v0\nv_lshl_add_u32 v27, v14, 7, v27")
        st(f"v_lshrrev_b32 v14, 5, v0\nv_lshl_add_u32 v14, v14, 9, v1\ns_lshl_b32 s{sT0}, s2, 11\ns_cmp_eq_u32 s{sW}, 1\ns_cselect_b32 s{sT0}, s{sT0}, 0x100000")
        self.stamp(st, "h", "setup", 64)
        def second():
            if not self.c.sec & 2: ldw()
            for i in range(4, 8): ldx(i)
            st.bar("B0")
        if self.c.wo_early:
            for i in range(2): st.vm(f"buffer_load_dwordx4 {vr(232+4*i,4)}, v14, {srd(WO)}, s{sT0} offen offset:{512*i}")
        if not self.c.sec & 1: second()
        def red16(a):
            for m in ("quad_perm:[1,0,3,2]", "quad_perm:[2,3,0,1]", "row_half_mirror", "row_mirror"):
                st(f"s_nop 1\nv_add_f32_dpp v{a}, v{a}, v{a} {m} row_mask:0xf bank_mask:0xf")
        for ps in range(2):
            P = XP + 16 * ps
            for i in range(4):
                if ps == 0: st.wait_vm(("x", i))
                for r in range(4):
                    st(f"v_dot2_f32_bf16 v{AC+r%2}, v{P+4*i+r}, s{sONE}, {'0' if i == 0 and r < 2 else 'v%d' % (AC+r%2)}")
            if ps == 0: self.stamp(st, "h", "xland", 193)
            if ps == 0 and self.c.sec & 1: second()
            st(f"s_nop 2\nv_add_f32 v{AC}, v{AC}, v{AC+1}")
            red16(AC)
            st(f"v_mul_f32 v{AC}, {f32(-1.0/512)}, v{AC}")
            st.ds(f"ds_write_b32 v{122+ps}, v{AC}")
            self.stamp(st, "h", f"mean{ps}", 128)
            for r in range(16):
                st(f"v_dot2_f32_bf16 v{XF+2*r}, v{P+r}, s{sLO}, v{AC}\nv_dot2_f32_bf16 v{XF+2*r+1}, v{P+r}, s{sHI}, v{AC}")
            for r in range(16):
                d = AC + 2 + 2 * (r % 2)
                if r < 2: st(f"v_pk_mul_f32 {vr(d,2)}, {vr(XF+2*r,2)}, {vr(XF+2*r,2)}")
                else: st(f"v_pk_fma_f32 {vr(d,2)}, {vr(XF+2*r,2)}, {vr(XF+2*r,2)}, {vr(d,2)}")
            st(f"v_pk_add_f32 {vr(AC+2,2)}, {vr(AC+2,2)}, {vr(AC+4,2)}\nv_add_f32 v{AC+2}, v{AC+2}, v{AC+3}")
            red16(AC + 2)
            self.stamp(st, "h", f"var{ps}", 128)
            st(f"v_mov_b32 v{AC+3}, {f32(1e-5)}\nv_fmac_f32 v{AC+3}, {f32(1.0/512)}, v{AC+2}\nv_rsq_f32 v{AC+2}, v{AC+3}\nv_mov_b32 v231, {ps+1}")
            for i in range(4):
                for r in range(4):
                    st(f"v_pk_mul_f32 {vr(XF+8*i+2*r,2)}, {vr(XF+8*i+2*r,2)}, {vr(AC+2,2)} op_sel_hi:[1,0]")
                for r in range(4):
                    st(f"v_cvt_pk_bf16_f32 v{P+4*i+r}, v{XF+8*i+2*r}, v{XF+8*i+2*r+1}")
                st.ds(f"ds_write_b128 v{120+ps}, {vr(P+4*i,4)} offset:{8448*i}")
            self.stamp(st, "h", f"wr{ps}", 128)
            st.wait_vm("wkv")
            st.wait_ds()
            st("ds_write_b32 v230, v231")
            self.stamp(st, "h", f"ln{ps}", 192)
            if ps == 0:
                self.epoch_make(st)
                st(f"s_add_u32 s{sXCC}, s{sXCC}, s{sEP}\nv_mov_b32 v31, s{sEP}")
                st.wait_vm(("x", 7))
                self.stamp(st, "h", "p2start", 128)
        st(f"s_cmp_lg_u32 s{sW}, 1\ns_cbranch_scc1 L_nowb1")
        a = 240
        if not self.c.wo_early:
            for i in range(2): st(f"buffer_load_dwordx4 {vr(232+4*i,4)}, v14, {srd(WO)}, s{sT0} offen offset:{512*i}")
        st("s_waitcnt vmcnt(0)")
        for r in range(8): st(f"v_dot2_f32_bf16 v{a}, v{232+r}, s{sONE}, {'0' if r == 0 else 'v%d' % a}")
        st("s_nop 0")
        for m in ("quad_perm:[1,0,3,2]", "quad_perm:[2,3,0,1]", "row_half_mirror", "row_mirror"):
            st(f"s_nop 1\nv_add_f32_dpp v{a}, v{a}, v{a} {m} row_mask:0xf bank_mask:0xf")
        st(f"v_mov_b32 v{a+1}, v{a}\ns_nop 1\nv_permlane16_swap_b32 v{a}, v{a+1}\nv_add_f32 v{a}, v{a}, v{a+1}")
        st(f"v_mul_f32 v{a}, {f32(1.0/512)}, v{a}\nv_mov_b32 v{a+1}, v{a}\ns_nop 1\nv_permlane32_swap_b32 v{a}, v{a+1}")
        st(f"v_cvt_pk_bf16_f32 v{a+4}, v{a}, v{a+1}\nv_lshlrev_b32 v{a+2}, 16, v{a+4}\nv_and_b32 v{a+3}, 0xffff0000, v{a+4}")
        st(f"v_sub_f32 v{a}, v{a}, v{a+2}\nv_sub_f32 v{a+1}, v{a+1}, v{a+3}\nv_cvt_pk_bf16_f32 v{a+5}, v{a}, v{a+1}")
        st(f"v_mov_b32 v{a+6}, s{sEP1}\ns_lshl_b32 s{sT0}, s2, 7\ns_add_u32 s{sF}, s{sT0}, {WS_WB}")
        st.label("L_nowb1")

    def kv_addr(self, st):
        st(f"v_lshrrev_b32 v20, 4, v0\nv_and_b32 v13, 15, v0\nv_lshlrev_b32 v14, 8, v20\nv_lshl_add_u32 v249, v13, 3, v14")
        st(f"s_and_b32 s{sT0}, s{sCB}, 1\ns_lshl_b32 s{sT1}, s{sT0}, 8\ns_add_u32 s{sT2}, s{sT1}, {XN}")
        st(f"v_mul_u32_u24 v15, 528, v20\nv_lshl_add_u32 v15, v13, 4, v15\nv_add_u32 v250, s{sT2}, v15")
        st(f"s_lshl_b32 s{sT2}, s{sT0}, 9\ns_add_u32 s{sT2}, s{sT2}, 1024\ns_cmp_ge_u32 s{sCB}, 2")
        st(f"s_cselect_b32 s{sT1}, s{sT2}, s{sT1}\ns_cselect_b32 s{sT2}, 3, 9\ns_cselect_b32 s{sT3}, 8, 3")
        st(f"v_and_b32 v14, 1, v20\nv_lshlrev_b32 v14, s{sT2}, v14\nv_lshrrev_b32 v15, 1, v20\nv_lshlrev_b32 v15, s{sT3}, v15")
        st(f"v_lshl_add_u32 v14, v13, 4, v14\nv_add3_u32 v251, v14, v15, s{sT1}")
        st(f"s_lshl_b32 s{mKG}, s{sRB}, 11\ns_add_u32 s{mKL}, s{mKG}, {WS_KVL}\ns_add_u32 s{mKG}, s{mKG}, {WS_KV}")
        st(f"s_lshl_b32 s{sT0}, s{sG}, 5\ns_add_u32 s{sT0}, s{sT0}, s{sIDX}\ns_lshl_b32 s{mFL}, s{sT0}, 2\ns_add_u32 s{mFL}, s{mFL}, {WS_FLGL}")
        st(f"s_lshl_b32 s{mFG}, s{sT0}, 7\ns_add_u32 s{mFG}, s{mFG}, {WS_FLG1}")

    def kv_job(self, st):
        WR, XR, AC = 168, 112, 144
        st("s_setprio 3")
        self.lds_spin(st, "L_xc0", 18, 20, 1, sleep=1)
        self.stamp(st, "m", "m0xc", 64)
        st(f"s_cmp_ge_u32 s{sCB}, 2\ns_cbranch_scc1 L_vjob")
        for job in ("k", "v"):
            if job == "v": st.label("L_vjob")
            LA = 4
            for j in range(16 + LA):
                if j < 16:
                    for t in range(2): st.ds(f"ds_read_b64_tr_b16 {vr(WR+4*j+2*t,2)}, v249 offset:{WKV + 1024*j + 128*t}")
                    st.ds(f"ds_read_b128 {vr(XR+4*(j % 8),4)}, v250 offset:{2112*j}", ("rd", j))
                m = j - LA
                if m >= 0:
                    st.wait_ds(("rd", m))
                    w, x = WR + 4 * m, XR + 4 * (m % 8)
                    a, b = (w, x) if job == "k" else (x, w)
                    st(mfma16(AC, a, b, "0" if m == 0 else None))
            if job == "k": st("s_branch L_kvst")
        st.label("L_kvst")
        self.stamp(st, "m", "m0kvmf", 64)
        st.nop(8)
        st(f"v_cvt_pk_bf16_f32 v{AC+4}, v{AC}, v{AC+1}\nv_cvt_pk_bf16_f32 v{AC+5}, v{AC+2}, v{AC+3}")
        st(f"buffer_store_dwordx2 {vr(AC+4,2)}, v251, {srd(WS)}, s{mKL} offen")
        st(f"buffer_store_dwordx2 {vr(AC+4,2)}, v251, {srd(WS)}, s{mKG} offen sc1")
        st("s_setprio 0")

    def kv_flag(self, st, glob, younger):
        st(f"s_cmp_lg_u32 s{sW}, 0\ns_cbranch_scc1 L_nofl{glob}")
        st(f"v_mov_b32 v19, s{sEP1 if glob else sXCC}\ns_mov_b64 exec, 1\ns_waitcnt vmcnt({younger})")
        self.stamp(st, "m", "m0GF" if glob else "m0LF", 64)
        st.vm(f"buffer_store_dword v19, off, {srd(WS)}, s{mFG if glob else mFL}{' sc1' if glob else ''}", cond=True)
        st("s_mov_b64 exec, -1")
        st.label(f"L_nofl{glob}")

    WOR, WDR = 128, 48

    def odd_voffsets(self, st, base, t):
        st(f"s_and_b32 s{sT0}, s{sIDX}, 15\ns_mul_i32 s{sT0}, s{sT0}, 224\ns_and_b32 s{sT1}, s{sW}, 1\ns_lshl_b32 s{sT1}, s{sT1}, 2\ns_lshl_b32 s{sT2}, s{sCB}, 1")
        for p in range(3):
            d = base + p
            st(f"v_add_u32 v{t}, {64*p}, v0\nv_mul_u32_u24 v{t+1}, 10923, v{t}\nv_lshrrev_b32 v{t+1}, 16, v{t+1}\nv_mul_u32_u24 v{d}, 6, v{t+1}")
            st(f"v_sub_u32 v{t}, v{t}, v{d}\nv_cmp_gt_u32 vcc, s{sT2}, v{t}\nv_xor_b32 v{t+1}, s{sT1}, v{t+1}\nv_add_u32 v{d}, 8, v{t}")
            st(f"v_cndmask_b32 v{t}, v{d}, v{t}, vcc\nv_mul_u32_u24 v{t+1}, 3584, v{t+1}\nv_lshlrev_b32 v{t}, 4, v{t}\nv_add3_u32 v{d}, v{t}, v{t+1}, s{sT0}")

    def full_voffset(self, st, d, t):
        st(f"s_and_b32 s{sT0}, s{sIDX}, 15\ns_mul_i32 s{sT0}, s{sT0}, 224\ns_lshl_b32 s{sT1}, s{sCB}, 5\ns_add_u32 s{sT0}, s{sT0}, s{sT1}")
        st(f"s_and_b32 s{sT1}, s{sW}, 1\ns_lshl_b32 s{sT1}, s{sT1}, 2")
        st(f"v_bfe_u32 v{t}, v0, 4, 1\nv_lshlrev_b32 v{t}, 1, v{t}\nv_or_b32 v{t}, s{sT1}, v{t}\nv_and_b32 v{t+1}, 7, v0\nv_xor_b32 v{t}, v{t}, v{t+1}")
        st(f"v_lshlrev_b32 v{t}, 4, v{t}\nv_lshrrev_b32 v{t+1}, 3, v0\nv_mul_u32_u24 v{t+1}, 3584, v{t+1}\nv_add3_u32 v{d}, v{t}, v{t+1}, s{sT0}")

    pace = None

    def paced(self, st):
        if self.pace is not None: st(f"s_waitcnt vmcnt({self.pace})")

    def odd_pair(self, st, u0, mask, vbase):
        st(f"s_and_b32 s{sT2}, s{sP+4}, {mask | 1}\ns_xor_b32 s{sT2}, s{sT2}, {u0}\ns_mul_i32 s{sT1}, s{sT2}, 114688")
        st(f"s_lshl_b32 s{sT2}, s{sT2}, 1\ns_and_b32 s{sT3}, s{sW}, 1\ns_add_u32 s{sT2}, s{sT2}, s{sT3}\ns_mul_i32 s{sT2}, s{sT2}, 3072")
        for p in range(3):
            st(f"s_add_u32 m0, s{sT2}, {ODD + 1024*p}\ns_nop 0")
            st.vm(f"buffer_load_dwordx4 v{vbase+p}, {srd(WG)}, s{sT1} offen lds", ("odd", u0))

    def full_unit(self, st, u, v):
        for q in range(2):
            st(f"s_add_u32 m0, s{sP+6}, {slot8(FSLOT[u]) + 1024*q}\ns_add_u32 s{sT1}, s{sP+5}, {(32*u + 8*q) * 3584}")
            self.paced(st)
            st.vm(f"buffer_load_dwordx4 v{v}, {srd(WG)}, s{sT1} offen lds", ("full", u))

    def wd_dma(self, st, j, addr, vD, sbase):
        p = j % 4
        t = tile_of(p, j // 4)
        if self.c.fake & 4 and j >= 10:
            for q in range(2):
                st(f"s_add_u32 m0, s{sbase}, {addr + 1024*q}\ns_lshl_b32 s{sT1}, s{sG}, 18\ns_add_u32 s{sT1}, s{sT1}, s{sbase}\ns_add_u32 s{sT1}, s{sT1}, {WS_H + (j-10)*8192 + 1024*q}")
                self.paced(st)
                st.vm(f"buffer_load_dwordx4 v1, {srd(WS)}, s{sT1} offen lds", ("wd", j))
            return
        st(f"s_add_u32 m0, s{sbase}, {addr}\ns_add_u32 s{sT1}, s{sP+7}, {(7*p + t) * 16384}")
        self.paced(st)
        st.vm(f"buffer_load_dwordx4 v{vD}, {srd(WD)}, s{sT1} offen lds")
        st(f"s_add_u32 m0, s{sbase}, {addr + 1024}\ns_add_u32 s{sT1}, s{sT1}, 8192")
        self.paced(st)
        st.vm(f"buffer_load_dwordx4 v{vD}, {srd(WD)}, s{sT1} offen lds", ("wd", j))

    def wd_read(self, st, j, reg, va, off):
        for nt in range(2):
            for t in range(2):
                st.ds(f"ds_read_b64_tr_b16 {vr(reg+4*nt+2*t,2)}, v{va[nt]} offset:{off + 1024*t}", ("wdr", j))

    def wd_addr(self, st, vD, va, t0):
        st(f"v_lshrrev_b32 v{t0}, 3, v0\nv_bfe_u32 v{t0+1}, v0, 4, 1\nv_lshlrev_b32 v{t0+1}, 2, v{t0+1}\nv_and_b32 v{vD}, 7, v0")
        st(f"v_xor_b32 v{vD}, v{vD}, v{t0+1}\nv_lshlrev_b32 v{vD}, 4, v{vD}\nv_lshl_add_u32 v{vD}, v{t0}, 10, v{vD}")
        st(f"v_lshrrev_b32 v{t0}, 5, v0\nv_bfe_u32 v{t0+1}, v0, 2, 2\nv_lshl_add_u32 v{t0}, v{t0}, 2, v{t0+1}\nv_lshlrev_b32 v{t0}, 7, v{t0}")
        st(f"v_bfe_u32 v{t0+1}, v0, 3, 1\ns_and_b32 s{sT0}, s{sW}, 1\nv_xor_b32 v{t0+1}, s{sT0}, v{t0+1}\nv_lshl_add_u32 v{t0}, v{t0+1}, 6, v{t0}")
        st(f"v_bfe_u32 v{t0+1}, v0, 4, 1\nv_lshl_add_u32 v{t0}, v{t0+1}, 5, v{t0}\nv_and_b32 v{t0+1}, 3, v0\nv_lshl_add_u32 v{va[0]}, v{t0+1}, 3, v{t0}")
        st(f"v_xor_b32 v{va[1]}, 64, v{va[0]}")

    def helper_setup(self, st):
        vL, vP, vR = 1, 2, 3
        st(f"v_and_b32 v{vP}, 7, v0\ns_lshl_b32 s{sT0}, s{sW}, 3\nv_add_u32 v{vP}, s{sT0}, v{vP}\nv_lshlrev_b32 v{vP}, 7, v{vP}")
        st(f"v_lshrrev_b32 v{vR}, 3, v0\nv_lshl_add_u32 v{vP}, v{vR}, 12, v{vP}")
        vWO, vTR, vWD, vWA, GU = 4, 5, 6, (12, 13), 16
        st(f"v_lshrrev_b32 v14, 2, v0\nv_lshlrev_b32 v14, 10, v14\nv_and_b32 v15, 3, v0\nv_lshlrev_b32 v15, 4, v15")
        st(f"s_lshl_b32 s{sT0}, s{sCB}, 8\ns_lshl_b32 s{sT1}, s{sW}, 6\ns_add_u32 s{sT0}, s{sT0}, s{sT1}")
        st(f"v_add3_u32 v{vWO}, v14, v15, s{sT0}")
        st(f"s_mul_i32 s{sE}, s{sW}, {STGW}\ns_add_u32 s{sE}, s{sE}, {STG}")
        st(f"v_lshrrev_b32 v14, 5, v0\nv_lshlrev_b32 v14, 8, v14\nv_bfe_u32 v15, v0, 2, 2\nv_lshl_add_u32 v14, v15, 6, v14")
        st(f"v_bfe_u32 v15, v0, 4, 1\nv_lshl_add_u32 v14, v15, 5, v14\nv_and_b32 v15, 3, v0\nv_lshl_add_u32 v14, v15, 3, v14")
        st(f"v_add_u32 v{vTR}, s{sE}, v14")
        self.wd_addr(st, vWD, vWA, 14)
        st(f"v_add_u32 v24, s{sE}, v{vWA[0]}\nv_add_u32 v25, s{sE}, v{vWA[1]}")
        self.odd_voffsets(st, GU, 14)
        self.full_voffset(st, GU + 3, 14)
        st(f"s_lshr_b32 s{sT0}, s{sW}, 1\ns_mul_i32 s{sP+5}, s{sT0}, {16*3584}\ns_lshr_b32 s{sT1}, s{sIDX}, 4\ns_lshl_b32 s{sT1}, s{sT1}, 1\ns_or_b32 s{sT1}, s{sT1}, s{sT0}")
        st(f"s_and_b32 s{sT2}, s{sIDX}, 1\ns_lshl_b32 s{sT2}, s{sT2}, 2\ns_or_b32 s{sP+4}, s{sT1}, s{sT2}")
        st(f"s_lshl_b32 s{sT0}, s{sT0}, 11\ns_and_b32 s{sT1}, s{sW}, 1\ns_lshl_b32 s{sT1}, s{sT1}, 12\ns_add_u32 s{sP+6}, s{sT0}, s{sT1}")
        st(f"v_lshrrev_b32 v14, 4, v0\nv_mul_u32_u24 v14, 3584, v14\nv_bfe_u32 v15, v0, 2, 2\nv_mul_u32_u24 v15, 896, v15\nv_and_b32 v{GU+4}, 3, v0")
        st(f"v_lshlrev_b32 v{GU+4}, 8, v{GU+4}\nv_add3_u32 v{GU+4}, v{GU+4}, v14, v15")
        st(f"s_mul_i32 s{sT0}, s{sW}, {28*16384}\ns_and_b32 s{sT1}, s{sIDX}, 7\ns_lshl_b32 s{sT1}, s{sT1}, 7\ns_add_u32 s{sP+7}, s{sT0}, s{sT1}")
        st(f"v_mov_b32 v26, {MISC}\nv_lshlrev_b32 v23, 7, v0")
        st(f"v_and_b32 v14, 31, v0\nv_lshlrev_b32 v14, 10, v14\nv_lshrrev_b32 v15, 5, v0\nv_lshl_add_u32 v40, v15, 4, v14")
        st(f"v_lshrrev_b32 v14, 4, v0\nv_lshlrev_b32 v14, 7, v14\nv_bfe_u32 v15, v0, 1, 1\nv_lshl_add_u32 v14, v15, 6, v14")
        st(f"v_bfe_u32 v15, v0, 2, 2\nv_lshl_add_u32 v14, v15, 3, v14\nv_and_b32 v15, 1, v0\nv_lshl_add_u32 v14, v15, 2, v14\nv_add_u32 v42, {WBL}, v14")

    def helper_attention(self, st):
        vL, vP, vR = 1, 2, 3
        st(f"s_lshl_b32 s{sT1}, s{sG}, 12\ns_add_u32 s{sB}, s{sT1}, {WS_FLG1}")
        st(f"s_mul_i32 s{sC}, s{sW}, {2*TILE}\ns_lshl_b32 s{sD}, s{sW}, 12\ns_add_u32 s{sD}, s{sD}, {WS_KV}")
        st(f"s_cmp_lt_u32 s{sW}, 2\ns_cbranch_scc1 L_x1skip")
        st(f"s_and_b32 s{sT2}, s{sW}, 1\ns_lshl_b32 s{sT0}, s{sT2}, 4\nv_and_b32 v12, 15, v0\nv_add_u32 v12, s{sT0}, v12")
        st(f"v_lshlrev_b32 v14, 7, v12\nv_lshlrev_b32 v12, 2, v12\ns_lshl_b32 s{sT1}, s{sG}, 7\ns_add_u32 s{sT1}, s{sT1}, {WS_FLGL}")
        st(f"s_lshl_b32 s{sE}, s{sG}, 14\ns_lshl_b32 s{sT0}, s{sT2}, 13\ns_add_u32 s{sE}, s{sE}, s{sT0}\ns_add_u32 s{sE}, s{sE}, {WS_KVL}")
        st(f"s_mul_i32 s{sT0}, s{sT2}, {4*TILE}\ns_add_u32 m0, s{sT0}, {RING}")
        st(f"s_lshl_b32 s{sT0}, s{sT2}, 2\ns_add_u32 s{sT0}, s{sT0}, {MISC}\nv_mov_b32 v15, s{sT0}")
        st(f"v_mov_b32 v13, 1\ns_mov_b32 s{sCNT}, {SPINL}\ns_bfm_b64 exec, 16, 0")
        st.label("L_x1l")
        st(f"buffer_load_dword v{vR}, v12, {srd(WS)}, s{sT1} offen sc1")
        st.wait_vm()
        st(f"v_cmp_ne_u32 vcc, s{sXCC}, v{vR}\ns_cbranch_vccz L_x1a_ok")
        st(f"s_sub_u32 s{sCNT}, s{sCNT}, 1\ns_cbranch_scc0 L_x1l")
        st(f"s_mov_b64 exec, -1\ns_sub_u32 s{sE}, s{sE}, {WS_KVL - WS_KV}\nv_mov_b32 v13, 0")
        self.poll(st, "L_x1a", 14, f"s{sB}", vR, 1, exact=True, lanes=16)
        for i in range(8):
            if i in (2, 6): st("s_add_u32 m0, m0, 32\ns_nop 0")
            if i == 4: st(f"s_add_u32 m0, m0, {2*TILE - 32}\ns_add_u32 s{sE}, s{sE}, 4096")
            st(f"buffer_load_dwordx4 v{vL}, {srd(WS)}, s{sE} offen offset:{1024*(i % 4)} sc1 lds")
        self.stamp(st, "h", "w2poll", 64)
        st("ds_write_b32 v15, v13")
        st.label("L_x1skip")
        self.stamp(st, "h", "x1own")
        def chunk(c):
            st(f"s_add_u32 s{sT0}, s{sG}, {c}\ns_and_b32 s{sT0}, s{sT0}, 7\ns_lshl_b32 s{sT0}, s{sT0}, 14")
            st(f"s_add_u32 m0, s{sC}, {RING + (c % 2) * 8 * TILE}\ns_add_u32 s{sT0}, s{sT0}, s{sD}")
            for i in range(4):
                if i == 2: st("s_add_u32 m0, m0, 32\ns_nop 0")
                st.vm(f"buffer_load_dwordx4 v{vL}, {srd(WS)}, s{sT0} offen offset:{1024*i} sc1 lds", ("kv", c))
        vWO, vTR, vWD, GU = 4, 5, 6, 16
        st(f"s_mul_i32 s{sE}, s{sW}, {STGW}\ns_add_u32 s{sE}, s{sE}, {STG}")
        st(f"s_cmp_lt_u32 s{sW}, 2\ns_cbranch_scc1 L_x1skip2")
        st.wait_vm()
        st.wait_ds()
        st.label("L_x1skip2")
        self.pad(st, 1)
        st.bar("B2")
        self.stamp(st, "h", "cycB2", 32)
        st.ds(f"ds_write_b128 v7, v[8:11] offset:{8*TILE + 2048}")
        st.ds("ds_read_b64 v[28:29], v26")
        st.ds("ds_read_b32 v12, v41")
        st(f"s_mov_b32 s{sB}, {WS_FLG1}")
        self.poll(st, "L_x1b", vP, f"s{sB}", vR, 1, exact=True)
        self.stamp(st, "h", "x1a", 81)
        st.wait_ds()
        self.colo_reduce(st, 28)
        st(f"s_setprio {self.c.hprio}")
        st(f"s_lshl_b32 s{sA}, s{sCB}, 17")
        def wo_dma(j, pos):
            st(f"s_add_u32 m0, s{sE}, {1024*pos}\ns_xor_b32 s{sT1}, s{sA}, {j*16384}")
            st.vm(f"buffer_load_dwordx4 v{vWO}, {srd(WO)}, s{sT1} offen lds", ("wo", j))
        def wo_read(j, pos):
            for t in range(2):
                st.ds(f"ds_read_b64_tr_b16 {vr(self.WOR+4*j+2*t,2)}, v{vTR} offset:{1024*pos + 512*t}")
        vT, vTD, vJ = 23, 27, 30
        incond = [False]
        def touch(buf, v, soff, lanes=64):
            if lanes < 64: st(f"s_bfm_b64 exec, {lanes}, 0")
            st.vm(f"buffer_load_dword v{vJ}, v{v}, {srd(buf)}, {soff} offen{' sc1' if buf == WS else ''}", cond=incond[0])
            if lanes < 64: st("s_mov_b64 exec, -1")
        def lines(name, soff, n):
            if name[0] == "T": return touch(WS, vT, soff, n)
            if n < 8: st(f"s_bfm_b64 exec, {8*n}, 0")
            for i in range(-(-n // 8)):
                if i == 4: st(f"s_add_u32 {soff}, {soff}, 4096")
                st.vm(f"buffer_store_dwordx4 v[8:11], v{vL}, {srd(WS)}, {soff} offen offset:{1024*(i % 4)} sc1")
            if n < 8: st("s_mov_b64 exec, -1")
        items = [("o", j) for j in range(32)] + [("d", j) for j in range(10)]
        staged = []
        def stage(n):
            assert not staged
            pos = 0
            while items and pos + (1 if items[0][0] == "o" else 2) <= n:
                kind, j = items.pop(0)
                if kind == "o": wo_dma(j, pos)
                else: self.wd_dma(st, j, 1024 * pos, vWD, sE)
                staged.append((kind, j, pos))
                pos += 1 if kind == "o" else 2
        def unstage():
            st.wait_vm(("w" + staged[-1][0], staged[-1][1]))
            for kind, j, pos in staged:
                if kind == "o": wo_read(j, pos)
                else: self.wd_read(st, j, self.WDR + 8 * j, (24, 25), 1024 * pos)
            st.wait_ds()
            staged.clear()
        gid = f"s_lshl_b32 s{sT0}, s{sIDX}, 2\ns_add_u32 s{sT0}, s{sT0}, s{sW}"
        cid = f"s_lshl_b32 s{sT0}, s2, 2\ns_add_u32 s{sT0}, s{sT0}, s{sW}"
        free_hi = [False]
        def op(name):
            if name[0] == "S": stage(int(name[1:]))
            elif name == "R": unstage()
            elif name[0] == "O":
                u, _, mask = name[1:].partition("^")
                assert int(u) < 6 or free_hi[0] or self.c.loose
                self.odd_pair(st, int(u), int(mask or 0), GU)
            elif name[0] == "F": self.full_unit(st, int(name[1:]), GU + 3)
            elif name == "Tkv":
                st(f"{gid}\ns_lshl_b32 s{sT1}, s{sT0}, 10\ns_add_u32 s{sT1}, s{sT1}, {WS_KV}")
                touch(WS, vT, f"s{sT1}", 8)
            elif name == "Tmd":
                st(f"{cid}\ns_mul_i32 s{sT1}, s{sT0}, {14*128}")
                touch(WD, vT, f"s{sT1}", 14)
            elif name in ("Tmg0", "Tmg1"):
                st(f"{cid}\ns_lshr_b32 s{sT0}, s{sT0}, 1\ns_mul_i32 s{sT1}, s{sT0}, {14*128}\ns_add_u32 s{sT1}, s{sT1}, {917504*int(name[3])}")
                touch(WG, vT, f"s{sT1}", 14)
            elif name == "To":
                st(f"{gid}\ns_lshl_b32 s{sT1}, s{sT0}, 12")
                touch(WO, vT, f"s{sT1}", 32)
            elif name[:2] in ("Tf", "Tq"):
                row0 = (96 if name[1] == "f" else 0) + 256 * int(name[2:])
                st(f"{gid}\ns_lshr_b32 s{sT0}, s{sT0}, 1\ns_mul_i32 s{sT1}, s{sT0}, {4*3584}\ns_add_u32 s{sT1}, s{sT1}, {row0*3584 + (0 if name[1] == 'f' else 128)}")
                if name[1] == "q": st("s_mov_b32 exec_lo, 0x77777777\ns_mov_b32 exec_hi, 0x77777777")
                touch(WG, GU + 4, f"s{sT1}")
                if name[1] == "q": st("s_mov_b64 exec, -1")
            elif name[:2] == "Td":
                st(f"{gid}\ns_lshr_b32 s{sT1}, s{sT0}, 3\ns_and_b32 s{sT2}, s{sT1}, 3\ns_mul_i32 s{sT1}, s{sT1}, 114688\ns_and_b32 s{sT0}, s{sT0}, 7\ns_lshl_b32 s{sT0}, s{sT0}, 11")
                st(f"s_add_u32 s{sT1}, s{sT0}, s{sT1}")
                if name == "Tdf":
                    st(f"s_lshl_b32 s{sT2}, s{sT2}, 14\ns_add_u32 s{sT1}, s{sT1}, s{sT2}")
                    touch(WD, vTD, f"s{sT1}")
                else:
                    for i in range(3):
                        st(f"s_cmp_gt_u32 s{sT2}, {i}\ns_cselect_b32 s{sT0}, {i*16384}, {(i+4)*16384}\ns_add_u32 s{sT0}, s{sT0}, s{sT1}".replace(f"s_cselect_b32 s{sT0}, {i*16384}, {(i+4)*16384}", f"s_cselect_b32 s{sT0}, 0, 0x10000\ns_add_u32 s{sT0}, s{sT0}, {i*16384}"))
                        touch(WD, vT, f"s{sT0}", 16)
            elif name[:2] in ("Th", "Ph"):
                a, b = map(int, name[2:].split("-"))
                st(f"s_lshr_b32 s{sT0}, s{sIDX}, 4\ns_lshl_b32 s{sT1}, s{sG}, 1\ns_add_u32 s{sT0}, s{sT0}, s{sT1}\ns_lshl_b32 s{sT0}, s{sT0}, 2\ns_add_u32 s{sT0}, s{sT0}, s{sW}")
                st(f"s_mul_i32 s{sT0}, s{sT0}, 114688\ns_and_b32 s{sT1}, s{sIDX}, 15\ns_mul_i32 s{sT1}, s{sT1}, 7168\ns_add_u32 s{sT0}, s{sT0}, s{sT1}\ns_add_u32 s{sT0}, s{sT0}, {WS_HH + 1024*a}")
                lines(name, f"s{sT0}", 8 * (b - a))
            elif name in ("Tx", "Px"):
                st(f"s_lshl_b32 s{sT0}, s{sRB}, 15\ns_lshl_b32 s{sT1}, s{sCB}, 13\ns_add_u32 s{sT0}, s{sT0}, s{sT1}\ns_lshl_b32 s{sT1}, s{sW}, 11\ns_add_u32 s{sT0}, s{sT0}, s{sT1}")
                st(f"s_add_u32 s{sT1}, s{sT0}, {WS_O}")
                lines(name, f"s{sT1}", 16)
                st(f"s_add_u32 s{sT1}, s{sT0}, {WS_H}")
                lines(name, f"s{sT1}", 16)
                st(f"s_lshr_b32 s{sT1}, s{sT0}, 3\ns_add_u32 s{sT1}, s{sT1}, {WS_ST}")
                lines(name, f"s{sT1}", 2)
                st(f"s_add_u32 s{sT1}, s{sT1}, {WS_PM - WS_ST}")
                lines(name, f"s{sT1}", 2)
            elif name == "Tz":
                st(f"s_min_u32 s{sT0}, s{sW}, 2\ns_lshl_b32 s{sT0}, s{sT0}, 13\ns_lshl_b32 s{sT1}, s{sRB}, 7\ns_add_u32 s{sT1}, s{sT1}, s{sT0}\ns_add_u32 s{sT1}, s{sT1}, {WS_FLG2}")
                touch(WS, vT, f"s{sT1}", 1)
            elif name == "X":
                st(f"s_lshl_b32 s{sT0}, s{sRB}, 15\ns_lshl_b32 s{sT1}, s{sCB}, 8\ns_add_u32 s{sT0}, s{sT0}, s{sT1}\ns_lshl_b32 s{sT1}, s{sW}, 6\ns_add_u32 s{sT0}, s{sT0}, s{sT1}")
                for q in range(2):
                    st.vm(f"buffer_load_dwordx4 {vr(32+4*q,4)}, v40, {srd(X)}, s{sT0} offen offset:{32*q}")
            elif name == "B":
                st(f"s_cmp_lg_u32 s{sW}, 3\ns_cbranch_scc1 L_nowb2")
                st(f"s_lshl_b32 s{sT0}, s{sCB}, 13\ns_add_u32 s{sT0}, s{sT0}, {WS_WB}\ns_mov_b32 s{sCNT}, {SPIN}\ns_setprio 2")
                st.label("L_wb")
                st(f"buffer_load_dwordx3 v[44:46], v{vT}, {srd(WS)}, s{sT0} offen sc1\ns_waitcnt vmcnt(0)")
                st(f"v_cmp_ne_u32 vcc, s{sEP1}, v46\ns_cbranch_vccz L_wb_ok\ns_sub_u32 s{sCNT}, s{sCNT}, 1\ns_cbranch_scc0 L_wb")
                st.label("L_wb_ok")
                st(f"s_setprio {self.c.hprio}\nds_write2_b32 v42, v44, v45 offset0:0 offset1:8\ns_waitcnt lgkmcnt(0)")
                st.label("L_nowb2")
            elif name == "W":
                st.wait_vm()
                self.stamp(st, "h", "drain", 16)
            else: raise KeyError(name)
        chunk(1)
        st(f"s_cmp_lg_u32 s{sW}, 1\ns_cbranch_scc1 L_nopub\ns_mov_b64 exec, 1")
        st.vm(f"buffer_store_dwordx3 v[244:246], off, {srd(WS)}, s{sF} sc1", cond=True)
        st("s_mov_b64 exec, -1")
        st.label("L_nopub")
        ints = self.c.sched.split("|")
        assert len(ints) == 8
        for c, ops in enumerate(ints):
            if c == 1:
                st(f"{cid}\ns_cmp_lg_u32 s{sT0}, 0\ns_cbranch_scc1 L_noep")
                st(f"s_mov_b32 s{sT1}, {WS_EPOCH}\ns_mov_b64 exec, 1")
                st.vm(f"buffer_store_dword v31, off, {srd(WS)}, s{sT1} sc1", cond=True)
                st("s_mov_b64 exec, -1")
                st.label("L_noep")
            plain, _, stag = ops.partition("[")
            def staggered(par):
                if not stag: return
                st(f"s_xor_b32 s{sT0}, s{sIDX}, s{sG}\ns_bitcmp1_b32 s{sT0}, 0\ns_cbranch_scc{par} L_st{c}_{par}")
                incond[0] = True
                for name in stag.rstrip("]").split(): op(name)
                incond[0] = False
                st.label(f"L_st{c}_{par}")
            staggered(0)
            for name in plain.split(): op(name)
            st.wait_vm(("kv", c + 1))
            staggered(1)
            self.stamp(st, "h", f"arrBA{c}", 2)
            st.bar(f"BA{c}")
            self.stamp(st, "h", f"cycBA{c}", 32)
            if not items and not staged: free_hi[0] = True
            if c + 2 < 8: chunk(c + 2)
        assert self.c.loose or (not items and not staged)
        st("s_setprio 2")
        self.stamp(st, "h", "BA7")

    def helper_phase_c(self, st):
        vL, vP, vR, XR, ACC, BRG, PM = 1, 2, 3, 32, 16, (4, 8, 40, 44), self.WOR
        st(f"s_lshl_b32 s{sT0}, s{sRB}, 7\ns_lshl_b32 s{sT1}, s{sW}, 2\ns_add_u32 s{sT0}, s{sT0}, s{sT1}\ns_add_u32 s{sB}, s{sT0}, {WS_FLG2}")
        st(f"s_lshl_b32 s{sT2}, s{sCB}, 4\ns_add_u32 s{sT0}, s{sT0}, s{sT2}\ns_add_u32 s{sF}, s{sT0}, {WS_FLG3}")
        st(f"v_and_b32 v{vP}, 3, v0\nv_max_u32 v{vP}, 1, v{vP}\nv_lshlrev_b32 v{vP}, 4, v{vP}\nv_xor_b32 v{vP}, s{sT2}, v{vP}")
        st(f"s_lshl_b32 s{sT0}, s{sRB}, 15\ns_lshl_b32 s{sT2}, s{sCB}, 13\ns_add_u32 s{sT0}, s{sT0}, s{sT2}\ns_lshl_b32 s{sD}, s{sW}, 11\ns_add_u32 s{sT0}, s{sT0}, s{sD}")
        st(f"s_add_u32 s{sC}, s{sT0}, {WS_O}\ns_add_u32 s{sA}, s{sT0}, {WS_H}")
        st(f"s_lshl_b32 s{sT0}, s{sRB}, 12\ns_add_u32 s{sP}, s{sT0}, {WS_PM}\ns_lshl_b32 s{sT2}, s{sCB}, 10\ns_add_u32 s{sT0}, s{sT0}, s{sT2}\ns_add_u32 s{sT0}, s{sT0}, s{sT1}\ns_add_u32 s{sE}, s{sT0}, {WS_ST}")
        self.poll(st, "L_x2", vP, f"s{sB}", vR, 1, exact=True, lanes=4)
        self.pad(st, 2)
        self.stamp(st, "h", "x2ok", 3)
        for a in range(1, 4):
            st(f"s_add_u32 m0, s{sD}, {RING + 8192*a}\ns_xor_b32 s{sT0}, s{sC}, {8192*a}")
            for q in range(2):
                st.vm(f"buffer_load_dwordx4 v{vL}, {srd(WS)}, s{sT0} offen offset:{1024*q} sc1 lds")
        for b in (XR, XR + 4): st(f"v_permlane32_swap_b32 v{b}, v{b+2}\nv_permlane32_swap_b32 v{b+1}, v{b+3}")
        st.bar("BC0")
        rd = lambda j: st.ds(f"ds_read_b128 {vr(BRG[j % 4],4)}, v{vL} offset:{RING + 1024*j}", ("o", j))
        for j in range(3): rd(j)
        for r in range(8): st(f"v_lshlrev_b32 v{ACC+2*r}, 16, v{XR+r}\nv_and_b32 v{ACC+2*r+1}, 0xffff0000, v{XR+r}")
        st("s_nop 0")
        red = [lambda: st.wait_vm("pm")]
        for n in (8, 4, 2, 1): red += [f"v_add_f32 v{PM+i}, v{PM+i}, v{PM+n+i}" for i in range(n)]
        red += [f"v_mov_b32 v{PM+1}, v{PM}", f"v_cmp_eq_u32 vcc, 0, v0", "v_mov_b32 v14, 0x80000000", f"v_permlane32_swap_b32 v{PM}, v{PM+1}",
                "v_cndmask_b32_e64 v14, v14, 0, vcc", f"v_add_f32 v{PM}, v{PM}, v{PM+1}", f"v_mov_b32 v15, s{sEP1}", f"v_sub_f32 v12, v12, v{PM}"]
        for m in range(32):
            if m == 8:
                st.wait_vm()
                st.bar("BC1")
                for j in range(8, 11): rd(j)
                for i in range(4):
                    st.vm(f"buffer_load_dwordx4 {vr(PM+4*i,4)}, v{vL}, {srd(WS)}, s{sP} offen offset:{1024*i} sc1", "pm")
            st.wait_ds(("o", m))
            st(mfma32(ACC, self.WOR + 4 * m, BRG[m % 4]))
            if m + 3 < 32 and not 8 <= m + 3 < 11: rd(m + 3)
            if m >= 24:
                for op in red[3 * (m - 24):3 * (m - 23)]: op() if callable(op) else st(op)
        assert len(red) == 24
        st.bar("BC2")
        st(f"s_cmp_eq_u32 s{sCOLO}, {2 if self.c.force_slow else 1}\ns_cbranch_scc0 L_c_slow")
        self.c_epilogue(st, "")
        st.label("L_c_done")
        self.stamp(st, "h", "hflag")
        tc = self.tailcode
        tc.label("L_c_slow")
        self.c_epilogue(tc, " sc1")
        tc("s_branch L_c_done")

    def c_epilogue(self, st, sc):
        vL, ACC, P = 1, 16, 40
        st.nop(6)
        for r in range(8):
            st(f"v_pk_add_f32 {vr(ACC+2*r,2)}, {vr(ACC+2*r,2)}, v[12:13] op_sel_hi:[1,0]")
            if r % 4 == 3:
                for i in range(r - 3, r + 1): st(f"v_cvt_pk_bf16_f32 v{P+i}, v{ACC+2*i}, v{ACC+2*i+1}")
                st.vm(f"buffer_store_dwordx4 {vr(P+r-3,4)}, v{vL}, {srd(WS)}, s{sA} offen offset:{1024*(r//4)}{sc}")
        for r in range(8):
            st(f"v_dot2_f32_bf16 v{ACC+1}, v{P+r}, v{P+r}, {'0' if r == 0 else 'v%d' % (ACC+1)}")
        st(f"v_mul_f32 v{ACC}, -0.5, v12\ns_nop 1")
        st(f"v_permlane32_swap_b32 v{ACC}, v{ACC+1}\nv_add_f32 v{ACC}, v{ACC}, v{ACC+1}")
        st.vm(f"buffer_store_dword v{ACC}, v{vL}, {srd(WS)}, s{sE} offen{sc}")
        st.wait_vm()
        st.vm(f"buffer_store_dword v15, v14, {srd(WS)}, s{sF} offen{sc}")

    def e_setup(self, st):
        vL, vP, vA = 1, 2, (7, 8, 9, 10)
        st(f"s_lshr_b32 s{sT0}, s{sIDX}, 3\ns_lshl_b32 s{sT1}, s{sG}, 2\ns_add_u32 s{sT0}, s{sT0}, s{sT1}\ns_lshl_b32 s{sA}, s{sT0}, 1")
        st(f"s_mul_i32 s{sT0}, s{sA}, 114688\ns_mul_i32 s{sT1}, s{sW}, {28*1024}\ns_add_u32 s{sT0}, s{sT0}, s{sT1}")
        for p in range(4): st(f"s_add_u32 s{sP+p}, s{sT0}, {WS_HH + 7168*p}")
        st(f"s_lshr_b32 s{sT2}, s{sW}, 1\ns_mul_i32 s{sT0}, s{sT2}, 114688\ns_sub_u32 s{sT1}, 114688, s{sT0}")
        st(f"v_add_u32 v{vA[0]}, s{sT0}, v{vL}\nv_add_u32 v{vA[1]}, s{sT1}, v{vL}\nv_add_u32 v{vA[2]}, 4096, v{vA[0]}\nv_add_u32 v{vA[3]}, 4096, v{vA[1]}")
        st(f"v_bfe_u32 v{vP}, v0, 2, 1\nv_lshlrev_b32 v{vP}, 7, v{vP}\nv_and_b32 v14, 3, v0\nv_lshl_add_u32 v{vP}, v14, 2, v{vP}")
        st(f"v_lshrrev_b32 v14, 3, v0\nv_lshl_add_u32 v{vP}, v14, 28, v{vP}")
        st(f"s_lshl_b32 s{sT0}, s{sA}, 7\ns_lshl_b32 s{sT1}, s{sW}, 4\ns_add_u32 s{sB}, s{sT0}, s{sT1}\ns_add_u32 s{sB}, s{sB}, {WS_FLG4}")
        st(f"s_add_u32 s{sA}, s{sA}, s{sT2}")
        st(f"s_lshl_b32 s{sT0}, s{sA}, 15\ns_lshl_b32 s{sT1}, s{sW}, 13\ns_add_u32 s{sT0}, s{sT0}, s{sT1}\ns_add_u32 s{eO}, s{sT0}, {WS_O}")
        st(f"s_add_u32 s{eO+1}, s{eO}, 4096\ns_xor_b32 s{eO+2}, s{eO}, 0x8000\ns_xor_b32 s{eO+3}, s{eO+1}, 0x8000")
        st(f"s_and_b32 s{sT0}, s{sIDX}, 7\ns_lshl_b32 s{sT0}, s{sT0}, 1\ns_and_b32 s{sT1}, s{sW}, 1\ns_add_u32 s{sT0}, s{sT0}, s{sT1}")
        st(f"s_lshl_b32 s{sT1}, s{sA}, 15\ns_lshl_b32 s{sC}, s{sT0}, 11\ns_add_u32 s{sC}, s{sC}, s{sT1}\ns_add_u32 s{sC}, s{sC}, {WS_H}")
        st(f"s_lshl_b32 s{sD}, s{sT0}, 6\ns_add_u32 s{sD}, s{sD}, s{sT1}")
        st(f"s_lshl_b32 s{sF}, s{sA}, 12\ns_add_u32 s{sF}, s{sF}, {WS_ST}")
        st(f"v_and_b32 v15, 31, v0\nv_lshlrev_b32 v11, 4, v15\nv_lshlrev_b32 v14, 10, v15\nv_lshrrev_b32 v15, 5, v0\nv_lshl_add_u32 v14, v15, 4, v14")

    def helper_phase_de(self, st):
        vL, vP, vR = 1, 2, 3
        vWD, vWA, vWH, GU = 4, (12, 13), (5, 6), 192
        self.full_voffset(st, GU, 14)
        self.wd_addr(st, vWD, vWA, 14)
        LO, HI = slot8(5), slot8(12)
        st(f"s_lshl_b32 s{sE}, s{sW}, 11\ns_add_u32 s{sT0}, s{sE}, {LO}")
        st(f"v_add_u32 v{vWA[0]}, s{sT0}, v{vWA[0]}\nv_add_u32 v{vWA[1]}, s{sT0}, v{vWA[1]}")
        st(f"v_add_u32 v{vWH[0]}, {HI - LO}, v{vWA[0]}\nv_add_u32 v{vWH[1]}, {HI - LO}, v{vWA[1]}")
        where = {}
        def dma(j, i):
            where[j] = i
            self.wd_dma(st, j, slot8(i), vWD, sE)
        def read(j, reg):
            i = where[j]
            if i < 12: self.wd_read(st, j, reg, vWA, slot8(i) - LO)
            else: self.wd_read(st, j, reg, vWH, slot8(i) - HI)
        wreg = {j: self.WDR + 8 * j for j in range(18)}
        def rd(js):
            st.wait_vm(("wd", js[-1]))
            for j in js: read(j, wreg[j])
            st.wait_ds()
        vPG, vLD, vN, CK = 200, 201, 202, 204
        st(f"s_lshl_b32 s{sT0}, s{sW}, 2\ns_add_u32 s{sT0}, s{sT0}, {LAND}\nv_mov_b32 v{vLD}, s{sT0}\nv_mov_b32 v{vPG}, {PROG}")
        def prog(n):
            if n in (3, 5, 7, 9, 20): self.stamp(st, "h", f"arr{n}", 4)
            self.lds_spin(st, f"L_pg{n}", vPG, CK, n)
        def land(tag, n):
            st(f"v_mov_b32 v{vN}, {n}")
            st.wait_vm(tag)
            st.ds(f"ds_write_b32 v{vLD}, v{vN}")
        self.e_setup(st)
        st(f"s_setprio {self.c.dprio}")
        self.pace = self.c.pace
        full = lambda u: self.full_unit(st, u, GU)
        self.lds_spin(st, "L_pg1", vPG, CK, 1)
        for op in self.c.dplan.split():
            a = op[1:]
            if op[0] == "F": full(int(a))
            elif op[0] == "W": dma(*map(int, a.split(">")))
            elif op[0] == "P": prog(int(a))
            elif op[0] == "L": land(("full", int(a) - 1), int(a))
            elif op[0] == "R": rd(list(map(int, a.split(","))))
            elif op == "T":
                st(f"s_setprio {self.c.tprio}")
                self.pace = self.c.pace2
        self.stamp(st, "h", "Dhelp_end", 13)
        ACC, vA = 192, (7, 8, 9, 10)
        free = [16, 24, 32, 40]
        areg = {}
        def ldA(j):
            p, t = j % 4, j // 4
            if self.c.fake & 2: t = 0
            areg[j] = r = free.pop(0)
            for mt in range(2):
                if t < 2:
                    st.vm(f"buffer_load_dwordx4 {vr(r+4*mt,4)}, v{vL}, {srd(WS)}, s{eO + 2*mt + p//2} offen offset:{2048*(p % 2) + 1024*t} sc1", ("a", j))
                    continue
                st.vm(f"buffer_load_dwordx4 {vr(r+4*mt,4)}, v{vA[mt + (2 if t >= 4 else 0)]}, {srd(WS)}, s{sP+p} offen offset:{1024*(t % 4)} sc1", ("a", j))
        def gate(t):
            tc = self.near
            st.wait_vm(("poll", t))
            self.notready(st, vR, t + 1)
            st(f"s_and_b64 vcc, vcc, 0xff\ns_cbranch_scc1 L_x4s{t}")
            st.label(f"L_x4r{t}")
            tc.label(f"L_x4s{t}")
            if self.c.diag & 8: tc(f"s_bitset1_b32 s{CODE}, {t}")
            self.poll(tc, f"L_x4p{t}", vP, f"s{sB}", vR, t + 1, lanes=8)
            tc(f"s_branch L_x4r{t}")
        stg = self.stages()
        f0 = stg[0][0]
        pollat = {p: c for c, p in stg[1:]}
        gateat = {4 * stg[i][0]: stg[i + 1][0] for i in range(len(stg) - 1)}
        if self.c.diag & 8: st(f"s_mov_b32 s{CODE}, 0")
        st(f"s_setprio {self.c.pprio}")
        self.poll(st, "L_x4", vP, f"s{sB}", vR, f0, lanes=8)
        if self.c.diag & 8: st(f"s_sub_u32 s{CODE}, {SPIN}, s{sCNT}\ns_lshl_b32 s{CODE}, s{CODE}, 8")
        st(f"s_setprio {self.c.eprio}")
        self.stamp(st, "h", "x4ok", 13)
        for j in range(4): ldA(j)
        nextA, nextW, DEPTH = 4, 18, self.c.edepth
        hres = None
        DEF0, LASTG = 20, 24
        mm = lambda j, a: st(mfma32(ACC + 16 * a, wreg[j] + 4 * (a & 1), areg[j] + 4 * (a >> 1), "0" if j == 0 else None))
        def more(j):
            nonlocal nextA, nextW, hres
            if nextW < 28 and nextW <= j + 4 and free:
                wreg[nextW] = free.pop(0); read(nextW, wreg[nextW]); nextW += 1
            elif nextA < 28 and nextA <= j + DEPTH and free:
                if nextA in gateat: gate(gateat[nextA] - 1)
                if nextA in pollat: st.vm(f"buffer_load_dword v{vR}, v{vP}, {srd(WS)}, s{sB} offen sc1", ("poll", pollat[nextA] - 1))
                ldA(nextA); nextA += 1
            elif j >= 8 and hres is None and len(free) > 3:
                hres = [free.pop(0) for _ in range(3)]
                for i in range(2):
                    st.vm(f"buffer_load_dwordx4 {vr(hres[0]+4*i,4)}, v{vL}, {srd(WS)}, s{sC} offen offset:{1024*i} sc1")
                st.vm(f"buffer_load_dword v15, v11, {srd(WS)}, s{sF} offen sc1", "h")
        resops = []
        for j in range(LASTG):
            st.wait_vm(("a", j))
            if j >= 18: st.wait_ds(("wdr", j))
            if j % 4 == 0: self.stamp(st, "h", f"Et{j//4}", 8)
            if j == 16:
                st.wait_vm("h")
                res = lambda r: hres[1 + r // 8] + r % 8
                for r in range(8):
                    resops += [f"v_lshlrev_b32 v{res(2*r)}, 16, v{hres[0]+r}", f"v_and_b32 v{res(2*r+1)}, 0xffff0000, v{hres[0]+r}"]
                resops += [f"v_add_f32 v{res(r)}, v15, v{res(r)}" for r in range(16)]
            for a in ((0, 2, 3, 1) if j < DEF0 else (2, 3, 1)):
                mm(j, a)
                if j == DEF0 and a == 2: st.bar("BE1")
                if a != 1: more(j)
                for _ in range(2):
                    if resops: st(resops.pop(0))
            if j < DEF0: free += [wreg[j], areg[j]]
            if j == DEF0 - 1: free.append(hres[0])
            more(j)
        assert nextA == 28 and nextW == 28 and not resops, (nextA, nextW, len(resops))
        BUF = RING
        vX = (5, 6, 12, 13)
        xaddr = [f"s_xor_b32 s{sT0}, s{sW}, {a}\ns_mul_i32 s{sT0}, s{sT0}, 12288\ns_add_u32 s{sT0}, s{sT0}, {BUF}\nv_add_u32 v{vX[a]}, s{sT0}, v{vL}" for a in range(4)]
        st.wait_ds(("wdr", 27))
        self.stamp(st, "h", "Et6", 8)
        wr = lambda a, q: st.ds(f"ds_write_b128 v{vX[a]}, {vr(ACC+16*a+4*q,4)} offset:{4096*(a-1) + 1024*q}")
        seq = [(j, 1) for j in range(LASTG, 28)] + [(j, 2) for j in range(LASTG, 28)] + [(j, 3) for j in range(LASTG, 28)] + [(j, 0) for j in range(DEF0, 28)]
        after = {0: [xaddr[1]], 1: [xaddr[2]], 2: [xaddr[3]], 3: [xaddr[0]], 6: ["s_nop 7"],
                 7: [(1, 0), (1, 1)], 8: [(1, 2), (1, 3)], 10: ["s_nop 3"], 11: [(2, 0), (2, 1)], 12: [(2, 2), (2, 3)],
                 14: ["s_nop 4", (3, 0), (3, 1)], 15: [(3, 2), (3, 3)]}
        RD = ACC + 16
        for i, (j, a) in enumerate(seq):
            if a == 1: st.wait_vm(("a", j))
            mm(j, a)
            for op in after.get(i, []): st(op) if isinstance(op, str) else wr(*op)
            if i == 17:
                st.wait_ds()
                st.bar("BE2")
                for q in range(4):
                    for b in range(3):
                        st.ds(f"ds_read_b128 {vr(RD+16*b+4*q,4)}, v{vX[0]} offset:{4096*b + 1024*q}", ("r", q))
        self.stamp(st, "h", "Emfma_end", 13)
        for q in range(4):
            st.wait_ds(("r", q))
            for r in range(4 * q, 4 * q + 4):
                st(f"v_add_f32 v{RD+r}, v{RD+r}, v{RD+16+r}\nv_add_f32 v{res(r)}, v{res(r)}, v{RD+32+r}")
            for r in range(4 * q, 4 * q + 4, 2):
                st(f"v_pk_add_f32 {vr(RD+r,2)}, {vr(RD+r,2)}, {vr(res(r),2)}")
            if q % 2 == 1:
                b = RD + 16 + 4 * (q // 2)
                for r in range(4 * q - 4, 4 * q + 4, 2):
                    st(f"v_pk_add_f32 {vr(RD+r,2)}, {vr(RD+r,2)}, {vr(ACC+r,2)}")
                for r in range(4):
                    st(f"v_cvt_pk_bf16_f32 v{b+r}, v{RD+4*q-4+2*r}, v{RD+4*q-3+2*r}")
                st(f"s_nop 1\nv_permlane32_swap_b32 v{b}, v{b+2}\nv_permlane32_swap_b32 v{b+1}, v{b+3}")
                st.vm(f"buffer_store_dwordx4 {vr(b,4)}, v14, {srd(OUT)}, s{sD} offen offset:{32*(q//2)}")
        self.pad(st, 0)
        self.stamp(st, "h", "end", 9)
        if self.c.diag & 8:
            self.nstamp["h"].append("gates")
            st(f"s_waitcnt lgkmcnt(0)\ns_mov_b32 s{sSTAMP + 2*(len(self.nstamp['h'])-1)}, s{CODE}")
        self.dump_stamps(st, "h")

    def build(self):
        p, m, h = Stream(), Stream(), Stream()
        self.prologue(p)
        m.label("L_main")
        self.main_phase_a(m); self.main_attention(m); self.main_publish_o(m); self.main_phase_d(m)
        ms = Stream()
        self.sc, self.sfx = " sc1", "_s"
        ms.label("L_main_slow")
        self.main_publish_o(ms); self.main_phase_d(ms)
        self.sc, self.sfx = "", ""
        self.helper_phase_a(h); self.helper_attention(h); self.helper_phase_c(h); self.helper_phase_de(h)
        assert m.nbar + 2 == h.nbar, (m.nbar, h.nbar)
        ref = open("hdr.ref").read().splitlines()
        hdr = [l for l in ref if l.startswith(";") and "@launch" not in l]
        o = "\n".join(hdr) + f"\n; @launch grid=(256,1,1) block=(512,1,1) lds={LDS_BYTES}\n"
        o += f'.amdgcn_target "amdgcn-amd-amdhsa--gfx950"\n.text\n.globl {NAME}_kernel\n.p2align 8\n.type {NAME}_kernel,@function\n{NAME}_kernel:\n'
        o += p.text() + "\n" + h.text() + "\nL_end:\n    s_endpgm\n" + self.near.text() + "\n" + m.text() + "\nL_codeend:\n" + self.tailcode.text() + "\n" + ms.text() + "\n"
        o += f""".section .rodata,"a"
.p2align 6
.amdhsa_kernel {NAME}_kernel
  .amdhsa_next_free_vgpr 256
  .amdhsa_next_free_sgpr 102
  .amdhsa_accum_offset 256
  .amdhsa_group_segment_fixed_size 0
  .amdhsa_kernarg_size 96
  .amdhsa_user_sgpr_count 2
  .amdhsa_user_sgpr_kernarg_segment_ptr 1
  .amdhsa_system_sgpr_workgroup_id_x 1
.end_amdhsa_kernel
"""
        return o

if __name__ == "__main__":
    import hazcheck, json
    cfg = Cfg()
    out = sys.argv[1]
    for a in sys.argv[2:]:
        k, v = a.split("=")
        setattr(cfg, k, v if k in ("sched", "dplan", "gates") else int(v))
    g = Gen(cfg)
    txt = g.build()
    open(out, "w").write(txt)
    json.dump(dict(g.nstamp, cyc=cfg.cyc) if g.nstamp else {}, open(out + ".stamps.json", "w"))
    errs = hazcheck.check(txt)
    for e in errs[:40]: print(e)
    print(len(errs), "hazard findings;", len(txt.splitlines()), "lines")
```

```python
import sys, struct
from emit import Stream, vr, sr

NAME = "sequential_preLN__grouped_kv_mqa__glu_gated_glu__prompt"

def f32(x): return hex(struct.unpack("<I", struct.pack("<f", x))[0])

WS_KV, WS_KVL, WS_FLG1, WS_FLGL, WS_FLG2, WS_FLG3, WS_FLG4 = 0x0, 0x20000, 0x40000, 0x48000, 0x50000, 0x52000, 0x54000
WS_WB, WS_ST, WS_DIAG, WS_PM, WS_O, WS_H, WS_HH, WS_SIZE = 0x58000, 0x60000, 0xA0000, 0xC0000, 0x100000, 0x300000, 0x500000, 0xC00000
TILE, RING, FS, ODD = 2080, 0, 33280, 57856
XN, WKV, WQST, NWQ = 33280, 16640, 67072, 23
LDS_BYTES = 163840
PML, WBL, MISC = 156160, 163072, 163584
PROG, LAND, XC, WC = MISC + 160, MISC + 176, MISC + 192, MISC + 208
STGW = 14336
STG = WBL - 4 * STGW
def slot8(i): return RING + 8192 * i if i < 4 else FS + 8192 * (i - 4)
FSLOT = (4, 5, 6, 0, 1, 2, 3, 4, 5, 7, 6, 0, 1, 2, 3, 4)
def tile_of(c, i): return (i if i < c else i + 4) if i < 3 else c + i - 3
X, WQ, WKVS, WO, WG, WU, WD, OUT, DBG, WS = 4, 8, 12, 16, 20, 24, 28, 32, 36, 40
sG, sIDX, sRB, sCB, sW, sXCC = 44, 45, 46, 47, 48, 49
sT0, sT1, sT2, sT3, sCNT = 50, 51, 52, 53, 54
sA, sB, sC, sD, sE = 55, 56, 57, 58, 59
sONE, sLO, sHI = 60, 61, 62
sF = 63
CODE = 64
sP = 68
mO, mPM, mF2, mF3, mF4, mST, mHH0, mHH1, mRB, mCHK, mHO, mKG, mKL, mFG, mFL = range(20, 35)
MOUT = WO
eO = WQ
sSTAMP = 76
SPIN = 1 << 17
SPINL = 96
sCOLO = 3
WS_EPOCH = 0x48400
sEP = DBG
sEP1 = DBG + 1
def srd(b): return sr(b, 4)

class Cfg:
    diag = False
    tail = 7
    force_fallback = False
    force_slow = False
    npre = 6
    nearly = 80
    tq = 8
    ndeep = 12
    sec = 2
    wo_early = 2
    lfat = 4
    gfat = 5
    jx = 8
    pace = 4
    lag = 20
    be1 = 0
    kv2 = 0
    x1late = 0
    align = 0
    lalign = 6
    pmat = 2
    g2early = 1
    stat = 0
    d2 = 0
    d3 = 32
    nlate = 0
    lateat = 8
    wafter = 0
    wper = 4
    la = 7
    cfull = 2
    pprio = 2
    fexec = 0
    dplan = ("P1 F3 F4 F5 F6 L5 P2 F7 P3 F8 L7 F9 P4 F10 L9 W10>8 P5 F11 W11>9 P6 F12 P7 F13 W12>10 R10,11 W13>8 W14>9 P8 F14 W15>11 "
             "P9 F15 T W16>12 R12,13,14 W17>8 L16 W18>9 W19>10 R15,16 W20>11 W21>12 R17 W22>8 P20 W23>13 W24>14 W25>15 W26>16 W27>17")
    gates = "2,4:1:4,7:8:11"
    lagp = 10
    tprio = 0
    eprio = 0
    fake = 0
    cyc = 0
    dprio = 0
    pace2 = 5
    loose = 0
    hprio = 0
    nt = 0
    swap = 1
    abatch = 1
    edepth = 5
    etile = 5
    sched = "Tkv S6|R S14 X Tmd Tmg0 Tmg1|R S6|R S14 O0^2 F0|R S12 O2^2 O4 R|O8^6 O10^6 Tx|O12^6 O14^6 O6 Cx|F1 F2 Cf B K"
    padto = 0
    padat = 0
    padwg = -1
    probe = ''
    outf = ''
    hhplain = 2

def mfma32(d, a, b, c=None):
    return f"v_mfma_f32_32x32x16_bf16 {vr(d,16)}, {vr(a,4)}, {vr(b,4)}, {vr(d,16) if c is None else c}"
def mfma16(d, a, b, c=None):
    return f"v_mfma_f32_16x16x32_bf16 {vr(d,4)}, {vr(a,4)}, {vr(b,4)}, {vr(d,4) if c is None else c}"
def smf(d, a, b, idx):
    return f"v_smfmac_f32_32x32x32_bf16 {vr(d,16)}, {vr(a,4)}, {vr(b,8)}, v{idx}"

class Gen:
    def __init__(self, cfg):
        self.c = cfg
        self.tailcode = Stream()
        self.near = Stream()
        self.nstamp = {}

    sc, sfx = "", ""

    def stamp(self, st, role, name, level=1):
        if self.c.probe and not self.sc:
            r, a, b, kind = self.c.probe.split(",")
            op = "s_memtime" if kind == "c" else "s_memrealtime"
            if role == r and name == "start": st("s_memrealtime s[100:101]")
            if role == r and name == a: st(f"{op} s[96:97]")
            if role == r and name == b: st(f"{op} s[94:95]")
            if role == r and name == "end":
                if self.c.padwg >= 0: st(f"s_cmp_lg_u32 s2, {self.c.padwg}\ns_cbranch_scc1 L_prbx")
                st("s_waitcnt lgkmcnt(0)\ns_sub_u32 s94, s94, s96")
                st("s_lshr_b32 s94, s94, 1" if kind == "c" else "s_mul_i32 s94, s94, 10")
                st("s_add_u32 s94, s94, 6000")
                st.label("L_prb")
                st("s_memrealtime s[98:99]\ns_waitcnt lgkmcnt(0)\ns_sub_u32 s98, s98, s100\ns_cmp_lt_u32 s98, s94\ns_cbranch_scc1 L_prb")
                st.label("L_prbx")
        if not (self.c.diag & level) or self.sc: return
        l = self.nstamp.setdefault(role, [])
        i = len(l); l.append(name)
        assert i < 13
        st(f"{'s_memtime' if name.startswith('cyc') or self.c.cyc else 's_memrealtime'} {sr(sSTAMP + 2*i, 2)}")

    def dump_stamps(self, st, role):
        if not self.c.diag or self.sc: return
        n = len(self.nstamp[role])
        st("s_waitcnt lgkmcnt(0)")
        st(f"s_lshl_b32 s{sT0}, s2, 3\ns_add_u32 s{sT0}, s{sT0}, s{sW}")
        st(f"s_add_u32 s{sT0}, s{sT0}, {4 if role == 'h' else 0}\ns_lshl_b32 s{sT0}, s{sT0}, 6\ns_add_u32 s{sT0}, s{sT0}, {WS_DIAG}")
        for i in range(n):
            st(f"v_mov_b32 v1, s{sSTAMP + 2*i}")
            st(f"buffer_store_dword v1, off, {srd(WS)}, s{sT0} offset:{4*i}")
        st("s_waitcnt vmcnt(0)")

    def notready(self, st, vdst, need):
        st(f"v_subrev_u32 v{vdst}, s{sEP}, v{vdst}")
        st(f"v_subrev_u32 v{vdst}, {need}, v{vdst}")
        st(f"v_cmp_lt_u32 vcc, {15 - need}, v{vdst}")

    def poll(self, st, name, vaddr, soff, vdst, need, exact=False, lanes=64):
        st(f"s_mov_b32 s{sCNT}, {SPIN}")
        if lanes < 64: st(f"s_bfm_b64 exec, {lanes}, 0")
        st.label(name)
        st(f"buffer_load_dword v{vdst}, v{vaddr}, {srd(WS)}, {soff} offen sc1")
        st.wait_vm()
        if exact: st(f"v_cmp_ne_u32 vcc, s{sEP1}, v{vdst}")
        else: self.notready(st, vdst, need)
        st(f"s_cbranch_vccz {name}_ok")
        st(f"s_sub_u32 s{sCNT}, s{sCNT}, 1")
        st(f"s_cbranch_scc0 {name}")
        st.label(name + "_ok")
        if lanes < 64: st("s_mov_b64 exec, -1")

    def pad(self, st, at):
        if not self.c.padto or self.c.padat != at: return
        if self.c.padwg >= 0: st(f"s_cmp_lg_u32 s2, {self.c.padwg}\ns_cbranch_scc1 L_padx")
        st.label("L_pad")
        st("s_memrealtime s[98:99]\ns_waitcnt lgkmcnt(0)\ns_sub_u32 s98, s98, s100")
        st(f"s_cmp_lt_u32 s98, {self.c.padto * 100}\ns_cbranch_scc1 L_pad")
        st.label("L_padx")

    def lds_min(self, st, r, need):
        st(f"v_min3_u32 v{r}, v{r}, v{r+1}, v{r+2}\nv_min_u32 v{r}, v{r}, v{r+3}\nv_cmp_gt_u32 vcc, {need}, v{r}")

    def lds_spin(self, st, name, va, r, need, sleep=0):
        st(f"s_mov_b32 s{sCNT}, {SPIN * 16}")
        st.label(name)
        st(f"ds_read_b128 {vr(r,4)}, v{va}")
        st.wait_ds()
        self.lds_min(st, r, need)
        st(f"s_cbranch_vccz {name}_ok")
        if sleep: st(f"s_sleep {sleep}")
        st(f"s_sub_u32 s{sCNT}, s{sCNT}, 1\ns_cbranch_scc0 {name}")
        st.label(name + "_ok")

    def validate(self, st, name, regs, tmp, reload, inline=False):
        def test(o):
            r = list(regs)
            while len(r) > 1:
                if len(r) > 2: o(f"v_max3_u32 v{tmp}, v{r[0]}, v{r[1]}, v{r[2]}"); r = [tmp] + r[3:]
                else: o(f"v_max_u32 v{tmp}, v{r[0]}, v{r[1]}"); r = [tmp]
            o(f"v_cmp_eq_u32 vcc, -1, v{r[0]}")
        name += self.sfx
        test(st)
        if inline:
            st(f"s_cbranch_vccz {name}r")
            o = st
        else:
            st(f"s_cbranch_vccnz {name}s")
            st.label(name + "r")
            o = self.tailcode if self.sc else self.near
            o.label(name + "s")
        o(f"s_mov_b32 s{sCNT}, {SPIN}")
        o.label(name + "l")
        if self.c.diag & 512 and not self.sc: o(f"s_add_u32 s{CODE}, s{CODE}, {1 if name[2] == 'g' else 256 if name == 'L_a0' else 65536}")
        for l in reload: o(l)
        o("s_waitcnt vmcnt(0)")
        test(o)
        o(f"s_cbranch_vccz {name}r\ns_sub_u32 s{sCNT}, s{sCNT}, 1\ns_cbranch_scc0 {name}l")
        if inline: st.label(name + "r")
        else: o(f"s_branch {name}r")

    def epoch_load(self, st):
        st(f"s_load_dword s{sEP}, {sr(WS,2)}, {WS_EPOCH}")

    def epoch_make(self, st):
        st(f"s_and_b32 s{sEP}, s{sEP}, 0xfffffff0\ns_add_u32 s{sEP}, s{sEP}, 0x9e3779b0\ns_add_u32 s{sEP1}, s{sEP}, 1")

    def srds(self, st, lst):
        for b, n in lst: st(f"s_mov_b32 s{b+2}, {n}\ns_mov_b32 s{b+3}, 0x20000")

    def prologue(self, st):
        st(f"s_load_dwordx2 {sr(X,2)}, s[0:1], 0\ns_lshr_b32 s{sT2}, s2, 1\ns_and_b32 s{sT2}, s{sT2}, 8\ns_add_u32 s{sT2}, s{sT2}, 16")
        st(f"s_load_dwordx2 {sr(WKVS,2)}, s[0:1], s{sT2}\ns_load_dwordx2 {sr(WS,2)}, s[0:1], 88")
        st("s_cmpk_ge_u32 s2, 256\ns_cbranch_scc1 L_end")
        st(f"s_getpc_b64 {sr(CODE,2)}")
        st.label("L_pc")
        st(f"v_readfirstlane_b32 s{sT0}, v0\ns_lshr_b32 s{sIDX}, s2, 3\ns_lshl_b32 s{sT1}, s{sIDX}, 11")
        st(f"s_mov_b32 s{CODE+2}, L_codeend-L_pc\ns_mov_b32 s{CODE+3}, 0x20000\nv_lshrrev_b32 v1, 5, v0\nv_lshlrev_b32 v1, 7, v1")
        st(f"buffer_load_dword v255, v1, {srd(CODE)}, s{sT1} offen")
        st(f"s_and_b32 s{sG}, s2, 7\ns_lshr_b32 s{sT1}, s{sIDX}, 2\ns_lshl_b32 s{sRB}, s{sG}, 3\ns_add_u32 s{sRB}, s{sRB}, s{sT1}")
        st(f"s_and_b32 s{sCB}, s{sIDX}, 3\ns_bfe_u32 s{sW}, s{sT0}, 0x20006\nv_and_b32 v0, 63, v0")
        st(f"s_cmpk_lt_u32 s{sT0}, 256\ns_cbranch_scc1 L_main")

    def main_phase_a(self, st):
        self.stamp(st, "m", "start", 2047)
        vD, vTR, vXB, vXC = 2, 3, 4, 5
        XR, ACC = 112, 144
        st.vq.append((None, False))
        st(f"s_load_dwordx2 {sr(WQ,2)}, s[0:1], 8\ns_load_dwordx2 {sr(MOUT,2)}, s[0:1], 72")
        st(f"v_and_b32 v12, 15, v0\nv_lshlrev_b32 v12, 2, v12\nv_add_u32 v12, {PROG}, v12\nv_mov_b32 v13, 0\nds_write_b32 v12, v13")
        self.srds(st, ((WQ, 524288), (WKVS, 16384), (WS, WS_SIZE)))
        st(f"s_mov_b32 s{sONE}, 0x3f803f80")
        st(f"v_lshrrev_b32 v10, 2, v0\nv_lshlrev_b32 v10, 10, v10\nv_and_b32 v11, 3, v0\nv_lshlrev_b32 v17, 7, v0\nv_lshlrev_b32 v11, 4, v11")
        st(f"s_lshl_b32 s{sT0}, s{sCB}, 8\ns_lshl_b32 s{sT1}, s{sW}, 6\ns_add_u32 s{sT0}, s{sT0}, s{sT1}")
        st(f"v_add3_u32 v{vD}, v10, v11, s{sT0}\nv_lshlrev_b32 v{self.vK}, 4, v0")
        st(f"s_mul_i32 s{sA}, s{sW}, {NWQ*1024}\ns_add_u32 s{sA}, s{sA}, {WQST}")
        st(f"s_lshr_b32 s{sB}, s{sIDX}, 2\ns_lshl_b32 s{sC}, s{sB}, 16")
        st(f"s_lshl_b32 s{sT0}, s{sB}, 1\ns_and_b32 s{sT1}, s{sCB}, 1\ns_add_u32 s{sT0}, s{sT0}, s{sT1}\ns_lshl_b32 s{sT0}, s{sT0}, 2\ns_add_u32 s{sT0}, s{sT0}, s{sW}\ns_lshl_b32 s{sT0}, s{sT0}, 8")
        st(f"s_lshl_b32 s{sT1}, s{sIDX}, 2\ns_add_u32 s{sT1}, s{sT1}, s{sW}\ns_lshl_b32 s{sT2}, s{sT1}, 7\ns_lshl_b32 s{sT1}, s{sT1}, 12")
        st(f"s_lshl_b32 s{sT3}, s{sG}, 14\ns_add_u32 s{sT2}, s{sT2}, s{sT3}\ns_add_u32 s{sT2}, s{sT2}, {WS_KVL}\ns_lshl_b32 s{sT3}, s{sG}, 7\ns_add_u32 s{sT3}, s{sT3}, {WS_FLGL}")
        st("s_waitcnt lgkmcnt(0)")
        self.epoch_load(st)
        st.bar("B00")
        st("s_mov_b64 exec, 3")
        st.vm(f"buffer_load_dword v254, v17, {srd(WKVS)}, s{sT0} offen")
        st("s_mov_b64 exec, 1")
        st.vm(f"buffer_load_dword v253, off, {srd(WS)}, s{sT2} sc1")
        st.vm(f"buffer_load_dword v252, off, {srd(WS)}, s{sT3} sc1")
        st(f"s_bfm_b64 exec, {self.c.tq}, 0")
        st.vm(f"buffer_load_dword v248, v17, {srd(WQ)}, s{sT1} offen")
        st("s_mov_b64 exec, -1")
        st(f"v_lshrrev_b32 v10, 5, v0\nv_lshlrev_b32 v11, 9, v10\nv_bfe_u32 v13, v0, 2, 2\nv_lshl_add_u32 v11, v13, 6, v11")
        st(f"v_bfe_u32 v13, v0, 4, 1\nv_lshl_add_u32 v11, v13, 5, v11\nv_and_b32 v13, 3, v0\nv_lshl_add_u32 v11, v13, 3, v11")
        st(f"v_add_u32 v{vTR}, s{sA}, v11")
        st(f"v_mul_u32_u24 v11, 528, v10\nv_and_b32 v13, 31, v0\nv_lshl_add_u32 v11, v13, 4, v11\nv_add_u32 v{vXB}, {XN}, v11")
        st(f"v_mov_b32 v18, {XC}\nv_lshlrev_b32 v16, 2, v0")
        self.kv_addr(st)
        late = Stream()
        self.main_scalars(st, late)
        self.attn_setup(late)
        for l in late.lines[:self.c.nearly]: st(l)
        late.lines = late.lines[self.c.nearly:]
        st("s_waitcnt lgkmcnt(0)")
        self.epoch_make(st)
        st(f"s_getreg_b32 s{sXCC}, hwreg(HW_REG_XCC_ID, 0, 4)\ns_add_u32 s{sXCC}, s{sXCC}, s{sEP}")
        st.bar("B0")
        self.stamp(st, "m", "B0", 64)
        def dma(j):
            st(f"s_add_u32 m0, s{sA}, {(j % NWQ)*1024}")
            st(f"s_xor_b32 s{sT1}, s{sC}, {j*16384}")
            st.vm(f"buffer_load_dwordx4 v{vD}, {srd(WQ)}, s{sT1} offen lds", ("wq", j))
        nd = self.c.npre
        for j in range(nd): dma(j)
        self.stamp(st, "m", "pre", 64)
        st(f"s_cmp_gt_u32 s{sW}, {self.c.kv2}\ns_cbranch_scc1 L_nokv")
        self.kv_job(st)
        st.label("L_nokv")
        st.vq += [(None, True)] * 2
        fill = [f"v_mov_b32 v{self.vVAL}, s{sEP1}"] + late.lines
        JX, NWR = self.c.jx, 20
        wreg = lambda j: 168 + 4 * (j % NWR)
        nx = nm = 0
        def rdx():
            nonlocal nx
            if nx % 4 == 0:
                st(f"s_xor_b32 s{sT1}, s{sB}, {nx//4}\ns_mul_i32 s{sT1}, s{sT1}, 4224\nv_add_u32 v{vXC}, s{sT1}, v{vXB}")
            st.ds(f"ds_read_b128 {vr(XR+4*(nx % 8),4)}, v{vXC} offset:{(nx % 4)*1056}", ("x", nx)); nx += 1
        def mm():
            nonlocal nm
            st.wait_ds(("x", nm)); st.wait_ds(("w", nm))
            st(mfma32(ACC, wreg(nm), XR + 4 * (nm % 8), "0" if nm == 0 else None))
            nm += 1
            if nx < 32: rdx()
            for _ in range(2):
                if fill: st(fill.pop(0))
            if nm in (9, 20): self.stamp(st, "m", f"q{nm}", 64)
        for j in range(32):
            if j == JX:
                self.lds_spin(st, "L_xc", 18, 20, 2, sleep=1)
                self.stamp(st, "m", "B1m", 65)
                for _ in range(4): rdx()
            assert j - nm < NWR
            if j == self.c.lfat: self.kv_flag(st, 0, nd - self.c.npre + 1)
            if j == self.c.gfat: self.kv_flag(st, 1, nd - self.c.npre + 1)
            st.wait_vm(("wq", j))
            o = (j % NWQ) * 1024
            st.ds(f"ds_read_b64_tr_b16 {vr(wreg(j),2)}, v{vTR} offset:{o}")
            st.ds(f"ds_read_b64_tr_b16 {vr(wreg(j)+2,2)}, v{vTR} offset:{o+256}", ("w", j))
            if nd < 32 and nd - NWQ <= j - 2:
                if nd >= NWQ: st.wait_ds(("w", nd - NWQ))
                dma(nd); nd += 1
                if j >= self.c.gfat and nd < min(NWQ, j + self.c.ndeep): dma(nd); nd += 1
            if j >= JX:
                for _ in range(2):
                    if nm < j - 1: mm()
        while nm < 32: mm()
        assert nd == 32
        assert not fill
        self.stamp(st, "m", "Qdone", 65)

    S, Q, O, KVB, vIDX, vK, vV0, vV1 = (16, 32), 48, (56, 72), (88, 100), 6, 7, 8, 9

    def attn_setup(self, st):
        st(f"v_mov_b32 v{self.vIDX}, 0xdddddddd")
        st("v_and_b32 v12, 31, v0\nv_lshrrev_b32 v13, 5, v0\nv_lshl_add_u32 v13, v13, 4, v12\nv_lshlrev_b32 v13, 4, v13")
        st("v_and_b32 v14, 27, v0\nv_cmp_eq_u32 vcc, 16, v14\nv_mov_b32 v14, 2064\nv_mov_b32 v15, 2048")
        st("v_cndmask_b32 v14, v14, v15, vcc")
        st("v_cmp_gt_u32 vcc, 16, v12\nv_add_u32 v15, 1024, v13\nv_add_u32 v13, 1536, v13")
        st(f"v_cndmask_b32 v{self.vV0}, v14, v15, vcc\nv_cndmask_b32 v{self.vV1}, v14, v13, vcc")
        st(f"v_mov_b32 v10, {MISC}")
        for r in range(32): st(f"v_mov_b32 v{self.O[0]+r}, 0")
        for r in range(8): st(f"v_mov_b32 v{self.S[1]+8+r}, 0")
        for r in range(4): st(f"v_mov_b32 v{self.KVB[1]+8+r}, 0")

    vFZ, vVAL, vOW, vWB, vL4, vPW = 160, 161, 162, 163, 164, 165

    def main_scalars(self, st, late):
        st(f"s_lshl_b32 s{sT0}, s{sRB}, 4\ns_lshl_b32 s{sT1}, s{sCB}, 2\ns_add_u32 s{sT0}, s{sT0}, s{sT1}\ns_add_u32 s{sT2}, s{sT0}, s{sW}")
        st(f"s_lshl_b32 s{mO}, s{sT2}, 11\ns_add_u32 s{mO}, s{mO}, {WS_O}")
        st(f"s_lshl_b32 s{mPM}, s{sT2}, 8\ns_add_u32 s{mPM}, s{mPM}, {WS_PM}")
        st(f"s_lshr_b32 s{sT0}, s{sIDX}, 4\ns_lshl_b32 s{sT1}, s{sG}, 1\ns_add_u32 s{sT1}, s{sT1}, s{sT0}\ns_lshl_b32 s{sT1}, s{sT1}, 2\ns_add_u32 s{mRB}, s{sT1}, s{sW}")
        st(f"s_lshl_b32 s{sT1}, s{mRB}, 15")
        for i in range(4): st(f"s_add_u32 s{sP+i}, s{sT1}, {8192*i}")
        self.srds(st, ((MOUT, 2097152),))
        st(f"s_lshl_b32 s{mST}, s{mRB}, 12\ns_add_u32 s{mST}, s{mST}, {WS_ST}")
        st(f"s_and_b32 s{sT0}, s{sIDX}, 15\ns_mul_i32 s{mHH0}, s{mRB}, 114688\ns_mul_i32 s{sT1}, s{sT0}, 7168")
        st(f"s_add_u32 s{mHH0}, s{mHH0}, s{sT1}\ns_add_u32 s{mHH0}, s{mHH0}, {WS_HH}\ns_add_u32 s{mHH1}, s{mHH0}, 4096")
        st(f"s_lshl_b32 s{mHO}, s{sT0}, 11\ns_add_u32 s{mHO}, s{mHO}, s{sP}\ns_add_u32 s{mHO}, s{mHO}, {WS_O}")
        st(f"s_lshl_b32 s{sT1}, s{mRB}, 7\ns_lshl_b32 s{sT0}, s{sT0}, 2\ns_add_u32 s{mF4}, s{sT1}, s{sT0}\ns_add_u32 s{mF4}, s{mF4}, {WS_FLG4}")
        st(f"s_mov_b32 s{mCHK}, 0")
        st(f"s_lshl_b32 s{sD}, s{sW}, 11\ns_lshl_b32 s{sE}, s{sW}, 7\ns_add_u32 s{sE}, s{sE}, {WBL}")
        late(f"v_cmp_eq_u32 vcc, 0, v0\nv_mov_b32 v{self.vFZ}, 0x80000000\nv_add_u32 v{self.vOW}, s{sD}, v{self.vK}\nv_cndmask_b32_e64 v{self.vFZ}, v{self.vFZ}, 0, vcc")
        late(f"v_lshrrev_b32 v13, 5, v0\nv_lshlrev_b32 v14, 6, v13\nv_add_u32 v{self.vWB}, s{sE}, v14")
        st(f"s_lshl_b32 s{mF2}, s{sW}, 2\ns_add_u32 s{mF2}, s{mF2}, {PML}")
        late(f"v_lshlrev_b32 v{self.vL4}, 2, v0\nv_add_u32 v{self.vPW}, s{mF2}, v{self.vK}")

    def colo_reduce(self, st, r):
        st(f"v_and_b32 v{r}, v{r}, v{r+1}\ns_nop 0")
        st(f"v_readfirstlane_b32 s{sCOLO}, v{r}")

    def main_attention(self, st):
        S, Q, O, KVB = self.S, self.Q, self.O, self.KVB
        buf = lambda t: KVB[t % 2]
        off = lambda t: (t % 16) * TILE
        rdK = lambda t: f"ds_read_b128 {vr(buf(t),4)}, v{self.vK} offset:{off(t)}"
        rdV0 = lambda t: f"ds_read_b128 {vr(buf(t)+4,4)}, v{self.vV0} offset:{off(t)}"
        rdV1 = lambda t: f"ds_read_b128 {vr(buf(t)+8,4)}, v{self.vV1} offset:{off(t)}"
        body = []
        for t in range(16):
            for q in range(2):
                cur, nxt = S[q], S[1 - q]
                e = [f"v_exp_f32 v{cur+i}, v{cur+i}" for i in range(16)]
                tp = t - 1 if q == 0 else t
                pv1 = smf(O[1 - q], buf(tp) + 8, nxt + 8, self.vIDX)
                qk = mfma32(nxt, buf(t + q), Q + 4 * (1 - q), "0")
                pv0 = smf(O[q], buf(t) + 4, cur, self.vIDX)
                if q == 0:
                    f0, f1, f2 = [rdV1(t + 1)], [], []
                    if t == 1: f2 = [f"s_sub_u32 s{sA}, s{sA}, 1"]
                else:
                    f0, f1, f2 = ["s_waitcnt lgkmcnt(0)"], [rdK(t + 2)], [rdV0(t + 2)]
                    if t % 8 == 6: f0.append("s_barrier                ; BA")
                body += e[0:2] + [pv1] + f0 + e[2:5] + [qk] + f1 + e[5:11] + [pv0] + f2 + e[11:16]
        nhead = 2 + 1 + 1 + 3 + 1
        head, rest = body[:nhead], body[nhead:]
        st.bar("B2")
        self.stamp(st, "m", "B2", 83)
        self.stamp(st, "m", "cyc0", 32)
        for s in (rdK(0), "ds_read_b64 v[12:13], v10", rdV0(0), rdV1(0), rdK(1), rdV0(1)): st(s)
        st(f"s_mov_b32 s{sA}, 3")
        st.nop(4)
        cv = [f"v_cvt_pk_bf16_f32 v{Q + r}, v{144+2*r}, v{144+2*r+1}" for r in range(8)]
        st("\n".join(cv[:5]))
        st("s_waitcnt lgkmcnt(4)")
        st(mfma32(S[0], buf(0), Q, "0"))
        st("\n".join(cv[5:]))
        self.colo_reduce(st, 12)
        st("s_waitcnt lgkmcnt(0)")
        if self.c.align:
            st(f"s_branch L_al\n.p2align {self.c.align}")
            st.label("L_al")
            st.nop(4)
        else: st.nop(5)
        st("\n".join(head))
        if self.c.lalign: st(f".p2align {self.c.lalign}")
        st.label("L_attn")
        st("\n".join(rest + head))
        st("s_cbranch_scc0 L_attn")
        st.nbar += 8
        self.stamp(st, "m", "attn_end", 1043)
        self.stamp(st, "m", "cyc1", 32)
        st.label("L_norm")
        st(f"s_cmp_eq_u32 s{sCOLO}, {2 if self.c.force_slow else 1}\ns_cbranch_scc0 L_main_slow")
        self.fallback()

    def main_publish_o(self, st):
        O, T, WB, sc = self.O, 192, 176, self.sc
        if self.c.diag & 512: st(f"s_mov_b32 s{CODE}, 0")
        st(f"v_rcp_f32 v{T+8}, v{O[0]+8}\ns_movk_i32 s{sT0}, 0x207")
        for r in range(8): st(f"v_mul_f32 v{O[0]+r}, v{T+8}, v{O[0]+r}")
        st(f"v_rcp_f32 v{T+8}, v{O[1]+8}")
        st(f"v_min_f32 v{T+12}, v{O[0]+8}, v{O[1]+8}\nv_add_f32 v{T+13}, v{O[0]+8}, v{O[1]+8}")
        for r in range(0, 8, 2): st(f"v_pk_mul_f32 {vr(O[1]+r,2)}, {vr(O[1]+r,2)}, {vr(T+8,2)} op_sel_hi:[1,0]")
        for r in range(0, 8, 2): st(f"v_pk_fma_f32 {vr(T+10,2)}, {vr(O[0]+r,2)}, {vr(O[1]+r,2)}, {vr(T+10,2) if r else 0}".replace(", 0", ", 0 op_sel_hi:[1,1,0]"))
        st(f"v_cmp_nle_f32 vcc, {f32(2.0**-64)}, v{T+12}")
        st(f"v_add_f32 v{T+10}, v{T+10}, v{T+11}")
        st(f"v_cmp_class_f32_e64 {sr(sT2,2)}, v{T+10}, s{sT0}")
        st(f"s_or_b64 {sr(sT2,2)}, {sr(sT2,2)}, vcc")
        st(f"v_cmp_nge_f32 vcc, {f32(2.0**64)}, v{T+13}")
        for r in range(4): st(f"v_cvt_pk_bf16_f32 v{T+r}, v{O[0]+2*r}, v{O[0]+2*r+1}")
        st(f"s_or_b64 {sr(sT2,2)}, {sr(sT2,2)}, vcc")
        if self.c.force_fallback: st(f"s_or_b64 {sr(sT2,2)}, {sr(sT2,2)}, 1")
        st(f"s_cbranch_scc1 L_unsafe{self.sfx}")
        st.label("L_safe" + self.sfx)
        self.stamp(st, "m", "safe", 1024)
        tc = self.tailcode
        tc.label("L_unsafe" + self.sfx)
        tc(f"s_waitcnt lgkmcnt(0)\ns_cmp_eq_u32 s{mCHK}, 0\ns_cbranch_scc1 L_fallback")
        tc(f"v_min_u32 v{T}, -2, v{T}\nv_cmp_o_f32 vcc, v{O[1]}, v{O[1]}\nv_mov_b32 v{T+9}, 0x7fc00000\ns_nop 0\nv_cndmask_b32 v{O[1]}, v{T+9}, v{O[1]}, vcc")
        tc(f"s_branch L_safe{self.sfx}")
        sto = lambda q: st.vm(f"buffer_store_dwordx4 {vr(T+4*q,4)}, v{self.vK}, {srd(WS)}, s{mO} offen offset:{1024*q}{sc}")
        sto(0)
        for i in range(4): st(f"ds_read_b128 {vr(WB+4*i,4)}, v{self.vWB} offset:{16*i}")
        for r in range(4): st(f"v_cvt_pk_bf16_f32 v{T+4+r}, v{O[1]+2*r}, v{O[1]+2*r+1}")
        sto(1)
        self.stamp(st, "m", "Ost", 1025)
        for a in range(1, 4): st(f"s_xor_b32 s{4+a}, s{mO}, {8192*a}\ns_xor_b32 s{8+a}, s{mPM}, {1024*a}")
        st("s_waitcnt lgkmcnt(0)")
        for r in range(8):
            for hl in range(2):
                d = T + 10 + hl + 4 * (r % 2)
                st(f"v_dot2_f32_bf16 v{d}, v{T+r}, v{WB+8*hl+r}, {'0' if r < 2 else 'v%d' % d}")
        for q in range(2): st(f"ds_write_b128 v{self.vOW}, {vr(T+4*q,4)} offset:{RING + 1024*q}")
        st(f"s_nop 0\nv_pk_add_f32 {vr(T+10,2)}, {vr(T+10,2)}, {vr(T+14,2)}\nv_add_f32 v{T+10}, v{T+10}, v{T+11}\nv_min_u32 v{T+10}, -2, v{T+10}")
        G, GP = (lambda a: 208 + 8 * (a - 1)), 232
        ld = lambda a: [f"buffer_load_dwordx4 {vr(G(a)+4*q,4)}, v{self.vK}, {srd(WS)}, s{4+a} offen offset:{1024*q} sc1" for q in range(2)]
        ldp = [f"buffer_load_dword v{GP+a}, v{self.vL4}, {srd(WS)}, s{8+a} offen sc1" for a in range(1, 4)]
        pmst = lambda: st.vm(f"buffer_store_dword v{T+10}, v{self.vL4}, {srd(WS)}, s{mPM} offen{sc}")
        if self.c.pmat == 0: pmst()
        st.nop(self.c.d2)
        for l in ld(1): st.vm(l, ("g", 1))
        st("s_waitcnt lgkmcnt(0)")
        st.bar("BC0")
        self.stamp(st, "m", "BC0", 1024)
        for a in (2, 3):
            if self.c.pmat == a - 1: pmst()
            for l in ld(a): st.vm(l, ("g", a))
        if self.c.pmat == 3: pmst()
        self.d_setup(st)
        def take(a):
            st.wait_vm(("g", a))
            if a == 1: self.stamp(st, "m", "g1ret", 1024)
            self.validate(st, f"L_g{a}", (G(a), G(a) + 4), GP, ld(a), inline=True)
            self.stamp(st, "m", f"Gok{a}", 1025 if a == 1 else 1024)
            for q in range(2): st.ds(f"ds_write_b128 v{self.vOW}, {vr(G(a)+4*q,4)} offset:{RING + 8192*a + 1024*q}", ("gw", a))
        take(1)
        for l in ldp: st.vm(l, "gp")
        if self.c.g2early: take(2)
        st.wait_ds(("gw", 1))
        st.bar("BC1a")
        if not self.c.g2early: take(2)
        take(3)
        st.wait_ds(("gw", 2))
        st.bar("BC1b")
        st.wait_vm("gp")
        self.validate(st, "L_gp", (GP + 1, GP + 2, GP + 3), GP, ldp, inline=True)
        st(f"v_add_f32 v{GP+1}, v{GP+1}, v{GP+2}\nv_add_f32 v{T+10}, v{T+10}, v{GP+3}\nv_add_f32 v{T+10}, v{T+10}, v{GP+1}")
        st(f"ds_write_b32 v{self.vPW}, v{T+10}")
        st.wait_ds()
        st.bar("BC1c")

    def fallback(self):
        st = self.tailcode
        S, Q, O, KVB = self.S, self.Q, self.O, self.KVB
        K, V0, V1, NM = KVB[0], KVB[0] + 4, KVB[0] + 8, (112, 128)
        st.label("L_fallback")
        st(f"s_mov_b32 s{mCHK}, 1")
        st("v_mov_b32 v10, 0xff800000\nv_mov_b32 v11, 0xff800000")
        st(f"s_mov_b32 s{sT0}, {WS_KV}")
        st.label("L_fb1")
        st(f"buffer_load_dwordx4 {vr(K,4)}, v{self.vK}, {srd(WS)}, s{sT0} offen sc1\ns_waitcnt vmcnt(0)")
        st(mfma32(S[0], K, Q, "0")); st(mfma32(S[1], K, Q + 4, "0"))
        st.nop(12)
        for q in range(2):
            for r in range(0, 16, 2): st(f"v_max3_f32 v{10+q}, v{S[q]+r}, v{S[q]+r+1}, v{10+q}")
        st(f"s_add_u32 s{sT0}, s{sT0}, 2048\ns_cmp_lt_u32 s{sT0}, {WS_KV + 131072}\ns_cbranch_scc1 L_fb1")
        st("v_mov_b32 v12, v10\nv_mov_b32 v13, v11\ns_nop 1")
        st("v_permlane32_swap_b32 v10, v12\nv_permlane32_swap_b32 v11, v13")
        st("v_max_f32 v10, v10, v12\nv_max_f32 v11, v11, v13")
        for q in range(2):
            for r in range(16):
                st(f"v_sub_f32 v{NM[q]+r}, 0, v{10+q}\nv_mov_b32 v{O[q]+r}, 0")
        st(f"v_and_b32 v12, 27, v0\nv_cmp_eq_u32 vcc, 16, v12\nv_mov_b32 v13, s{sONE}\ns_nop 0\nv_cndmask_b32 v13, 0, v13, vcc")
        for r in range(8): st(f"v_mov_b32 v{V0+r}, v13")
        st(f"s_mov_b32 s{sT0}, {WS_KV}\ns_mov_b32 s{sT2}, 0xffff\ns_mov_b32 s{sT3}, 0xffff")
        st.label("L_fb2")
        st(f"buffer_load_dwordx4 {vr(K,4)}, v{self.vK}, {srd(WS)}, s{sT0} offen sc1")
        st(f"s_mov_b64 exec, {sr(sT2,2)}")
        st(f"buffer_load_dwordx4 {vr(V0,4)}, v{self.vV0}, {srd(WS)}, s{sT0} offen sc1")
        st(f"buffer_load_dwordx4 {vr(V1,4)}, v{self.vV1}, {srd(WS)}, s{sT0} offen sc1")
        st("s_mov_b64 exec, -1\ns_waitcnt vmcnt(0)")
        st(mfma32(S[0], K, Q, vr(NM[0], 16))); st(mfma32(S[1], K, Q + 4, vr(NM[1], 16)))
        st.nop(12)
        for q in range(2):
            for r in range(16): st(f"v_exp_f32 v{S[q]+r}, v{S[q]+r}")
        st.nop(2)
        for q in range(2):
            st(smf(O[q], V0, S[q], self.vIDX)); st(smf(O[q], V1, S[q] + 8, self.vIDX))
        st(f"s_add_u32 s{sT0}, s{sT0}, 2048\ns_cmp_lt_u32 s{sT0}, {WS_KV + 131072}\ns_cbranch_scc1 L_fb2")
        st.nop(12)
        st("s_branch L_norm")

    def stages(self):
        return [tuple(map(int, x.split(":"))) for x in self.c.gates.split(",")]

    def h_voffset(self, st, d, t):
        st(f"v_lshrrev_b32 v{d}, 3, v0\nv_lshlrev_b32 v{d}, 10, v{d}\nv_and_b32 v{t}, 7, v0\nv_lshl_add_u32 v{d}, v{t}, 4, v{d}")

    def h_base(self, st, d):
        st(f"s_lshl_b32 s{d}, s{sRB}, 1\ns_and_b32 s{sT3}, s{sW}, 1\ns_add_u32 s{d}, s{d}, s{sT3}\ns_lshl_b32 s{d}, s{d}, 14")
        st(f"s_lshl_b32 s{sT3}, s{sCB}, 2\ns_add_u32 s{sT3}, s{sT3}, s{sW}\ns_lshr_b32 s{sT3}, s{sT3}, 1\ns_lshl_b32 s{sT3}, s{sT3}, 7\ns_add_u32 s{d}, s{d}, s{sT3}")

    def d_setup(self, st):
        vFZ, vVAL, vO, vF = 10, 11, (2, 3), (24, 25, 26, 27)
        st(f"v_mov_b32 v{vFZ}, v{self.vFZ}\nv_mov_b32 v{vVAL}, v{self.vVAL}")
        st("v_lshrrev_b32 v13, 5, v0\nv_bfe_u32 v14, v0, 4, 1\nv_bfe_u32 v15, v0, 2, 2\nv_and_b32 v16, 3, v0\nv_lshlrev_b32 v16, 3, v16")
        st("v_xor_b32 v17, v13, v14\nv_lshl_add_u32 v17, v17, 2, v15\nv_mul_u32_u24 v17, 96, v17\nv_mul_u32_u24 v18, 3072, v14\nv_add3_u32 v17, v17, v18, v16")
        st(f"v_add_u32 v{vO[0]}, {ODD}, v17\nv_add_u32 v{vO[1]}, {ODD + 49152}, v17")
        st("v_lshl_add_u32 v17, v13, 2, v15\nv_lshlrev_b32 v17, 7, v17\nv_lshl_add_u32 v17, v14, 12, v17\nv_bfe_u32 v18, v0, 3, 2")
        st(f"v_lshlrev_b32 v18, 5, v18\nv_add3_u32 v{vF[0]}, v17, v18, v16")
        for i in range(1, 4): st(f"v_xor_b32 v{vF[i]}, {32*i}, v{vF[0]}")
        self.h_voffset(st, 4, 5)
        st(f"v_and_b32 v5, 31, v0\nv_lshlrev_b32 v5, 4, v5\nv_lshrrev_b32 v13, 5, v0\nv_lshl_add_u32 v5, v13, 11, v5")
        vPG, vLD, vN, CK = 14, 15, 16, 20
        st(f"s_lshl_b32 s{sT0}, s{sW}, 2\ns_add_u32 s{sT0}, s{sT0}, {PROG}\nv_mov_b32 v{vPG}, s{sT0}\nv_mov_b32 v{vLD}, {LAND}")

    def main_phase_d(self, st):
        T, sc = self.c.tail, self.sc
        ACC, BR, AR, STT = 144, 112, 48, 32
        NBR, LA, NAR = 8, self.c.la, 16
        vL, vFZ, vVAL, vO, vF, vC1, vSD, vPOLL = self.vK, 10, 11, (2, 3), (24, 25, 26, 27), 8, 9, 12
        vPG, vLD, vN, CK = 14, 15, 16, 20
        nk = 32 - 2 * T
        order = [(k, n) for k in range(nk) for n in range(7)] + [(k, n) for n in range(7) for k in range(nk, 32)]
        def rdB(m):
            k, n = order[m]
            b = BR + 4 * (m % NBR)
            for t in range(2):
                u, row = k // 2, 16 * (k % 2) + 8 * t
                if n < 3: va, o = vO[u // 8], (u % 8) * 6144 + row * 96 + 32 * n
                else: va, o = vF[n - 3], slot8(FSLOT[u]) + row * 128
                st.ds(f"ds_read_b64_tr_b16 {vr(b+2*t,2)}, v{va} offset:{o}", ("b", m))
        for m in range(LA): rdB(m)
        st.bar("BC2")
        self.stamp(st, "m", "BC2", 1025)
        st.nop(self.c.d3)
        nxt = [0]
        lda = lambda k: f"buffer_load_dwordx4 {vr(AR+4*(k % NAR),4)}, v4, {srd(MOUT)}, s{sP + k % 4} offen offset:{128*(k // 4)} sc1"
        def ldA(upto):
            while nxt[0] < min(32, upto):
                k = nxt[0]; nxt[0] += 1
                st.vm(lda(k), ("a", k))
        def chk(k, n=1):
            st.wait_vm(("a", k + n - 1))
            self.validate(st, f"L_a{k}", [AR + 4 * (i % NAR) for i in range(k, k + n)], 13,
                          [lda(i) for i in range(k, min(nxt[0], max(k + n, (k | 7) + 1)))], inline=(k == 0))
        ldA(2)
        if self.c.diag & 1024:
            st.wait_vm(("a", 0))
            self.stamp(st, "m", "a0ret", 1024)
        chk(0)
        self.stamp(st, "m", "x3ok", 1029)
        def run(op): op() if callable(op) else st(op)
        lds_ = [f"buffer_load_dwordx4 {vr(STT+4*i,4)}, v5, {srd(WS)}, s{mST} offen offset:{512 + 1024*i} sc1" for i in range(2)]
        def ldst():
            for l in lds_: st.vm(l, "st")
        stats = [lambda: st.wait_vm("st"), lambda: self.validate(st, "L_st", range(STT, STT + 8), STT + 8, lds_)]
        stats += [f"v_add_f32 v{STT+i}, v{STT+i}, v{STT+4+i}" for i in range(4)]
        stats += [f"v_add_f32 v{STT}, v{STT}, v{STT+2}", f"v_add_f32 v{STT+1}, v{STT+1}, v{STT+3}", f"v_add_f32 v{STT}, v{STT}, v{STT+1}",
                  f"v_mov_b32 v{STT+1}, v{STT}", f"v_mov_b32 v{STT+2}, {f32(1e-5)}", "s_nop 0",
                  f"v_permlane32_swap_b32 v{STT}, v{STT+1}", f"v_add_f32 v{STT}, v{STT}, v{STT+1}",
                  f"v_fmac_f32 v{STT+2}, {f32(1.0/512)}, v{STT}", f"v_rsq_f32 v{STT+3}, v{STT+2}", "s_nop 0",
                  f"v_mul_f32 v{vSD}, v{STT+2}, v{STT+3}", f"v_mul_f32 v{vC1}, {f32(-1.4426950408889634)}, v{STT+3}"]
        pub = [1]
        def publish(cnt):
            ops = [f"v_add_u32 v{vVAL}, {cnt - pub[0]}, v{vVAL}"] if cnt > pub[0] else []
            pub[0] = cnt
            ops.append(lambda: st.wait_vm(("hh", cnt - 1)))
            if self.c.fexec: ops.append("s_mov_b64 exec, 1")
            ops.append(lambda: st.vm(f"buffer_store_dword v{vVAL}, v{vFZ}, {srd(WS)}, s{mF4} offen{sc}"))
            if self.c.fexec: ops.append("s_mov_b64 exec, -1")
            ops.append(lambda: self.stamp(st, "m", f"pub{cnt}", 8))
            return ops
        def epilogue(n):
            a = ACC + 16 * n
            ops = [f"v_mul_f32 v{a+j}, v{vC1}, v{a+j}" for j in range(8)]
            ops += [f"v_exp_f32 v{a+j}, v{a+j}" for j in range(8)]
            ops += [f"v_fma_f32 v{a+j}, v{a+j}, v{vSD}, v{vSD}" for j in range(8)]
            ops += [f"v_rcp_f32 v{a+j}, v{a+j}" for j in range(8)]
            ops += [f"v_mul_f32 v{a+j}, v{a+j}, v{a+8+j}" for j in range(8)]
            ops += [f"v_cvt_pk_bf16_f32 v{a+8+j}, v{a+2*j}, v{a+2*j+1}" for j in range(4)]
            return ops
        def store(n):
            a = ACC + 16 * n
            st.vm(f"buffer_store_dwordx4 {vr(a+8,4)}, v{vL}, {srd(WS)}, s{mHO if n < 2 else mHH0 if n < 4 else mHH1} offen offset:{1024*(n % 4)}{sc if n < self.c.hhplain else ' sc1'}", ("hh", n))
        cost = lambda op: 8 if op.startswith(("v_exp", "v_rcp")) else 4
        fill = {m: [] for m in range(224)}
        first = {m: [] for m in range(224)}
        first[0].append(lambda: ldA(4)); first[2].append(lambda: ldA(6))
        for k in range(1, nk):
            for n, d in ((1, 1), (4, 2)):
                first[7 * k + n].append(lambda u=min(k + NAR, 4 + 2 * k + d): ldA(u))
        first[7 * 14 + 4].append(ldst)
        for i, op in enumerate(stats): fill[7 * (nk - 1) + i // 2].append(op)
        base = 7 * nk
        stages, nst = [x[0] for x in self.stages()], 0
        for n in range(1, 7):
            ops = epilogue(n - 1)
            g0, ng = base + 2 * T * n + 2, 2 * T - 1
            tot, acc = sum(map(cost, ops)), 0
            for op in ops:
                fill.setdefault(g0 + acc * ng // tot, []).append(op); acc += cost(op)
            if n - 1 < self.c.hhplain or n in stages or (self.c.stat >> n & 1):
                for i in range(nst, n): first.setdefault(g0 + ng, []).append(lambda i=i: store(i))
                nst = n
            if n in stages:
                lag = self.c.lagp if n <= self.c.hhplain else self.c.lag
                for op in publish(n): first.setdefault(min(g0 + ng + lag, 226), []).append(op)
        assert T == 7
        posts = {2: 1, base + 6 * T - 1: 20, 223: 30}
        posts.update({14 * u + 13: u + 2 for u in range(8)})
        checks = {14 * 3 + 3 - LA: 5, 14 * 5 + 3 - LA: 7, 14 * 7 + 3 - LA: 9, base + 6 * T - LA: 16}
        vplan = {5: (1, 1), 12: (2, 2)}
        vplan.update({7 * k + 5: (k + 1, 3) for k in (3, 6, 9, 12)})
        vplan.update({7 * 14 + 5: (16, 3), 7 * 15 + 5: (19, 3), 7 * 16 + 5: (22, 3), base + 3: (25, 3), base + 6: (28, 2), base + 10: (30, 2)})
        near = self.near if not sc else self.tailcode
        for m in range(224):
            k, n = order[m]
            if m in posts: st(f"v_mov_b32 v{vN}, {posts[m]}")
            wp = self.c.wper
            if m == 0 or (m % wp == 0 and not self.c.wafter): st.wait_ds(("b", min(m + wp - 1, 223)))
            st(mfma32(ACC + 16 * n, BR + 4 * (m % NBR), AR + 4 * (k % NAR), "0" if k == 0 else None))
            if self.c.wafter and m % wp == wp - 1: st.wait_ds(("b", min(m + wp, 223)))
            if m == 0: self.stamp(st, "m", "mfma0", 4)
            for op in first[m]: run(op)
            if m in posts: st.ds(f"ds_write_b32 v{vPG}, v{vN}")
            if m < base and m % 28 == 27: self.stamp(st, "m", f"u{m // 14}", 4)
            if m == base: self.stamp(st, "m", "tail0", 4)
            if m == base + 2 * T: self.stamp(st, "m", "tail1", 4)
            if m >= base and (m - base) % (2 * T) == 0: self.stamp(st, "m", f"t{(m - base) // (2 * T)}", 256)
            if m + 5 in checks: st.ds(f"ds_read_b128 {vr(CK,4)}, v{vLD}", "ck")
            if m in checks:
                lab = f"L_ld{checks[m]}{self.sfx}"
                st(f"s_cbranch_vccnz {lab}s")
                st.label(lab + "r")
                near.label(lab + "s")
                self.lds_spin(near, lab, vLD, CK, checks[m])
                near(f"s_branch {lab}r")
            if m + LA < 224: rdB(m + LA)
            if m + 1 in checks:
                st.wait_ds("ck")
                self.lds_min(st, CK, checks[m + 1])
            assert not (m + 1 in checks and m in vplan)
            if m in vplan: chk(*vplan[m])
            for op in fill[m]: run(op)
        assert nxt[0] == 32
        self.stamp(st, "m", "Dmfma_end", 269)
        for m in (224, 225):
            for op in first.get(m, []) + fill.get(m, []): run(op)
        for i in range(nst, 6): store(i)
        st.nop(8)
        ep = epilogue(6)
        for op in ep[:32] + first.get(226, []) + ep[32:]: run(op)
        store(6)
        for op in publish(7): run(op)
        self.stamp(st, "m", "end", 13)
        if self.c.diag & 512 and not sc:
            self.nstamp["m"].append("retry")
            st(f"s_waitcnt lgkmcnt(0)\ns_mov_b32 s{sSTAMP + 2*(len(self.nstamp['m'])-1)}, s{CODE}")
        self.dump_stamps(st, "m")
        st("s_endpgm")

    def helper_phase_a(self, st):
        self.stamp(st, "h", "start", 2047)
        XP, XF, AC = 48, 80, 112
        st("s_setprio 2")
        if self.c.padto: st("s_memrealtime s[100:101]")
        st.vq.append((None, False))
        st(f"v_lshrrev_b32 v2, 4, v0\nv_and_b32 v3, 15, v0\nv_lshlrev_b32 v4, 10, v2\nv_lshl_add_u32 v4, v3, 4, v4")
        st(f"s_and_b32 s{sT2}, s{sCB}, 1\ns_lshl_b32 s{sC}, s{sT2}, 2\ns_add_u32 s{sC}, s{sC}, s{sW}\ns_lshl_b32 s{sT0}, s{sRB}, 3\ns_add_u32 s{sA}, s{sT0}, s{sC}")
        st(f"s_lshl_b32 s{sA}, s{sA}, 12\ns_xor_b32 s{sB}, s{sA}, 0x4000")
        self.srds(st, ((X, 2097152), (WKVS, 16384)))
        st(f"v_lshlrev_b32 v1, 4, v0\ns_lshl_b32 s{sD}, s{sW}, 12\ns_add_u32 m0, s{sD}, {WKV}\nv_mov_b32 v124, v4")
        st("s_waitcnt lgkmcnt(0)")
        ldx = lambda i: st.vm(f"buffer_load_dwordx4 {vr(XP+4*i,4)}, v124, {srd(X)}, s{sA if i < 4 else sB} offen offset:{256*(i % 4)}", ("x", i))
        for i in range(4): ldx(i)
        st.bar("B00")
        ldw = lambda: [st.vm(f"buffer_load_dwordx4 v1, {srd(WKVS)}, s{sD} offen offset:{1024*i} lds", "wkv") for i in range(4)]
        if self.c.sec & 2: ldw()
        st(f"s_and_b32 s{sT0}, s{sW}, 1\ns_lshl_b32 s{sT0}, s{sT0}, 3\ns_add_u32 s{sT0}, s{sT0}, 48\ns_load_dwordx2 {sr(WG,2)}, s[0:1], s{sT0}")
        for b, off in ((WO, 32), (WD, 64), (OUT, 72)):
            st(f"s_load_dwordx2 {sr(b,2)}, s[0:1], {off}")
        self.srds(st, ((WO, 524288), (WG, 1835008), (WD, 1835008), (OUT, 2097152), (WS, WS_SIZE)))
        st(f"s_mov_b32 s{sONE}, 0x3f803f80\ns_mov_b32 s{sLO}, 0x3f80\ns_mov_b32 s{sHI}, 0x3f800000")
        st(f"s_getreg_b32 s{sXCC}, hwreg(HW_REG_XCC_ID, 0, 4)")
        st(f"v_bfe_u32 v5, v0, 1, 3\nv_mul_u32_u24 v5, {TILE}, v5\nv_and_b32 v6, 1, v0\nv_lshl_add_u32 v7, v6, 4, v5")
        st(f"v_cmp_eq_u32 vcc, 0, v6\nv_mov_b32 v8, s{sONE}\ns_nop 0\nv_cndmask_b32 v8, 0, v8, vcc\nv_mov_b32 v9, v8\nv_mov_b32 v10, v8\nv_mov_b32 v11, v8")
        st.ds("ds_write_b128 v7, v[8:11] offset:2048")
        st(f"v_mul_u32_u24 v5, 528, v3\nv_lshl_add_u32 v5, v2, 4, v5\ns_lshl_b32 s{sT0}, s{sC}, 6\ns_xor_b32 s{sT1}, s{sT0}, 256")
        st(f"s_add_u32 s{sT2}, s{sT0}, {XN}\ns_add_u32 s{sT3}, s{sT1}, {XN}\nv_add_u32 v120, s{sT2}, v5\nv_add_u32 v121, s{sT3}, v5")
        st(f"s_lshr_b32 s{sT0}, s{sT0}, 2\ns_lshr_b32 s{sT1}, s{sT1}, 2\ns_add_u32 s{sT0}, s{sT0}, {MISC + 16}\ns_add_u32 s{sT1}, s{sT1}, {MISC + 16}")
        st(f"v_lshl_add_u32 v122, v2, 2, s{sT0}\nv_lshl_add_u32 v123, v2, 2, s{sT1}")
        st.wait_ds()
        self.epoch_load(st)
        self.helper_setup(st)
        st(f"s_lshl_b32 s{sT0}, s{sW}, 2\ns_add_u32 s{sT0}, s{sT0}, {XC}\nv_mov_b32 v230, s{sT0}")
        st(f"v_and_b32 v41, 31, v0\nv_lshlrev_b32 v41, 2, v41\nv_add_u32 v41, {MISC + 16}, v41")
        st("v_lshrrev_b32 v27, 4, v0\nv_lshlrev_b32 v27, 14, v27\nv_and_b32 v14, 15, v0\nv_lshl_add_u32 v27, v14, 7, v27")
        st(f"v_lshrrev_b32 v14, 5, v0\nv_lshl_add_u32 v14, v14, 9, v1\ns_lshl_b32 s{sT0}, s2, 11\ns_cmp_eq_u32 s{sW}, 1\ns_cselect_b32 s{sT0}, s{sT0}, 0x100000")
        self.stamp(st, "h", "setup", 64)
        def second():
            if not self.c.sec & 2: ldw()
            if not self.c.x1late:
                for i in range(4, 8): ldx(i)
            st.bar("B0")
            if self.c.wo_early == 2: ldo()
        ldo = lambda: [st.vm(f"buffer_load_dwordx4 {vr(232+4*i,4)}, v14, {srd(WO)}, s{sT0} offen offset:{512*i}") for i in range(2)]
        if self.c.wo_early == 1: ldo()
        if not self.c.sec & 1: second()
        def red16(a):
            for m in ("quad_perm:[1,0,3,2]", "quad_perm:[2,3,0,1]", "row_half_mirror", "row_mirror"):
                st(f"s_nop 1\nv_add_f32_dpp v{a}, v{a}, v{a} {m} row_mask:0xf bank_mask:0xf")
        for ps in range(2):
            P = XP + 16 * ps
            for i in range(4):
                if ps == 0: st.wait_vm(("x", i))
                for r in range(4):
                    st(f"v_dot2_f32_bf16 v{AC+r%2}, v{P+4*i+r}, s{sONE}, {'0' if i == 0 and r < 2 else 'v%d' % (AC+r%2)}")
            if ps == 0: self.stamp(st, "h", "xland", 193)
            if ps == 0 and self.c.sec & 1: second()
            st(f"s_nop 2\nv_add_f32 v{AC}, v{AC}, v{AC+1}")
            red16(AC)
            st(f"v_mul_f32 v{AC}, {f32(-1.0/512)}, v{AC}")
            st.ds(f"ds_write_b32 v{122+ps}, v{AC}")
            self.stamp(st, "h", f"mean{ps}", 128)
            for r in range(16):
                st(f"v_dot2_f32_bf16 v{XF+2*r}, v{P+r}, s{sLO}, v{AC}\nv_dot2_f32_bf16 v{XF+2*r+1}, v{P+r}, s{sHI}, v{AC}")
            for r in range(16):
                d = AC + 2 + 2 * (r % 2)
                if r < 2: st(f"v_pk_mul_f32 {vr(d,2)}, {vr(XF+2*r,2)}, {vr(XF+2*r,2)}")
                else: st(f"v_pk_fma_f32 {vr(d,2)}, {vr(XF+2*r,2)}, {vr(XF+2*r,2)}, {vr(d,2)}")
            st(f"v_pk_add_f32 {vr(AC+2,2)}, {vr(AC+2,2)}, {vr(AC+4,2)}\nv_add_f32 v{AC+2}, v{AC+2}, v{AC+3}")
            red16(AC + 2)
            self.stamp(st, "h", f"var{ps}", 128)
            st(f"v_mov_b32 v{AC+3}, {f32(1e-5)}\nv_fmac_f32 v{AC+3}, {f32(1.0/512)}, v{AC+2}\nv_rsq_f32 v{AC+2}, v{AC+3}\nv_mov_b32 v231, {ps+1}")
            for i in range(4):
                for r in range(4):
                    st(f"v_pk_mul_f32 {vr(XF+8*i+2*r,2)}, {vr(XF+8*i+2*r,2)}, {vr(AC+2,2)} op_sel_hi:[1,0]")
                for r in range(4):
                    st(f"v_cvt_pk_bf16_f32 v{P+4*i+r}, v{XF+8*i+2*r}, v{XF+8*i+2*r+1}")
                st.ds(f"ds_write_b128 v{120+ps}, {vr(P+4*i,4)} offset:{8448*i}")
            self.stamp(st, "h", f"wr{ps}", 128)
            st.wait_vm("wkv")
            st.wait_ds()
            st("ds_write_b32 v230, v231")
            self.stamp(st, "h", f"ln{ps}", 192)
            if ps == 0:
                self.epoch_make(st)
                st(f"s_add_u32 s{sXCC}, s{sXCC}, s{sEP}\nv_mov_b32 v31, s{sEP}")
                if self.c.x1late:
                    for i in range(4, 8): ldx(i)
                st.wait_vm(("x", 7))
                self.stamp(st, "h", "p2start", 128)
        st(f"s_cmp_lg_u32 s{sW}, 1\ns_cbranch_scc1 L_nowb1")
        a = 240
        if not self.c.wo_early:
            for i in range(2): st(f"buffer_load_dwordx4 {vr(232+4*i,4)}, v14, {srd(WO)}, s{sT0} offen offset:{512*i}")
        st("s_waitcnt vmcnt(0)")
        for r in range(8): st(f"v_dot2_f32_bf16 v{a}, v{232+r}, s{sONE}, {'0' if r == 0 else 'v%d' % a}")
        st("s_nop 0")
        for m in ("quad_perm:[1,0,3,2]", "quad_perm:[2,3,0,1]", "row_half_mirror", "row_mirror"):
            st(f"s_nop 1\nv_add_f32_dpp v{a}, v{a}, v{a} {m} row_mask:0xf bank_mask:0xf")
        st(f"v_mov_b32 v{a+1}, v{a}\ns_nop 1\nv_permlane16_swap_b32 v{a}, v{a+1}\nv_add_f32 v{a}, v{a}, v{a+1}")
        st(f"v_mul_f32 v{a}, {f32(1.0/512)}, v{a}\nv_mov_b32 v{a+1}, v{a}\ns_nop 1\nv_permlane32_swap_b32 v{a}, v{a+1}")
        st(f"v_cvt_pk_bf16_f32 v{a+4}, v{a}, v{a+1}\nv_lshlrev_b32 v{a+2}, 16, v{a+4}\nv_and_b32 v{a+3}, 0xffff0000, v{a+4}")
        st(f"v_sub_f32 v{a}, v{a}, v{a+2}\nv_sub_f32 v{a+1}, v{a+1}, v{a+3}\nv_cvt_pk_bf16_f32 v{a+5}, v{a}, v{a+1}")
        st(f"v_mov_b32 v{a+6}, s{sEP1}\ns_lshl_b32 s{sT0}, s2, 7\ns_add_u32 s{sF}, s{sT0}, {WS_WB}")
        st.label("L_nowb1")

    def kv_addr(self, st):
        st(f"v_lshrrev_b32 v20, 4, v0\nv_and_b32 v13, 15, v0\nv_lshlrev_b32 v14, 8, v20\nv_lshl_add_u32 v249, v13, 3, v14")
        st(f"s_and_b32 s{sT0}, s{sCB}, 1\ns_lshl_b32 s{sT1}, s{sT0}, 8\ns_add_u32 s{sT2}, s{sT1}, {XN}")
        st(f"v_mul_u32_u24 v15, 528, v20\nv_lshl_add_u32 v15, v13, 4, v15\nv_add_u32 v250, s{sT2}, v15")
        st(f"s_lshl_b32 s{sT2}, s{sT0}, 9\ns_add_u32 s{sT2}, s{sT2}, 1024\ns_cmp_ge_u32 s{sCB}, 2")
        st(f"s_cselect_b32 s{sT1}, s{sT2}, s{sT1}\ns_cselect_b32 s{sT2}, 31, 9\ns_cselect_b32 s{sT3}, 8, 31")
        st(f"v_and_b32 v14, 1, v20\nv_lshlrev_b32 v14, s{sT2}, v14\nv_lshrrev_b32 v15, 1, v20\nv_lshlrev_b32 v15, s{sT3}, v15")
        st(f"v_lshl_add_u32 v14, v13, 4, v14\nv_add3_u32 v251, v14, v15, s{sT1}")
        st(f"s_lshl_b32 s{mKG}, s{sRB}, 11\ns_add_u32 s{mKL}, s{mKG}, {WS_KVL}\ns_add_u32 s{mKG}, s{mKG}, {WS_KV}")
        st(f"s_lshl_b32 s{sT0}, s{sG}, 5\ns_add_u32 s{sT0}, s{sT0}, s{sIDX}\ns_lshl_b32 s{mFL}, s{sT0}, 2\ns_add_u32 s{mFL}, s{mFL}, {WS_FLGL}")
        st(f"s_lshl_b32 s{mFG}, s{sT0}, 7\ns_add_u32 s{mFG}, s{mFG}, {WS_FLG1}")

    def kv_job(self, st):
        WR, XR, AC = 168, 112, 144
        st("s_setprio 3")
        self.lds_spin(st, "L_xc0", 18, 20, 1, sleep=1)
        self.stamp(st, "m", "m0xc", 64)
        st(f"s_cmp_ge_u32 s{sCB}, 2\ns_cbranch_scc1 L_vjob")
        for job in ("k", "v"):
            if job == "v": st.label("L_vjob")
            LA = 4
            for j in range(16 + LA):
                if j < 16:
                    for t in range(2): st.ds(f"ds_read_b64_tr_b16 {vr(WR+4*j+2*t,2)}, v249 offset:{WKV + 1024*j + 128*t}")
                    st.ds(f"ds_read_b128 {vr(XR+4*(j % 8),4)}, v250 offset:{2112*j}", ("rd", j))
                m = j - LA
                if m >= 0:
                    st.wait_ds(("rd", m))
                    w, x = WR + 4 * m, XR + 4 * (m % 8)
                    a, b = (w, x) if job == "k" else (x, w)
                    st(mfma16(AC, a, b, "0" if m == 0 else None))
            st.nop(8)
            if job == "k":
                for r in range(4): st(f"v_mul_f32 v{AC+r}, {f32(0.25 * 1.4426950408889634)}, v{AC+r}")
            for r in (4, 6): st(f"v_cvt_pk_bf16_f32 v{AC+r}, v{AC}, v{AC+1}\nv_cvt_pk_bf16_f32 v{AC+r+1}, v{AC+2}, v{AC+3}")
            sw = "v_permlane32_swap_b32" if job == "k" else "v_permlane16_swap_b32"
            st(f"s_nop 0\n{sw} v{AC+4}, v{AC+6}\n{sw} v{AC+5}, v{AC+7}")
            if job == "k": st("s_branch L_kvst")
        st.label("L_kvst")
        self.stamp(st, "m", "m0kvmf", 64)
        if self.c.kv2: st(f"s_cmp_lg_u32 s{sW}, 0\ns_cbranch_scc1 L_kvx")
        st(f"buffer_store_dwordx4 {vr(AC+4,4)}, v251, {srd(WS)}, s{mKL} offen")
        st(f"buffer_store_dwordx4 {vr(AC+4,4)}, v251, {srd(WS)}, s{mKG} offen sc1")
        st.label("L_kvx")
        st("s_setprio 0")

    def kv_flag(self, st, glob, younger):
        st(f"s_cmp_lg_u32 s{sW}, 0\ns_cbranch_scc1 L_nofl{glob}")
        st(f"v_mov_b32 v19, s{sEP1 if glob else sXCC}\ns_bfm_b64 exec, {32 if glob else 1}, 0\ns_waitcnt vmcnt({younger})")
        self.stamp(st, "m", "m0GF" if glob else "m0LF", 64)
        st.vm(f"buffer_store_dword v19, v16, {srd(WS)}, s{mFG if glob else mFL} offen{' sc1' if glob else ''}", cond=True)
        st("s_mov_b64 exec, -1")
        st.label(f"L_nofl{glob}")

    WOR, WDR = 128, 48

    def odd_voffsets(self, st, base, t):
        st(f"s_and_b32 s{sT0}, s{sIDX}, 15\ns_mul_i32 s{sT0}, s{sT0}, 224\ns_and_b32 s{sT1}, s{sW}, 1\ns_lshl_b32 s{sT1}, s{sT1}, 2\ns_lshl_b32 s{sT2}, s{sCB}, 1")
        for p in range(3):
            d = base + p
            st(f"v_add_u32 v{t}, {64*p}, v0\nv_mul_u32_u24 v{t+1}, 10923, v{t}\nv_lshrrev_b32 v{t+1}, 16, v{t+1}\nv_mul_u32_u24 v{d}, 6, v{t+1}")
            st(f"v_sub_u32 v{t}, v{t}, v{d}\nv_cmp_gt_u32 vcc, s{sT2}, v{t}\nv_xor_b32 v{t+1}, s{sT1}, v{t+1}\nv_add_u32 v{d}, 8, v{t}")
            st(f"v_cndmask_b32 v{t}, v{d}, v{t}, vcc\nv_mul_u32_u24 v{t+1}, 3584, v{t+1}\nv_lshlrev_b32 v{t}, 4, v{t}\nv_add3_u32 v{d}, v{t}, v{t+1}, s{sT0}")

    def full_voffset(self, st, d, t):
        st(f"s_and_b32 s{sT0}, s{sIDX}, 15\ns_mul_i32 s{sT0}, s{sT0}, 224\ns_lshl_b32 s{sT1}, s{sCB}, 5\ns_add_u32 s{sT0}, s{sT0}, s{sT1}")
        st(f"s_and_b32 s{sT1}, s{sW}, 1\ns_lshl_b32 s{sT1}, s{sT1}, 2")
        st(f"v_bfe_u32 v{t}, v0, 4, 1\nv_lshlrev_b32 v{t}, 1, v{t}\nv_or_b32 v{t}, s{sT1}, v{t}\nv_and_b32 v{t+1}, 7, v0\nv_xor_b32 v{t}, v{t}, v{t+1}")
        st(f"v_lshlrev_b32 v{t}, 4, v{t}\nv_lshrrev_b32 v{t+1}, 3, v0\nv_mul_u32_u24 v{t+1}, 3584, v{t+1}\nv_add3_u32 v{d}, v{t}, v{t+1}, s{sT0}")

    pace = None

    def paced(self, st):
        if self.pace is not None: st(f"s_waitcnt vmcnt({self.pace})")

    def odd_pair(self, st, u0, mask, vbase):
        st(f"s_and_b32 s{sT2}, s{sP+4}, {mask | 1}\ns_xor_b32 s{sT2}, s{sT2}, {u0}\ns_mul_i32 s{sT1}, s{sT2}, 114688")
        st(f"s_lshl_b32 s{sT2}, s{sT2}, 1\ns_and_b32 s{sT3}, s{sW}, 1\ns_add_u32 s{sT2}, s{sT2}, s{sT3}\ns_mul_i32 s{sT2}, s{sT2}, 3072")
        for p in range(3):
            st(f"s_add_u32 m0, s{sT2}, {ODD + 1024*p}\ns_nop 0")
            st.vm(f"buffer_load_dwordx4 v{vbase+p}, {srd(WG)}, s{sT1} offen lds", ("odd", u0))

    def full_unit(self, st, u, v, qs=(0, 1)):
        for q in qs:
            st(f"s_add_u32 m0, s{sP+6}, {slot8(FSLOT[u]) + 1024*q}\ns_add_u32 s{sT1}, s{sP+5}, {(32*u + 8*q) * 3584}")
            self.paced(st)
            st.vm(f"buffer_load_dwordx4 v{v}, {srd(WG)}, s{sT1} offen lds", ("full", u))

    def wd_dma(self, st, j, addr, vD, sbase):
        p = j % 4
        t = tile_of(p, j // 4)
        if self.c.fake & 4 and j >= 10:
            for q in range(2):
                st(f"s_add_u32 m0, s{sbase}, {addr + 1024*q}\ns_lshl_b32 s{sT1}, s{sG}, 18\ns_add_u32 s{sT1}, s{sT1}, s{sbase}\ns_add_u32 s{sT1}, s{sT1}, {WS_H + (j-10)*8192 + 1024*q}")
                self.paced(st)
                st.vm(f"buffer_load_dwordx4 v1, {srd(WS)}, s{sT1} offen lds", ("wd", j))
            return
        st(f"s_add_u32 m0, s{sbase}, {addr}\ns_add_u32 s{sT1}, s{sP+7}, {(7*p + t) * 16384}")
        self.paced(st)
        st.vm(f"buffer_load_dwordx4 v{vD}, {srd(WD)}, s{sT1} offen lds")
        st(f"s_add_u32 m0, s{sbase}, {addr + 1024}\ns_add_u32 s{sT1}, s{sT1}, 8192")
        self.paced(st)
        st.vm(f"buffer_load_dwordx4 v{vD}, {srd(WD)}, s{sT1} offen lds", ("wd", j))

    def wd_read(self, st, j, reg, va, off):
        for nt in range(2):
            for t in range(2):
                st.ds(f"ds_read_b64_tr_b16 {vr(reg+4*nt+2*t,2)}, v{va[nt]} offset:{off + 1024*t}", ("wdr", j))

    def wd_addr(self, st, vD, va, t0):
        st(f"v_lshrrev_b32 v{t0}, 3, v0\nv_bfe_u32 v{t0+1}, v0, 4, 1\nv_lshlrev_b32 v{t0+1}, 2, v{t0+1}\nv_and_b32 v{vD}, 7, v0")
        st(f"v_xor_b32 v{vD}, v{vD}, v{t0+1}\nv_lshlrev_b32 v{vD}, 4, v{vD}\nv_lshl_add_u32 v{vD}, v{t0}, 10, v{vD}")
        st(f"v_lshrrev_b32 v{t0}, 5, v0\nv_bfe_u32 v{t0+1}, v0, 2, 2\nv_lshl_add_u32 v{t0}, v{t0}, 2, v{t0+1}\nv_lshlrev_b32 v{t0}, 7, v{t0}")
        st(f"v_bfe_u32 v{t0+1}, v0, 3, 1\ns_and_b32 s{sT0}, s{sW}, 1\nv_xor_b32 v{t0+1}, s{sT0}, v{t0+1}\nv_lshl_add_u32 v{t0}, v{t0+1}, 6, v{t0}")
        st(f"v_bfe_u32 v{t0+1}, v0, 4, 1\nv_lshl_add_u32 v{t0}, v{t0+1}, 5, v{t0}\nv_and_b32 v{t0+1}, 3, v0\nv_lshl_add_u32 v{va[0]}, v{t0+1}, 3, v{t0}")
        st(f"v_xor_b32 v{va[1]}, 64, v{va[0]}")

    def helper_setup(self, st):
        vL, vP, vR = 1, 2, 3
        st(f"v_and_b32 v{vP}, 7, v0\ns_lshl_b32 s{sT0}, s{sW}, 3\nv_add_u32 v{vP}, s{sT0}, v{vP}\nv_lshlrev_b32 v{vP}, 7, v{vP}")
        st(f"v_lshrrev_b32 v{vR}, 3, v0\nv_lshl_add_u32 v{vP}, v{vR}, 12, v{vP}")
        vWO, vTR, vWD, vWA, GU = 4, 5, 6, (12, 13), 16
        st(f"v_lshrrev_b32 v14, 2, v0\nv_lshlrev_b32 v14, 10, v14\nv_and_b32 v15, 3, v0\nv_lshlrev_b32 v15, 4, v15")
        st(f"s_lshl_b32 s{sT0}, s{sCB}, 8\ns_lshl_b32 s{sT1}, s{sW}, 6\ns_add_u32 s{sT0}, s{sT0}, s{sT1}")
        st(f"v_add3_u32 v{vWO}, v14, v15, s{sT0}")
        st(f"s_mul_i32 s{sE}, s{sW}, {STGW}\ns_add_u32 s{sE}, s{sE}, {STG}")
        st(f"v_lshrrev_b32 v14, 5, v0\nv_lshlrev_b32 v14, 8, v14\nv_bfe_u32 v15, v0, 2, 2\nv_lshl_add_u32 v14, v15, 6, v14")
        st(f"v_bfe_u32 v15, v0, 4, 1\nv_lshl_add_u32 v14, v15, 5, v14\nv_and_b32 v15, 3, v0\nv_lshl_add_u32 v14, v15, 3, v14")
        st(f"v_add_u32 v{vTR}, s{sE}, v14")
        self.wd_addr(st, vWD, vWA, 14)
        st(f"v_add_u32 v24, s{sE}, v{vWA[0]}\nv_add_u32 v25, s{sE}, v{vWA[1]}")
        self.odd_voffsets(st, GU, 14)
        self.full_voffset(st, 43, 14)
        st(f"s_lshr_b32 s{sT0}, s{sW}, 1\ns_mul_i32 s{sP+5}, s{sT0}, {16*3584}\ns_lshr_b32 s{sT1}, s{sIDX}, 4\ns_lshl_b32 s{sT1}, s{sT1}, 1\ns_or_b32 s{sT1}, s{sT1}, s{sT0}")
        st(f"s_and_b32 s{sT2}, s{sIDX}, 1\ns_lshl_b32 s{sT2}, s{sT2}, 2\ns_or_b32 s{sP+4}, s{sT1}, s{sT2}")
        st(f"s_lshl_b32 s{sT0}, s{sT0}, 11\ns_and_b32 s{sT1}, s{sW}, 1\ns_lshl_b32 s{sT1}, s{sT1}, 12\ns_add_u32 s{sP+6}, s{sT0}, s{sT1}")
        st(f"v_lshrrev_b32 v14, 4, v0\nv_mul_u32_u24 v14, 3584, v14\nv_bfe_u32 v15, v0, 2, 2\nv_mul_u32_u24 v15, 896, v15\nv_and_b32 v{GU+4}, 3, v0")
        st(f"v_lshlrev_b32 v{GU+4}, 8, v{GU+4}\nv_add3_u32 v{GU+4}, v{GU+4}, v14, v15")
        st(f"s_mul_i32 s{sT0}, s{sW}, {28*16384}\ns_and_b32 s{sT1}, s{sIDX}, 7\ns_lshl_b32 s{sT1}, s{sT1}, 7\ns_add_u32 s{sP+7}, s{sT0}, s{sT1}")
        st(f"v_mov_b32 v26, {MISC}\nv_lshlrev_b32 v23, 7, v0\nv_lshlrev_b32 v47, 2, v0")
        st(f"s_lshl_b32 s{sT0}, s{sRB}, 4\ns_lshl_b32 s{sT1}, s{sCB}, 2\ns_add_u32 s{sT0}, s{sT0}, s{sT1}\ns_add_u32 s{sT0}, s{sT0}, s{sW}\ns_lshl_b32 s{sT1}, s{sT0}, 11\ns_lshl_b32 s{sT0}, s{sT0}, 8")
        for lo, n, sb, base in ((0, 16, sT1, WS_O), (16, 2, sT0, WS_ST), (18, 2, sT0, WS_PM)):
            st(f"s_bfm_b64 exec, {n}, {lo}\ns_add_u32 s{sT2}, s{sb}, {base - 128*lo}\nv_add_u32 v21, s{sT2}, v23")
        st(f"s_lshl_b32 s{sT0}, s{sRB}, 7\ns_add_u32 s{sT0}, s{sT0}, {WS_FLG4}\ns_lshl_b32 s{sT1}, s{sRB}, 6\ns_add_u32 s{sT1}, s{sT1}, {WS_FLG2}")
        st(f"s_bitcmp1_b32 s{sW}, 0\ns_cselect_b32 s{sT1}, s{sT0}, s{sT1}\ns_bfm_b64 exec, 44, 20\nv_mov_b32 v21, s{sT1}\ns_mov_b64 exec, -1\nv_lshlrev_b32 v22, 10, v0")
        self.h_voffset(st, 19, 14)
        st(f"v_and_b32 v14, 31, v0\nv_lshlrev_b32 v14, 10, v14\nv_lshrrev_b32 v15, 5, v0\nv_lshl_add_u32 v40, v15, 4, v14")
        st(f"v_lshrrev_b32 v14, 4, v0\nv_lshlrev_b32 v14, 7, v14\nv_bfe_u32 v15, v0, 1, 1\nv_lshl_add_u32 v14, v15, 6, v14")
        st(f"v_bfe_u32 v15, v0, 2, 2\nv_lshl_add_u32 v14, v15, 3, v14\nv_and_b32 v15, 1, v0\nv_lshl_add_u32 v14, v15, 2, v14\nv_add_u32 v42, {WBL}, v14")

    def helper_attention(self, st):
        vL, vP, vR = 1, 2, 3
        st(f"s_lshl_b32 s{sT1}, s{sG}, 12\ns_add_u32 s{sB}, s{sT1}, {WS_FLG1}")
        st(f"s_mul_i32 s{sC}, s{sW}, {2*TILE}\ns_lshl_b32 s{sD}, s{sW}, 12\ns_add_u32 s{sD}, s{sD}, {WS_KV}")
        st(f"s_cmp_lt_u32 s{sW}, 2\ns_cbranch_scc1 L_x1skip")
        st(f"s_and_b32 s{sT2}, s{sW}, 1\ns_lshl_b32 s{sT0}, s{sT2}, 4\nv_and_b32 v12, 15, v0\nv_add_u32 v12, s{sT0}, v12")
        st(f"v_lshlrev_b32 v14, 7, v12\nv_lshlrev_b32 v12, 2, v12\ns_lshl_b32 s{sT1}, s{sG}, 7\ns_add_u32 s{sT1}, s{sT1}, {WS_FLGL}")
        st(f"s_lshl_b32 s{sE}, s{sG}, 14\ns_lshl_b32 s{sT0}, s{sT2}, 13\ns_add_u32 s{sE}, s{sE}, s{sT0}\ns_add_u32 s{sE}, s{sE}, {WS_KVL}")
        st(f"s_mul_i32 s{sT0}, s{sT2}, {4*TILE}\ns_add_u32 m0, s{sT0}, {RING}")
        st(f"s_lshl_b32 s{sT0}, s{sT2}, 2\ns_add_u32 s{sT0}, s{sT0}, {MISC}\nv_mov_b32 v15, s{sT0}")
        st(f"v_mov_b32 v13, 1\ns_mov_b32 s{sCNT}, {SPINL}\ns_bfm_b64 exec, 16, 0")
        st.label("L_x1l")
        st(f"buffer_load_dword v{vR}, v12, {srd(WS)}, s{sT1} offen sc1")
        st.wait_vm()
        st(f"v_cmp_ne_u32 vcc, s{sXCC}, v{vR}\ns_cbranch_vccz L_x1a_ok")
        st(f"s_sub_u32 s{sCNT}, s{sCNT}, 1\ns_cbranch_scc0 L_x1l")
        st(f"s_mov_b64 exec, -1\ns_sub_u32 s{sE}, s{sE}, {WS_KVL - WS_KV}\nv_mov_b32 v13, 0")
        self.poll(st, "L_x1a", 14, f"s{sB}", vR, 1, exact=True, lanes=16)
        for i in range(8):
            if i in (2, 6): st("s_add_u32 m0, m0, 32\ns_nop 0")
            if i == 4: st(f"s_add_u32 m0, m0, {2*TILE - 32}\ns_add_u32 s{sE}, s{sE}, 4096")
            st(f"buffer_load_dwordx4 v{vL}, {srd(WS)}, s{sE} offen offset:{1024*(i % 4)} sc1 lds")
        self.stamp(st, "h", "w2poll", 64)
        st("ds_write_b32 v15, v13")
        st.label("L_x1skip")
        self.stamp(st, "h", "x1own")
        def chunk(c):
            st(f"s_add_u32 s{sT0}, s{sG}, {c}\ns_and_b32 s{sT0}, s{sT0}, 7\ns_lshl_b32 s{sT0}, s{sT0}, 14")
            st(f"s_add_u32 m0, s{sC}, {RING + (c % 2) * 8 * TILE}\ns_add_u32 s{sT0}, s{sT0}, s{sD}")
            for i in range(4):
                if i == 2: st("s_add_u32 m0, m0, 32\ns_nop 0")
                st.vm(f"buffer_load_dwordx4 v{vL}, {srd(WS)}, s{sT0} offen offset:{1024*i} sc1 lds", ("kv", c))
        vWO, vTR, vWD, GU = 4, 5, 6, 16
        st(f"s_mul_i32 s{sE}, s{sW}, {STGW}\ns_add_u32 s{sE}, s{sE}, {STG}")
        st(f"s_cmp_lt_u32 s{sW}, 2\ns_cbranch_scc1 L_x1skip2")
        st.wait_vm()
        st.wait_ds()
        st.label("L_x1skip2")
        self.pad(st, 1)
        st.bar("B2")
        self.stamp(st, "h", "cycB2", 32)
        st.ds(f"ds_write_b128 v7, v[8:11] offset:{8*TILE + 2048}")
        st.ds("ds_read_b64 v[28:29], v26")
        st.ds("ds_read_b32 v12, v41")
        st(f"s_mov_b32 s{sB}, {WS_FLG1}")
        self.poll(st, "L_x1b", vP, f"s{sB}", vR, 1, exact=True)
        self.stamp(st, "h", "x1a", 81)
        st.wait_ds()
        self.colo_reduce(st, 28)
        st(f"v_mov_b32 v29, s{sEP1}\nv_mov_b32 v8, -1\nv_mov_b32 v9, -1\nv_mov_b32 v10, -1\nv_mov_b32 v11, -1")
        st(f"s_setprio {self.c.hprio}")
        st(f"s_lshl_b32 s{sA}, s{sCB}, 17")
        def wo_dma(j, pos):
            st(f"s_add_u32 m0, s{sE}, {1024*pos}\ns_xor_b32 s{sT1}, s{sA}, {j*16384}")
            st.vm(f"buffer_load_dwordx4 v{vWO}, {srd(WO)}, s{sT1} offen lds", ("wo", j))
        def wo_read(j, pos):
            for t in range(2):
                st.ds(f"ds_read_b64_tr_b16 {vr(self.WOR+4*j+2*t,2)}, v{vTR} offset:{1024*pos + 512*t}")
        vT, vTD, vJ = 23, 27, 30
        incond = [False]
        def touch(buf, v, soff, lanes=64):
            if lanes < 64: st(f"s_bfm_b64 exec, {lanes}, 0")
            st.vm(f"buffer_load_dword v{vJ}, v{v}, {srd(buf)}, {soff} offen{' sc1' if buf in (WS, OUT) else ''}", "tx", cond=incond[0])
            if lanes < 64: st("s_mov_b64 exec, -1")
        def lines(name, soff, n):
            if name[0] == "T": return touch(WS, vT, soff, n)
            if n < 8: st(f"s_bfm_b64 exec, {8*n}, 0")
            for i in range(-(-n // 8)):
                if i == 4: st(f"s_add_u32 {soff}, {soff}, 4096")
                st.vm(f"buffer_store_dwordx4 v[8:11], v{vL}, {srd(WS)}, {soff} offen offset:{1024*(i % 4)} sc1")
            if n < 8: st("s_mov_b64 exec, -1")
        items = [("o", j) for j in range(32)] + [("d", j) for j in range(10)]
        staged = []
        def stage(n):
            assert not staged
            pos = 0
            while items and pos + (1 if items[0][0] == "o" else 2) <= n:
                kind, j = items.pop(0)
                if kind == "o": wo_dma(j, pos)
                else: self.wd_dma(st, j, 1024 * pos, vWD, sE)
                staged.append((kind, j, pos))
                pos += 1 if kind == "o" else 2
        def unstage():
            st.wait_vm(("w" + staged[-1][0], staged[-1][1]))
            for kind, j, pos in staged:
                if kind == "o": wo_read(j, pos)
                else: self.wd_read(st, j, self.WDR + 8 * j, (24, 25), 1024 * pos)
            st.wait_ds()
            staged.clear()
        gid = f"s_lshl_b32 s{sT0}, s{sIDX}, 2\ns_add_u32 s{sT0}, s{sT0}, s{sW}"
        cid = f"s_lshl_b32 s{sT0}, s2, 2\ns_add_u32 s{sT0}, s{sT0}, s{sW}"
        free_hi = [False]
        def op(name):
            if name[0] == "S": stage(int(name[1:]))
            elif name == "R": unstage()
            elif name[0] == "O":
                u, _, mask = name[1:].partition("^")
                assert int(u) < 6 or free_hi[0] or self.c.loose
                self.odd_pair(st, int(u), int(mask or 0), GU)
            elif name[0] == "F": self.full_unit(st, int(name[1:]), 43)
            elif name == "Tkv":
                st(f"{gid}\ns_lshl_b32 s{sT1}, s{sT0}, 10\ns_add_u32 s{sT1}, s{sT1}, {WS_KV}")
                touch(WS, vT, f"s{sT1}", 8)
            elif name == "Tmd":
                st(f"{cid}\ns_mul_i32 s{sT1}, s{sT0}, {14*128}")
                touch(WD, vT, f"s{sT1}", 14)
            elif name in ("Tmg0", "Tmg1"):
                st(f"{cid}\ns_lshr_b32 s{sT0}, s{sT0}, 1\ns_mul_i32 s{sT1}, s{sT0}, {14*128}\ns_add_u32 s{sT1}, s{sT1}, {917504*int(name[3])}")
                touch(WG, vT, f"s{sT1}", 14)
            elif name == "To":
                st(f"{gid}\ns_lshl_b32 s{sT1}, s{sT0}, 12")
                touch(WO, vT, f"s{sT1}", 32)
            elif name[:2] in ("Tf", "Tq"):
                row0 = (96 if name[1] == "f" else 0) + 256 * int(name[2:])
                st(f"{gid}\ns_lshr_b32 s{sT0}, s{sT0}, 1\ns_mul_i32 s{sT1}, s{sT0}, {4*3584}\ns_add_u32 s{sT1}, s{sT1}, {row0*3584 + (0 if name[1] == 'f' else 128)}")
                if name[1] == "q": st("s_mov_b32 exec_lo, 0x77777777\ns_mov_b32 exec_hi, 0x77777777")
                touch(WG, GU + 4, f"s{sT1}")
                if name[1] == "q": st("s_mov_b64 exec, -1")
            elif name[:2] == "Td":
                st(f"{gid}\ns_lshr_b32 s{sT1}, s{sT0}, 3\ns_and_b32 s{sT2}, s{sT1}, 3\ns_mul_i32 s{sT1}, s{sT1}, 114688\ns_and_b32 s{sT0}, s{sT0}, 7\ns_lshl_b32 s{sT0}, s{sT0}, 11")
                st(f"s_add_u32 s{sT1}, s{sT0}, s{sT1}")
                if name == "Tdf":
                    st(f"s_lshl_b32 s{sT2}, s{sT2}, 14\ns_add_u32 s{sT1}, s{sT1}, s{sT2}")
                    touch(WD, vTD, f"s{sT1}")
                else:
                    for i in range(3):
                        st(f"s_cmp_gt_u32 s{sT2}, {i}\ns_cselect_b32 s{sT0}, {i*16384}, {(i+4)*16384}\ns_add_u32 s{sT0}, s{sT0}, s{sT1}".replace(f"s_cselect_b32 s{sT0}, {i*16384}, {(i+4)*16384}", f"s_cselect_b32 s{sT0}, 0, 0x10000\ns_add_u32 s{sT0}, s{sT0}, {i*16384}"))
                        touch(WD, vT, f"s{sT0}", 16)
            elif name[:2] in ("Th", "Ph"):
                a, b = map(int, name[2:].split("-"))
                st(f"s_lshr_b32 s{sT0}, s{sIDX}, 4\ns_lshl_b32 s{sT1}, s{sG}, 1\ns_add_u32 s{sT0}, s{sT0}, s{sT1}\ns_lshl_b32 s{sT0}, s{sT0}, 2\ns_add_u32 s{sT0}, s{sT0}, s{sW}")
                st(f"s_mul_i32 s{sT0}, s{sT0}, 114688\ns_and_b32 s{sT1}, s{sIDX}, 15\ns_mul_i32 s{sT1}, s{sT1}, 7168\ns_add_u32 s{sT0}, s{sT0}, s{sT1}\ns_add_u32 s{sT0}, s{sT0}, {WS_HH + 1024*a}")
                lines(name, f"s{sT0}", 8 * (b - a))
            elif name == "Tx":
                self.h_base(st, sT0)
                touch(OUT, 22, f"s{sT0}", 16)
                touch(WS, 21, "0", 21)
            elif name in ("Cx", "Cf"):
                st(f"s_lshl_b32 s{sT0}, s{sRB}, 4\ns_lshl_b32 s{sT1}, s{sCB}, 2\ns_add_u32 s{sT0}, s{sT0}, s{sT1}\ns_add_u32 s{sT0}, s{sT0}, s{sW}")
                st.wait_vm("tx" if name == "Cx" else "cx")
                st(f"s_cmp_eq_u32 s{sCOLO}, {2 if self.c.force_slow else 1}\ns_cbranch_scc0 L_{name}s")
                for o, sc in ((st, ""), (self.tailcode, " sc1")):
                    if sc: o.label(f"L_{name}s")
                    if name == "Cx":
                        o(f"s_lshl_b32 s{sT1}, s{sT0}, 11\ns_add_u32 s{sT1}, s{sT1}, {WS_O}")
                        for q in range(2): o.vm(f"buffer_store_dwordx4 v[8:11], v{vL}, {srd(WS)}, s{sT1} offen offset:{1024*q}{sc}", "cx")
                        self.h_base(o, sT1)
                        for q in range(2):
                            o.vm(f"buffer_store_dwordx4 v[8:11], v19, {srd(OUT)}, s{sT1} offen{sc}", "cx")
                            if q == 0: o(f"s_add_u32 s{sT1}, s{sT1}, 8192")
                        o("s_bfm_b64 exec, 16, 0")
                        for base in (WS_ST, WS_PM):
                            o(f"s_lshl_b32 s{sT1}, s{sT0}, 8\ns_add_u32 s{sT1}, s{sT1}, {base}")
                            o.vm(f"buffer_store_dwordx4 v[8:11], v{vL}, {srd(WS)}, s{sT1} offen{sc}", "cx")
                    else:
                        o(f"s_lshl_b32 s{sT1}, s{sT0}, 2\ns_add_u32 s{sT1}, s{sT1}, {WS_FLG2}\ns_mov_b64 exec, 1")
                        o.vm(f"buffer_store_dword v29, off, {srd(WS)}, s{sT1}{sc}")
                    o("s_mov_b64 exec, -1")
                    if sc: o(f"s_branch L_{name}d")
                st.label(f"L_{name}d")
            elif name == "K":
                st(f"s_lshl_b32 s{sT0}, s{sG}, 9\ns_lshl_b32 s{sT1}, s{sW}, 7\ns_add_u32 s{sT0}, s{sT0}, s{sT1}\ns_add_u32 s{sT0}, s{sT0}, {WS_FLG2}\ns_setprio 2")
                self.poll(st, "L_clr", 47, f"s{sT0}", vR, 1, exact=True, lanes=32)
                st(f"s_setprio {self.c.hprio}")
            elif name == "X":
                st(f"s_lshl_b32 s{sT0}, s{sRB}, 15\ns_lshl_b32 s{sT1}, s{sCB}, 8\ns_add_u32 s{sT0}, s{sT0}, s{sT1}\ns_lshl_b32 s{sT1}, s{sW}, 6\ns_add_u32 s{sT0}, s{sT0}, s{sT1}")
                for q in range(2):
                    st.vm(f"buffer_load_dwordx4 {vr(32+4*q,4)}, v40, {srd(X)}, s{sT0} offen offset:{32*q}")
            elif name == "B":
                st(f"s_cmp_lg_u32 s{sW}, 3\ns_cbranch_scc1 L_nowb2")
                st(f"s_lshl_b32 s{sT0}, s{sCB}, 13\ns_add_u32 s{sT0}, s{sT0}, {WS_WB}\ns_mov_b32 s{sCNT}, {SPIN}\ns_setprio 2")
                st.label("L_wb")
                st(f"buffer_load_dwordx3 v[44:46], v{vT}, {srd(WS)}, s{sT0} offen sc1\ns_waitcnt vmcnt(0)")
                st(f"v_cmp_ne_u32 vcc, s{sEP1}, v46\ns_cbranch_vccz L_wb_ok\ns_sub_u32 s{sCNT}, s{sCNT}, 1\ns_cbranch_scc0 L_wb")
                st.label("L_wb_ok")
                st(f"s_setprio {self.c.hprio}\nds_write2_b32 v42, v44, v45 offset0:0 offset1:8\ns_waitcnt lgkmcnt(0)")
                st.label("L_nowb2")
            elif name == "W":
                st.wait_vm()
                self.stamp(st, "h", "drain", 16)
            else: raise KeyError(name)
        chunk(1)
        st(f"s_cmp_lg_u32 s{sW}, 1\ns_cbranch_scc1 L_nopub\ns_mov_b64 exec, 0xff")
        st.vm(f"buffer_store_dwordx4 v[244:247], v{vL}, {srd(WS)}, s{sF} offen sc1", cond=True)
        st("s_mov_b64 exec, -1")
        st.label("L_nopub")
        ints = self.c.sched.split("|")
        assert len(ints) == 8
        for c, ops in enumerate(ints):
            if c == 1:
                st(f"{cid}\ns_cmp_lg_u32 s{sT0}, 0\ns_cbranch_scc1 L_noep")
                st(f"s_mov_b32 s{sT1}, {WS_EPOCH}\ns_mov_b64 exec, 1")
                st.vm(f"buffer_store_dword v31, off, {srd(WS)}, s{sT1} sc1", cond=True)
                st("s_mov_b64 exec, -1")
                st.label("L_noep")
            plain, _, stag = ops.partition("[")
            def staggered(par):
                if not stag: return
                st(f"s_xor_b32 s{sT0}, s{sIDX}, s{sG}\ns_bitcmp1_b32 s{sT0}, 0\ns_cbranch_scc{par} L_st{c}_{par}")
                incond[0] = True
                for name in stag.rstrip("]").split(): op(name)
                incond[0] = False
                st.label(f"L_st{c}_{par}")
            staggered(0)
            for name in plain.split(): op(name)
            st.wait_vm(("kv", c + 1))
            staggered(1)
            self.stamp(st, "h", f"arrBA{c}", 2)
            st.bar(f"BA{c}")
            self.stamp(st, "h", f"cycBA{c}", 32)
            if not items and not staged: free_hi[0] = True
            if c + 2 < 8: chunk(c + 2)
        assert self.c.loose or (not items and not staged)
        st("s_setprio 2")
        self.stamp(st, "h", "BA7")

    def helper_phase_c(self, st):
        vL, XR, ACC, BRG, PM = 1, 32, 16, (4, 8, 40, 44), self.WOR
        st(f"s_lshl_b32 s{sT0}, s{sRB}, 2\ns_add_u32 s{sT0}, s{sT0}, s{sCB}\ns_lshl_b32 s{sE}, s{sT0}, 10\ns_lshl_b32 s{sT1}, s{sW}, 2\ns_add_u32 s{sE}, s{sE}, s{sT1}\ns_add_u32 s{sE}, s{sE}, {WS_ST}")
        self.h_base(st, sA)
        st(f"s_add_u32 s{sB}, s{sA}, 8192")
        st.wait_vm()
        st.bar("BC0")
        st("v_mov_b32 v13, v43\nv_mov_b32 v3, v19")
        rd = lambda j: st.ds(f"ds_read_b128 {vr(BRG[j % 4],4)}, v{vL} offset:{RING + 1024*j}", ("o", j))
        for j in range(3): rd(j)
        for b in (XR, XR + 4): st(f"v_permlane32_swap_b32 v{b}, v{b+2}\nv_permlane32_swap_b32 v{b+1}, v{b+3}")
        for r in range(8): st(f"v_lshlrev_b32 v{ACC+2*r}, 16, v{XR+r}\nv_and_b32 v{ACC+2*r+1}, 0xffff0000, v{XR+r}")
        st(f"v_add_u32 v2, {PML}, v{vL}")
        red = {25: [f"v_add_f32 v{PM}, v{PM}, v{PM+1}", f"v_add_f32 v{PM+2}, v{PM+2}, v{PM+3}", f"v_add_f32 v{PM}, v{PM}, v{PM+2}"],
               26: [f"v_mov_b32 v{PM+1}, v{PM}"], 27: [f"v_permlane32_swap_b32 v{PM}, v{PM+1}", f"v_add_f32 v{PM}, v{PM}, v{PM+1}", f"v_sub_f32 v12, v12, v{PM}"],
               28: ["v_mul_f32 v14, -0.5, v12"]}
        for m in range(32):
            if m == 8:
                self.stamp(st, "h", "own", 1024)
                st.bar("BC1a")
                self.pad(st, 2)
                self.stamp(st, "h", "x2ok", 1027)
                for j in range(8, 11): rd(j)
            st.wait_ds(("o", m))
            st(mfma32(ACC, self.WOR + 4 * m, BRG[m % 4]))
            if m in (13, 21):
                self.stamp(st, "h", f"m{m}", 1024)
                st.bar("BC1b" if m == 13 else "BC1c")
                self.stamp(st, "h", f"m{m}b", 1024)
            if m == 21: st.ds(f"ds_read_b128 {vr(PM,4)}, v2")
            if m in (15, 17) and self.c.cfull > 0: self.full_unit(st, 3, 13, (m // 17,))
            if m in (22, 24) and self.c.cfull > 1: self.full_unit(st, 4, 13, (m // 24,))
            if m + 3 < 32 and not 8 <= m + 3 < 11: rd(m + 3)
            for op in red.get(m, []): st(op)
        self.stamp(st, "h", "m31", 1024)
        st(f"s_cmp_eq_u32 s{sCOLO}, {2 if self.c.force_slow else 1}\ns_cbranch_scc0 L_c_slow")
        self.c_epilogue(st, "")
        st.label("L_c_done")
        st.nbar += 1
        self.stamp(st, "h", "hflag")
        tc = self.tailcode
        tc.label("L_c_slow")
        self.c_epilogue(tc, " sc1")
        tc("s_branch L_c_done")

    def c_epilogue(self, st, sc):
        vL, ACC, P = 1, 16, 40
        st.nop(10)
        for r in range(8):
            st(f"v_pk_add_f32 {vr(ACC+2*r,2)}, {vr(ACC+2*r,2)}, v[12:13] op_sel_hi:[1,0]")
            if r % 4 == 3:
                for i in range(r - 3, r + 1): st(f"v_cvt_pk_bf16_f32 v{P+i}, v{ACC+2*i}, v{ACC+2*i+1}")
                st(f"v_min_u32 v{P+r-3}, -2, v{P+r-3}")
                st.vm(f"buffer_store_dwordx4 {vr(P+r-3,4)}, v3, {srd(OUT)}, s{sA + r//4} offen{sc}")
        st("s_barrier                ; BC2")
        for r in range(8):
            st(f"v_dot2_f32_bf16 v15, v{P+r}, v{P+r}, {'0' if r == 0 else 'v15'}")
        st(f"s_nop 2\nv_permlane32_swap_b32 v14, v15\nv_add_f32 v2, v14, v15\nv_min_u32 v2, -2, v2")
        st.vm(f"buffer_store_dword v2, v{vL}, {srd(WS)}, s{sE} offen{sc}")

    def e_setup(self, st):
        vL, vP, vA = 1, 2, (7, 8, 9, 10)
        st(f"s_lshr_b32 s{sT0}, s{sIDX}, 3\ns_lshl_b32 s{sT1}, s{sG}, 2\ns_add_u32 s{sT0}, s{sT0}, s{sT1}\ns_lshl_b32 s{sA}, s{sT0}, 1")
        st(f"s_mul_i32 s{sT0}, s{sA}, 114688\ns_mul_i32 s{sT1}, s{sW}, {28*1024}\ns_add_u32 s{sT0}, s{sT0}, s{sT1}")
        for p in range(4): st(f"s_add_u32 s{sP+p}, s{sT0}, {WS_HH + 7168*p}")
        st(f"s_lshr_b32 s{sT2}, s{sW}, 1\ns_mul_i32 s{sT0}, s{sT2}, 114688\ns_sub_u32 s{sT1}, 114688, s{sT0}")
        st(f"v_add_u32 v{vA[0]}, s{sT0}, v{vL}\nv_add_u32 v{vA[1]}, s{sT1}, v{vL}\nv_add_u32 v{vA[2]}, 4096, v{vA[0]}\nv_add_u32 v{vA[3]}, 4096, v{vA[1]}")
        st(f"v_bfe_u32 v{vP}, v0, 2, 1\nv_lshlrev_b32 v{vP}, 7, v{vP}\nv_and_b32 v14, 3, v0\nv_lshl_add_u32 v{vP}, v14, 2, v{vP}")
        st(f"v_lshrrev_b32 v14, 3, v0\nv_lshl_add_u32 v{vP}, v14, 28, v{vP}")
        st(f"s_lshl_b32 s{sT0}, s{sA}, 7\ns_lshl_b32 s{sT1}, s{sW}, 4\ns_add_u32 s{sB}, s{sT0}, s{sT1}\ns_add_u32 s{sB}, s{sB}, {WS_FLG4}")
        st(f"s_add_u32 s{sA}, s{sA}, s{sT2}")
        st(f"s_lshl_b32 s{sT0}, s{sA}, 15\ns_lshl_b32 s{sT1}, s{sW}, 13\ns_add_u32 s{sT0}, s{sT0}, s{sT1}\ns_add_u32 s{eO}, s{sT0}, {WS_O}")
        st(f"s_add_u32 s{eO+1}, s{eO}, 4096\ns_xor_b32 s{eO+2}, s{eO}, 0x8000\ns_xor_b32 s{eO+3}, s{eO+1}, 0x8000")
        st(f"s_and_b32 s{sT0}, s{sIDX}, 7\ns_lshl_b32 s{sT0}, s{sT0}, 1\ns_and_b32 s{sT1}, s{sW}, 1\ns_add_u32 s{sT0}, s{sT0}, s{sT1}")
        st(f"s_lshl_b32 s{sC}, s{sT1}, 14\ns_lshl_b32 s{sT1}, s{sA}, 15\ns_add_u32 s{sC}, s{sC}, s{sT1}\ns_and_b32 s{sT2}, s{sIDX}, 7\ns_lshl_b32 s{sT2}, s{sT2}, 7\ns_add_u32 s{sC}, s{sC}, s{sT2}\ns_add_u32 s{sXCC}, s{sC}, 8192")
        st(f"s_lshl_b32 s{sD}, s{sT0}, 6\ns_add_u32 s{sD}, s{sD}, s{sT1}")
        st(f"s_lshl_b32 s{sF}, s{sA}, 12\ns_add_u32 s{sF}, s{sF}, {WS_ST}")
        st(f"v_and_b32 v15, 31, v0\nv_lshlrev_b32 v11, 4, v15\nv_lshlrev_b32 v14, 10, v15\nv_lshrrev_b32 v15, 5, v0\nv_lshl_add_u32 v14, v15, 4, v14")

    def helper_phase_de(self, st):
        vL, vP, vR = 1, 2, 3
        vWD, vWA, vWH, GU = 4, (12, 13), (5, 6), 192
        st(f"v_mov_b32 v{GU}, v13")
        self.wd_addr(st, vWD, vWA, 14)
        LO, HI = slot8(5), slot8(12)
        st(f"s_lshl_b32 s{sE}, s{sW}, 11\ns_add_u32 s{sT0}, s{sE}, {LO}")
        st(f"v_add_u32 v{vWA[0]}, s{sT0}, v{vWA[0]}\nv_add_u32 v{vWA[1]}, s{sT0}, v{vWA[1]}")
        st(f"v_add_u32 v{vWH[0]}, {HI - LO}, v{vWA[0]}\nv_add_u32 v{vWH[1]}, {HI - LO}, v{vWA[1]}")
        where = {}
        def dma(j, i):
            where[j] = i
            self.wd_dma(st, j, slot8(i), vWD, sE)
        def read(j, reg):
            i = where[j]
            if i < 12: self.wd_read(st, j, reg, vWA, slot8(i) - LO)
            else: self.wd_read(st, j, reg, vWH, slot8(i) - HI)
        wreg = {j: self.WDR + 8 * j for j in range(18)}
        def rd(js):
            st.wait_vm(("wd", js[-1]))
            for j in js: read(j, wreg[j])
            st.wait_ds()
        vPG, vLD, vN, CK = 200, 201, 202, 204
        st(f"s_lshl_b32 s{sT0}, s{sW}, 2\ns_add_u32 s{sT0}, s{sT0}, {LAND}\nv_mov_b32 v{vLD}, s{sT0}\nv_mov_b32 v{vPG}, {PROG}")
        def prog(n):
            if n in (3, 5, 7, 9, 20): self.stamp(st, "h", f"arr{n}", 4)
            self.lds_spin(st, f"L_pg{n}", vPG, CK, n)
        def land(tag, n):
            st(f"v_mov_b32 v{vN}, {n}")
            st.wait_vm(tag)
            st.ds(f"ds_write_b32 v{vLD}, v{vN}")
        self.e_setup(st)
        st(f"s_setprio {self.c.dprio}")
        self.pace = self.c.pace
        full = lambda u: self.full_unit(st, u, GU)
        plan = self.c.dplan.split()
        latew = [tuple(map(int, x[1:].split(">"))) for x in plan[len(plan) - self.c.nlate:]]
        for op in plan[:len(plan) - self.c.nlate]:
            a = op[1:]
            if op[0] == "F":
                if int(a) >= 3 + self.c.cfull: full(int(a))
            elif op[0] == "W": dma(*map(int, a.split(">")))
            elif op[0] == "P": prog(int(a))
            elif op[0] == "L": land(("full", int(a) - 1), int(a))
            elif op[0] == "R": rd(list(map(int, a.split(","))))
            elif op == "T":
                st(f"s_setprio {self.c.tprio}")
                self.pace = self.c.pace2
        self.stamp(st, "h", "Dhelp_end", 13)
        ACC, vA = 192, (7, 8, 9, 10)
        free = [16, 24, 32, 40]
        areg = {}
        W0 = 20
        def frags(s):
            if s < W0: return [(s, 0), (s, 1)]
            i = (s - W0) % 4
            return [(W0 + 2 * i + e, 1 if s < W0 + 4 else 0) for e in range(2)]
        def ldA(s):
            areg[s] = r = free.pop(0)
            for e, (j, mt) in enumerate(frags(s)):
                p, t = j % 4, j // 4
                if t < 2: a = f"v{vL}, {srd(WS)}, s{eO + 2*mt + p//2} offen offset:{2048*(p % 2) + 1024*t}"
                else: a = f"v{vA[mt + (2 if t >= 4 else 0)]}, {srd(WS)}, s{sP+p} offen offset:{1024*(t % 4)}"
                st.vm(f"buffer_load_dwordx4 {vr(r+4*e,4)}, {a} sc1", ("a", s))
        def gate(t):
            tc = self.near
            st.wait_vm(("poll", t))
            self.notready(st, vR, t + 1)
            st(f"s_and_b64 vcc, vcc, 0xff\ns_cbranch_scc1 L_x4s{t}")
            st.label(f"L_x4r{t}")
            tc.label(f"L_x4s{t}")
            if self.c.diag & 8: tc(f"s_bitset1_b32 s{CODE}, {t}")
            self.poll(tc, f"L_x4p{t}", vP, f"s{sB}", vR, t + 1, lanes=8)
            tc(f"s_branch L_x4r{t}")
        stg = self.stages()
        f0 = stg[0][0]
        pollat = {x[1]: x[0] for x in stg[1:]}
        gateat = {4 * stg[i][0]: stg[i + 1] for i in range(len(stg) - 1)}
        if self.c.diag & 8: st(f"s_mov_b32 s{CODE}, 0")
        assert not latew
        st(f"s_setprio {self.c.pprio}")
        self.h_voffset(st, 4, vR)
        self.poll(st, "L_x4", vP, f"s{sB}", vR, f0, lanes=8)
        if self.c.diag & 8: st(f"s_sub_u32 s{CODE}, {SPIN}, s{sCNT}\ns_lshl_b32 s{CODE}, s{CODE}, 8")
        st(f"s_setprio {self.c.eprio}")
        self.stamp(st, "h", "x4ok", 13)
        self.pace = None
        for j in range(4): ldA(j)
        nextA, nextW, DEPTH = 4, 18, self.c.edepth
        hres = None
        assert max(gateat, default=0) <= W0
        def mm(s, e, nt):
            j, mt = frags(s)[e]
            st(mfma32(ACC + 16 * (nt + 2 * mt), wreg[j] + 4 * nt, areg[s] + 4 * e, "0" if s == 0 else None))
        wneed = lambda j: j if j < W0 else W0 + (j - W0) // 2
        def more(s):
            nonlocal nextA, nextW, hres
            if nextW < 28 and wneed(nextW) <= s + 3 and free:
                st.wait_vm(("wd", nextW))
                wreg[nextW] = free.pop(0); read(nextW, wreg[nextW]); nextW += 1
            elif s in pollat:
                st.vm(f"buffer_load_dword v{vR}, v{vP}, {srd(WS)}, s{sB} offen sc1", ("poll", pollat.pop(s) - 1))
            elif nextA < 28 and nextA <= s + DEPTH and free and (nextA not in gateat or gateat[nextA][2] <= s):
                if nextA in gateat: gate(gateat[nextA][0] - 1)
                ldA(nextA); nextA += 1
            elif latew and nextA >= self.c.lateat:
                dma(*latew.pop(0))
            elif s >= 6 and hres is None and len(free) > 3:
                hres = [free.pop(0) for _ in range(3)]
                for l in hld(): st.vm(l, "h")
        hld = lambda: [f"buffer_load_dwordx4 {vr(hres[0]+4*i,4)}, v4, {srd(OUT)}, s{(sC, sXCC)[i]} offen sc1" for i in range(2)] + \
                      [f"buffer_load_dword v15, v11, {srd(WS)}, s{sF} offen sc1"]
        BUF, vX = RING, (5, 6, 12, 13)
        valu = []
        for s in range(W0 + 4):
            st.wait_vm(("a", s))
            st.wait_ds(("wdr", frags(s)[1][0]))
            if s % 4 == 0: self.stamp(st, "h", f"Et{s//4}", 8)
            if s == 13:
                st.wait_vm("h")
                self.validate(st, "L_hr", (hres[0], hres[0] + 4, 15), hres[1], hld())
                res = lambda r: hres[1 + r // 8] + r % 8
                for r in range(8):
                    valu += [f"v_lshlrev_b32 v{res(2*r)}, 16, v{hres[0]+r}", f"v_and_b32 v{res(2*r+1)}, 0xffff0000, v{hres[0]+r}"]
                valu += [f"v_add_f32 v{res(r)}, v15, v{res(r)}" for r in range(16)]
            if s == W0 + 2:
                assert nextW == 28 and not valu
                valu += [f"s_xor_b32 s{sT0}, s{sW}, {a}\ns_mul_i32 s{sT0}, s{sT0}, 12288\ns_add_u32 s{sT0}, s{sT0}, {BUF}\nv_add_u32 v{vX[a]}, s{sT0}, v{vL}" for a in range(4)]
            for i, (e, nt) in enumerate(((0, 0), (1, 0), (1, 1), (0, 1))):
                mm(s, e, nt)
                if s == W0 and i == 0:
                    if self.c.be1: st.bar("BE1")
                    else:
                        st(f"v_mov_b32 v4, {PROG}")
                        ck = free.pop(0)
                if s == W0 and i == 1 and not self.c.be1: st.ds(f"ds_read_b128 {vr(ck,4)}, v4", "ck")
                if s == W0 + 1 and i == 3 and not self.c.be1:
                    st.wait_ds("ck")
                    self.lds_min(st, ck, 30)
                    st("s_cbranch_vccnz L_mds")
                    st.label("L_mdr")
                    self.near.label("L_mds")
                    self.lds_spin(self.near, "L_md", 4, ck, 30)
                    self.near("s_branch L_mdr")
                if i < 3: more(s)
                for _ in range(2 if s < W0 else 1):
                    if valu: st(valu.pop(0))
            free.append(areg[s])
            if s < W0: free.append(wreg[s])
            if s == 15: free.append(hres[0])
            more(s)
        assert nextA == 28 and not valu, nextA
        self.stamp(st, "h", "Et6", 8)
        wr = lambda a, q: st.ds(f"ds_write_b128 v{vX[a]}, {vr(ACC+16*a+4*q,4)} offset:{4096*(a-1) + 1024*q}")
        rdp = lambda a, q: st.ds(f"ds_read_b128 {vr(ACC+16*a+4*q,4)}, v{vX[0]} offset:{4096*(a-1) + 1024*q}", ("r", a, q))
        def adds(a, q):
            st.wait_ds(("r", a, q))
            for r in range(4 * q, 4 * q + 4): st(f"v_add_f32 v{res(r)}, v{res(r)}, v{ACC+16*a+r}")
        s0 = W0 + 4
        st.wait_vm(("a", s0))
        mm(s0, 0, 1); st("s_nop 6"); mm(s0, 0, 0); wr(2, 0); wr(2, 1)
        mm(s0, 1, 1); wr(2, 2); mm(s0, 1, 0); wr(2, 3)
        st.wait_vm(("a", s0 + 1))
        for i, (e, nt) in enumerate(((0, 1), (0, 0), (1, 1), (1, 0))):
            mm(s0 + 1, e, nt); wr(3, i)
        st.wait_vm(("a", s0 + 2))
        mm(s0 + 2, 0, 1); mm(s0 + 2, 1, 1)
        st.wait_ds()
        st.bar("BE2a")
        for a in (2, 3):
            for q in range(4): rdp(a, q)
        st.wait_vm(("a", s0 + 3))
        mm(s0 + 3, 0, 1); mm(s0 + 3, 1, 1)
        mm(s0 + 2, 0, 0); adds(2, 0); mm(s0 + 2, 1, 0); adds(2, 1)
        wr(1, 0); wr(1, 1); mm(s0 + 3, 0, 0); wr(1, 2); wr(1, 3); mm(s0 + 3, 1, 0)
        self.stamp(st, "h", "Emfma_end", 13)
        adds(2, 2); adds(2, 3)
        for q in range(4): adds(3, q)
        st.wait_ds()
        st.bar("BE2b")
        for q in range(4): rdp(1, q)
        for r in range(0, 16, 2): st(f"v_pk_add_f32 {vr(ACC+r,2)}, {vr(ACC+r,2)}, {vr(res(r),2)}")
        for h in range(2):
            st.wait_ds(("r", 1, 2 * h + 1))
            b = ACC + 32 + 4 * h
            for r in range(8 * h, 8 * h + 8, 2): st(f"v_pk_add_f32 {vr(ACC+r,2)}, {vr(ACC+r,2)}, {vr(ACC+16+r,2)}")
            for r in range(4): st(f"v_cvt_pk_bf16_f32 v{b+r}, v{ACC+8*h+2*r}, v{ACC+8*h+2*r+1}")
            st(f"s_nop 1\nv_permlane32_swap_b32 v{b}, v{b+2}\nv_permlane32_swap_b32 v{b+1}, v{b+3}")
            st.vm(f"buffer_store_dwordx4 {vr(b,4)}, v14, {srd(OUT)}, s{sD} offen offset:{32*h} {self.c.outf}")
        self.pad(st, 0)
        self.stamp(st, "h", "end", 9)
        if self.c.diag & 8:
            self.nstamp["h"].append("gates")
            st(f"s_waitcnt lgkmcnt(0)\ns_mov_b32 s{sSTAMP + 2*(len(self.nstamp['h'])-1)}, s{CODE}")
        self.dump_stamps(st, "h")

    def build(self):
        p, m, h = Stream(), Stream(), Stream()
        self.prologue(p)
        m.label("L_main")
        self.main_phase_a(m); self.main_attention(m); self.main_publish_o(m); self.main_phase_d(m)
        ms = Stream()
        self.sc, self.sfx = " sc1", "_s"
        ms.label("L_main_slow")
        self.main_publish_o(ms); self.main_phase_d(ms)
        self.sc, self.sfx = "", ""
        self.helper_phase_a(h); self.helper_attention(h); self.helper_phase_c(h); self.helper_phase_de(h)
        assert m.nbar + 2 + self.c.be1 == h.nbar, (m.nbar, h.nbar)
        ref = open("hdr.ref").read().splitlines()
        hdr = [l for l in ref if l.startswith(";") and "@launch" not in l]
        o = "\n".join(hdr) + f"\n; @launch grid=(256,1,1) block=(512,1,1) lds={LDS_BYTES}\n"
        o += f'.amdgcn_target "amdgcn-amd-amdhsa--gfx950"\n.text\n.globl {NAME}_kernel\n.p2align 8\n.type {NAME}_kernel,@function\n{NAME}_kernel:\n'
        o += p.text() + "\n" + h.text() + "\nL_end:\n    s_endpgm\n" + self.near.text() + "\n" + m.text() + "\nL_codeend:\n" + self.tailcode.text() + "\n" + ms.text() + "\n"
        o += f""".section .rodata,"a"
.p2align 6
.amdhsa_kernel {NAME}_kernel
  .amdhsa_next_free_vgpr 256
  .amdhsa_next_free_sgpr 102
  .amdhsa_accum_offset 256
  .amdhsa_group_segment_fixed_size 0
  .amdhsa_kernarg_size 96
  .amdhsa_user_sgpr_count 2
  .amdhsa_user_sgpr_kernarg_segment_ptr 1
  .amdhsa_system_sgpr_workgroup_id_x 1
.end_amdhsa_kernel
"""
        return o

if __name__ == "__main__":
    import hazcheck, json
    cfg = Cfg()
    out = sys.argv[1]
    for a in sys.argv[2:]:
        k, v = a.split("=")
        setattr(cfg, k, v if k in ("sched", "dplan", "gates", "probe", "outf") else int(v))
    g = Gen(cfg)
    txt = g.build()
    open(out, "w").write(txt)
    json.dump(dict(g.nstamp, cyc=cfg.cyc) if g.nstamp else {}, open(out + ".stamps.json", "w"))
    errs = hazcheck.check(txt)
    for e in errs[:40]: print(e)
    print(len(errs), "hazard findings;", len(txt.splitlines()), "lines")
```

```python
import sys, struct
from emit import Stream, vr, sr

NAME = "sequential_preLN__grouped_kv_mqa__glu_gated_glu__prompt"

def f32(x): return hex(struct.unpack("<I", struct.pack("<f", x))[0])

WS_KV, WS_KVL, WS_FLG1, WS_FLGL, WS_FLG2, WS_FLG3, WS_FLG4 = 0x0, 0x20000, 0x40000, 0x48000, 0x50000, 0x52000, 0x54000
WS_WB, WS_ST, WS_DIAG, WS_PM, WS_O, WS_H, WS_HH, WS_SIZE = 0x58000, 0x60000, 0xA0000, 0xC0000, 0x100000, 0x300000, 0x500000, 0xC00000
TILE, RING, FS, ODD = 2080, 0, 33280, 57856
XN, WKV, WQST, NWQ = 33280, 16640, 67072, 23
LDS_BYTES = 163840
PML, WBL, MISC = 156160, 163072, 163584
PROG, LAND, XC, WC = MISC + 160, MISC + 176, MISC + 192, MISC + 208
STGW = 14336
STG = WBL - 4 * STGW
def slot8(i): return RING + 8192 * i if i < 4 else FS + 8192 * (i - 4)
FSLOT = (4, 5, 6, 0, 1, 2, 3, 4, 5, 7, 6, 0, 1, 2, 3, 4)
def tile_of(c, i): return (i if i < c else i + 4) if i < 3 else c + i - 3
X, WQ, WKVS, WO, WG, WU, WD, OUT, DBG, WS = 4, 8, 12, 16, 20, 24, 28, 32, 36, 40
sG, sIDX, sRB, sCB, sW, sXCC = 44, 45, 46, 47, 48, 49
sT0, sT1, sT2, sT3, sCNT = 50, 51, 52, 53, 54
sA, sB, sC, sD, sE = 55, 56, 57, 58, 59
sONE, sLO, sHI = 60, 61, 62
sF = 63
CODE = 64
sP = 68
mO, mPM, mF2, mF3, mF4, mST, mHH0, mHH1, mRB, mCHK, mHO, mKG, mKL, mFG, mFL = range(20, 35)
MOUT = WO
eO = WQ
sSTAMP = 76
SPIN = 1 << 17
SPINL = 96
sCOLO = 3
WS_EPOCH = 0x48400
sEP = DBG
sEP1 = DBG + 1
def srd(b): return sr(b, 4)

class Cfg:
    diag = False
    tail = 7
    force_fallback = False
    force_slow = False
    npre = 6
    nearly = 80
    tq = 8
    ndeep = 12
    sec = 2
    wo_early = 2
    lfat = 4
    gfat = 5
    jx = 8
    pace = 4
    lag = 16
    wpos = '1,3,6,8,11,13,16,18,20,22,24,26'
    kv2 = 0
    hfirst = 0
    mprio = 1
    tm = 0
    tkv = 1
    wcat = 1
    nh = 0
    nb = 0
    nmore = 0
    x1late = 0
    align = 0
    lalign = 6
    pmat = 2
    g2early = 1
    stat = 0
    d2 = 0
    d3 = 32
    nlate = 0
    lateat = 8
    wafter = 0
    wper = 4
    la = 7
    cfull = 2
    pprio = 2
    fexec = 0
    dplan = ("P1 F3 F4 F5 F6 L5 P2 F7 P3 F8 L7 F9 P4 F10 L9 W10>8 P5 F11 W11>9 P6 F12 P7 F13 W12>10 R10,11 W13>8 W14>9 P8 F14 W15>11 "
             "P9 F15 T W16>12 R12,13,14 W17>8 L16 W18>9 W19>10 R15,16 W20>11 W21>12 R17 W22>8 P20 W23>13 W24>14 W25>15 W26>16 W27>17")
    gates = "2,4:2:5,7:9:12"
    lagp = 10
    tprio = 0
    eprio = 0
    fake = 0
    cyc = 0
    dprio = 0
    pace2 = 5
    loose = 0
    hprio = 0
    nt = 0
    swap = 1
    abatch = 1
    edepth = 5
    etile = 5
    sched = "Tkv S6|R S14 X Tmd Tmg0 Tmg1|R S6|R S14 O0^2 F0|R S12 O2^2 O4 R|O8^6 O10^6 Tx|O12^6 O14^6 O6 Cx|F1 F2 Cf B K"
    padto = 0
    padat = 0
    padwg = -1
    probe = ''
    outf = ''
    hhplain = 2

def mfma32(d, a, b, c=None):
    return f"v_mfma_f32_32x32x16_bf16 {vr(d,16)}, {vr(a,4)}, {vr(b,4)}, {vr(d,16) if c is None else c}"
def mfma16(d, a, b, c=None):
    return f"v_mfma_f32_16x16x32_bf16 {vr(d,4)}, {vr(a,4)}, {vr(b,4)}, {vr(d,4) if c is None else c}"
def smf(d, a, b, idx):
    return f"v_smfmac_f32_32x32x32_bf16 {vr(d,16)}, {vr(a,4)}, {vr(b,8)}, v{idx}"

class Gen:
    def __init__(self, cfg):
        self.c = cfg
        self.tailcode = Stream()
        self.near = Stream()
        self.nstamp = {}

    sc, sfx = "", ""

    def stamp(self, st, role, name, level=1):
        if self.c.probe and not self.sc:
            r, a, b, kind = self.c.probe.split(",")
            op = "s_memtime" if kind == "c" else "s_memrealtime"
            if role == r and name == "start": st("s_memrealtime s[100:101]")
            if role == r and name == a: st(f"{op} s[96:97]")
            if role == r and name == b: st(f"{op} s[94:95]")
            if role == r and name == "end":
                if self.c.padwg >= 0: st(f"s_cmp_lg_u32 s2, {self.c.padwg}\ns_cbranch_scc1 L_prbx")
                st("s_waitcnt lgkmcnt(0)\ns_sub_u32 s94, s94, s96")
                st("s_lshr_b32 s94, s94, 1" if kind == "c" else "s_mul_i32 s94, s94, 10")
                st("s_add_u32 s94, s94, 6000")
                st.label("L_prb")
                st("s_memrealtime s[98:99]\ns_waitcnt lgkmcnt(0)\ns_sub_u32 s98, s98, s100\ns_cmp_lt_u32 s98, s94\ns_cbranch_scc1 L_prb")
                st.label("L_prbx")
        if not (self.c.diag & level) or self.sc: return
        l = self.nstamp.setdefault(role, [])
        i = len(l); l.append(name)
        assert i < 13
        st(f"{'s_memtime' if name.startswith('cyc') or self.c.cyc else 's_memrealtime'} {sr(sSTAMP + 2*i, 2)}")

    def dump_stamps(self, st, role):
        if not self.c.diag or self.sc: return
        n = len(self.nstamp[role])
        st("s_waitcnt lgkmcnt(0)")
        st(f"s_lshl_b32 s{sT0}, s2, 3\ns_add_u32 s{sT0}, s{sT0}, s{sW}")
        st(f"s_add_u32 s{sT0}, s{sT0}, {4 if role == 'h' else 0}\ns_lshl_b32 s{sT0}, s{sT0}, 6\ns_add_u32 s{sT0}, s{sT0}, {WS_DIAG}")
        for i in range(n):
            st(f"v_mov_b32 v1, s{sSTAMP + 2*i}")
            st(f"buffer_store_dword v1, off, {srd(WS)}, s{sT0} offset:{4*i}")
        st("s_waitcnt vmcnt(0)")

    def notready(self, st, vdst, need):
        st(f"v_subrev_u32 v{vdst}, s{sEP}, v{vdst}")
        st(f"v_subrev_u32 v{vdst}, {need}, v{vdst}")
        st(f"v_cmp_lt_u32 vcc, {15 - need}, v{vdst}")

    def poll(self, st, name, vaddr, soff, vdst, need, exact=False, lanes=64):
        st(f"s_mov_b32 s{sCNT}, {SPIN}")
        if lanes < 64: st(f"s_bfm_b64 exec, {lanes}, 0")
        st.label(name)
        st(f"buffer_load_dword v{vdst}, v{vaddr}, {srd(WS)}, {soff} offen sc1")
        st.wait_vm()
        if exact: st(f"v_cmp_ne_u32 vcc, s{sEP1}, v{vdst}")
        else: self.notready(st, vdst, need)
        st(f"s_cbranch_vccz {name}_ok")
        st(f"s_sub_u32 s{sCNT}, s{sCNT}, 1")
        st(f"s_cbranch_scc0 {name}")
        st.label(name + "_ok")
        if lanes < 64: st("s_mov_b64 exec, -1")

    def pad(self, st, at):
        if not self.c.padto or self.c.padat != at: return
        if self.c.padwg >= 0: st(f"s_cmp_lg_u32 s2, {self.c.padwg}\ns_cbranch_scc1 L_padx")
        st.label("L_pad")
        st("s_memrealtime s[98:99]\ns_waitcnt lgkmcnt(0)\ns_sub_u32 s98, s98, s100")
        st(f"s_cmp_lt_u32 s98, {self.c.padto * 100}\ns_cbranch_scc1 L_pad")
        st.label("L_padx")

    def lds_min(self, st, r, need):
        st(f"v_min3_u32 v{r}, v{r}, v{r+1}, v{r+2}\nv_min_u32 v{r}, v{r}, v{r+3}\nv_cmp_gt_u32 vcc, {need}, v{r}")

    def lds_spin(self, st, name, va, r, need, sleep=0):
        st(f"s_mov_b32 s{sCNT}, {SPIN * 16}")
        st.label(name)
        st(f"ds_read_b128 {vr(r,4)}, v{va}")
        st.wait_ds()
        self.lds_min(st, r, need)
        st(f"s_cbranch_vccz {name}_ok")
        if sleep: st(f"s_sleep {sleep}")
        st(f"s_sub_u32 s{sCNT}, s{sCNT}, 1\ns_cbranch_scc0 {name}")
        st.label(name + "_ok")

    def validate(self, st, name, regs, tmp, reload, inline=False):
        def test(o):
            r = list(regs)
            while len(r) > 1:
                if len(r) > 2: o(f"v_max3_u32 v{tmp}, v{r[0]}, v{r[1]}, v{r[2]}"); r = [tmp] + r[3:]
                else: o(f"v_max_u32 v{tmp}, v{r[0]}, v{r[1]}"); r = [tmp]
            o(f"v_cmp_eq_u32 vcc, -1, v{r[0]}")
        name += self.sfx
        test(st)
        if inline:
            st(f"s_cbranch_vccz {name}r")
            o = st
        else:
            st(f"s_cbranch_vccnz {name}s")
            st.label(name + "r")
            o = self.tailcode if self.sc else self.near
            o.label(name + "s")
        o(f"s_mov_b32 s{sCNT}, {SPIN}")
        o.label(name + "l")
        if self.c.diag & 512 and not self.sc: o(f"s_add_u32 s{CODE}, s{CODE}, {1 if name[2] == 'g' else 256 if name == 'L_a0' else 65536}")
        for l in reload: o(l)
        o("s_waitcnt vmcnt(0)")
        test(o)
        o(f"s_cbranch_vccz {name}r\ns_sub_u32 s{sCNT}, s{sCNT}, 1\ns_cbranch_scc0 {name}l")
        if inline: st.label(name + "r")
        else: o(f"s_branch {name}r")

    def epoch_load(self, st):
        st(f"s_load_dword s{sEP}, {sr(WS,2)}, {WS_EPOCH}")

    def epoch_make(self, st):
        st(f"s_and_b32 s{sEP}, s{sEP}, 0xfffffff0\ns_add_u32 s{sEP}, s{sEP}, 0x9e3779b0\ns_add_u32 s{sEP1}, s{sEP}, 1")

    def srds(self, st, lst):
        for b, n in lst: st(f"s_mov_b32 s{b+2}, {n}\ns_mov_b32 s{b+3}, 0x20000")

    def prologue(self, st):
        st(f"s_load_dwordx2 {sr(X,2)}, s[0:1], 0\ns_lshr_b32 s{sT2}, s2, 1\ns_and_b32 s{sT2}, s{sT2}, 8\ns_add_u32 s{sT2}, s{sT2}, 16")
        st(f"s_load_dwordx2 {sr(WKVS,2)}, s[0:1], s{sT2}\ns_load_dwordx2 {sr(WS,2)}, s[0:1], 88")
        st("s_cmpk_ge_u32 s2, 256\ns_cbranch_scc1 L_end")
        st(f"s_getpc_b64 {sr(CODE,2)}")
        st.label("L_pc")
        st(f"v_readfirstlane_b32 s{sT0}, v0\ns_lshr_b32 s{sIDX}, s2, 3\ns_lshl_b32 s{sT1}, s{sIDX}, 11")
        st(f"s_mov_b32 s{CODE+2}, L_codeend-L_pc\ns_mov_b32 s{CODE+3}, 0x20000\nv_lshrrev_b32 v1, 5, v0\nv_lshlrev_b32 v1, 7, v1")
        st(f"buffer_load_dword v255, v1, {srd(CODE)}, s{sT1} offen")
        st(f"s_and_b32 s{sG}, s2, 7\ns_lshr_b32 s{sT1}, s{sIDX}, 2\ns_lshl_b32 s{sRB}, s{sG}, 3\ns_add_u32 s{sRB}, s{sRB}, s{sT1}")
        st(f"s_and_b32 s{sCB}, s{sIDX}, 3\ns_bfe_u32 s{sW}, s{sT0}, 0x20006\nv_and_b32 v0, 63, v0")
        st(f"s_cmpk_lt_u32 s{sT0}, 256\ns_cbranch_scc{1 - self.c.hfirst} L_main")

    def main_phase_a(self, st):
        self.stamp(st, "m", "start", 4095)
        vD, vTR, vXB, vXC = 2, 3, 4, 5
        XR, ACC = 112, 144
        st.vq.append((None, False))
        if self.c.mprio: st(f"s_setprio {self.c.mprio}")
        st(f"s_load_dwordx2 {sr(WQ,2)}, s[0:1], 8\ns_load_dwordx2 {sr(MOUT,2)}, s[0:1], 72")
        st(f"v_and_b32 v12, 15, v0\nv_lshlrev_b32 v12, 2, v12\nv_add_u32 v12, {PROG}, v12\nv_mov_b32 v13, 0\nds_write_b32 v12, v13")
        self.srds(st, ((WQ, 524288), (WKVS, 16384), (WS, WS_SIZE)))
        st(f"s_mov_b32 s{sONE}, 0x3f803f80")
        st(f"v_lshrrev_b32 v10, 2, v0\nv_lshlrev_b32 v10, 10, v10\nv_and_b32 v11, 3, v0\nv_lshlrev_b32 v17, 7, v0\nv_lshlrev_b32 v11, 4, v11")
        st(f"s_lshl_b32 s{sT0}, s{sCB}, 8\ns_lshl_b32 s{sT1}, s{sW}, 6\ns_add_u32 s{sT0}, s{sT0}, s{sT1}")
        st(f"v_add3_u32 v{vD}, v10, v11, s{sT0}\nv_lshlrev_b32 v{self.vK}, 4, v0")
        st(f"s_mul_i32 s{sA}, s{sW}, {NWQ*1024}\ns_add_u32 s{sA}, s{sA}, {WQST}")
        st(f"s_lshr_b32 s{sB}, s{sIDX}, 2\ns_lshl_b32 s{sC}, s{sB}, 16")
        st(f"s_lshl_b32 s{sT0}, s{sB}, 1\ns_and_b32 s{sT1}, s{sCB}, 1\ns_add_u32 s{sT0}, s{sT0}, s{sT1}\ns_lshl_b32 s{sT0}, s{sT0}, 2\ns_add_u32 s{sT0}, s{sT0}, s{sW}\ns_lshl_b32 s{sT0}, s{sT0}, 8")
        st(f"s_lshl_b32 s{sT1}, s{sIDX}, 2\ns_add_u32 s{sT1}, s{sT1}, s{sW}\ns_lshl_b32 s{sT2}, s{sT1}, 7\ns_mul_i32 s{sT1}, s{sT1}, {128 * self.c.tq if self.c.nh else 4096}")
        st(f"s_lshl_b32 s{sT3}, s{sG}, 14\ns_add_u32 s{sT2}, s{sT2}, s{sT3}\ns_add_u32 s{sT2}, s{sT2}, {WS_KVL}\ns_lshl_b32 s{sT3}, s{sG}, 7\ns_add_u32 s{sT3}, s{sT3}, {WS_FLGL}")
        st("s_waitcnt lgkmcnt(0)")
        self.epoch_load(st)
        if self.c.tm < 2: st.bar("B00")
        st("s_mov_b64 exec, 3")
        if self.c.tkv: st.vm(f"buffer_load_dword v254, v17, {srd(WKVS)}, s{sT0} offen")
        st("s_mov_b64 exec, 1")
        st.vm(f"buffer_load_dword v253, off, {srd(WS)}, s{sT2} sc1")
        st.vm(f"buffer_load_dword v252, off, {srd(WS)}, s{sT3} sc1")
        if self.c.tm: st(f"s_lshl_b32 s{sT1}, s2, 2\ns_add_u32 s{sT1}, s{sT1}, s{sW}\ns_lshl_b32 s{sT1}, s{sT1}, 9")
        st(f"s_bfm_b64 exec, {4 if self.c.tm else self.c.tq}, 0")
        st.vm(f"buffer_load_dword v248, v17, {srd(WQ)}, s{sT1} offen")
        st("s_mov_b64 exec, -1")
        if self.c.tm == 2: st.bar("B00")
        st(f"v_lshrrev_b32 v10, 5, v0\nv_lshlrev_b32 v11, 9, v10\nv_bfe_u32 v13, v0, 2, 2\nv_lshl_add_u32 v11, v13, 6, v11")
        st(f"v_bfe_u32 v13, v0, 4, 1\nv_lshl_add_u32 v11, v13, 5, v11\nv_and_b32 v13, 3, v0\nv_lshl_add_u32 v11, v13, 3, v11")
        st(f"v_add_u32 v{vTR}, s{sA}, v11")
        st(f"v_mul_u32_u24 v11, 528, v10\nv_and_b32 v13, 31, v0\nv_lshl_add_u32 v11, v13, 4, v11\nv_add_u32 v{vXB}, {XN}, v11")
        st(f"v_mov_b32 v18, {XC}\nv_lshlrev_b32 v16, 2, v0")
        self.kv_addr(st)
        late = Stream()
        self.main_scalars(st, late)
        self.attn_setup(late)
        for l in late.lines[:self.c.nearly]: st(l)
        late.lines = late.lines[self.c.nearly:]
        st("s_waitcnt lgkmcnt(0)")
        self.epoch_make(st)
        st(f"s_getreg_b32 s{sXCC}, hwreg(HW_REG_XCC_ID, 0, 4)\ns_add_u32 s{sXCC}, s{sXCC}, s{sEP}")
        st.bar("B0")
        self.stamp(st, "m", "B0", 64)
        nh, nb = self.c.nh, self.c.nb
        assert nh in (0, self.c.tq)
        gs = (32 - nh) // 8
        rot = [(a, nh + b) for a in range(8) for b in range(gs)]
        seq = [(None, k) for k in range(nb)] + rot[:gs] + [(None, k) for k in range(nb, nh)] + rot[gs:]
        def dma(j):
            a, k = seq[j]
            st(f"s_add_u32 m0, s{sA}, {(j % NWQ)*1024}")
            if a is None: st(f"s_mov_b32 s{sT1}, {k*16384}")
            elif nh == 0: st(f"s_xor_b32 s{sT1}, s{sC}, {j*16384}")
            else: st(f"s_xor_b32 s{sT1}, s{sB}, {a}\ns_mul_i32 s{sT1}, s{sT1}, {gs*16384}\ns_add_u32 s{sT1}, s{sT1}, {k*16384}")
            st.vm(f"buffer_load_dwordx4 v{vD}, {srd(WQ)}, s{sT1} offen lds", ("wq", j))
        nd = self.c.npre
        for j in range(nd): dma(j)
        self.stamp(st, "m", "pre", 64)
        st(f"s_cmp_gt_u32 s{sW}, {self.c.kv2}\ns_cbranch_scc1 L_nokv")
        self.kv_job(st)
        st.label("L_nokv")
        st.vq += [(None, True)] * 2
        for _ in range(self.c.nmore): dma(nd); nd += 1
        fill = [f"v_mov_b32 v{self.vVAL}, s{sEP1}"] + late.lines
        JX, NWR = self.c.jx, 20
        wreg = lambda j: 168 + 4 * (j % NWR)
        nx = nm = 0
        def rdx():
            nonlocal nx
            a, k = seq[nx]
            if a is not None and k == nh:
                st(f"s_xor_b32 s{sT1}, s{sB}, {a}\ns_mul_i32 s{sT1}, s{sT1}, {gs*1056}\nv_add_u32 v{vXC}, s{sT1}, v{vXB}")
            st.ds(f"ds_read_b128 {vr(XR+4*(nx % 8),4)}, v{vXB if a is None else vXC} offset:{k*1056}", ("x", nx)); nx += 1
        def mm():
            nonlocal nm
            st.wait_ds(("x", nm)); st.wait_ds(("w", nm))
            st(mfma32(ACC, wreg(nm), XR + 4 * (nm % 8), "0" if nm == 0 else None))
            nm += 1
            if nx < 32: rdx()
            for _ in range(2):
                if fill: st(fill.pop(0))
            if nm in (9, 20): self.stamp(st, "m", f"q{nm}", 64)
        for j in range(32):
            if j == JX:
                self.lds_spin(st, "L_xc", 18, 20, 3, sleep=1)
                self.stamp(st, "m", "B1m", 2113)
                for _ in range(4): rdx()
            assert j - nm < NWR
            if j == self.c.lfat: self.kv_flag(st, 0, nd - self.c.npre + 1)
            if j == self.c.gfat: self.kv_flag(st, 1, nd - self.c.npre + 1)
            st.wait_vm(("wq", j))
            if j % 4 == 3 or j == 0: self.stamp(st, "m", f"j{j}", 2048)
            o = (j % NWQ) * 1024
            st.ds(f"ds_read_b64_tr_b16 {vr(wreg(j),2)}, v{vTR} offset:{o}")
            st.ds(f"ds_read_b64_tr_b16 {vr(wreg(j)+2,2)}, v{vTR} offset:{o+256}", ("w", j))
            if nd < 32 and nd - NWQ <= j - 2:
                if nd >= NWQ: st.wait_ds(("w", nd - NWQ))
                dma(nd); nd += 1
                if j >= self.c.gfat and nd < min(NWQ, j + self.c.ndeep): dma(nd); nd += 1
            if j >= JX:
                for _ in range(2):
                    if nm < j - 1: mm()
        while nm < 32: mm()
        assert nd == 32
        assert not fill
        self.stamp(st, "m", "Qdone", 2113)

    S, Q, O, KVB, vIDX, vK, vV0, vV1 = (16, 32), 48, (56, 72), (88, 100), 6, 7, 8, 9

    def attn_setup(self, st):
        st(f"v_mov_b32 v{self.vIDX}, 0xdddddddd")
        st("v_and_b32 v12, 31, v0\nv_lshrrev_b32 v13, 5, v0\nv_lshl_add_u32 v13, v13, 4, v12\nv_lshlrev_b32 v13, 4, v13")
        st("v_and_b32 v14, 27, v0\nv_cmp_eq_u32 vcc, 16, v14\nv_mov_b32 v14, 2064\nv_mov_b32 v15, 2048")
        st("v_cndmask_b32 v14, v14, v15, vcc")
        st("v_cmp_gt_u32 vcc, 16, v12\nv_add_u32 v15, 1024, v13\nv_add_u32 v13, 1536, v13")
        st(f"v_cndmask_b32 v{self.vV0}, v14, v15, vcc\nv_cndmask_b32 v{self.vV1}, v14, v13, vcc")
        st(f"v_mov_b32 v10, {MISC}")
        for r in range(32): st(f"v_mov_b32 v{self.O[0]+r}, 0")
        for r in range(8): st(f"v_mov_b32 v{self.S[1]+8+r}, 0")
        for r in range(4): st(f"v_mov_b32 v{self.KVB[1]+8+r}, 0")

    vFZ, vVAL, vOW, vWB, vL4, vPW = 160, 161, 162, 163, 164, 165

    def main_scalars(self, st, late):
        st(f"s_lshl_b32 s{sT0}, s{sRB}, 4\ns_lshl_b32 s{sT1}, s{sCB}, 2\ns_add_u32 s{sT0}, s{sT0}, s{sT1}\ns_add_u32 s{sT2}, s{sT0}, s{sW}")
        st(f"s_lshl_b32 s{mO}, s{sT2}, 11\ns_add_u32 s{mO}, s{mO}, {WS_O}")
        st(f"s_lshl_b32 s{mPM}, s{sT2}, 8\ns_add_u32 s{mPM}, s{mPM}, {WS_PM}")
        st(f"s_lshr_b32 s{sT0}, s{sIDX}, 4\ns_lshl_b32 s{sT1}, s{sG}, 1\ns_add_u32 s{sT1}, s{sT1}, s{sT0}\ns_lshl_b32 s{sT1}, s{sT1}, 2\ns_add_u32 s{mRB}, s{sT1}, s{sW}")
        st(f"s_lshl_b32 s{sT1}, s{mRB}, 15")
        for i in range(4): st(f"s_add_u32 s{sP+i}, s{sT1}, {8192*i}")
        self.srds(st, ((MOUT, 2097152),))
        st(f"s_lshl_b32 s{mST}, s{mRB}, 12\ns_add_u32 s{mST}, s{mST}, {WS_ST}")
        st(f"s_and_b32 s{sT0}, s{sIDX}, 15\ns_mul_i32 s{mHH0}, s{mRB}, 114688\ns_mul_i32 s{sT1}, s{sT0}, 7168")
        st(f"s_add_u32 s{mHH0}, s{mHH0}, s{sT1}\ns_add_u32 s{mHH0}, s{mHH0}, {WS_HH}\ns_add_u32 s{mHH1}, s{mHH0}, 4096")
        st(f"s_lshl_b32 s{mHO}, s{sT0}, 11\ns_add_u32 s{mHO}, s{mHO}, s{sP}\ns_add_u32 s{mHO}, s{mHO}, {WS_O}")
        st(f"s_lshl_b32 s{sT1}, s{mRB}, 7\ns_lshl_b32 s{sT0}, s{sT0}, 2\ns_add_u32 s{mF4}, s{sT1}, s{sT0}\ns_add_u32 s{mF4}, s{mF4}, {WS_FLG4}")
        st(f"s_mov_b32 s{mCHK}, 0")
        st(f"s_lshl_b32 s{sD}, s{sW}, 11\ns_lshl_b32 s{sE}, s{sW}, 7\ns_add_u32 s{sE}, s{sE}, {WBL}")
        late(f"v_cmp_eq_u32 vcc, 0, v0\nv_mov_b32 v{self.vFZ}, 0x80000000\nv_add_u32 v{self.vOW}, s{sD}, v{self.vK}\nv_cndmask_b32_e64 v{self.vFZ}, v{self.vFZ}, 0, vcc")
        late(f"v_lshrrev_b32 v13, 5, v0\nv_lshlrev_b32 v14, 6, v13\nv_add_u32 v{self.vWB}, s{sE}, v14")
        st(f"s_lshl_b32 s{mF2}, s{sW}, 2\ns_add_u32 s{mF2}, s{mF2}, {PML}")
        late(f"v_lshlrev_b32 v{self.vL4}, 2, v0\nv_add_u32 v{self.vPW}, s{mF2}, v{self.vK}")

    def colo_reduce(self, st, r):
        st(f"v_and_b32 v{r}, v{r}, v{r+1}\ns_nop 0")
        st(f"v_readfirstlane_b32 s{sCOLO}, v{r}")

    def main_attention(self, st):
        S, Q, O, KVB = self.S, self.Q, self.O, self.KVB
        buf = lambda t: KVB[t % 2]
        off = lambda t: (t % 16) * TILE
        rdK = lambda t: f"ds_read_b128 {vr(buf(t),4)}, v{self.vK} offset:{off(t)}"
        rdV0 = lambda t: f"ds_read_b128 {vr(buf(t)+4,4)}, v{self.vV0} offset:{off(t)}"
        rdV1 = lambda t: f"ds_read_b128 {vr(buf(t)+8,4)}, v{self.vV1} offset:{off(t)}"
        body = []
        for t in range(16):
            for q in range(2):
                cur, nxt = S[q], S[1 - q]
                e = [f"v_exp_f32 v{cur+i}, v{cur+i}" for i in range(16)]
                tp = t - 1 if q == 0 else t
                pv1 = smf(O[1 - q], buf(tp) + 8, nxt + 8, self.vIDX)
                qk = mfma32(nxt, buf(t + q), Q + 4 * (1 - q), "0")
                pv0 = smf(O[q], buf(t) + 4, cur, self.vIDX)
                if q == 0:
                    f0, f1, f2 = [rdV1(t + 1)], [], []
                    if t == 1: f2 = [f"s_sub_u32 s{sA}, s{sA}, 1"]
                else:
                    f0, f1, f2 = ["s_waitcnt lgkmcnt(0)"], [rdK(t + 2)], [rdV0(t + 2)]
                    if t % 8 == 6: f0.append("s_barrier                ; BA")
                body += e[0:2] + [pv1] + f0 + e[2:5] + [qk] + f1 + e[5:11] + [pv0] + f2 + e[11:16]
        nhead = 2 + 1 + 1 + 3 + 1
        head, rest = body[:nhead], body[nhead:]
        st.bar("B2")
        self.stamp(st, "m", "B2", 83)
        self.stamp(st, "m", "cyc0", 32)
        for s in (rdK(0), "ds_read_b64 v[12:13], v10", rdV0(0), rdV1(0), rdK(1), rdV0(1)): st(s)
        st(f"s_mov_b32 s{sA}, 3")
        st.nop(4)
        cv = [f"v_cvt_pk_bf16_f32 v{Q + r}, v{144+2*r}, v{144+2*r+1}" for r in range(8)]
        st("\n".join(cv[:5]))
        st("s_waitcnt lgkmcnt(4)")
        st(mfma32(S[0], buf(0), Q, "0"))
        st("\n".join(cv[5:]))
        self.colo_reduce(st, 12)
        st("s_waitcnt lgkmcnt(0)")
        if self.c.align:
            st(f"s_branch L_al\n.p2align {self.c.align}")
            st.label("L_al")
            st.nop(4)
        else: st.nop(5)
        st("\n".join(head))
        if self.c.lalign: st(f".p2align {self.c.lalign}")
        st.label("L_attn")
        st("\n".join(rest + head))
        st("s_cbranch_scc0 L_attn")
        st.nbar += 8
        self.stamp(st, "m", "attn_end", 1043)
        self.stamp(st, "m", "cyc1", 32)
        st.label("L_norm")
        st(f"s_cmp_eq_u32 s{sCOLO}, {2 if self.c.force_slow else 1}\ns_cbranch_scc0 L_main_slow")
        self.fallback()

    def main_publish_o(self, st):
        O, T, WB, sc = self.O, 192, 176, self.sc
        if self.c.diag & 512: st(f"s_mov_b32 s{CODE}, 0")
        st(f"v_rcp_f32 v{T+8}, v{O[0]+8}\ns_movk_i32 s{sT0}, 0x207")
        for r in range(8): st(f"v_mul_f32 v{O[0]+r}, v{T+8}, v{O[0]+r}")
        st(f"v_rcp_f32 v{T+8}, v{O[1]+8}")
        st(f"v_min_f32 v{T+12}, v{O[0]+8}, v{O[1]+8}\nv_add_f32 v{T+13}, v{O[0]+8}, v{O[1]+8}")
        for r in range(0, 8, 2): st(f"v_pk_mul_f32 {vr(O[1]+r,2)}, {vr(O[1]+r,2)}, {vr(T+8,2)} op_sel_hi:[1,0]")
        for r in range(0, 8, 2): st(f"v_pk_fma_f32 {vr(T+10,2)}, {vr(O[0]+r,2)}, {vr(O[1]+r,2)}, {vr(T+10,2) if r else 0}".replace(", 0", ", 0 op_sel_hi:[1,1,0]"))
        st(f"v_cmp_nle_f32 vcc, {f32(2.0**-64)}, v{T+12}")
        st(f"v_add_f32 v{T+10}, v{T+10}, v{T+11}")
        st(f"v_cmp_class_f32_e64 {sr(sT2,2)}, v{T+10}, s{sT0}")
        st(f"s_or_b64 {sr(sT2,2)}, {sr(sT2,2)}, vcc")
        st(f"v_cmp_nge_f32 vcc, {f32(2.0**64)}, v{T+13}")
        for r in range(4): st(f"v_cvt_pk_bf16_f32 v{T+r}, v{O[0]+2*r}, v{O[0]+2*r+1}")
        st(f"s_or_b64 {sr(sT2,2)}, {sr(sT2,2)}, vcc")
        if self.c.force_fallback: st(f"s_or_b64 {sr(sT2,2)}, {sr(sT2,2)}, 1")
        st(f"s_cbranch_scc1 L_unsafe{self.sfx}")
        st.label("L_safe" + self.sfx)
        self.stamp(st, "m", "safe", 1024)
        tc = self.tailcode
        tc.label("L_unsafe" + self.sfx)
        tc(f"s_waitcnt lgkmcnt(0)\ns_cmp_eq_u32 s{mCHK}, 0\ns_cbranch_scc1 L_fallback")
        tc(f"v_min_u32 v{T}, -2, v{T}\nv_cmp_o_f32 vcc, v{O[1]}, v{O[1]}\nv_mov_b32 v{T+9}, 0x7fc00000\ns_nop 0\nv_cndmask_b32 v{O[1]}, v{T+9}, v{O[1]}, vcc")
        tc(f"s_branch L_safe{self.sfx}")
        sto = lambda q: st.vm(f"buffer_store_dwordx4 {vr(T+4*q,4)}, v{self.vK}, {srd(WS)}, s{mO} offen offset:{1024*q}{sc}")
        sto(0)
        for i in range(4): st(f"ds_read_b128 {vr(WB+4*i,4)}, v{self.vWB} offset:{16*i}")
        for r in range(4): st(f"v_cvt_pk_bf16_f32 v{T+4+r}, v{O[1]+2*r}, v{O[1]+2*r+1}")
        sto(1)
        self.stamp(st, "m", "Ost", 1025)
        for a in range(1, 4): st(f"s_xor_b32 s{4+a}, s{mO}, {8192*a}\ns_xor_b32 s{8+a}, s{mPM}, {1024*a}")
        st("s_waitcnt lgkmcnt(0)")
        for r in range(8):
            for hl in range(2):
                d = T + 10 + hl + 4 * (r % 2)
                st(f"v_dot2_f32_bf16 v{d}, v{T+r}, v{WB+8*hl+r}, {'0' if r < 2 else 'v%d' % d}")
        for q in range(2): st(f"ds_write_b128 v{self.vOW}, {vr(T+4*q,4)} offset:{RING + 1024*q}")
        st(f"s_nop 0\nv_pk_add_f32 {vr(T+10,2)}, {vr(T+10,2)}, {vr(T+14,2)}\nv_add_f32 v{T+10}, v{T+10}, v{T+11}\nv_min_u32 v{T+10}, -2, v{T+10}")
        G, GP = (lambda a: 208 + 8 * (a - 1)), 232
        ld = lambda a: [f"buffer_load_dwordx4 {vr(G(a)+4*q,4)}, v{self.vK}, {srd(WS)}, s{4+a} offen offset:{1024*q} sc1" for q in range(2)]
        ldp = [f"buffer_load_dword v{GP+a}, v{self.vL4}, {srd(WS)}, s{8+a} offen sc1" for a in range(1, 4)]
        pmst = lambda: st.vm(f"buffer_store_dword v{T+10}, v{self.vL4}, {srd(WS)}, s{mPM} offen{sc}")
        if self.c.pmat == 0: pmst()
        st.nop(self.c.d2)
        for l in ld(1): st.vm(l, ("g", 1))
        st("s_waitcnt lgkmcnt(0)")
        st.bar("BC0")
        self.stamp(st, "m", "BC0", 1024)
        for a in (2, 3):
            if self.c.pmat == a - 1: pmst()
            for l in ld(a): st.vm(l, ("g", a))
        if self.c.pmat == 3: pmst()
        self.d_setup(st)
        def take(a):
            st.wait_vm(("g", a))
            if a == 1: self.stamp(st, "m", "g1ret", 1024)
            self.validate(st, f"L_g{a}", (G(a), G(a) + 4), GP, ld(a), inline=True)
            self.stamp(st, "m", f"Gok{a}", 1025 if a == 1 else 1024)
            for q in range(2): st.ds(f"ds_write_b128 v{self.vOW}, {vr(G(a)+4*q,4)} offset:{RING + 8192*a + 1024*q}", ("gw", a))
        take(1)
        for l in ldp: st.vm(l, "gp")
        if self.c.g2early: take(2)
        st.wait_ds(("gw", 1))
        st.bar("BC1a")
        if not self.c.g2early: take(2)
        take(3)
        st.wait_ds(("gw", 2))
        st.bar("BC1b")
        st.wait_vm("gp")
        self.validate(st, "L_gp", (GP + 1, GP + 2, GP + 3), GP, ldp, inline=True)
        st(f"v_add_f32 v{GP+1}, v{GP+1}, v{GP+2}\nv_add_f32 v{T+10}, v{T+10}, v{GP+3}\nv_add_f32 v{T+10}, v{T+10}, v{GP+1}")
        st(f"ds_write_b32 v{self.vPW}, v{T+10}")
        st.wait_ds()
        st.bar("BC1c")

    def fallback(self):
        st = self.tailcode
        S, Q, O, KVB = self.S, self.Q, self.O, self.KVB
        K, V0, V1, NM = KVB[0], KVB[0] + 4, KVB[0] + 8, (112, 128)
        st.label("L_fallback")
        st(f"s_mov_b32 s{mCHK}, 1")
        st("v_mov_b32 v10, 0xff800000\nv_mov_b32 v11, 0xff800000")
        st(f"s_mov_b32 s{sT0}, {WS_KV}")
        st.label("L_fb1")
        st(f"buffer_load_dwordx4 {vr(K,4)}, v{self.vK}, {srd(WS)}, s{sT0} offen sc1\ns_waitcnt vmcnt(0)")
        st(mfma32(S[0], K, Q, "0")); st(mfma32(S[1], K, Q + 4, "0"))
        st.nop(12)
        for q in range(2):
            for r in range(0, 16, 2): st(f"v_max3_f32 v{10+q}, v{S[q]+r}, v{S[q]+r+1}, v{10+q}")
        st(f"s_add_u32 s{sT0}, s{sT0}, 2048\ns_cmp_lt_u32 s{sT0}, {WS_KV + 131072}\ns_cbranch_scc1 L_fb1")
        st("v_mov_b32 v12, v10\nv_mov_b32 v13, v11\ns_nop 1")
        st("v_permlane32_swap_b32 v10, v12\nv_permlane32_swap_b32 v11, v13")
        st("v_max_f32 v10, v10, v12\nv_max_f32 v11, v11, v13")
        for q in range(2):
            for r in range(16):
                st(f"v_sub_f32 v{NM[q]+r}, 0, v{10+q}\nv_mov_b32 v{O[q]+r}, 0")
        st(f"v_and_b32 v12, 27, v0\nv_cmp_eq_u32 vcc, 16, v12\nv_mov_b32 v13, s{sONE}\ns_nop 0\nv_cndmask_b32 v13, 0, v13, vcc")
        for r in range(8): st(f"v_mov_b32 v{V0+r}, v13")
        st(f"s_mov_b32 s{sT0}, {WS_KV}\ns_mov_b32 s{sT2}, 0xffff\ns_mov_b32 s{sT3}, 0xffff")
        st.label("L_fb2")
        st(f"buffer_load_dwordx4 {vr(K,4)}, v{self.vK}, {srd(WS)}, s{sT0} offen sc1")
        st(f"s_mov_b64 exec, {sr(sT2,2)}")
        st(f"buffer_load_dwordx4 {vr(V0,4)}, v{self.vV0}, {srd(WS)}, s{sT0} offen sc1")
        st(f"buffer_load_dwordx4 {vr(V1,4)}, v{self.vV1}, {srd(WS)}, s{sT0} offen sc1")
        st("s_mov_b64 exec, -1\ns_waitcnt vmcnt(0)")
        st(mfma32(S[0], K, Q, vr(NM[0], 16))); st(mfma32(S[1], K, Q + 4, vr(NM[1], 16)))
        st.nop(12)
        for q in range(2):
            for r in range(16): st(f"v_exp_f32 v{S[q]+r}, v{S[q]+r}")
        st.nop(2)
        for q in range(2):
            st(smf(O[q], V0, S[q], self.vIDX)); st(smf(O[q], V1, S[q] + 8, self.vIDX))
        st(f"s_add_u32 s{sT0}, s{sT0}, 2048\ns_cmp_lt_u32 s{sT0}, {WS_KV + 131072}\ns_cbranch_scc1 L_fb2")
        st.nop(12)
        st("s_branch L_norm")

    def stages(self):
        return [tuple(map(int, x.split(":"))) for x in self.c.gates.split(",")]

    def h_voffset(self, st, d, t):
        st(f"v_lshrrev_b32 v{d}, 3, v0\nv_lshlrev_b32 v{d}, 10, v{d}\nv_and_b32 v{t}, 7, v0\nv_lshl_add_u32 v{d}, v{t}, 4, v{d}")

    def h_base(self, st, d):
        st(f"s_lshl_b32 s{d}, s{sRB}, 1\ns_and_b32 s{sT3}, s{sW}, 1\ns_add_u32 s{d}, s{d}, s{sT3}\ns_lshl_b32 s{d}, s{d}, 14")
        st(f"s_lshl_b32 s{sT3}, s{sCB}, 2\ns_add_u32 s{sT3}, s{sT3}, s{sW}\ns_lshr_b32 s{sT3}, s{sT3}, 1\ns_lshl_b32 s{sT3}, s{sT3}, 7\ns_add_u32 s{d}, s{d}, s{sT3}")

    def d_setup(self, st):
        vFZ, vVAL, vO, vF = 10, 11, (2, 3), (24, 25, 26, 27)
        st(f"v_mov_b32 v{vFZ}, v{self.vFZ}\nv_mov_b32 v{vVAL}, v{self.vVAL}")
        st("v_lshrrev_b32 v13, 5, v0\nv_bfe_u32 v14, v0, 4, 1\nv_bfe_u32 v15, v0, 2, 2\nv_and_b32 v16, 3, v0\nv_lshlrev_b32 v16, 3, v16")
        st("v_xor_b32 v17, v13, v14\nv_lshl_add_u32 v17, v17, 2, v15\nv_mul_u32_u24 v17, 96, v17\nv_mul_u32_u24 v18, 3072, v14\nv_add3_u32 v17, v17, v18, v16")
        st(f"v_add_u32 v{vO[0]}, {ODD}, v17\nv_add_u32 v{vO[1]}, {ODD + 49152}, v17")
        st("v_lshl_add_u32 v17, v13, 2, v15\nv_lshlrev_b32 v17, 7, v17\nv_lshl_add_u32 v17, v14, 12, v17\nv_bfe_u32 v18, v0, 3, 2")
        st(f"v_lshlrev_b32 v18, 5, v18\nv_add3_u32 v{vF[0]}, v17, v18, v16")
        for i in range(1, 4): st(f"v_xor_b32 v{vF[i]}, {32*i}, v{vF[0]}")
        self.h_voffset(st, 4, 5)
        st(f"v_and_b32 v5, 31, v0\nv_lshlrev_b32 v5, 4, v5\nv_lshrrev_b32 v13, 5, v0\nv_lshl_add_u32 v5, v13, 11, v5")
        vPG, vLD, vN, CK = 14, 15, 16, 20
        st(f"s_lshl_b32 s{sT0}, s{sW}, 2\ns_add_u32 s{sT0}, s{sT0}, {PROG}\nv_mov_b32 v{vPG}, s{sT0}\nv_mov_b32 v{vLD}, {LAND}")

    def main_phase_d(self, st):
        T, sc = self.c.tail, self.sc
        ACC, BR, AR, STT = 144, 112, 48, 32
        NBR, LA, NAR = 8, self.c.la, 16
        vL, vFZ, vVAL, vO, vF, vC1, vSD, vPOLL = self.vK, 10, 11, (2, 3), (24, 25, 26, 27), 8, 9, 12
        vPG, vLD, vN, CK = 14, 15, 16, 20
        nk = 32 - 2 * T
        order = [(k, n) for k in range(nk) for n in range(7)] + [(k, n) for n in range(7) for k in range(nk, 32)]
        def rdB(m):
            k, n = order[m]
            b = BR + 4 * (m % NBR)
            for t in range(2):
                u, row = k // 2, 16 * (k % 2) + 8 * t
                if n < 3: va, o = vO[u // 8], (u % 8) * 6144 + row * 96 + 32 * n
                else: va, o = vF[n - 3], slot8(FSLOT[u]) + row * 128
                st.ds(f"ds_read_b64_tr_b16 {vr(b+2*t,2)}, v{va} offset:{o}", ("b", m))
        for m in range(LA): rdB(m)
        st.bar("BC2")
        self.stamp(st, "m", "BC2", 1025)
        st.nop(self.c.d3)
        nxt = [0]
        lda = lambda k: f"buffer_load_dwordx4 {vr(AR+4*(k % NAR),4)}, v4, {srd(MOUT)}, s{sP + k % 4} offen offset:{128*(k // 4)} sc1"
        def ldA(upto):
            while nxt[0] < min(32, upto):
                k = nxt[0]; nxt[0] += 1
                st.vm(lda(k), ("a", k))
        def chk(k, n=1):
            st.wait_vm(("a", k + n - 1))
            self.validate(st, f"L_a{k}", [AR + 4 * (i % NAR) for i in range(k, k + n)], 13,
                          [lda(i) for i in range(k, min(nxt[0], max(k + n, (k | 7) + 1)))], inline=(k == 0))
        ldA(2)
        if self.c.diag & 1024:
            st.wait_vm(("a", 0))
            self.stamp(st, "m", "a0ret", 1024)
        chk(0)
        self.stamp(st, "m", "x3ok", 1029)
        def run(op): op() if callable(op) else st(op)
        lds_ = [f"buffer_load_dwordx4 {vr(STT+4*i,4)}, v5, {srd(WS)}, s{mST} offen offset:{512 + 1024*i} sc1" for i in range(2)]
        def ldst():
            for l in lds_: st.vm(l, "st")
        stats = [lambda: st.wait_vm("st"), lambda: self.validate(st, "L_st", range(STT, STT + 8), STT + 8, lds_)]
        stats += [f"v_add_f32 v{STT+i}, v{STT+i}, v{STT+4+i}" for i in range(4)]
        stats += [f"v_add_f32 v{STT}, v{STT}, v{STT+2}", f"v_add_f32 v{STT+1}, v{STT+1}, v{STT+3}", f"v_add_f32 v{STT}, v{STT}, v{STT+1}",
                  f"v_mov_b32 v{STT+1}, v{STT}", f"v_mov_b32 v{STT+2}, {f32(1e-5)}", "s_nop 0",
                  f"v_permlane32_swap_b32 v{STT}, v{STT+1}", f"v_add_f32 v{STT}, v{STT}, v{STT+1}",
                  f"v_fmac_f32 v{STT+2}, {f32(1.0/512)}, v{STT}", f"v_rsq_f32 v{STT+3}, v{STT+2}", "s_nop 0",
                  f"v_mul_f32 v{vSD}, v{STT+2}, v{STT+3}", f"v_mul_f32 v{vC1}, {f32(-1.4426950408889634)}, v{STT+3}"]
        pub = [1]
        def publish(cnt):
            ops = [f"v_add_u32 v{vVAL}, {cnt - pub[0]}, v{vVAL}"] if cnt > pub[0] else []
            pub[0] = cnt
            ops.append(lambda: st.wait_vm(("hh", cnt - 1)))
            if self.c.fexec: ops.append("s_mov_b64 exec, 1")
            ops.append(lambda: st.vm(f"buffer_store_dword v{vVAL}, v{vFZ}, {srd(WS)}, s{mF4} offen{sc}"))
            if self.c.fexec: ops.append("s_mov_b64 exec, -1")
            ops.append(lambda: self.stamp(st, "m", f"pub{cnt}", 8))
            return ops
        def epilogue(n):
            a = ACC + 16 * n
            ops = [f"v_mul_f32 v{a+j}, v{vC1}, v{a+j}" for j in range(8)]
            ops += [f"v_exp_f32 v{a+j}, v{a+j}" for j in range(8)]
            ops += [f"v_fma_f32 v{a+j}, v{a+j}, v{vSD}, v{vSD}" for j in range(8)]
            ops += [f"v_rcp_f32 v{a+j}, v{a+j}" for j in range(8)]
            ops += [f"v_mul_f32 v{a+j}, v{a+j}, v{a+8+j}" for j in range(8)]
            ops += [f"v_cvt_pk_bf16_f32 v{a+8+j}, v{a+2*j}, v{a+2*j+1}" for j in range(4)]
            return ops
        def store(n):
            a = ACC + 16 * n
            st.vm(f"buffer_store_dwordx4 {vr(a+8,4)}, v{vL}, {srd(WS)}, s{mHO if n < 2 else mHH0 if n < 4 else mHH1} offen offset:{1024*(n % 4)}{sc if n < self.c.hhplain else ' sc1'}", ("hh", n))
        cost = lambda op: 8 if op.startswith(("v_exp", "v_rcp")) else 4
        fill = {m: [] for m in range(224)}
        first = {m: [] for m in range(224)}
        first[0].append(lambda: ldA(4)); first[2].append(lambda: ldA(6))
        for k in range(1, nk):
            for n, d in ((1, 1), (4, 2)):
                first[7 * k + n].append(lambda u=min(k + NAR, 4 + 2 * k + d): ldA(u))
        first[7 * 14 + 4].append(ldst)
        for i, op in enumerate(stats): fill[7 * (nk - 1) + i // 2].append(op)
        base = 7 * nk
        stages, nst = [x[0] for x in self.stages()], 0
        for n in range(1, 7):
            ops = epilogue(n - 1)
            g0, ng = base + 2 * T * n + 2, 2 * T - 1
            tot, acc = sum(map(cost, ops)), 0
            for op in ops:
                fill.setdefault(g0 + acc * ng // tot, []).append(op); acc += cost(op)
            if n - 1 < self.c.hhplain or n in stages or (self.c.stat >> n & 1):
                for i in range(nst, n): first.setdefault(g0 + ng, []).append(lambda i=i: store(i))
                nst = n
            if n in stages:
                lag = self.c.lagp if n <= self.c.hhplain else self.c.lag
                for op in publish(n): first.setdefault(min(g0 + ng + lag, 226), []).append(op)
        assert T == 7
        posts = {2: 1, base + 6 * T - 1: 20, 223: 30}
        posts.update({14 * u + 13: u + 2 for u in range(8)})
        checks = {14 * 3 + 3 - LA: 5, 14 * 5 + 3 - LA: 7, 14 * 7 + 3 - LA: 9, base + 6 * T - LA: 16}
        vplan = {5: (1, 1), 12: (2, 2)}
        vplan.update({7 * k + 5: (k + 1, 3) for k in (3, 6, 9, 12)})
        vplan.update({7 * 14 + 5: (16, 3), 7 * 15 + 5: (19, 3), 7 * 16 + 5: (22, 3), base + 3: (25, 3), base + 6: (28, 2), base + 10: (30, 2)})
        near = self.near if not sc else self.tailcode
        for m in range(224):
            k, n = order[m]
            if m in posts: st(f"v_mov_b32 v{vN}, {posts[m]}")
            wp = self.c.wper
            if m == 0 or (m % wp == 0 and not self.c.wafter): st.wait_ds(("b", min(m + wp - 1, 223)))
            st(mfma32(ACC + 16 * n, BR + 4 * (m % NBR), AR + 4 * (k % NAR), "0" if k == 0 else None))
            if self.c.wafter and m % wp == wp - 1: st.wait_ds(("b", min(m + wp, 223)))
            if m == 0: self.stamp(st, "m", "mfma0", 4)
            for op in first[m]: run(op)
            if m in posts: st.ds(f"ds_write_b32 v{vPG}, v{vN}")
            if m < base and m % 28 == 27: self.stamp(st, "m", f"u{m // 14}", 4)
            if m == base: self.stamp(st, "m", "tail0", 4)
            if m == base + 2 * T: self.stamp(st, "m", "tail1", 4)
            if m >= base and (m - base) % (2 * T) == 0: self.stamp(st, "m", f"t{(m - base) // (2 * T)}", 256)
            if m + 5 in checks: st.ds(f"ds_read_b128 {vr(CK,4)}, v{vLD}", "ck")
            if m in checks:
                lab = f"L_ld{checks[m]}{self.sfx}"
                st(f"s_cbranch_vccnz {lab}s")
                st.label(lab + "r")
                near.label(lab + "s")
                self.lds_spin(near, lab, vLD, CK, checks[m])
                near(f"s_branch {lab}r")
            if m + LA < 224: rdB(m + LA)
            if m + 1 in checks:
                st.wait_ds("ck")
                self.lds_min(st, CK, checks[m + 1])
            assert not (m + 1 in checks and m in vplan)
            if m in vplan: chk(*vplan[m])
            for op in fill[m]: run(op)
        assert nxt[0] == 32
        self.stamp(st, "m", "Dmfma_end", 269)
        for m in (224, 225):
            for op in first.get(m, []) + fill.get(m, []): run(op)
        for i in range(nst, 6): store(i)
        st.nop(8)
        ep = epilogue(6)
        for op in ep[:32] + first.get(226, []) + ep[32:]: run(op)
        store(6)
        for op in publish(7): run(op)
        self.stamp(st, "m", "end", 13)
        if self.c.diag & 512 and not sc:
            self.nstamp["m"].append("retry")
            st(f"s_waitcnt lgkmcnt(0)\ns_mov_b32 s{sSTAMP + 2*(len(self.nstamp['m'])-1)}, s{CODE}")
        self.dump_stamps(st, "m")
        st("s_endpgm")

    def helper_phase_a(self, st):
        self.stamp(st, "h", "start", 4095)
        XP, XF, AC = 48, 80, 112
        st("s_setprio 2")
        if self.c.padto: st("s_memrealtime s[100:101]")
        st.vq.append((None, False))
        st(f"v_lshrrev_b32 v2, 4, v0\nv_and_b32 v3, 15, v0\nv_lshlrev_b32 v4, 10, v2\nv_lshl_add_u32 v4, v3, 4, v4")
        st(f"s_and_b32 s{sT2}, s{sCB}, 1\ns_lshl_b32 s{sC}, s{sT2}, 2\ns_add_u32 s{sC}, s{sC}, s{sW}\ns_lshl_b32 s{sT0}, s{sRB}, 3\ns_add_u32 s{sA}, s{sT0}, s{sC}")
        st(f"s_lshl_b32 s{sA}, s{sA}, 12\ns_xor_b32 s{sB}, s{sA}, 0x4000")
        self.srds(st, ((X, 2097152), (WKVS, 16384)))
        st(f"v_lshlrev_b32 v1, 4, v0\ns_lshl_b32 s{sD}, s{sW}, 12\ns_add_u32 m0, s{sD}, {WKV}\nv_mov_b32 v124, v4")
        st("s_waitcnt lgkmcnt(0)")
        ldx = lambda i: st.vm(f"buffer_load_dwordx4 {vr(XP+4*i,4)}, v124, {srd(X)}, s{sA if i < 4 else sB} offen offset:{256*(i % 4)}", ("x", i))
        for i in range(4): ldx(i)
        st.bar("B00")
        ldw = lambda: [st.vm(f"buffer_load_dwordx4 v1, {srd(WKVS)}, s{sD} offen offset:{1024*i} lds", "wkv") for i in range(4)]
        if self.c.sec & 2: ldw()
        st(f"s_and_b32 s{sT0}, s{sW}, 1\ns_lshl_b32 s{sT0}, s{sT0}, 3\ns_add_u32 s{sT0}, s{sT0}, 48\ns_load_dwordx2 {sr(WG,2)}, s[0:1], s{sT0}")
        for b, off in ((WO, 32), (WD, 64), (OUT, 72)):
            st(f"s_load_dwordx2 {sr(b,2)}, s[0:1], {off}")
        self.srds(st, ((WO, 524288), (WG, 1835008), (WD, 1835008), (OUT, 2097152), (WS, WS_SIZE)))
        st(f"s_mov_b32 s{sONE}, 0x3f803f80\ns_mov_b32 s{sLO}, 0x3f80\ns_mov_b32 s{sHI}, 0x3f800000")
        st(f"s_getreg_b32 s{sXCC}, hwreg(HW_REG_XCC_ID, 0, 4)")
        st(f"v_bfe_u32 v5, v0, 1, 3\nv_mul_u32_u24 v5, {TILE}, v5\nv_and_b32 v6, 1, v0\nv_lshl_add_u32 v7, v6, 4, v5")
        st(f"v_cmp_eq_u32 vcc, 0, v6\nv_mov_b32 v8, s{sONE}\ns_nop 0\nv_cndmask_b32 v8, 0, v8, vcc\nv_mov_b32 v9, v8\nv_mov_b32 v10, v8\nv_mov_b32 v11, v8")
        st.ds("ds_write_b128 v7, v[8:11] offset:2048")
        st(f"v_mul_u32_u24 v5, 528, v3\nv_lshl_add_u32 v5, v2, 4, v5\ns_lshl_b32 s{sT0}, s{sC}, 6\ns_xor_b32 s{sT1}, s{sT0}, 256")
        st(f"s_add_u32 s{sT2}, s{sT0}, {XN}\ns_add_u32 s{sT3}, s{sT1}, {XN}\nv_add_u32 v120, s{sT2}, v5\nv_add_u32 v121, s{sT3}, v5")
        st(f"s_lshr_b32 s{sT0}, s{sT0}, 2\ns_lshr_b32 s{sT1}, s{sT1}, 2\ns_add_u32 s{sT0}, s{sT0}, {MISC + 16}\ns_add_u32 s{sT1}, s{sT1}, {MISC + 16}")
        st(f"v_lshl_add_u32 v122, v2, 2, s{sT0}\nv_lshl_add_u32 v123, v2, 2, s{sT1}")
        st.wait_ds()
        self.epoch_load(st)
        self.helper_setup(st)
        st(f"s_lshl_b32 s{sT0}, s{sW}, 2\ns_add_u32 s{sT0}, s{sT0}, {XC}\nv_mov_b32 v230, s{sT0}")
        st(f"v_and_b32 v41, 31, v0\nv_lshlrev_b32 v41, 2, v41\nv_add_u32 v41, {MISC + 16}, v41")
        st(f"v_lshrrev_b32 v14, 5, v0\nv_lshl_add_u32 v14, v14, 9, v1\ns_lshl_b32 s{sT0}, s2, 11\ns_cmp_eq_u32 s{sW}, 1\ns_cselect_b32 s{sT0}, s{sT0}, 0x100000")
        self.stamp(st, "h", "setup", 64)
        def second():
            if not self.c.sec & 2: ldw()
            if not self.c.x1late:
                for i in range(4, 8): ldx(i)
            st.bar("B0")
            if self.c.wo_early == 2: ldo()
        ldo = lambda: [st.vm(f"buffer_load_dwordx4 {vr(232+4*i,4)}, v14, {srd(WO)}, s{sT0} offen offset:{512*i}") for i in range(2)]
        if self.c.wo_early == 1: ldo()
        if not self.c.sec & 1: second()
        def postw():
            st("v_mov_b32 v231, 1")
            st.wait_vm("wkv")
            st.ds("ds_write_b32 v230, v231")
        def red16(a):
            for m in ("quad_perm:[1,0,3,2]", "quad_perm:[2,3,0,1]", "row_half_mirror", "row_mirror"):
                st(f"s_nop 1\nv_add_f32_dpp v{a}, v{a}, v{a} {m} row_mask:0xf bank_mask:0xf")
        for ps in range(2):
            P = XP + 16 * ps
            for i in range(4):
                if ps == 0: st.wait_vm(("x", i))
                for r in range(4):
                    st(f"v_dot2_f32_bf16 v{AC+r%2}, v{P+4*i+r}, s{sONE}, {'0' if i == 0 and r < 2 else 'v%d' % (AC+r%2)}")
            if ps == 0: self.stamp(st, "h", "xland", 193)
            if ps == 0 and self.c.sec & 1: second()
            st(f"s_nop 2\nv_add_f32 v{AC}, v{AC}, v{AC+1}")
            red16(AC)
            st(f"v_mul_f32 v{AC}, {f32(-1.0/512)}, v{AC}")
            st.ds(f"ds_write_b32 v{122+ps}, v{AC}")
            self.stamp(st, "h", f"mean{ps}", 128)
            if ps == 0 and self.c.wcat == 0: postw()
            for r in range(16):
                st(f"v_dot2_f32_bf16 v{XF+2*r}, v{P+r}, s{sLO}, v{AC}\nv_dot2_f32_bf16 v{XF+2*r+1}, v{P+r}, s{sHI}, v{AC}")
            for r in range(16):
                d = AC + 2 + 2 * (r % 2)
                if r < 2: st(f"v_pk_mul_f32 {vr(d,2)}, {vr(XF+2*r,2)}, {vr(XF+2*r,2)}")
                else: st(f"v_pk_fma_f32 {vr(d,2)}, {vr(XF+2*r,2)}, {vr(XF+2*r,2)}, {vr(d,2)}")
            st(f"v_pk_add_f32 {vr(AC+2,2)}, {vr(AC+2,2)}, {vr(AC+4,2)}\nv_add_f32 v{AC+2}, v{AC+2}, v{AC+3}")
            red16(AC + 2)
            self.stamp(st, "h", f"var{ps}", 128)
            if ps == 0 and self.c.wcat == 1: postw()
            st(f"v_mov_b32 v{AC+3}, {f32(1e-5)}\nv_fmac_f32 v{AC+3}, {f32(1.0/512)}, v{AC+2}\nv_rsq_f32 v{AC+2}, v{AC+3}\nv_mov_b32 v231, {ps+2}")
            for i in range(4):
                for r in range(4):
                    st(f"v_pk_mul_f32 {vr(XF+8*i+2*r,2)}, {vr(XF+8*i+2*r,2)}, {vr(AC+2,2)} op_sel_hi:[1,0]")
                for r in range(4):
                    st(f"v_cvt_pk_bf16_f32 v{P+4*i+r}, v{XF+8*i+2*r}, v{XF+8*i+2*r+1}")
                st.ds(f"ds_write_b128 v{120+ps}, {vr(P+4*i,4)} offset:{8448*i}")
            self.stamp(st, "h", f"wr{ps}", 128)
            st.wait_vm("wkv")
            st.wait_ds()
            st("ds_write_b32 v230, v231")
            self.stamp(st, "h", f"ln{ps}", 2240)
            if ps == 0:
                self.epoch_make(st)
                st(f"s_add_u32 s{sXCC}, s{sXCC}, s{sEP}\nv_mov_b32 v31, s{sEP}")
                if self.c.x1late:
                    for i in range(4, 8): ldx(i)
                st.wait_vm(("x", 7))
                self.stamp(st, "h", "p2start", 128)
        st(f"s_cmp_lg_u32 s{sW}, 1\ns_cbranch_scc1 L_nowb1")
        a = 240
        if not self.c.wo_early:
            for i in range(2): st(f"buffer_load_dwordx4 {vr(232+4*i,4)}, v14, {srd(WO)}, s{sT0} offen offset:{512*i}")
        st("s_waitcnt vmcnt(0)")
        for r in range(8): st(f"v_dot2_f32_bf16 v{a}, v{232+r}, s{sONE}, {'0' if r == 0 else 'v%d' % a}")
        st("s_nop 0")
        for m in ("quad_perm:[1,0,3,2]", "quad_perm:[2,3,0,1]", "row_half_mirror", "row_mirror"):
            st(f"s_nop 1\nv_add_f32_dpp v{a}, v{a}, v{a} {m} row_mask:0xf bank_mask:0xf")
        st(f"v_mov_b32 v{a+1}, v{a}\ns_nop 1\nv_permlane16_swap_b32 v{a}, v{a+1}\nv_add_f32 v{a}, v{a}, v{a+1}")
        st(f"v_mul_f32 v{a}, {f32(1.0/512)}, v{a}\nv_mov_b32 v{a+1}, v{a}\ns_nop 1\nv_permlane32_swap_b32 v{a}, v{a+1}")
        st(f"v_cvt_pk_bf16_f32 v{a+4}, v{a}, v{a+1}\nv_lshlrev_b32 v{a+2}, 16, v{a+4}\nv_and_b32 v{a+3}, 0xffff0000, v{a+4}")
        st(f"v_sub_f32 v{a}, v{a}, v{a+2}\nv_sub_f32 v{a+1}, v{a+1}, v{a+3}\nv_cvt_pk_bf16_f32 v{a+5}, v{a}, v{a+1}")
        st(f"v_mov_b32 v{a+6}, s{sEP1}\ns_lshl_b32 s{sT0}, s2, 7\ns_add_u32 s{sF}, s{sT0}, {WS_WB}")
        st.label("L_nowb1")

    def kv_addr(self, st):
        st(f"v_lshrrev_b32 v20, 4, v0\nv_and_b32 v13, 15, v0\nv_lshlrev_b32 v14, 8, v20\nv_lshl_add_u32 v249, v13, 3, v14")
        st(f"s_and_b32 s{sT0}, s{sCB}, 1\ns_lshl_b32 s{sT1}, s{sT0}, 8\ns_add_u32 s{sT2}, s{sT1}, {XN}")
        st(f"v_mul_u32_u24 v15, 528, v20\nv_lshl_add_u32 v15, v13, 4, v15\nv_add_u32 v250, s{sT2}, v15")
        st(f"s_lshl_b32 s{sT2}, s{sT0}, 9\ns_add_u32 s{sT2}, s{sT2}, 1024\ns_cmp_ge_u32 s{sCB}, 2")
        st(f"s_cselect_b32 s{sT1}, s{sT2}, s{sT1}\ns_cselect_b32 s{sT2}, 31, 9\ns_cselect_b32 s{sT3}, 8, 31")
        st(f"v_and_b32 v14, 1, v20\nv_lshlrev_b32 v14, s{sT2}, v14\nv_lshrrev_b32 v15, 1, v20\nv_lshlrev_b32 v15, s{sT3}, v15")
        st(f"v_lshl_add_u32 v14, v13, 4, v14\nv_add3_u32 v251, v14, v15, s{sT1}")
        st(f"s_lshl_b32 s{mKG}, s{sRB}, 11\ns_add_u32 s{mKL}, s{mKG}, {WS_KVL}\ns_add_u32 s{mKG}, s{mKG}, {WS_KV}")
        st(f"s_lshl_b32 s{sT0}, s{sG}, 5\ns_add_u32 s{sT0}, s{sT0}, s{sIDX}\ns_lshl_b32 s{mFL}, s{sT0}, 2\ns_add_u32 s{mFL}, s{mFL}, {WS_FLGL}")
        st(f"s_lshl_b32 s{mFG}, s{sT0}, 7\ns_add_u32 s{mFG}, s{mFG}, {WS_FLG1}")

    def kv_job(self, st):
        WR, AC = 168, 144
        XR = [112 + 4 * j for j in range(8)] + [232 + 4 * j for j in range(4)] + [24 + 4 * j for j in range(4)]
        st("s_setprio 3")
        self.lds_spin(st, "L_wc0", 18, 20, 1, sleep=1)
        for j in range(16):
            for t in range(2): st.ds(f"ds_read_b64_tr_b16 {vr(WR+4*j+2*t,2)}, v249 offset:{WKV + 1024*j + 128*t}")
        self.lds_spin(st, "L_xc0", 18, 20, 2)
        self.stamp(st, "m", "m0xc", 64)
        for j in range(8): st.ds(f"ds_read_b128 {vr(XR[j],4)}, v250 offset:{2112*j}", ("rd", j))
        st(f"s_cmp_ge_u32 s{sCB}, 2\ns_cbranch_scc1 L_vjob")
        lq = list(st.lq)
        for job in ("k", "v"):
            if job == "v": st.label("L_vjob")
            st.lq = list(lq)
            for m in range(16):
                if m < 4:
                    for j in (8 + 2 * m, 9 + 2 * m): st.ds(f"ds_read_b128 {vr(XR[j],4)}, v250 offset:{2112*j}", ("rd", j))
                st.wait_ds(("rd", m))
                a, b = (WR + 4 * m, XR[m]) if job == "k" else (XR[m], WR + 4 * m)
                st(mfma16(AC, a, b, "0" if m == 0 else None))
            st.nop(8)
            if job == "k":
                for r in range(4): st(f"v_mul_f32 v{AC+r}, {f32(0.25 * 1.4426950408889634)}, v{AC+r}")
            for r in (4, 6): st(f"v_cvt_pk_bf16_f32 v{AC+r}, v{AC}, v{AC+1}\nv_cvt_pk_bf16_f32 v{AC+r+1}, v{AC+2}, v{AC+3}")
            sw = "v_permlane32_swap_b32" if job == "k" else "v_permlane16_swap_b32"
            st(f"s_nop 0\n{sw} v{AC+4}, v{AC+6}\n{sw} v{AC+5}, v{AC+7}")
            if job == "k": st("s_branch L_kvst")
        st.label("L_kvst")
        self.stamp(st, "m", "m0kvmf", 64)
        if self.c.kv2: st(f"s_cmp_lg_u32 s{sW}, 0\ns_cbranch_scc1 L_kvx")
        st(f"buffer_store_dwordx4 {vr(AC+4,4)}, v251, {srd(WS)}, s{mKL} offen")
        st(f"buffer_store_dwordx4 {vr(AC+4,4)}, v251, {srd(WS)}, s{mKG} offen sc1")
        st.label("L_kvx")
        st(f"s_setprio {self.c.mprio}")

    def kv_flag(self, st, glob, younger):
        st(f"s_cmp_lg_u32 s{sW}, 0\ns_cbranch_scc1 L_nofl{glob}")
        st(f"v_mov_b32 v19, s{sEP1 if glob else sXCC}\ns_bfm_b64 exec, {32 if glob else 1}, 0\ns_waitcnt vmcnt({younger})")
        self.stamp(st, "m", "m0GF" if glob else "m0LF", 64)
        st.vm(f"buffer_store_dword v19, v16, {srd(WS)}, s{mFG if glob else mFL} offen{' sc1' if glob else ''}", cond=True)
        st("s_mov_b64 exec, -1")
        st.label(f"L_nofl{glob}")

    WOR, WDR, vWS = 128, 48, (24, 25, 13, 27)

    def odd_voffsets(self, st, base, t):
        st(f"s_and_b32 s{sT0}, s{sIDX}, 15\ns_mul_i32 s{sT0}, s{sT0}, 224\ns_and_b32 s{sT1}, s{sW}, 1\ns_lshl_b32 s{sT1}, s{sT1}, 2\ns_lshl_b32 s{sT2}, s{sCB}, 1")
        for p in range(3):
            d = base + p
            st(f"v_add_u32 v{t}, {64*p}, v0\nv_mul_u32_u24 v{t+1}, 10923, v{t}\nv_lshrrev_b32 v{t+1}, 16, v{t+1}\nv_mul_u32_u24 v{d}, 6, v{t+1}")
            st(f"v_sub_u32 v{t}, v{t}, v{d}\nv_cmp_gt_u32 vcc, s{sT2}, v{t}\nv_xor_b32 v{t+1}, s{sT1}, v{t+1}\nv_add_u32 v{d}, 8, v{t}")
            st(f"v_cndmask_b32 v{t}, v{d}, v{t}, vcc\nv_mul_u32_u24 v{t+1}, 3584, v{t+1}\nv_lshlrev_b32 v{t}, 4, v{t}\nv_add3_u32 v{d}, v{t}, v{t+1}, s{sT0}")

    def full_voffset(self, st, d, t):
        st(f"s_and_b32 s{sT0}, s{sIDX}, 15\ns_mul_i32 s{sT0}, s{sT0}, 224\ns_lshl_b32 s{sT1}, s{sCB}, 5\ns_add_u32 s{sT0}, s{sT0}, s{sT1}")
        st(f"s_and_b32 s{sT1}, s{sW}, 1\ns_lshl_b32 s{sT1}, s{sT1}, 2")
        st(f"v_bfe_u32 v{t}, v0, 4, 1\nv_lshlrev_b32 v{t}, 1, v{t}\nv_or_b32 v{t}, s{sT1}, v{t}\nv_and_b32 v{t+1}, 7, v0\nv_xor_b32 v{t}, v{t}, v{t+1}")
        st(f"v_lshlrev_b32 v{t}, 4, v{t}\nv_lshrrev_b32 v{t+1}, 3, v0\nv_mul_u32_u24 v{t+1}, 3584, v{t+1}\nv_add3_u32 v{d}, v{t}, v{t+1}, s{sT0}")

    pace = None
    c_wpos = (1, 4, 6, 9, 11, 14, 16, 19, 21, 24, 26, 29)

    def paced(self, st):
        if self.pace is not None: st(f"s_waitcnt vmcnt({self.pace})")

    def odd_pair(self, st, u0, mask, vbase):
        st(f"s_and_b32 s{sT2}, s{sP+4}, {mask | 1}\ns_xor_b32 s{sT2}, s{sT2}, {u0}\ns_mul_i32 s{sT1}, s{sT2}, 114688")
        st(f"s_lshl_b32 s{sT2}, s{sT2}, 1\ns_and_b32 s{sT3}, s{sW}, 1\ns_add_u32 s{sT2}, s{sT2}, s{sT3}\ns_mul_i32 s{sT2}, s{sT2}, 3072")
        for p in range(3):
            st(f"s_add_u32 m0, s{sT2}, {ODD + 1024*p}\ns_nop 0")
            st.vm(f"buffer_load_dwordx4 v{vbase+p}, {srd(WG)}, s{sT1} offen lds", ("odd", u0))

    def full_unit(self, st, u, v, qs=(0, 1)):
        for q in qs:
            st(f"s_add_u32 m0, s{sP+6}, {slot8(FSLOT[u]) + 1024*q}\ns_add_u32 s{sT1}, s{sP+5}, {(32*u + 8*q) * 3584}")
            self.paced(st)
            st.vm(f"buffer_load_dwordx4 v{v}, {srd(WG)}, s{sT1} offen lds", ("full", u))

    def wd_dma(self, st, J, addr, vD, sbase):
        for q in range(2):
            j = (J & ~1) + q
            ft = 7 * (j % 4) + tile_of(j % 4, j // 4)
            st(f"s_add_u32 m0, s{sbase}, {addr + 1024*q}\ns_add_u32 s{sT1}, s{sP+7}, {ft * 16384 + (J & 1) * 8192}")
            self.paced(st)
            st.vm(f"buffer_load_dwordx4 v{vD}, {srd(WD)}, s{sT1} offen lds", ("wd", J))

    def wd_read(self, st, J, grp, va, off, ns=range(4)):
        for n in ns:
            st.ds(f"ds_read_b64_tr_b16 {vr(grp[n // 2] + 4*(n % 2) + 2*(J & 1), 2)}, v{va[n]} offset:{off}", ("wdr", J))

    def wd_static(self, J): return (self.WDR + 16 * (J // 2), self.WDR + 16 * (J // 2) + 8)

    def wd_addr(self, st, vD, va, t0, sb):
        st(f"v_lshrrev_b32 v{t0}, 3, v0\nv_and_b32 v{t0+1}, 6, v{t0}\nv_and_b32 v{vD}, 7, v0")
        st(f"v_xor_b32 v{vD}, v{vD}, v{t0+1}\nv_lshlrev_b32 v{vD}, 4, v{vD}\nv_lshl_add_u32 v{vD}, v{t0}, 10, v{vD}")
        st(f"v_lshrrev_b32 v{t0}, 2, v0\nv_lshlrev_b32 v{t0}, 7, v{t0}\nv_bfe_u32 v{t0+1}, v0, 3, 2\ns_and_b32 s{sT0}, s{sW}, 1\ns_lshl_b32 s{sT0}, s{sT0}, 1")
        st(f"v_xor_b32 v{t0+1}, s{sT0}, v{t0+1}\nv_lshl_add_u32 v{t0}, v{t0+1}, 5, v{t0}\nv_and_b32 v{t0+1}, 3, v0\nv_lshlrev_b32 v{t0+1}, 3, v{t0+1}")
        st(f"v_add3_u32 v{va[0]}, v{t0}, v{t0+1}, s{sb}")
        for n in range(1, 4): st(f"v_xor_b32 v{va[n]}, {32*n}, v{va[0]}")

    def helper_setup(self, st):
        vL, vP, vR = 1, 2, 3
        st(f"v_and_b32 v{vP}, 7, v0\ns_lshl_b32 s{sT0}, s{sW}, 3\nv_add_u32 v{vP}, s{sT0}, v{vP}\nv_lshlrev_b32 v{vP}, 7, v{vP}")
        st(f"v_lshrrev_b32 v{vR}, 3, v0\nv_lshl_add_u32 v{vP}, v{vR}, 12, v{vP}")
        vWO, vTR, vWD, GU = 4, 5, 6, 16
        st(f"v_lshrrev_b32 v14, 2, v0\nv_lshlrev_b32 v14, 10, v14\nv_and_b32 v15, 3, v0\nv_lshlrev_b32 v15, 4, v15")
        st(f"s_lshl_b32 s{sT0}, s{sCB}, 8\ns_lshl_b32 s{sT1}, s{sW}, 6\ns_add_u32 s{sT0}, s{sT0}, s{sT1}")
        st(f"v_add3_u32 v{vWO}, v14, v15, s{sT0}")
        st(f"s_mul_i32 s{sE}, s{sW}, {STGW}\ns_add_u32 s{sE}, s{sE}, {STG}")
        st(f"v_lshrrev_b32 v14, 5, v0\nv_lshlrev_b32 v14, 8, v14\nv_bfe_u32 v15, v0, 2, 2\nv_lshl_add_u32 v14, v15, 6, v14")
        st(f"v_bfe_u32 v15, v0, 4, 1\nv_lshl_add_u32 v14, v15, 5, v14\nv_and_b32 v15, 3, v0\nv_lshl_add_u32 v14, v15, 3, v14")
        st(f"v_add_u32 v{vTR}, s{sE}, v14")
        self.wd_addr(st, vWD, self.vWS, 14, sE)
        self.odd_voffsets(st, GU, 14)
        self.full_voffset(st, 43, 14)
        st(f"s_lshr_b32 s{sT0}, s{sW}, 1\ns_mul_i32 s{sP+5}, s{sT0}, {16*3584}\ns_lshr_b32 s{sT1}, s{sIDX}, 4\ns_lshl_b32 s{sT1}, s{sT1}, 1\ns_or_b32 s{sT1}, s{sT1}, s{sT0}")
        st(f"s_and_b32 s{sT2}, s{sIDX}, 1\ns_lshl_b32 s{sT2}, s{sT2}, 2\ns_or_b32 s{sP+4}, s{sT1}, s{sT2}")
        st(f"s_lshl_b32 s{sT0}, s{sT0}, 11\ns_and_b32 s{sT1}, s{sW}, 1\ns_lshl_b32 s{sT1}, s{sT1}, 12\ns_add_u32 s{sP+6}, s{sT0}, s{sT1}")
        st(f"v_lshrrev_b32 v14, 4, v0\nv_mul_u32_u24 v14, 3584, v14\nv_bfe_u32 v15, v0, 2, 2\nv_mul_u32_u24 v15, 896, v15\nv_and_b32 v{GU+4}, 3, v0")
        st(f"v_lshlrev_b32 v{GU+4}, 8, v{GU+4}\nv_add3_u32 v{GU+4}, v{GU+4}, v14, v15")
        st(f"s_mul_i32 s{sT0}, s{sW}, {28*16384}\ns_and_b32 s{sT1}, s{sIDX}, 7\ns_lshl_b32 s{sT1}, s{sT1}, 7\ns_add_u32 s{sP+7}, s{sT0}, s{sT1}")
        st(f"v_mov_b32 v26, {MISC}\nv_lshlrev_b32 v23, 7, v0\nv_lshlrev_b32 v47, 2, v0")
        st(f"s_lshl_b32 s{sT0}, s{sRB}, 4\ns_lshl_b32 s{sT1}, s{sCB}, 2\ns_add_u32 s{sT0}, s{sT0}, s{sT1}\ns_add_u32 s{sT0}, s{sT0}, s{sW}\ns_lshl_b32 s{sT1}, s{sT0}, 11\ns_lshl_b32 s{sT0}, s{sT0}, 8")
        for lo, n, sb, base in ((0, 16, sT1, WS_O), (16, 2, sT0, WS_ST), (18, 2, sT0, WS_PM)):
            st(f"s_bfm_b64 exec, {n}, {lo}\ns_add_u32 s{sT2}, s{sb}, {base - 128*lo}\nv_add_u32 v21, s{sT2}, v23")
        st(f"s_lshl_b32 s{sT0}, s{sRB}, 7\ns_add_u32 s{sT0}, s{sT0}, {WS_FLG4}\ns_lshl_b32 s{sT1}, s{sRB}, 6\ns_add_u32 s{sT1}, s{sT1}, {WS_FLG2}")
        st(f"s_bitcmp1_b32 s{sW}, 0\ns_cselect_b32 s{sT1}, s{sT0}, s{sT1}\ns_bfm_b64 exec, 44, 20\nv_mov_b32 v21, s{sT1}\ns_mov_b64 exec, -1\nv_lshlrev_b32 v22, 10, v0")
        self.h_voffset(st, 19, 14)
        st(f"v_and_b32 v14, 31, v0\nv_lshlrev_b32 v14, 10, v14\nv_lshrrev_b32 v15, 5, v0\nv_lshl_add_u32 v40, v15, 4, v14")
        st(f"v_lshrrev_b32 v14, 4, v0\nv_lshlrev_b32 v14, 7, v14\nv_bfe_u32 v15, v0, 1, 1\nv_lshl_add_u32 v14, v15, 6, v14")
        st(f"v_bfe_u32 v15, v0, 2, 2\nv_lshl_add_u32 v14, v15, 3, v14\nv_and_b32 v15, 1, v0\nv_lshl_add_u32 v14, v15, 2, v14\nv_add_u32 v42, {WBL}, v14")

    def helper_attention(self, st):
        vL, vP, vR = 1, 2, 3
        st(f"s_lshl_b32 s{sT1}, s{sG}, 12\ns_add_u32 s{sB}, s{sT1}, {WS_FLG1}")
        st(f"s_mul_i32 s{sC}, s{sW}, {2*TILE}\ns_lshl_b32 s{sD}, s{sW}, 12\ns_add_u32 s{sD}, s{sD}, {WS_KV}")
        st(f"s_cmp_lt_u32 s{sW}, 2\ns_cbranch_scc1 L_x1skip")
        st(f"s_and_b32 s{sT2}, s{sW}, 1\ns_lshl_b32 s{sT0}, s{sT2}, 4\nv_and_b32 v12, 15, v0\nv_add_u32 v12, s{sT0}, v12")
        st(f"v_lshlrev_b32 v14, 7, v12\nv_lshlrev_b32 v12, 2, v12\ns_lshl_b32 s{sT1}, s{sG}, 7\ns_add_u32 s{sT1}, s{sT1}, {WS_FLGL}")
        st(f"s_lshl_b32 s{sE}, s{sG}, 14\ns_lshl_b32 s{sT0}, s{sT2}, 13\ns_add_u32 s{sE}, s{sE}, s{sT0}\ns_add_u32 s{sE}, s{sE}, {WS_KVL}")
        st(f"s_mul_i32 s{sT0}, s{sT2}, {4*TILE}\ns_add_u32 m0, s{sT0}, {RING}")
        st(f"s_lshl_b32 s{sT0}, s{sT2}, 2\ns_add_u32 s{sT0}, s{sT0}, {MISC}\nv_mov_b32 v15, s{sT0}")
        st(f"v_mov_b32 v125, 1\ns_mov_b32 s{sCNT}, {SPINL}\ns_bfm_b64 exec, 16, 0")
        st.label("L_x1l")
        st(f"buffer_load_dword v{vR}, v12, {srd(WS)}, s{sT1} offen sc1")
        st.wait_vm()
        st(f"v_cmp_ne_u32 vcc, s{sXCC}, v{vR}\ns_cbranch_vccz L_x1a_ok")
        st(f"s_sub_u32 s{sCNT}, s{sCNT}, 1\ns_cbranch_scc0 L_x1l")
        st(f"s_mov_b64 exec, -1\ns_sub_u32 s{sE}, s{sE}, {WS_KVL - WS_KV}\nv_mov_b32 v125, 0")
        self.poll(st, "L_x1a", 14, f"s{sB}", vR, 1, exact=True, lanes=16)
        for i in range(8):
            if i in (2, 6): st("s_add_u32 m0, m0, 32\ns_nop 0")
            if i == 4: st(f"s_add_u32 m0, m0, {2*TILE - 32}\ns_add_u32 s{sE}, s{sE}, 4096")
            st(f"buffer_load_dwordx4 v{vL}, {srd(WS)}, s{sE} offen offset:{1024*(i % 4)} sc1 lds")
        self.stamp(st, "h", "w2poll", 2112)
        st("ds_write_b32 v15, v125")
        st.label("L_x1skip")
        self.stamp(st, "h", "x1own")
        def chunk(c):
            st(f"s_add_u32 s{sT0}, s{sG}, {c}\ns_and_b32 s{sT0}, s{sT0}, 7\ns_lshl_b32 s{sT0}, s{sT0}, 14")
            st(f"s_add_u32 m0, s{sC}, {RING + (c % 2) * 8 * TILE}\ns_add_u32 s{sT0}, s{sT0}, s{sD}")
            for i in range(4):
                if i == 2: st("s_add_u32 m0, m0, 32\ns_nop 0")
                st.vm(f"buffer_load_dwordx4 v{vL}, {srd(WS)}, s{sT0} offen offset:{1024*i} sc1 lds", ("kv", c))
        vWO, vTR, vWD, GU = 4, 5, 6, 16
        st(f"s_mul_i32 s{sE}, s{sW}, {STGW}\ns_add_u32 s{sE}, s{sE}, {STG}")
        st(f"s_cmp_lt_u32 s{sW}, 2\ns_cbranch_scc1 L_x1skip2")
        st.wait_vm()
        st.wait_ds()
        st.label("L_x1skip2")
        self.pad(st, 1)
        st.bar("B2")
        self.stamp(st, "h", "cycB2", 32)
        st.ds(f"ds_write_b128 v7, v[8:11] offset:{8*TILE + 2048}")
        st.ds("ds_read_b64 v[28:29], v26")
        st.ds("ds_read_b32 v12, v41")
        st(f"s_mov_b32 s{sB}, {WS_FLG1}")
        self.poll(st, "L_x1b", vP, f"s{sB}", vR, 1, exact=True)
        self.stamp(st, "h", "x1a", 81)
        st.wait_ds()
        self.colo_reduce(st, 28)
        st(f"v_mov_b32 v29, s{sEP1}\nv_mov_b32 v8, -1\nv_mov_b32 v9, -1\nv_mov_b32 v10, -1\nv_mov_b32 v11, -1")
        st(f"s_setprio {self.c.hprio}")
        st(f"s_lshl_b32 s{sA}, s{sCB}, 17")
        def wo_dma(j, pos):
            st(f"s_add_u32 m0, s{sE}, {1024*pos}\ns_xor_b32 s{sT1}, s{sA}, {j*16384}")
            st.vm(f"buffer_load_dwordx4 v{vWO}, {srd(WO)}, s{sT1} offen lds", ("wo", j))
        def wo_read(j, pos):
            for t in range(2):
                st.ds(f"ds_read_b64_tr_b16 {vr(self.WOR+4*j+2*t,2)}, v{vTR} offset:{1024*pos + 512*t}")
        vT, vTD, vJ = 23, 27, 30
        incond = [False]
        def touch(buf, v, soff, lanes=64):
            if lanes < 64: st(f"s_bfm_b64 exec, {lanes}, 0")
            st.vm(f"buffer_load_dword v{vJ}, v{v}, {srd(buf)}, {soff} offen{' sc1' if buf in (WS, OUT) else ''}", "tx", cond=incond[0])
            if lanes < 64: st("s_mov_b64 exec, -1")
        def lines(name, soff, n):
            if name[0] == "T": return touch(WS, vT, soff, n)
            if n < 8: st(f"s_bfm_b64 exec, {8*n}, 0")
            for i in range(-(-n // 8)):
                if i == 4: st(f"s_add_u32 {soff}, {soff}, 4096")
                st.vm(f"buffer_store_dwordx4 v[8:11], v{vL}, {srd(WS)}, {soff} offen offset:{1024*(i % 4)} sc1")
            if n < 8: st("s_mov_b64 exec, -1")
        items = [("o", j) for j in range(32)] + [("d", j) for j in range(10)]
        staged = []
        def stage(n):
            assert not staged
            pos = 0
            while items and pos + (1 if items[0][0] == "o" else 2) <= n:
                kind, j = items.pop(0)
                if kind == "o": wo_dma(j, pos)
                else: self.wd_dma(st, j, 1024 * pos, vWD, sE)
                staged.append((kind, j, pos))
                pos += 1 if kind == "o" else 2
        def unstage():
            st.wait_vm(("w" + staged[-1][0], staged[-1][1]))
            for kind, j, pos in staged:
                if kind == "o": wo_read(j, pos)
                else: self.wd_read(st, j, self.wd_static(j), self.vWS, 1024 * pos)
            st.wait_ds()
            staged.clear()
        gid = f"s_lshl_b32 s{sT0}, s{sIDX}, 2\ns_add_u32 s{sT0}, s{sT0}, s{sW}"
        cid = f"s_lshl_b32 s{sT0}, s2, 2\ns_add_u32 s{sT0}, s{sT0}, s{sW}"
        free_hi = [False]
        def op(name):
            if name[0] == "S": stage(int(name[1:]))
            elif name == "R": unstage()
            elif name[0] == "O":
                u, _, mask = name[1:].partition("^")
                assert int(u) < 6 or free_hi[0] or self.c.loose
                self.odd_pair(st, int(u), int(mask or 0), GU)
            elif name[0] == "F": self.full_unit(st, int(name[1:]), 43)
            elif name == "Tkv":
                st(f"{gid}\ns_lshl_b32 s{sT1}, s{sT0}, 10\ns_add_u32 s{sT1}, s{sT1}, {WS_KV}")
                touch(WS, vT, f"s{sT1}", 8)
            elif name == "Tmd":
                st(f"{cid}\ns_mul_i32 s{sT1}, s{sT0}, {14*128}")
                touch(WD, vT, f"s{sT1}", 14)
            elif name in ("Tmg0", "Tmg1"):
                st(f"{cid}\ns_lshr_b32 s{sT0}, s{sT0}, 1\ns_mul_i32 s{sT1}, s{sT0}, {14*128}\ns_add_u32 s{sT1}, s{sT1}, {917504*int(name[3])}")
                touch(WG, vT, f"s{sT1}", 14)
            elif name == "To":
                st(f"{gid}\ns_lshl_b32 s{sT1}, s{sT0}, 12")
                touch(WO, vT, f"s{sT1}", 32)
            elif name[:2] in ("Tf", "Tq"):
                row0 = (96 if name[1] == "f" else 0) + 256 * int(name[2:])
                st(f"{gid}\ns_lshr_b32 s{sT0}, s{sT0}, 1\ns_mul_i32 s{sT1}, s{sT0}, {4*3584}\ns_add_u32 s{sT1}, s{sT1}, {row0*3584 + (0 if name[1] == 'f' else 128)}")
                if name[1] == "q": st("s_mov_b32 exec_lo, 0x77777777\ns_mov_b32 exec_hi, 0x77777777")
                touch(WG, GU + 4, f"s{sT1}")
                if name[1] == "q": st("s_mov_b64 exec, -1")
            elif name[:2] in ("Th", "Ph"):
                a, b = map(int, name[2:].split("-"))
                st(f"s_lshr_b32 s{sT0}, s{sIDX}, 4\ns_lshl_b32 s{sT1}, s{sG}, 1\ns_add_u32 s{sT0}, s{sT0}, s{sT1}\ns_lshl_b32 s{sT0}, s{sT0}, 2\ns_add_u32 s{sT0}, s{sT0}, s{sW}")
                st(f"s_mul_i32 s{sT0}, s{sT0}, 114688\ns_and_b32 s{sT1}, s{sIDX}, 15\ns_mul_i32 s{sT1}, s{sT1}, 7168\ns_add_u32 s{sT0}, s{sT0}, s{sT1}\ns_add_u32 s{sT0}, s{sT0}, {WS_HH + 1024*a}")
                lines(name, f"s{sT0}", 8 * (b - a))
            elif name == "Tx":
                self.h_base(st, sT0)
                touch(OUT, 22, f"s{sT0}", 16)
                touch(WS, 21, "0", 21)
            elif name in ("Cx", "Cf"):
                st(f"s_lshl_b32 s{sT0}, s{sRB}, 4\ns_lshl_b32 s{sT1}, s{sCB}, 2\ns_add_u32 s{sT0}, s{sT0}, s{sT1}\ns_add_u32 s{sT0}, s{sT0}, s{sW}")
                st.wait_vm("tx" if name == "Cx" else "cx")
                st(f"s_cmp_eq_u32 s{sCOLO}, {2 if self.c.force_slow else 1}\ns_cbranch_scc0 L_{name}s")
                for o, sc in ((st, ""), (self.tailcode, " sc1")):
                    if sc: o.label(f"L_{name}s")
                    if name == "Cx":
                        o(f"s_lshl_b32 s{sT1}, s{sT0}, 11\ns_add_u32 s{sT1}, s{sT1}, {WS_O}")
                        for q in range(2): o.vm(f"buffer_store_dwordx4 v[8:11], v{vL}, {srd(WS)}, s{sT1} offen offset:{1024*q}{sc}", "cx")
                        self.h_base(o, sT1)
                        for q in range(2):
                            o.vm(f"buffer_store_dwordx4 v[8:11], v19, {srd(OUT)}, s{sT1} offen{sc}", "cx")
                            if q == 0: o(f"s_add_u32 s{sT1}, s{sT1}, 8192")
                        o("s_bfm_b64 exec, 16, 0")
                        for base in (WS_ST, WS_PM):
                            o(f"s_lshl_b32 s{sT1}, s{sT0}, 8\ns_add_u32 s{sT1}, s{sT1}, {base}")
                            o.vm(f"buffer_store_dwordx4 v[8:11], v{vL}, {srd(WS)}, s{sT1} offen{sc}", "cx")
                    else:
                        o(f"s_lshl_b32 s{sT1}, s{sT0}, 2\ns_add_u32 s{sT1}, s{sT1}, {WS_FLG2}\ns_mov_b64 exec, 1")
                        o.vm(f"buffer_store_dword v29, off, {srd(WS)}, s{sT1}{sc}")
                    o("s_mov_b64 exec, -1")
                    if sc: o(f"s_branch L_{name}d")
                st.label(f"L_{name}d")
            elif name == "K":
                st(f"s_lshl_b32 s{sT0}, s{sG}, 9\ns_lshl_b32 s{sT1}, s{sW}, 7\ns_add_u32 s{sT0}, s{sT0}, s{sT1}\ns_add_u32 s{sT0}, s{sT0}, {WS_FLG2}\ns_setprio 2")
                self.poll(st, "L_clr", 47, f"s{sT0}", vR, 1, exact=True, lanes=32)
                st(f"s_setprio {self.c.hprio}")
            elif name == "X":
                st(f"s_lshl_b32 s{sT0}, s{sRB}, 15\ns_lshl_b32 s{sT1}, s{sCB}, 8\ns_add_u32 s{sT0}, s{sT0}, s{sT1}\ns_lshl_b32 s{sT1}, s{sW}, 6\ns_add_u32 s{sT0}, s{sT0}, s{sT1}")
                for q in range(2):
                    st.vm(f"buffer_load_dwordx4 {vr(32+4*q,4)}, v40, {srd(X)}, s{sT0} offen offset:{32*q}")
            elif name == "B":
                st(f"s_cmp_lg_u32 s{sW}, 3\ns_cbranch_scc1 L_nowb2")
                st(f"s_lshl_b32 s{sT0}, s{sCB}, 13\ns_add_u32 s{sT0}, s{sT0}, {WS_WB}\ns_mov_b32 s{sCNT}, {SPIN}\ns_setprio 2")
                st.label("L_wb")
                st(f"buffer_load_dwordx3 v[44:46], v{vT}, {srd(WS)}, s{sT0} offen sc1\ns_waitcnt vmcnt(0)")
                st(f"v_cmp_ne_u32 vcc, s{sEP1}, v46\ns_cbranch_vccz L_wb_ok\ns_sub_u32 s{sCNT}, s{sCNT}, 1\ns_cbranch_scc0 L_wb")
                st.label("L_wb_ok")
                st(f"s_setprio {self.c.hprio}\nds_write2_b32 v42, v44, v45 offset0:0 offset1:8\ns_waitcnt lgkmcnt(0)")
                st.label("L_nowb2")
            elif name[0] == "W":
                st.wait_vm()
                self.stamp(st, "h", "drain" + name[1:], 16)
            else: raise KeyError(name)
        chunk(1)
        st(f"s_cmp_lg_u32 s{sW}, 1\ns_cbranch_scc1 L_nopub\ns_mov_b64 exec, 0xff")
        st.vm(f"buffer_store_dwordx4 v[244:247], v{vL}, {srd(WS)}, s{sF} offen sc1", cond=True)
        st("s_mov_b64 exec, -1")
        st.label("L_nopub")
        ints = self.c.sched.split("|")
        assert len(ints) == 8
        for c, ops in enumerate(ints):
            if c == 1:
                st(f"{cid}\ns_cmp_lg_u32 s{sT0}, 0\ns_cbranch_scc1 L_noep")
                st(f"s_mov_b32 s{sT1}, {WS_EPOCH}\ns_mov_b64 exec, 1")
                st.vm(f"buffer_store_dword v31, off, {srd(WS)}, s{sT1} sc1", cond=True)
                st("s_mov_b64 exec, -1")
                st.label("L_noep")
            plain, _, stag = ops.partition("[")
            def staggered(par):
                if not stag: return
                st(f"s_xor_b32 s{sT0}, s{sIDX}, s{sG}\ns_bitcmp1_b32 s{sT0}, 0\ns_cbranch_scc{par} L_st{c}_{par}")
                incond[0] = True
                for name in stag.rstrip("]").split(): op(name)
                incond[0] = False
                st.label(f"L_st{c}_{par}")
            staggered(0)
            for name in plain.split(): op(name)
            st.wait_vm(("kv", c + 1))
            staggered(1)
            self.stamp(st, "h", f"arrBA{c}", 2)
            st.bar(f"BA{c}")
            self.stamp(st, "h", f"cycBA{c}", 32)
            if not items and not staged: free_hi[0] = True
            if c + 2 < 8: chunk(c + 2)
        assert self.c.loose or (not items and not staged)
        st("s_setprio 2")
        self.stamp(st, "h", "BA7")

    def helper_phase_c(self, st):
        vL, XR, ACC, BRG, PM = 1, 32, 16, (4, 8, 40, 44), self.WOR
        st(f"s_lshl_b32 s{sT0}, s{sRB}, 2\ns_add_u32 s{sT0}, s{sT0}, s{sCB}\ns_lshl_b32 s{sE}, s{sT0}, 10\ns_lshl_b32 s{sT1}, s{sW}, 2\ns_add_u32 s{sE}, s{sE}, s{sT1}\ns_add_u32 s{sE}, s{sE}, {WS_ST}")
        self.h_base(st, sA)
        st(f"s_add_u32 s{sB}, s{sA}, 8192")
        st.wait_vm()
        st.bar("BC0")
        st("v_mov_b32 v13, v43\nv_mov_b32 v3, v19")
        rd = lambda j: st.ds(f"ds_read_b128 {vr(BRG[j % 4],4)}, v{vL} offset:{RING + 1024*j}", ("o", j))
        for j in range(3): rd(j)
        for b in (XR, XR + 4): st(f"v_permlane32_swap_b32 v{b}, v{b+2}\nv_permlane32_swap_b32 v{b+1}, v{b+3}")
        for r in range(8): st(f"v_lshlrev_b32 v{ACC+2*r}, 16, v{XR+r}\nv_and_b32 v{ACC+2*r+1}, 0xffff0000, v{XR+r}")
        st(f"v_add_u32 v2, {PML}, v{vL}")
        red = {25: [f"v_add_f32 v{PM}, v{PM}, v{PM+1}", f"v_add_f32 v{PM+2}, v{PM+2}, v{PM+3}", f"v_add_f32 v{PM}, v{PM}, v{PM+2}"],
               26: [f"v_mov_b32 v{PM+1}, v{PM}"], 27: [f"v_permlane32_swap_b32 v{PM}, v{PM+1}", f"v_add_f32 v{PM}, v{PM}, v{PM+1}", f"v_sub_f32 v12, v12, v{PM}"],
               28: ["v_mul_f32 v14, -0.5, v12"]}
        for m in range(32):
            if m == 8:
                self.stamp(st, "h", "own", 1024)
                st.bar("BC1a")
                self.pad(st, 2)
                self.stamp(st, "h", "x2ok", 1027)
                for j in range(8, 11): rd(j)
            st.wait_ds(("o", m))
            st(mfma32(ACC, self.WOR + 4 * m, BRG[m % 4]))
            if m in (13, 21):
                self.stamp(st, "h", f"m{m}", 1024)
                st.bar("BC1b" if m == 13 else "BC1c")
                self.stamp(st, "h", f"m{m}b", 1024)
            if m == 21: st.ds(f"ds_read_b128 {vr(PM,4)}, v2")
            if m in (15, 17) and self.c.cfull > 0: self.full_unit(st, 3, 13, (m // 17,))
            if m in (22, 24) and self.c.cfull > 1: self.full_unit(st, 4, 13, (m // 24,))
            if m + 3 < 32 and not 8 <= m + 3 < 11: rd(m + 3)
            for op in red.get(m, []): st(op)
        self.stamp(st, "h", "m31", 1024)
        st(f"s_cmp_eq_u32 s{sCOLO}, {2 if self.c.force_slow else 1}\ns_cbranch_scc0 L_c_slow")
        self.c_epilogue(st, "")
        st.label("L_c_done")
        st.nbar += 1
        self.stamp(st, "h", "hflag")
        tc = self.tailcode
        tc.label("L_c_slow")
        self.c_epilogue(tc, " sc1")
        tc("s_branch L_c_done")

    def c_epilogue(self, st, sc):
        vL, ACC, P = 1, 16, 40
        st.nop(10)
        for r in range(8):
            st(f"v_pk_add_f32 {vr(ACC+2*r,2)}, {vr(ACC+2*r,2)}, v[12:13] op_sel_hi:[1,0]")
            if r % 4 == 3:
                for i in range(r - 3, r + 1): st(f"v_cvt_pk_bf16_f32 v{P+i}, v{ACC+2*i}, v{ACC+2*i+1}")
                st(f"v_min_u32 v{P+r-3}, -2, v{P+r-3}")
                st.vm(f"buffer_store_dwordx4 {vr(P+r-3,4)}, v3, {srd(OUT)}, s{sA + r//4} offen{sc}")
        st("s_barrier                ; BC2")
        for r in range(8):
            st(f"v_dot2_f32_bf16 v15, v{P+r}, v{P+r}, {'0' if r == 0 else 'v15'}")
        st(f"s_nop 2\nv_permlane32_swap_b32 v14, v15\nv_add_f32 v2, v14, v15\nv_min_u32 v2, -2, v2")
        st.vm(f"buffer_store_dword v2, v{vL}, {srd(WS)}, s{sE} offen{sc}")

    def e_setup(self, st):
        vL, vP, vA = 1, 2, (7, 8, 9, 10)
        st(f"s_lshr_b32 s{sT0}, s{sIDX}, 3\ns_lshl_b32 s{sT1}, s{sG}, 2\ns_add_u32 s{sT0}, s{sT0}, s{sT1}\ns_lshl_b32 s{sA}, s{sT0}, 1")
        st(f"s_mul_i32 s{sT0}, s{sA}, 114688\ns_mul_i32 s{sT1}, s{sW}, {28*1024}\ns_add_u32 s{sT0}, s{sT0}, s{sT1}")
        for p in range(2): st(f"s_add_u32 s{sP+p}, s{sT0}, {WS_HH + 14336*p}")
        st("v_bfe_u32 v14, v0, 4, 1\nv_lshlrev_b32 v14, 9, v14\nv_and_b32 v15, 15, v0\nv_lshl_add_u32 v14, v15, 4, v14\nv_lshrrev_b32 v11, 5, v0")
        st("v_lshl_add_u32 v15, v11, 11, v14\nv_mul_u32_u24 v11, 7168, v11\nv_add_u32 v11, v11, v14")
        st(f"s_lshr_b32 s{sT2}, s{sW}, 1\ns_mul_i32 s{sT0}, s{sT2}, 114688\ns_sub_u32 s{sT1}, 114688, s{sT0}")
        st(f"v_add_u32 v{vA[0]}, s{sT0}, v11\nv_add_u32 v{vA[1]}, s{sT1}, v11\nv_add_u32 v{vA[2]}, 4096, v{vA[0]}\nv_add_u32 v{vA[3]}, 4096, v{vA[1]}")
        st(f"v_bfe_u32 v{vP}, v0, 2, 1\nv_lshlrev_b32 v{vP}, 7, v{vP}\nv_and_b32 v14, 3, v0\nv_lshl_add_u32 v{vP}, v14, 2, v{vP}")
        st(f"v_lshrrev_b32 v14, 3, v0\nv_lshl_add_u32 v{vP}, v14, 28, v{vP}")
        st(f"s_lshl_b32 s{sT0}, s{sA}, 7\ns_lshl_b32 s{sT1}, s{sW}, 4\ns_add_u32 s{sB}, s{sT0}, s{sT1}\ns_add_u32 s{sB}, s{sB}, {WS_FLG4}")
        st(f"s_add_u32 s{sA}, s{sA}, s{sT2}")
        st(f"s_lshl_b32 s{sT0}, s{sA}, 15\ns_lshl_b32 s{sT1}, s{sW}, 13\ns_add_u32 s{sT0}, s{sT0}, s{sT1}\ns_add_u32 s{eO}, s{sT0}, {WS_O}")
        st(f"s_add_u32 s{eO+1}, s{eO}, 4096\ns_xor_b32 s{eO+2}, s{eO}, 0x8000\ns_xor_b32 s{eO+3}, s{eO+1}, 0x8000")
        st(f"s_and_b32 s{sT0}, s{sIDX}, 7\ns_lshl_b32 s{sT0}, s{sT0}, 1\ns_and_b32 s{sT1}, s{sW}, 1\ns_add_u32 s{sT0}, s{sT0}, s{sT1}")
        st(f"s_lshl_b32 s{sC}, s{sT1}, 14\ns_lshl_b32 s{sT1}, s{sA}, 15\ns_add_u32 s{sC}, s{sC}, s{sT1}\ns_and_b32 s{sT2}, s{sIDX}, 7\ns_lshl_b32 s{sT2}, s{sT2}, 7\ns_add_u32 s{sC}, s{sC}, s{sT2}\ns_add_u32 s{sXCC}, s{sC}, 8192")
        st(f"s_lshl_b32 s{sD}, s{sT0}, 6\ns_add_u32 s{sD}, s{sD}, s{sT1}")
        st(f"s_lshl_b32 s{sF}, s{sA}, 12\ns_add_u32 s{sF}, s{sF}, {WS_ST}")
        st(f"v_and_b32 v14, 31, v0\nv_lshlrev_b32 v14, 10, v14\nv_lshrrev_b32 v3, 5, v0\nv_lshl_add_u32 v14, v3, 4, v14")
        st(f"v_and_b32 v11, 15, v0\nv_lshl_add_u32 v11, v3, 4, v11\nv_lshlrev_b32 v11, 4, v11")

    def helper_phase_de(self, st):
        vL, vP, vR = 1, 2, 3
        vWD, vWA, GU = 4, (5, 6, 12, 13), 192
        st(f"v_mov_b32 v{GU}, v13")
        lo = [slot8(8)]
        st(f"s_lshl_b32 s{sE}, s{sW}, 11\ns_add_u32 s{sT1}, s{sE}, {lo[0]}")
        self.wd_addr(st, vWD, vWA, 14, sT1)
        where = {}
        def dma(j, i):
            where[j] = i
            self.wd_dma(st, j, slot8(i), vWD, sE)
        def read(j, grp, ns=range(4)):
            if slot8(where[j]) - lo[0] > 65535:
                for v in vWA: st(f"v_add_u32 v{v}, 0x8000, v{v}")
                lo[0] += 0x8000
            assert slot8(where[j]) >= lo[0]
            self.wd_read(st, j, grp, vWA, slot8(where[j]) - lo[0], ns)
        wreg = {j: self.wd_static(j) for j in range(18)}
        def rd(js):
            st.wait_vm(("wd", js[-1]))
            for j in js: read(j, wreg[j])
            st.wait_ds()
        vPG, vLD, vN, CK = 200, 201, 202, 204
        st(f"s_lshl_b32 s{sT0}, s{sW}, 2\ns_add_u32 s{sT0}, s{sT0}, {LAND}\nv_mov_b32 v{vLD}, s{sT0}\nv_mov_b32 v{vPG}, {PROG}")
        def prog(n):
            if n in (3, 5, 7, 9, 20): self.stamp(st, "h", f"arr{n}", 4)
            self.lds_spin(st, f"L_pg{n}", vPG, CK, n)
        def land(tag, n):
            st(f"v_mov_b32 v{vN}, {n}")
            st.wait_vm(tag)
            st.ds(f"ds_write_b32 v{vLD}, v{vN}")
        self.e_setup(st)
        st(f"s_setprio {self.c.dprio}")
        self.pace = self.c.pace
        full = lambda u: self.full_unit(st, u, GU)
        plan = self.c.dplan.split()
        latew = [tuple(map(int, x[1:].split(">"))) for x in plan[len(plan) - self.c.nlate:]]
        for op in plan[:len(plan) - self.c.nlate]:
            a = op[1:]
            if op[0] == "F":
                if int(a) >= 3 + self.c.cfull: full(int(a))
            elif op[0] == "W": dma(*map(int, a.split(">")))
            elif op[0] == "P": prog(int(a))
            elif op[0] == "L": land(("full", int(a) - 1), int(a))
            elif op[0] == "R": rd(list(map(int, a.split(","))))
            elif op == "T":
                st(f"s_setprio {self.c.tprio}")
                self.pace = self.c.pace2
        self.stamp(st, "h", "Dhelp_end", 13)
        ACC, vA = 192, (7, 8, 9, 10)
        free = [16, 24, 32, 40]
        areg = {}
        W0 = 20
        def step(s):
            if s < W0: return s // 2, s % 2
            return W0 // 2 + (s - W0) % 4, 1 if s < W0 + 4 else 0
        def ldA(s):
            areg[s] = r = free.pop(0)
            P, mt = step(s)
            pp, t = P % 2, P // 2
            for mh in range(2):
                if t < 2: a = f"v15, {srd(WS)}, s{eO + 2*mt + pp} offen offset:{1024*t + 256*mh}"
                else: a = f"v{vA[mt + (2 if t >= 4 else 0)]}, {srd(WS)}, s{sP+pp} offen offset:{1024*(t % 4) + 256*mh}"
                st.vm(f"buffer_load_dwordx4 {vr(r+4*mh,4)}, {a} sc1", ("a", s))
        def gate(t):
            tc = self.near
            st.wait_vm(("poll", t))
            self.notready(st, vR, t + 1)
            st(f"s_and_b64 vcc, vcc, 0xff\ns_cbranch_scc1 L_x4s{t}")
            st.label(f"L_x4r{t}")
            tc.label(f"L_x4s{t}")
            if self.c.diag & 8: tc(f"s_bitset1_b32 s{CODE}, {t}")
            self.poll(tc, f"L_x4p{t}", vP, f"s{sB}", vR, t + 1, lanes=8)
            tc(f"s_branch L_x4r{t}")
        stg = self.stages()
        f0 = stg[0][0]
        pollat = {x[1]: x[0] for x in stg[1:]}
        gateat = {4 * stg[i][0]: stg[i + 1] for i in range(len(stg) - 1)}
        if self.c.diag & 8: st(f"s_mov_b32 s{CODE}, 0")
        assert not latew
        st(f"s_setprio {self.c.pprio}")
        st(f"v_bfe_u32 v4, v0, 4, 1\nv_lshlrev_b32 v4, 12, v4\nv_lshrrev_b32 v{vR}, 5, v0\nv_lshl_add_u32 v4, v{vR}, 11, v4")
        st(f"v_bfe_u32 v{vR}, v0, 3, 1\nv_lshl_add_u32 v4, v{vR}, 10, v4\nv_and_b32 v{vR}, 7, v0\nv_lshl_add_u32 v4, v{vR}, 4, v4")
        self.poll(st, "L_x4", vP, f"s{sB}", vR, f0, lanes=8)
        if self.c.diag & 8: st(f"s_sub_u32 s{CODE}, {SPIN}, s{sCNT}\ns_lshl_b32 s{CODE}, s{CODE}, 8")
        st(f"s_setprio {self.c.eprio}")
        self.stamp(st, "h", "x4ok", 13)
        self.pace = None
        for j in range(4): ldA(j)
        nextA, nextW, DEPTH = 4, 18, self.c.edepth
        hres = None
        assert max(gateat, default=0) <= W0
        def mm(s, nt, nh, mh):
            P, mt = step(s)
            st(mfma16(ACC + 16 * (nt + 2 * mt) + 8 * nh + 4 * mh, wreg[2 * P][nt] + 4 * nh, areg[s] + 4 * mh, "0" if P == 0 else None))
        wneed = lambda J: J & ~1 if J < W0 else W0 + (J - W0) // 2
        def more(s):
            nonlocal nextA, nextW, hres
            if nextW in wreg:
                read(nextW, wreg[nextW], (2, 3)); nextW += 1
            elif nextW < 28 and wneed(nextW) <= s + 3 and (nextW % 2 or len(free) > 1):
                st.wait_vm(("wd", nextW))
                wreg[nextW] = wreg[nextW - 1] if nextW % 2 else (free.pop(0), free.pop(0))
                read(nextW, wreg[nextW], (0, 1))
            elif s in pollat:
                st.vm(f"buffer_load_dword v{vR}, v{vP}, {srd(WS)}, s{sB} offen sc1", ("poll", pollat.pop(s) - 1))
            elif nextA < 28 and nextA <= s + DEPTH and free and (nextA not in gateat or gateat[nextA][2] <= s):
                if nextA in gateat: gate(gateat[nextA][0] - 1)
                ldA(nextA); nextA += 1
            elif latew and nextA >= self.c.lateat:
                dma(*latew.pop(0))
            elif s >= 6 and hres is None and len(free) > 3:
                hres = [free.pop(0) for _ in range(3)]
                for l in hld(): st.vm(l, "h")
        hld = lambda: [f"buffer_load_dwordx4 {vr(hres[0]+4*i,4)}, v4, {srd(OUT)}, s{(sC, sXCC)[i]} offen sc1" for i in range(2)] + \
                      [f"buffer_load_dword v15, v11, {srd(WS)}, s{sF} offen sc1"]
        BUF, vX = RING, (5, 6, 12, 13)
        valu = []
        quad = ((0, 0), (0, 1), (1, 1), (1, 0))
        for s in range(W0 + 4):
            st.wait_vm(("a", s))
            st.wait_ds(("wdr", 2 * step(s)[0] + 1))
            if s % 4 == 0: self.stamp(st, "h", f"Et{s//4}", 8)
            if s == 13:
                assert nextA > 8
                st.wait_vm("h")
                self.validate(st, "L_hr", (hres[0], hres[0] + 4, 15), hres[1], hld())
                res = lambda r: hres[1 + r // 8] + r % 8
                valu += ["v_mov_b32 v11, v15"] + [f"v_permlane32_swap_b32 v{hres[0]+r}, v{hres[0]+r+2}" for r in (0, 1, 4, 5)] + ["v_permlane32_swap_b32 v15, v11"]
                for r in range(8):
                    valu += [f"v_lshlrev_b32 v{res(2*r)}, 16, v{hres[0]+r}", f"v_and_b32 v{res(2*r+1)}, 0xffff0000, v{hres[0]+r}"]
                valu += [f"v_add_f32 v{res(r)}, v{11 if r & 4 else 15}, v{res(r)}" for r in range(16)]
            if s == W0 + 2:
                assert nextW == 28 and not valu
                valu += [f"s_xor_b32 s{sT0}, s{sW}, {a}\ns_mul_i32 s{sT0}, s{sT0}, 12288\ns_add_u32 s{sT0}, s{sT0}, {BUF}\nv_add_u32 v{vX[a]}, s{sT0}, v{vL}" for a in range(4)]
            for i in range(8):
                mm(s, i // 4, *quad[i % 4])
                if s == W0 and i == 0:
                    st(f"v_mov_b32 v4, {PROG}")
                    ck = free.pop(0)
                if s == W0 and i == 2: st.ds(f"ds_read_b128 {vr(ck,4)}, v4", "ck")
                if s == W0 + 1 and i == 7:
                    st.wait_ds("ck")
                    self.lds_min(st, ck, 30)
                    st("s_cbranch_vccnz L_mds")
                    st.label("L_mdr")
                    self.near.label("L_mds")
                    self.lds_spin(self.near, "L_md", 4, ck, 30)
                    self.near("s_branch L_mdr")
                n0 = len(st.lines)
                if i < 7: more(s)
                if len(st.lines) == n0 and i < 7:
                    for _ in range(2 if s < W0 else 1):
                        if valu: st(valu.pop(0))
            free.append(areg[s])
            if s < W0 and s % 2: free += list(wreg[s])
            if s == 17:
                assert len(valu) <= 16
                free.append(hres[0])
            more(s)
        assert nextA == 28 and not valu, nextA
        self.stamp(st, "h", "Et6", 8)
        wrs = [(a, q) for a in (2, 3, 1) for q in (0, 1, 3, 2)]
        def wr():
            a, q = wrs.pop(0)
            st.ds(f"ds_write_b128 v{vX[a]}, {vr(ACC+16*a+4*q,4)} offset:{4096*(a-1) + 1024*q}")
        seq = [(s, nt, x) for nt in (1, 0) for s in range(W0 + 4, W0 + 8) for x in quad]
        for i, (s, nt, x) in enumerate(seq):
            if nt == 1: st.wait_vm(("a", s))
            mm(s, nt, *x)
            if i in eval(self.c.wpos): wr()
        assert not wrs
        self.stamp(st, "h", "Emfma_end", 13)
        st.wait_ds()
        st.bar("BE2")
        for q in range(4):
            for a in (1, 2, 3): st.ds(f"ds_read_b128 {vr(ACC+16*a+4*q,4)}, v{vX[0]} offset:{4096*(a-1) + 1024*q}", ("r", q))
        for r in range(0, 16, 2): st(f"v_pk_add_f32 {vr(ACC+r,2)}, {vr(ACC+r,2)}, {vr(res(r),2)}")
        for q in range(4):
            st.wait_ds(("r", q))
            for r in (4 * q, 4 * q + 2):
                st(f"v_pk_add_f32 {vr(ACC+r,2)}, {vr(ACC+r,2)}, {vr(ACC+16+r,2)}\nv_pk_add_f32 {vr(ACC+32+r,2)}, {vr(ACC+32+r,2)}, {vr(ACC+48+r,2)}")
            for r in (4 * q, 4 * q + 2): st(f"v_pk_add_f32 {vr(ACC+r,2)}, {vr(ACC+r,2)}, {vr(ACC+32+r,2)}")
            b = hres[1 + q // 2]
            for e in range(2): st(f"v_cvt_pk_bf16_f32 v{b+2*(q % 2)+e}, v{ACC+4*q+2*e}, v{ACC+4*q+2*e+1}")
            if q % 2:
                st(f"s_nop 1\nv_permlane16_swap_b32 v{b}, v{b+2}\nv_permlane16_swap_b32 v{b+1}, v{b+3}")
                st.vm(f"buffer_store_dwordx4 {vr(b,4)}, v14, {srd(OUT)}, s{sD} offen offset:{32*(q//2)} {self.c.outf}")
        self.pad(st, 0)
        self.stamp(st, "h", "end", 9)
        if self.c.diag & 8:
            self.nstamp["h"].append("gates")
            st(f"s_waitcnt lgkmcnt(0)\ns_mov_b32 s{sSTAMP + 2*(len(self.nstamp['h'])-1)}, s{CODE}")
        self.dump_stamps(st, "h")

    def build(self):
        p, m, h = Stream(), Stream(), Stream()
        self.prologue(p)
        m.label("L_main")
        self.main_phase_a(m); self.main_attention(m); self.main_publish_o(m); self.main_phase_d(m)
        ms = Stream()
        self.sc, self.sfx = " sc1", "_s"
        ms.label("L_main_slow")
        self.main_publish_o(ms); self.main_phase_d(ms)
        self.sc, self.sfx = "", ""
        self.helper_phase_a(h); self.helper_attention(h); self.helper_phase_c(h); self.helper_phase_de(h)
        assert m.nbar + 1 == h.nbar, (m.nbar, h.nbar)
        ref = open("hdr.ref").read().splitlines()
        hdr = [l for l in ref if l.startswith(";") and "@launch" not in l]
        o = "\n".join(hdr) + f"\n; @launch grid=(256,1,1) block=(512,1,1) lds={LDS_BYTES}\n"
        o += f'.amdgcn_target "amdgcn-amd-amdhsa--gfx950"\n.text\n.globl {NAME}_kernel\n.p2align 8\n.type {NAME}_kernel,@function\n{NAME}_kernel:\n'
        o += p.text() + "\n" + h.text() + "\nL_end:\n    s_endpgm\n" + self.near.text() + "\n" + m.text() + "\nL_codeend:\n" + self.tailcode.text() + "\n" + ms.text() + "\n"
        o += f""".section .rodata,"a"
.p2align 6
.amdhsa_kernel {NAME}_kernel
  .amdhsa_next_free_vgpr 256
  .amdhsa_next_free_sgpr 102
  .amdhsa_accum_offset 256
  .amdhsa_group_segment_fixed_size 0
  .amdhsa_kernarg_size 96
  .amdhsa_user_sgpr_count 2
  .amdhsa_user_sgpr_kernarg_segment_ptr 1
  .amdhsa_system_sgpr_workgroup_id_x 1
.end_amdhsa_kernel
"""
        return o

if __name__ == "__main__":
    import hazcheck, json
    cfg = Cfg()
    out = sys.argv[1]
    for a in sys.argv[2:]:
        k, v = a.split("=")
        setattr(cfg, k, v if k in ("sched", "dplan", "gates", "probe", "outf", "wpos") else int(v))
    g = Gen(cfg)
    txt = g.build()
    open(out, "w").write(txt)
    json.dump(dict(g.nstamp, cyc=cfg.cyc) if g.nstamp else {}, open(out + ".stamps.json", "w"))
    errs = hazcheck.check(txt)
    for e in errs[:40]: print(e)
    print(len(errs), "hazard findings;", len(txt.splitlines()), "lines")
```

```python
import sys, struct
from emit import Stream, vr, sr

NAME = "sequential_preLN__grouped_kv_mqa__glu_gated_glu__prompt"

def f32(x): return hex(struct.unpack("<I", struct.pack("<f", x))[0])

WS_KV, WS_KVL, WS_FLG1, WS_FLGL, WS_FLG2, WS_FLG3, WS_FLG4 = 0x0, 0x20000, 0x40000, 0x48000, 0x50000, 0x52000, 0x54000
WS_WB, WS_ST, WS_DIAG, WS_PM, WS_O, WS_H, WS_HH, WS_SIZE = 0x58000, 0x60000, 0xA0000, 0xC0000, 0x100000, 0x300000, 0x500000, 0xC00000
TILE, RING, FS, ODD = 2080, 0, 33280, 57856
XN, WKV, WQST, NWQ = 33280, 16640, 67072, 23
LDS_BYTES = 163840
PML, WBL, MISC = 156160, 163072, 163584
PROG, LAND, XC, WC = MISC + 160, MISC + 176, MISC + 192, MISC + 208
STGW = 14336
STG = WBL - 4 * STGW
def slot8(i): return RING + 8192 * i if i < 4 else FS + 8192 * (i - 4)
FSLOT = (4, 5, 6, 0, 1, 2, 3, 4, 5, 7, 6, 0, 1, 2, 3, 4)
def tile_of(c, i): return (i if i < c else i + 4) if i < 3 else c + i - 3
X, WQ, WKVS, WO, WG, WU, WD, OUT, DBG, WS = 4, 8, 12, 16, 20, 24, 28, 32, 36, 40
sG, sIDX, sRB, sCB, sW, sXCC = 44, 45, 46, 47, 48, 49
sT0, sT1, sT2, sT3, sCNT = 50, 51, 52, 53, 54
sA, sB, sC, sD, sE = 55, 56, 57, 58, 59
sONE, sLO, sHI = 60, 61, 62
sF = 63
CODE = 64
sP = 68
mO, mPM, mF2, mF3, mF4, mST, mHH0, mHH1, mRB, mCHK, mKH, mKG, mKL, mFG, mFL = range(20, 35)
MOUT = WO
eO = WQ
sSTAMP = 76
SPIN = 1 << 17
SPINL = 96
sCOLO = 3
WS_EPOCH = 0x48400
sEP = DBG
sEP1 = DBG + 1
def srd(b): return sr(b, 4)

class Cfg:
    diag = False
    tail = 7
    force_fallback = False
    force_slow = False
    npre = 6
    nearly = 120
    tq = 8
    ndeep = 12
    sec = 2
    wo_early = 2
    lfat = 4
    gfat = 5
    jx = 8
    pace = 4
    lag = 16
    wpos = '1,3,6,8,11,13,16,18,20,22,24,26'
    kv2 = 0
    bpat = 1
    psleep = 0
    fake16 = 0
    bal = 0
    balc = 32
    hho = 0
    of = ''
    cf = ''
    sf = ''
    gf = ''
    hfirst = 0
    mprio = 1
    tm = 0
    tkv = 1
    wcat = 1
    nh = 0
    nb = 0
    nmore = 0
    x1late = 0
    align = 0
    lalign = 0
    pmat = 2
    g2early = 1
    stat = 127
    d2 = 0
    d3 = 32
    nlate = 0
    lateat = 8
    wafter = 0
    wper = 4
    la = 7
    cfull = 2
    pprio = 2
    fexec = 0
    dplan = ("L5 P1 F5 F6 P2 F7 P3 F8 L7 F9 P4 F10 L9 W10>8 P5 F11 W11>9 P6 F12 R10 P7 F13 W12>8 R11 W13>10 W14>9 P8 F14 R12 P9 F15 T "
             "W15>8 R13 W16>11 L16 R14 W17>12 W18>10 R15 W19>9 R16 W20>8 R17 W21>11 W22>12 P20 W23>13 W24>14 W25>15 W26>16 W27>17")
    gates = "2,4:2:5,7:9:12"
    lagp = 10
    tprio = 0
    eprio = 0
    fake = 0
    cyc = 0
    dprio = 0
    pace2 = 6
    loose = 0
    hprio = 0
    nt = 0
    swap = 1
    abatch = 1
    edepth = 5
    etile = 5
    sched = "Tkv S6|R S14 X Tmd Tmg0 Tmg1|R S14 F0|R S14 O0^2 F1|R S4 O2^2 O4 F2 R Tx|O8^6 O10^6 Cx|Cf O12^6 O14^6 O6 B|K Tf0"
    padto = 0
    padat = 0
    padwg = -1
    probe = ''
    outf = ''
    hhplain = 0

def mfma32(d, a, b, c=None):
    return f"v_mfma_f32_32x32x16_bf16 {vr(d,16)}, {vr(a,4)}, {vr(b,4)}, {vr(d,16) if c is None else c}"
def mfma16(d, a, b, c=None):
    return f"v_mfma_f32_16x16x32_bf16 {vr(d,4)}, {vr(a,4)}, {vr(b,4)}, {vr(d,4) if c is None else c}"
def smf(d, a, b, idx):
    return f"v_smfmac_f32_32x32x32_bf16 {vr(d,16)}, {vr(a,4)}, {vr(b,8)}, v{idx}"

class Gen:
    def __init__(self, cfg):
        self.c = cfg
        self.tailcode = Stream()
        self.near = Stream()
        self.nstamp = {}

    sc, sfx = "", ""

    def stamp(self, st, role, name, level=1):
        if self.c.probe and not self.sc:
            r, a, b, kind = self.c.probe.split(",")
            op = "s_memtime" if kind == "c" else "s_memrealtime"
            if role == r and name == "start": st("s_memrealtime s[100:101]")
            if role == r and name == a: st(f"{op} s[96:97]")
            if role == r and name == b: st(f"{op} s[94:95]")
            if role == r and name == "end":
                if self.c.padwg >= 0: st(f"s_cmp_lg_u32 s2, {self.c.padwg}\ns_cbranch_scc1 L_prbx")
                st("s_waitcnt lgkmcnt(0)\ns_sub_u32 s94, s94, s96")
                st("s_lshr_b32 s94, s94, 1" if kind == "c" else "s_mul_i32 s94, s94, 10")
                st("s_add_u32 s94, s94, 6000")
                st.label("L_prb")
                st("s_memrealtime s[98:99]\ns_waitcnt lgkmcnt(0)\ns_sub_u32 s98, s98, s100\ns_cmp_lt_u32 s98, s94\ns_cbranch_scc1 L_prb")
                st.label("L_prbx")
        if not (self.c.diag & level) or self.sc: return
        l = self.nstamp.setdefault(role, [])
        i = len(l); l.append(name)
        assert i < 13
        st(f"{'s_memtime' if name.startswith('cyc') or self.c.cyc else 's_memrealtime'} {sr(sSTAMP + 2*i, 2)}")

    def dump_stamps(self, st, role):
        if not self.c.diag or self.sc: return
        n = len(self.nstamp[role])
        st("s_waitcnt lgkmcnt(0)")
        st(f"s_lshl_b32 s{sT0}, s2, 3\ns_add_u32 s{sT0}, s{sT0}, s{sW}")
        st(f"s_add_u32 s{sT0}, s{sT0}, {4 if role == 'h' else 0}\ns_lshl_b32 s{sT0}, s{sT0}, 6\ns_add_u32 s{sT0}, s{sT0}, {WS_DIAG}")
        for i in range(n):
            st(f"v_mov_b32 v1, s{sSTAMP + 2*i}")
            st(f"buffer_store_dword v1, off, {srd(WS)}, s{sT0} offset:{4*i}")
        st("s_waitcnt vmcnt(0)")

    def notready(self, st, vdst, need):
        st(f"v_subrev_u32 v{vdst}, s{sEP}, v{vdst}")
        st(f"v_subrev_u32 v{vdst}, {need}, v{vdst}")
        st(f"v_cmp_lt_u32 vcc, {15 - need}, v{vdst}")

    def poll(self, st, name, vaddr, soff, vdst, need, exact=False, lanes=64):
        st(f"s_mov_b32 s{sCNT}, {SPIN}")
        if lanes < 64: st(f"s_bfm_b64 exec, {lanes}, 0")
        st.label(name)
        st(f"buffer_load_dword v{vdst}, v{vaddr}, {srd(WS)}, {soff} offen sc1")
        st.wait_vm()
        if exact: st(f"v_cmp_ne_u32 vcc, s{sEP1}, v{vdst}")
        else: self.notready(st, vdst, need)
        st(f"s_cbranch_vccz {name}_ok")
        st(f"s_sub_u32 s{sCNT}, s{sCNT}, 1")
        st(f"s_cbranch_scc0 {name}")
        st.label(name + "_ok")
        if lanes < 64: st("s_mov_b64 exec, -1")

    def pad(self, st, at):
        if not self.c.padto or self.c.padat != at: return
        if self.c.padwg >= 0: st(f"s_cmp_lg_u32 s2, {self.c.padwg}\ns_cbranch_scc1 L_padx")
        st.label("L_pad")
        st("s_memrealtime s[98:99]\ns_waitcnt lgkmcnt(0)\ns_sub_u32 s98, s98, s100")
        st(f"s_cmp_lt_u32 s98, {self.c.padto * 100}\ns_cbranch_scc1 L_pad")
        st.label("L_padx")

    def lds_min(self, st, r, need):
        st(f"v_min3_u32 v{r}, v{r}, v{r+1}, v{r+2}\nv_min_u32 v{r}, v{r}, v{r+3}\nv_cmp_gt_u32 vcc, {need}, v{r}")

    def lds_spin(self, st, name, va, r, need, sleep=0):
        st(f"s_mov_b32 s{sCNT}, {SPIN * 16}")
        st.label(name)
        st(f"ds_read_b128 {vr(r,4)}, v{va}")
        st.wait_ds()
        self.lds_min(st, r, need)
        st(f"s_cbranch_vccz {name}_ok")
        if sleep: st(f"s_sleep {sleep}")
        st(f"s_sub_u32 s{sCNT}, s{sCNT}, 1\ns_cbranch_scc0 {name}")
        st.label(name + "_ok")

    def validate(self, st, name, regs, tmp, reload, inline=False):
        def test(o):
            r = list(regs)
            while len(r) > 1:
                if len(r) > 2: o(f"v_max3_u32 v{tmp}, v{r[0]}, v{r[1]}, v{r[2]}"); r = [tmp] + r[3:]
                else: o(f"v_max_u32 v{tmp}, v{r[0]}, v{r[1]}"); r = [tmp]
            o(f"v_cmp_eq_u32 vcc, -1, v{r[0]}")
        name += self.sfx
        test(st)
        if inline:
            st(f"s_cbranch_vccz {name}r")
            o = st
        else:
            st(f"s_cbranch_vccnz {name}s")
            st.label(name + "r")
            o = self.tailcode if self.sc else self.near
            o.label(name + "s")
        o(f"s_mov_b32 s{sCNT}, {SPIN}")
        o.label(name + "l")
        if self.c.diag & 512 and not self.sc: o(f"s_add_u32 s{CODE}, s{CODE}, {1 if name[2] == 'g' else 256 if name == 'L_a0' else 65536}")
        for l in reload: o(l)
        o("s_waitcnt vmcnt(0)")
        test(o)
        o(f"s_cbranch_vccz {name}r\ns_sub_u32 s{sCNT}, s{sCNT}, 1\ns_cbranch_scc0 {name}l")
        if inline: st.label(name + "r")
        else: o(f"s_branch {name}r")

    def epoch_load(self, st):
        st(f"s_load_dword s{sEP}, {sr(WS,2)}, {WS_EPOCH}")

    def epoch_make(self, st):
        st(f"s_and_b32 s{sEP}, s{sEP}, 0xfffffff0\ns_add_u32 s{sEP}, s{sEP}, 0x9e3779b0\ns_add_u32 s{sEP1}, s{sEP}, 1")

    def srds(self, st, lst):
        for b, n in lst: st(f"s_mov_b32 s{b+2}, {n}\ns_mov_b32 s{b+3}, 0x20000")

    def prologue(self, st):
        st(f"s_load_dwordx2 {sr(X,2)}, s[0:1], 0\ns_lshr_b32 s{sT2}, s2, 1\ns_and_b32 s{sT2}, s{sT2}, 8\ns_add_u32 s{sT2}, s{sT2}, 16")
        st(f"s_load_dwordx2 {sr(WKVS,2)}, s[0:1], s{sT2}\ns_load_dwordx2 {sr(WS,2)}, s[0:1], 88")
        st("s_cmpk_ge_u32 s2, 256\ns_cbranch_scc1 L_end")
        st(f"s_getpc_b64 {sr(CODE,2)}")
        st.label("L_pc")
        st(f"v_readfirstlane_b32 s{sT0}, v0\ns_lshr_b32 s{sIDX}, s2, 3\ns_lshl_b32 s{sT1}, s{sIDX}, 11")
        st(f"s_mov_b32 s{CODE+2}, L_codeend-L_pc\ns_mov_b32 s{CODE+3}, 0x20000\nv_lshrrev_b32 v1, 5, v0\nv_lshlrev_b32 v1, 7, v1")
        st(f"buffer_load_dword v255, v1, {srd(CODE)}, s{sT1} offen")
        st(f"s_and_b32 s{sG}, s2, 7\ns_lshr_b32 s{sT1}, s{sIDX}, 2\ns_lshl_b32 s{sRB}, s{sG}, 3\ns_add_u32 s{sRB}, s{sRB}, s{sT1}")
        st(f"s_and_b32 s{sCB}, s{sIDX}, 3\ns_bfe_u32 s{sW}, s{sT0}, 0x20006\nv_and_b32 v0, 63, v0")
        st(f"s_cmpk_lt_u32 s{sT0}, 256\ns_cbranch_scc{1 - self.c.hfirst} L_main")

    def main_phase_a(self, st):
        self.stamp(st, "m", "start", 4095)
        vD, vTR, vXB, vXC = 2, 3, 4, 5
        XR, ACC = 112, 144
        st.vq.append((None, False))
        if self.c.mprio: st(f"s_setprio {self.c.mprio}")
        st(f"s_load_dwordx2 {sr(WQ,2)}, s[0:1], 8\ns_load_dwordx2 {sr(MOUT,2)}, s[0:1], 72")
        st(f"v_and_b32 v12, 15, v0\nv_lshlrev_b32 v12, 2, v12\nv_add_u32 v12, {PROG}, v12\nv_mov_b32 v13, 0\nds_write_b32 v12, v13")
        self.srds(st, ((WQ, 524288), (WKVS, 16384), (WS, WS_SIZE)))
        st(f"s_mov_b32 s{sONE}, 0x3f803f80")
        st(f"v_lshrrev_b32 v10, 2, v0\nv_lshlrev_b32 v10, 10, v10\nv_and_b32 v11, 3, v0\nv_lshlrev_b32 v17, 7, v0\nv_lshlrev_b32 v11, 4, v11")
        st(f"s_lshl_b32 s{sT0}, s{sCB}, 8\ns_lshl_b32 s{sT1}, s{sW}, 6\ns_add_u32 s{sT0}, s{sT0}, s{sT1}")
        st(f"v_add3_u32 v{vD}, v10, v11, s{sT0}\nv_lshlrev_b32 v{self.vK}, 4, v0")
        st(f"s_mul_i32 s{sA}, s{sW}, {NWQ*1024}\ns_add_u32 s{sA}, s{sA}, {WQST}")
        st(f"s_lshr_b32 s{sB}, s{sIDX}, 2\ns_lshl_b32 s{sC}, s{sB}, 16")
        st(f"s_lshl_b32 s{sT0}, s{sB}, 1\ns_and_b32 s{sT1}, s{sCB}, 1\ns_add_u32 s{sT0}, s{sT0}, s{sT1}\ns_lshl_b32 s{sT0}, s{sT0}, 2\ns_add_u32 s{sT0}, s{sT0}, s{sW}\ns_lshl_b32 s{sT0}, s{sT0}, 8")
        st(f"s_lshl_b32 s{sT1}, s{sIDX}, 2\ns_add_u32 s{sT1}, s{sT1}, s{sW}\ns_lshl_b32 s{sT2}, s{sT1}, 7\ns_mul_i32 s{sT1}, s{sT1}, {128 * self.c.tq if self.c.nh else 4096}")
        st(f"s_lshl_b32 s{sT3}, s{sG}, 14\ns_add_u32 s{sT2}, s{sT2}, s{sT3}\ns_add_u32 s{sT2}, s{sT2}, {WS_KVL}\ns_lshl_b32 s{sT3}, s{sG}, 7\ns_add_u32 s{sT3}, s{sT3}, {WS_FLGL}")
        st("s_waitcnt lgkmcnt(0)")
        self.epoch_load(st)
        if self.c.tm < 2: st.bar("B00")
        st("s_mov_b64 exec, 3")
        if self.c.tkv: st.vm(f"buffer_load_dword v254, v17, {srd(WKVS)}, s{sT0} offen")
        st("s_mov_b64 exec, 1")
        st.vm(f"buffer_load_dword v253, off, {srd(WS)}, s{sT2} sc1")
        st.vm(f"buffer_load_dword v252, off, {srd(WS)}, s{sT3} sc1")
        if self.c.tm: st(f"s_lshl_b32 s{sT1}, s2, 2\ns_add_u32 s{sT1}, s{sT1}, s{sW}\ns_lshl_b32 s{sT1}, s{sT1}, 9")
        st(f"s_bfm_b64 exec, {4 if self.c.tm else self.c.tq}, 0")
        st.vm(f"buffer_load_dword v248, v17, {srd(WQ)}, s{sT1} offen")
        st("s_mov_b64 exec, -1")
        if self.c.tm == 2: st.bar("B00")
        st(f"v_lshrrev_b32 v10, 5, v0\nv_lshlrev_b32 v11, 9, v10\nv_bfe_u32 v13, v0, 2, 2\nv_lshl_add_u32 v11, v13, 6, v11")
        st(f"v_bfe_u32 v13, v0, 4, 1\nv_lshl_add_u32 v11, v13, 5, v11\nv_and_b32 v13, 3, v0\nv_lshl_add_u32 v11, v13, 3, v11")
        st(f"v_add_u32 v{vTR}, s{sA}, v11")
        st(f"v_mul_u32_u24 v11, 528, v10\nv_and_b32 v13, 31, v0\nv_lshl_add_u32 v11, v13, 4, v11\nv_add_u32 v{vXB}, {XN}, v11")
        st(f"v_mov_b32 v18, {XC}\nv_lshlrev_b32 v16, 2, v0")
        self.kv_addr(st)
        late = Stream()
        self.main_scalars(st, late)
        self.attn_setup(late)
        for l in late.lines[:self.c.nearly]: st(l)
        late.lines = late.lines[self.c.nearly:]
        st("s_waitcnt lgkmcnt(0)")
        self.epoch_make(st)
        st(f"s_getreg_b32 s{sXCC}, hwreg(HW_REG_XCC_ID, 0, 4)\ns_add_u32 s{sXCC}, s{sXCC}, s{sEP}")
        st.bar("B0")
        self.stamp(st, "m", "B0", 64)
        nh, nb = self.c.nh, self.c.nb
        assert nh in (0, self.c.tq)
        gs = (32 - nh) // 8
        rot = [(a, nh + b) for a in range(8) for b in range(gs)]
        seq = [(None, k) for k in range(nb)] + rot[:gs] + [(None, k) for k in range(nb, nh)] + rot[gs:]
        def dma(j):
            a, k = seq[j]
            st(f"s_add_u32 m0, s{sA}, {(j % NWQ)*1024}")
            if a is None: st(f"s_mov_b32 s{sT1}, {k*16384}")
            elif nh == 0: st(f"s_xor_b32 s{sT1}, s{sC}, {j*16384}")
            else: st(f"s_xor_b32 s{sT1}, s{sB}, {a}\ns_mul_i32 s{sT1}, s{sT1}, {gs*16384}\ns_add_u32 s{sT1}, s{sT1}, {k*16384}")
            st.vm(f"buffer_load_dwordx4 v{vD}, {srd(WQ)}, s{sT1} offen lds", ("wq", j))
        nd = self.c.npre
        for j in range(nd): dma(j)
        self.stamp(st, "m", "pre", 64)
        st(f"s_cmp_gt_u32 s{sW}, {self.c.kv2}\ns_cbranch_scc1 L_nokv")
        self.kv_job(st)
        st.label("L_nokv")
        st.vq += [(None, True)] * 2
        for _ in range(self.c.nmore): dma(nd); nd += 1
        fill = [f"v_mov_b32 v{self.vVAL}, s{sEP1}"] + late.lines
        JX, NWR = self.c.jx, 20
        wreg = lambda j: 168 + 4 * (j % NWR)
        nx = nm = 0
        def rdx():
            nonlocal nx
            a, k = seq[nx]
            if a is not None and k == nh:
                st(f"s_xor_b32 s{sT1}, s{sB}, {a}\ns_mul_i32 s{sT1}, s{sT1}, {gs*1056}\nv_add_u32 v{vXC}, s{sT1}, v{vXB}")
            st.ds(f"ds_read_b128 {vr(XR+4*(nx % 8),4)}, v{vXB if a is None else vXC} offset:{k*1056}", ("x", nx)); nx += 1
        def mm():
            nonlocal nm
            st.wait_ds(("x", nm)); st.wait_ds(("w", nm))
            st(mfma32(ACC, wreg(nm), XR + 4 * (nm % 8), "0" if nm == 0 else None))
            nm += 1
            if nx < 32: rdx()
            for _ in range(2):
                if fill: st(fill.pop(0))
            if nm in (9, 20): self.stamp(st, "m", f"q{nm}", 64)
        for j in range(32):
            if j == JX:
                self.lds_spin(st, "L_xc", 18, 20, 3, sleep=1)
                self.stamp(st, "m", "B1m", 2113)
                for _ in range(4): rdx()
            assert j - nm < NWR
            if j == self.c.lfat: self.kv_flag(st, 0, nd - self.c.npre + 1)
            if j == self.c.gfat: self.kv_flag(st, 1, nd - self.c.npre + 1)
            st.wait_vm(("wq", j))
            if j % 4 == 3 or j == 0: self.stamp(st, "m", f"j{j}", 2048)
            o = (j % NWQ) * 1024
            st.ds(f"ds_read_b64_tr_b16 {vr(wreg(j),2)}, v{vTR} offset:{o}")
            st.ds(f"ds_read_b64_tr_b16 {vr(wreg(j)+2,2)}, v{vTR} offset:{o+256}", ("w", j))
            if nd < 32 and nd - NWQ <= j - 2:
                if nd >= NWQ: st.wait_ds(("w", nd - NWQ))
                dma(nd); nd += 1
                if j >= self.c.gfat and nd < min(NWQ, j + self.c.ndeep): dma(nd); nd += 1
            if j >= JX:
                for _ in range(2):
                    if nm < j - 1: mm()
        while nm < 32: mm()
        assert nd == 32
        assert not fill
        self.stamp(st, "m", "Qdone", 2113)

    S, Q, QF, O, OF, KVB, vIDX, vK, vV0, vV1 = (112, 128), 104, 16, (72, 88), (40, 56), (24, 168), 6, 7, 8, 9

    def attn_setup(self, st):
        st(f"v_mov_b32 v{self.vIDX}, 0xdddddddd")
        st("v_and_b32 v12, 31, v0\nv_lshrrev_b32 v13, 5, v0\nv_lshl_add_u32 v13, v13, 4, v12\nv_lshlrev_b32 v13, 4, v13")
        st("v_and_b32 v14, 27, v0\nv_cmp_eq_u32 vcc, 16, v14\nv_mov_b32 v14, 2064\nv_mov_b32 v15, 2048")
        st("v_cndmask_b32 v14, v14, v15, vcc")
        st("v_cmp_gt_u32 vcc, 16, v12\nv_add_u32 v15, 1024, v13\nv_add_u32 v13, 1536, v13")
        st(f"v_cndmask_b32 v{self.vV0}, v14, v15, vcc\nv_cndmask_b32 v{self.vV1}, v14, v13, vcc")
        st(f"v_add_u32 v{self.vV0}, s{mKH}, v{self.vV0}\nv_add_u32 v{self.vV1}, s{mKH}, v{self.vV1}\nv_add_u32 v{self.vKL}, s{mKH}, v{self.vK}")
        st(f"v_mov_b32 v10, {MISC}")
        for r in range(64): st(f"v_mov_b32 v{self.OF[0]+r}, 0")

    vFZ, vVAL, vOW, vWB, vL4, vPW, vKL, vXW = range(160, 168)

    def main_scalars(self, st, late):
        st(f"s_lshl_b32 s{sT0}, s{sRB}, 4\ns_lshl_b32 s{sT1}, s{sCB}, 2\ns_add_u32 s{sT0}, s{sT0}, s{sT1}\ns_add_u32 s{sT2}, s{sT0}, s{sW}")
        st(f"s_lshl_b32 s{mO}, s{sT2}, 11\ns_xor_b32 s{mO}, s{mO}, 2048\ns_add_u32 s{mO}, s{mO}, {WS_O}")
        st(f"s_lshl_b32 s{mPM}, s{sT2}, 8\ns_add_u32 s{mPM}, s{mPM}, {WS_PM}")
        st(f"s_lshr_b32 s{sT0}, s{sIDX}, 4\ns_lshl_b32 s{sT1}, s{sG}, 1\ns_add_u32 s{sT1}, s{sT1}, s{sT0}\ns_lshl_b32 s{sT1}, s{sT1}, 2\ns_add_u32 s{mRB}, s{sT1}, s{sW}")
        st(f"s_lshl_b32 s{sT1}, s{mRB}, 15")
        for i in range(4): st(f"s_add_u32 s{sP+i}, s{sT1}, {8192*i}")
        self.srds(st, ((MOUT, 2097152),))
        st(f"s_lshl_b32 s{mST}, s{mRB}, 12\ns_add_u32 s{mST}, s{mST}, {WS_ST}")
        st(f"s_and_b32 s{sT0}, s{sIDX}, 15\ns_mul_i32 s{mHH0}, s{mRB}, 114688\ns_mul_i32 s{sT1}, s{sT0}, 7168")
        st(f"s_add_u32 s{mHH0}, s{mHH0}, s{sT1}\ns_add_u32 s{mHH0}, s{mHH0}, {WS_HH}\ns_add_u32 s{mHH1}, s{mHH0}, 4096")
        st(f"s_and_b32 s{mKH}, s{sW}, 1\ns_mul_i32 s{mKH}, s{mKH}, {TILE}")
        st(f"s_lshl_b32 s{sT1}, s{mRB}, 7\ns_lshl_b32 s{sT0}, s{sT0}, 2\ns_add_u32 s{mF4}, s{sT1}, s{sT0}\ns_add_u32 s{mF4}, s{mF4}, {WS_FLG4}")
        st(f"s_mov_b32 s{mCHK}, 0")
        st(f"s_xor_b32 s{sE}, s{sW}, 1\ns_lshl_b32 s{sD}, s{sE}, 11\ns_lshl_b32 s{sE}, s{sE}, 7\ns_add_u32 s{sE}, s{sE}, {WBL}")
        late(f"v_cmp_eq_u32 vcc, 0, v0\nv_mov_b32 v{self.vFZ}, 0x80000000\nv_add_u32 v{self.vOW}, s{sD}, v{self.vK}\nv_cndmask_b32_e64 v{self.vFZ}, v{self.vFZ}, 0, vcc")
        late(f"v_lshrrev_b32 v13, 5, v0\nv_lshlrev_b32 v14, 6, v13\nv_add_u32 v{self.vWB}, s{sE}, v14")
        st(f"s_lshl_b32 s{mF2}, s{sW}, 2\ns_add_u32 s{mF2}, s{mF2}, {PML}")
        late(f"v_lshlrev_b32 v{self.vL4}, 2, v0\nv_add_u32 v{self.vPW}, s{mF2}, v{self.vK}\nv_xor_b32 v{self.vXW}, 2048, v{self.vOW}")

    def colo_reduce(self, st, r):
        st(f"v_and_b32 v{r}, v{r}, v{r+1}\ns_nop 0")
        st(f"v_readfirstlane_b32 s{sCOLO}, v{r}")

    def main_attention(self, st):
        S, KVB, O, OF = self.S, self.KVB, self.O, self.OF
        Q4, O4 = (self.QF, self.QF + 4, self.Q, self.Q + 4), OF + O
        buf = lambda t: KVB[t % 2]
        off = lambda t: (t % 8) * 2 * TILE
        rdK = lambda t: f"ds_read_b128 {vr(buf(t),4)}, v{self.vKL} offset:{off(t)}"
        rdV0 = lambda t: f"ds_read_b128 {vr(buf(t)+4,4)}, v{self.vV0} offset:{off(t)}"
        rdV1 = lambda t: f"ds_read_b128 {vr(buf(t)+8,4)}, v{self.vV1} offset:{off(t)}"
        def unit(t, q, f0=(), f1=(), f2=(), prev=0, succ=0):
            cur, nxt = S[q % 2], S[1 - q % 2]
            f0, f1, f2 = list(f0), list(f1), list(f2)
            if prev == 0: prev = (t, q - 1) if q else (t - 1, 3)
            if succ == 0: succ = (t + q // 3, (q + 1) % 4)
            e = [f"v_exp_f32 v{cur+i}, v{cur+i}" for i in range(16)]
            pv1 = [smf(O4[prev[1]], buf(prev[0]) + 8, nxt + 8, self.vIDX)] if prev else []
            mq = [mfma32(nxt, buf(succ[0]), Q4[succ[1]], "0")] if succ else []
            pv0 = smf(O4[q], buf(t) + 4, cur, self.vIDX)
            return e[0:2] + pv1 + f0 + e[2:5] + mq, f1 + e[5:11] + [pv0] + f2, e[11:16]
        parts = []
        for t in range(8):
            for q in range(4):
                f0, f1, f2 = [], [], []
                if q == 0 and t == 6: f0, f1 = [f"s_sub_u32 s{sA}, s{sA}, 1"], ["s_cbranch_scc1 L_exit"]
                if q == 1 and t % 4 == 3: f0 = ["s_barrier                ; BA"]
                if q == 2: f0, f1, f2 = [rdK(t + 1)], [rdV0(t + 1)], [rdV1(t + 1)]
                if q == 3: f0, f2 = ["s_waitcnt lgkmcnt(2)"], ["s_waitcnt lgkmcnt(0)"]
                parts += unit(t, q, f0, f1, f2)
        flat = lambda ps: "\n".join(l for p in ps for l in p)
        st.bar("B2")
        self.stamp(st, "m", "B2", 83)
        self.stamp(st, "m", "cyc0", 32)
        for l in (rdK(0), "ds_read_b64 v[12:13], v10", rdV0(0), rdV1(0)): st(l)
        st(f"s_mov_b32 s{sA}, 3")
        st.nop(6)
        cv = [f"v_cvt_pk_bf16_f32 v{self.QF + r}, v{144+2*r}, v{144+2*r+1}" for r in range(8)]
        st("\n".join(cv[:5]))
        st("s_waitcnt lgkmcnt(2)")
        st(mfma32(S[0], buf(0), Q4[0], "0"))
        st(f"ds_write_b128 v{self.vXW}, {vr(Q4[0],4)} offset:{ODD}")
        st("\n".join(cv[5:]))
        st(f"ds_write_b128 v{self.vXW}, {vr(Q4[1],4)} offset:{ODD + 1024}")
        self.colo_reduce(st, 12)
        st.nop(4)
        rq = [f"ds_read_b128 {vr(Q4[2+q],4)}, v{self.vOW} offset:{ODD + 1024*q}" for q in range(2)]
        st(flat(unit(0, 0, [], ["s_waitcnt lgkmcnt(0)", "s_barrier                ; BQ"], rq, prev=None)))
        st(flat(unit(0, 1, ["s_waitcnt lgkmcnt(0)"], [], [])[:1]))
        if self.c.lalign: st(f".p2align {self.c.lalign}")
        st.label("L_attn")
        st(flat(parts[4:] + parts[:4]))
        st("s_branch L_attn")
        st.label("L_exit")
        R = 208
        wr = lambda q: [f"ds_write_b128 v{self.vXW}, {vr(OF[q]+4*i,4)} offset:{RING + 8192*(q+1) + 1024*i}" for i in range(2)]
        rd = [f"ds_read_b128 {vr(R+8*q+4*i,4)}, v{self.vOW} offset:{RING + 8192*(q+1) + 1024*i}" for q in range(2) for i in range(2)]
        rd.insert(2, f"ds_read_b64 {vr(R+16,2)}, v{self.vOW} offset:{RING + 24576}")
        wl = [f"v_mov_b32 v{OF[0]+9}, v{OF[1]+8}", f"ds_write_b64 v{self.vXW}, {vr(OF[0]+8,2)} offset:{RING + 24576}"]
        w0 = "s_waitcnt lgkmcnt(0)"
        st(flat(unit(6, 0, [], [rdK(7)], [rdV0(7)])[1:]))
        st(flat(unit(6, 1, ["s_waitcnt lgkmcnt(1)"], [rdV1(7)], [], succ=(7, 0))))
        st(flat(unit(7, 0, [w0], ["s_barrier                ; BA"], [], prev=(6, 1))))
        st(flat(unit(7, 1, succ=(6, 2))))
        st(flat(unit(6, 2, wr(0)[:1], wr(0)[1:], wr(1)[:1] + wl[:1], prev=(7, 1))))
        st(flat(unit(6, 3, wr(1)[1:], wl[1:], [], succ=(7, 2))))
        st(flat(unit(7, 2, [w0], ["s_barrier                ; BP"], rd[:3], prev=(6, 3))))
        st(flat(unit(7, 3, rd[3:], [], [w0], succ=None)))
        st("s_nop 0")
        st(f"v_add_f32 v{O[0]+8}, v{O[0]+8}, v{R+16}")
        st(smf(O[1], buf(7) + 8, S[1] + 8, self.vIDX))
        for r in range(8): st(f"v_add_f32 v{O[0]+r}, v{O[0]+r}, v{R+r}")
        st.nop(4)
        st(f"v_add_f32 v{O[1]+8}, v{O[1]+8}, v{R+17}")
        for r in range(0, 8, 2): st(f"v_pk_add_f32 {vr(O[1]+r,2)}, {vr(O[1]+r,2)}, {vr(R+8+r,2)}")
        st.nbar += 10
        self.stamp(st, "m", "attn_end", 1043)
        self.stamp(st, "m", "cyc1", 32)
        st.label("L_norm")
        st(f"s_cmp_eq_u32 s{sCOLO}, {2 if self.c.force_slow else 1}\ns_cbranch_scc0 L_main_slow")
        self.fallback()

    def main_publish_o(self, st):
        O, T, WB, sc = self.O, 192, 176, self.sc
        if self.c.diag & 512: st(f"s_mov_b32 s{CODE}, 0")
        st(f"v_rcp_f32 v{T+8}, v{O[0]+8}\ns_movk_i32 s{sT0}, 0x207")
        for r in range(8): st(f"v_mul_f32 v{O[0]+r}, v{T+8}, v{O[0]+r}")
        st(f"v_rcp_f32 v{T+8}, v{O[1]+8}")
        st(f"v_min_f32 v{T+12}, v{O[0]+8}, v{O[1]+8}\nv_add_f32 v{T+13}, v{O[0]+8}, v{O[1]+8}")
        for r in range(0, 8, 2): st(f"v_pk_mul_f32 {vr(O[1]+r,2)}, {vr(O[1]+r,2)}, {vr(T+8,2)} op_sel_hi:[1,0]")
        for r in range(0, 8, 2): st(f"v_pk_fma_f32 {vr(T+10,2)}, {vr(O[0]+r,2)}, {vr(O[1]+r,2)}, {vr(T+10,2) if r else 0}".replace(", 0", ", 0 op_sel_hi:[1,1,0]"))
        st(f"v_cmp_nle_f32 vcc, {f32(2.0**-64)}, v{T+12}")
        st(f"v_add_f32 v{T+10}, v{T+10}, v{T+11}")
        st(f"v_cmp_class_f32_e64 {sr(sT2,2)}, v{T+10}, s{sT0}")
        st(f"s_or_b64 {sr(sT2,2)}, {sr(sT2,2)}, vcc")
        st(f"v_cmp_nge_f32 vcc, {f32(2.0**64)}, v{T+13}")
        for r in range(4): st(f"v_cvt_pk_bf16_f32 v{T+r}, v{O[0]+2*r}, v{O[0]+2*r+1}")
        st(f"s_or_b64 {sr(sT2,2)}, {sr(sT2,2)}, vcc")
        if self.c.force_fallback: st(f"s_or_b64 {sr(sT2,2)}, {sr(sT2,2)}, 1")
        st(f"s_cbranch_scc1 L_unsafe{self.sfx}")
        st.label("L_safe" + self.sfx)
        self.stamp(st, "m", "safe", 1024)
        tc = self.tailcode
        tc.label("L_unsafe" + self.sfx)
        tc(f"s_waitcnt lgkmcnt(0)\ns_cmp_eq_u32 s{mCHK}, 0\ns_cbranch_scc1 L_fallback")
        tc(f"v_min_u32 v{T}, -2, v{T}\nv_cmp_o_f32 vcc, v{O[1]}, v{O[1]}\nv_mov_b32 v{T+9}, 0x7fc00000\ns_nop 0\nv_cndmask_b32 v{O[1]}, v{T+9}, v{O[1]}, vcc")
        tc(f"s_branch L_safe{self.sfx}")
        sto = lambda q: st.vm(f"buffer_store_dwordx4 {vr(T+4*q,4)}, v{self.vK}, {srd(WS)}, s{mO} offen offset:{1024*q}{sc or ' ' + self.c.of}")
        sto(0)
        for i in range(4): st(f"ds_read_b128 {vr(WB+4*i,4)}, v{self.vWB} offset:{16*i}")
        for r in range(4): st(f"v_cvt_pk_bf16_f32 v{T+4+r}, v{O[1]+2*r}, v{O[1]+2*r+1}")
        sto(1)
        self.stamp(st, "m", "Ost", 1025)
        for a in range(1, 4): st(f"s_xor_b32 s{4+a}, s{mO}, {8192*a}\ns_xor_b32 s{8+a}, s{mPM}, {1024*a}")
        st("s_waitcnt lgkmcnt(0)")
        for r in range(8):
            for hl in range(2):
                d = T + 10 + hl + 4 * (r % 2)
                st(f"v_dot2_f32_bf16 v{d}, v{T+r}, v{WB+8*hl+r}, {'0' if r < 2 else 'v%d' % d}")
        for q in range(2): st(f"ds_write_b128 v{self.vOW}, {vr(T+4*q,4)} offset:{RING + 1024*q}")
        st(f"s_nop 0\nv_pk_add_f32 {vr(T+10,2)}, {vr(T+10,2)}, {vr(T+14,2)}\nv_add_f32 v{T+10}, v{T+10}, v{T+11}\nv_min_u32 v{T+10}, -2, v{T+10}")
        G, GP = (lambda a: 208 + 8 * (a - 1)), 232
        ld = lambda a: [f"buffer_load_dwordx4 {vr(G(a)+4*q,4)}, v{self.vK}, {srd(WS)}, s{4+a} offen offset:{1024*q} sc1 {self.c.gf}" for q in range(2)]
        ldp = [f"buffer_load_dword v{GP+a}, v{self.vL4}, {srd(WS)}, s{8+a} offen sc1" for a in range(1, 4)]
        pmst = lambda: st.vm(f"buffer_store_dword v{T+10}, v{self.vL4}, {srd(WS)}, s{mPM} offen{sc or ' ' + self.c.of}")
        if self.c.pmat == 0: pmst()
        st.nop(self.c.d2)
        for l in ld(1): st.vm(l, ("g", 1))
        st("s_waitcnt lgkmcnt(0)")
        st.bar("BC0")
        self.stamp(st, "m", "BC0", 1024)
        for a in (2, 3):
            if self.c.pmat == a - 1: pmst()
            for l in ld(a): st.vm(l, ("g", a))
        if self.c.pmat == 3: pmst()
        self.d_setup(st)
        def take(a):
            st.wait_vm(("g", a))
            if a == 1: self.stamp(st, "m", "g1ret", 1024)
            self.validate(st, f"L_g{a}", (G(a), G(a) + 4), GP, ld(a), inline=True)
            self.stamp(st, "m", f"Gok{a}", 1025 if a == 1 else 1024)
            for q in range(2): st.ds(f"ds_write_b128 v{self.vOW}, {vr(G(a)+4*q,4)} offset:{RING + 8192*a + 1024*q}", ("gw", a))
        take(1)
        for l in ldp: st.vm(l, "gp")
        if self.c.g2early: take(2)
        st.wait_ds(("gw", 1))
        st.bar("BC1a")
        if not self.c.g2early: take(2)
        take(3)
        st.wait_ds(("gw", 2))
        st.bar("BC1b")
        st.wait_vm("gp")
        self.validate(st, "L_gp", (GP + 1, GP + 2, GP + 3), GP, ldp, inline=True)
        st(f"v_add_f32 v{GP+1}, v{GP+1}, v{GP+2}\nv_add_f32 v{T+10}, v{T+10}, v{GP+3}\nv_add_f32 v{T+10}, v{T+10}, v{GP+1}")
        st(f"ds_write_b32 v{self.vPW}, v{T+10}")
        st.wait_ds()
        st.bar("BC1c")

    def fallback(self):
        st = self.tailcode
        S, Q, O, KVB = self.S, self.Q, self.O, self.KVB
        K, V0, V1, NM = KVB[0], KVB[0] + 4, KVB[0] + 8, self.OF
        st.label("L_fallback")
        st(f"s_mov_b32 s{mCHK}, 1\nv_subrev_u32 v{self.vV0}, s{mKH}, v{self.vV0}\nv_subrev_u32 v{self.vV1}, s{mKH}, v{self.vV1}")
        st("v_mov_b32 v10, 0xff800000\nv_mov_b32 v11, 0xff800000")
        st(f"s_mov_b32 s{sT0}, {WS_KV}")
        st.label("L_fb1")
        st(f"buffer_load_dwordx4 {vr(K,4)}, v{self.vK}, {srd(WS)}, s{sT0} offen sc1\ns_waitcnt vmcnt(0)")
        st(mfma32(S[0], K, Q, "0")); st(mfma32(S[1], K, Q + 4, "0"))
        st.nop(12)
        for q in range(2):
            for r in range(0, 16, 2): st(f"v_max3_f32 v{10+q}, v{S[q]+r}, v{S[q]+r+1}, v{10+q}")
        st(f"s_add_u32 s{sT0}, s{sT0}, 2048\ns_cmp_lt_u32 s{sT0}, {WS_KV + 131072}\ns_cbranch_scc1 L_fb1")
        st("v_mov_b32 v12, v10\nv_mov_b32 v13, v11\ns_nop 1")
        st("v_permlane32_swap_b32 v10, v12\nv_permlane32_swap_b32 v11, v13")
        st("v_max_f32 v10, v10, v12\nv_max_f32 v11, v11, v13")
        for q in range(2):
            for r in range(16):
                st(f"v_sub_f32 v{NM[q]+r}, 0, v{10+q}\nv_mov_b32 v{O[q]+r}, 0")
        st(f"v_and_b32 v12, 27, v0\nv_cmp_eq_u32 vcc, 16, v12\nv_mov_b32 v13, s{sONE}\ns_nop 0\nv_cndmask_b32 v13, 0, v13, vcc")
        for r in range(8): st(f"v_mov_b32 v{V0+r}, v13")
        st(f"s_mov_b32 s{sT0}, {WS_KV}\ns_mov_b32 s{sT2}, 0xffff\ns_mov_b32 s{sT3}, 0xffff")
        st.label("L_fb2")
        st(f"buffer_load_dwordx4 {vr(K,4)}, v{self.vK}, {srd(WS)}, s{sT0} offen sc1")
        st(f"s_mov_b64 exec, {sr(sT2,2)}")
        st(f"buffer_load_dwordx4 {vr(V0,4)}, v{self.vV0}, {srd(WS)}, s{sT0} offen sc1")
        st(f"buffer_load_dwordx4 {vr(V1,4)}, v{self.vV1}, {srd(WS)}, s{sT0} offen sc1")
        st("s_mov_b64 exec, -1\ns_waitcnt vmcnt(0)")
        st(mfma32(S[0], K, Q, vr(NM[0], 16))); st(mfma32(S[1], K, Q + 4, vr(NM[1], 16)))
        st.nop(12)
        for q in range(2):
            for r in range(16): st(f"v_exp_f32 v{S[q]+r}, v{S[q]+r}")
        st.nop(2)
        for q in range(2):
            st(smf(O[q], V0, S[q], self.vIDX)); st(smf(O[q], V1, S[q] + 8, self.vIDX))
        st(f"s_add_u32 s{sT0}, s{sT0}, 2048\ns_cmp_lt_u32 s{sT0}, {WS_KV + 131072}\ns_cbranch_scc1 L_fb2")
        st.nop(12)
        st("s_branch L_norm")

    def stages(self):
        return [tuple(map(int, x.split(":"))) for x in self.c.gates.split(",")]

    def h_voffset(self, st, d, t):
        st(f"v_lshrrev_b32 v{d}, 3, v0\nv_lshlrev_b32 v{d}, 10, v{d}\nv_and_b32 v{t}, 7, v0\nv_lshl_add_u32 v{d}, v{t}, 4, v{d}")

    def h_base(self, st, d):
        st(f"s_lshl_b32 s{d}, s{sRB}, 1\ns_and_b32 s{sT3}, s{sW}, 1\ns_add_u32 s{d}, s{d}, s{sT3}\ns_lshl_b32 s{d}, s{d}, 14")
        st(f"s_lshl_b32 s{sT3}, s{sCB}, 2\ns_add_u32 s{sT3}, s{sT3}, s{sW}\ns_lshr_b32 s{sT3}, s{sT3}, 1\ns_lshl_b32 s{sT3}, s{sT3}, 7\ns_add_u32 s{d}, s{d}, s{sT3}")

    def d_setup(self, st):
        vFZ, vVAL, vO, vF = 10, 11, (2, 3), (24, 25, 26, 27)
        st(f"v_mov_b32 v{vFZ}, v{self.vFZ}\nv_mov_b32 v{vVAL}, v{self.vVAL}")
        st("v_lshrrev_b32 v13, 5, v0\nv_bfe_u32 v15, v0, 2, 3\nv_lshl_add_u32 v15, v13, 4, v15\nv_and_b32 v16, 3, v0\nv_lshlrev_b32 v16, 3, v16")
        st(f"v_mul_u32_u24 v17, 96, v15\nv_add_u32 v17, v17, v16\nv_add_u32 v{vO[0]}, {ODD}, v17\nv_add_u32 v{vO[1]}, {ODD + 49152}, v17")
        st(f"v_lshlrev_b32 v17, 7, v15\nv_bfe_u32 v18, v0, 3, 2\nv_lshlrev_b32 v18, 5, v18\nv_add3_u32 v{vF[0]}, v17, v18, v16")
        for i in range(1, 4): st(f"v_xor_b32 v{vF[i]}, {32*i}, v{vF[0]}")
        st("v_lshrrev_b32 v14, 4, v0\nv_lshlrev_b32 v4, 12, v14\nv_bfe_u32 v15, v0, 3, 1\nv_lshl_add_u32 v4, v15, 10, v4\nv_and_b32 v15, 7, v0\nv_lshl_add_u32 v4, v15, 4, v4")
        st("v_and_b32 v15, 15, v0\nv_lshlrev_b32 v15, 4, v15\nv_lshl_add_u32 v5, v14, 10, v15")
        st("v_lshl_add_u32 v6, v13, 8, v15\nv_and_b32 v14, 1, v14\nv_lshl_add_u32 v6, v14, 9, v6")
        vPG, vLD = 14, 15
        st(f"s_lshl_b32 s{sT0}, s{sW}, 2\ns_add_u32 s{sT0}, s{sT0}, {PROG}\nv_mov_b32 v{vPG}, s{sT0}\nv_mov_b32 v{vLD}, {LAND}")

    def main_phase_d(self, st):
        T, sc = self.c.tail, self.sc
        ACC, BR, AR, STT = 144, 112, 40, 28
        NBR, LA, NAR = 8, self.c.la, 18
        vFZ, vVAL, vO, vF, vC1, vSD = 10, 11, (2, 3), (24, 25, 26, 27), (8, 9), (17, 18)
        vPG, vLD, vN, CK = 14, 15, 16, 20
        nu = 16 - T
        base = 14 * nu
        order = [(u, mat, n) for u in range(nu) for mat in range(2) for n in range(7)]
        order += [(u, mat, n) for n in range(7) for mat in range(2) for u in range(nu, 16)]
        def rdB(m, ts=(0, 1)):
            u, mat, n = order[m]
            b = BR + 4 * (m % NBR)
            for t in ts:
                if n < 3: va, o = vO[u // 8], (u % 8) * 6144 + mat * 3072 + t * 768 + 32 * n
                else: va, o = vF[n - 3], slot8(FSLOT[u]) + mat * 4096 + t * 1024
                st.ds(f"ds_read_b64_tr_b16 {vr(b+2*t,2)}, v{va} offset:{o}", ("b", m))
        for m in range(LA): rdB(m)
        st.bar("BC2")
        self.stamp(st, "m", "BC2", 1025)
        st.nop(self.c.d3)
        nxt = [0]
        lda = lambda a: f"buffer_load_dwordx4 {vr(AR+4*(a % NAR),4)}, v4, {srd(MOUT)}, s{sP + (a & 2)} offen offset:{128*(a // 4) + 2048*(a & 1)} sc1"
        def ldA(upto):
            while nxt[0] < min(32, upto):
                a = nxt[0]; nxt[0] += 1
                st.vm(lda(a), ("a", a))
        def chk(a, n):
            assert a + n <= nxt[0]
            st.wait_vm(("a", a + n - 1))
            self.validate(st, f"L_a{a}", [AR + 4 * (i % NAR) for i in range(a, a + n)], 13,
                          [lda(i) for i in range(a, min(nxt[0], max(a + n, (a | 7) + 1)))], inline=(a == 0))
        ldA(2)
        if self.c.diag & 1024:
            st.wait_vm(("a", 1))
            self.stamp(st, "m", "a0ret", 1024)
        chk(0, 2)
        self.stamp(st, "m", "x3ok", 1029)
        def run(op): op() if callable(op) else st(op)
        lds_ = [f"buffer_load_dwordx4 {vr(STT+4*i,4)}, v5, {srd(WS)}, s{mST} offen offset:{512 + 256*i} sc1" for i in range(2)]
        def ldst():
            for l in lds_: st.vm(l, "st")
        a, b = STT, STT + 4
        stats = [lambda: st.wait_vm("st"), lambda: self.validate(st, "L_st", range(STT, STT + 8), STT + 8, lds_)]
        stats += [f"v_add_f32 v{x}, v{x}, v{x+1}" for x in (a, a + 2, b, b + 2)] + [f"v_add_f32 v{x}, v{x}, v{x+2}" for x in (a, b)]
        stats += [f"v_permlane16_swap_b32 v{a}, v{b}", f"v_add_f32 v{a}, v{a}, v{b}", f"v_mov_b32 v{b}, v{a}", f"v_mov_b32 v{a+2}, {f32(1e-5)}",
                  f"v_permlane32_swap_b32 v{a}, v{b}", f"v_add_f32 v{a}, v{a}, v{b}", f"v_fmac_f32 v{a+2}, {f32(1.0/512)}, v{a}", f"v_rsq_f32 v{a+3}, v{a+2}"]
        stats += [f"v_mul_f32 v{x}, v{a+2}, v{a+3}" for x in vSD] + [f"v_mul_f32 v{x}, {f32(-1.4426950408889634)}, v{a+3}" for x in vC1]
        stats += [f"v_permlane16_swap_b32 v{vSD[0]}, v{vSD[1]}", f"v_permlane16_swap_b32 v{vC1[0]}, v{vC1[1]}"]
        pub = [1]
        def publish(cnt):
            ops = [f"v_add_u32 v{vVAL}, {cnt - pub[0]}, v{vVAL}"] if cnt > pub[0] else []
            pub[0] = cnt
            ops.append(lambda: st.wait_vm(("hh", cnt - 1)))
            ops.append(lambda: st.vm(f"buffer_store_dword v{vVAL}, v{vFZ}, {srd(WS)}, s{mF4} offen{sc}"))
            ops.append(lambda: self.stamp(st, "m", f"pub{cnt}", 8))
            return ops
        def epilogue(n):
            a = ACC + 16 * n
            ops = [f"v_mul_f32 v{a+j}, v{vC1[j//4]}, v{a+j}" for j in range(8)]
            ops += [f"v_exp_f32 v{a+j}, v{a+j}" for j in range(8)]
            ops += [f"v_fma_f32 v{a+j}, v{a+j}, v{vSD[j//4]}, v{vSD[j//4]}" for j in range(8)]
            ops += [f"v_rcp_f32 v{a+j}, v{a+j}" for j in range(8)]
            ops += [f"v_mul_f32 v{a+j}, v{a+j}, v{a+8+j}" for j in range(8)]
            ops += [f"v_cvt_pk_bf16_f32 v{a+8+j}, v{a+2*j}, v{a+2*j+1}" for j in (0, 2, 1, 3)]
            ops += [f"v_permlane32_swap_b32 v{a+8}, v{a+10}", f"s_nop 0\nv_permlane32_swap_b32 v{a+9}, v{a+11}"]
            return ops
        def store(n):
            a = ACC + 16 * n
            st.vm(f"buffer_store_dwordx4 {vr(a+8,4)}, v6, {srd(WS)}, s{mHH0 if n < 4 else mHH1} offen offset:{1024*(n % 4)} sc1", ("hh", n))
        cost = lambda op: 8 if op.startswith(("v_exp", "v_rcp")) else 4
        fill, first = {}, {}
        put = lambda d, g, op: d.setdefault(g, []).append(op)
        put(first, 0, lambda: ldA(4)); put(first, 6, lambda: ldA(6)); put(first, 16, lambda: ldA(8))
        for u in range(1, nu):
            for g, d in ((2, 2), (16, 4)): put(first, 28 * u + g, lambda x=min(2 * u + NAR, 4 + 4 * u + d): ldA(x))
        put(first, 28 * (nu - 3) + 8, ldst)
        for i, op in enumerate(stats): put(fill, 28 * (nu - 1) + 1 + i, op)
        stages = [x[0] for x in self.stages()]
        for n in range(7):
            ops = epilogue(n)
            g0, ng = 2 * (base + 2 * T * n + T) + 3, 4 * T - 2
            tot, acc = sum(map(cost, ops)), 0
            for op in ops:
                put(fill, g0 + acc * ng // tot, op); acc += cost(op)
            put(first, g0 + ng, lambda n=n: store(n))
            if n + 1 in stages:
                for op in publish(n + 1): put(first, g0 + ng + 2 * self.c.lag, op)
        assert T == 7
        posts = {3: 1, base + 6 * T - 1: 20, 223: 30}
        posts.update({14 * u + 13: u + 2 for u in range(8)})
        checks = {14 * 3 + 3 - LA: 5, 14 * 5 + 3 - LA: 7, 14 * 7 + 3 - LA: 9, base + 6 * T - LA: 16}
        vplan = {11: (2, 2), 14 + 11: (4, 4), 14 * 3 + 11: (8, 4), 14 * 5 + 6: (12, 4), 14 * 6 + 12: (16, 4), 14 * 7 + 5: (20, 4), 14 * 7 + 12: (24, 4), 14 * 8 + 12: (28, 4)}
        near = self.near if not sc else self.tailcode
        for m in range(224):
            u, mat, n = order[m]
            wp = self.c.wper
            if m % wp == 0: st.wait_ds(("b", min(m + wp - 1, 223)))
            for mh in range(2):
                g = 2 * m + mh
                st(mfma16(ACC + 16 * n + 8 * mat + 4 * mh, BR + 4 * (m % NBR), AR + 4 * ((2 * u + mh) % NAR), "0" if u == 0 else None))
                if g == 0: self.stamp(st, "m", "mfma0", 4)
                for op in first.pop(g, []): run(op)
                if mh == 0 and m in checks:
                    lab = f"L_ld{checks[m]}{self.sfx}"
                    st(f"s_cbranch_vccnz {lab}s")
                    st.label(lab + "r")
                    near.label(lab + "s")
                    self.lds_spin(near, lab, vLD, CK, checks[m])
                    near(f"s_branch {lab}r")
                if m + LA < 224: rdB(m + LA, (mh,))
                if m in posts:
                    if mh == 0: st(f"v_mov_b32 v{vN}, {posts[m]}")
                    else: st.ds(f"ds_write_b32 v{vPG}, v{vN}")
                if mh == 0 and m + 5 in checks: st.ds(f"ds_read_b128 {vr(CK,4)}, v{vLD}", "ck")
                if mh == 1 and m + 1 in checks:
                    st.wait_ds("ck")
                    self.lds_min(st, CK, checks[m + 1])
                assert not (m + 1 in checks and m in vplan)
                if mh == 1 and m in vplan: chk(*vplan[m])
                for op in fill.pop(g, []): run(op)
            if m < base and m % 28 == 27: self.stamp(st, "m", f"u{m // 14}", 4)
            if m == base: self.stamp(st, "m", "tail0", 4)
            if m == base + 2 * T: self.stamp(st, "m", "tail1", 4)
            if m >= base and (m - base) % (2 * T) == 0: self.stamp(st, "m", f"t{(m - base) // (2 * T)}", 256)
        assert nxt[0] == 32
        self.stamp(st, "m", "Dmfma_end", 269)
        for g in sorted(set(first) | set(fill)):
            for op in first.get(g, []) + fill.get(g, []): run(op)
        self.stamp(st, "m", "end", 13)
        if self.c.diag & 512 and not sc:
            self.nstamp["m"].append("retry")
            st(f"s_waitcnt lgkmcnt(0)\ns_mov_b32 s{sSTAMP + 2*(len(self.nstamp['m'])-1)}, s{CODE}")
        self.dump_stamps(st, "m")
        st("s_endpgm")

    def helper_phase_a(self, st):
        self.stamp(st, "h", "start", 4095)
        XP, XF, AC = 48, 80, 112
        st("s_setprio 2")
        if self.c.padto: st("s_memrealtime s[100:101]")
        st.vq.append((None, False))
        st(f"v_lshrrev_b32 v2, 4, v0\nv_and_b32 v3, 15, v0\nv_lshlrev_b32 v4, 10, v2\nv_lshl_add_u32 v4, v3, 4, v4")
        st(f"s_and_b32 s{sT2}, s{sCB}, 1\ns_lshl_b32 s{sC}, s{sT2}, 2\ns_add_u32 s{sC}, s{sC}, s{sW}\ns_lshl_b32 s{sT0}, s{sRB}, 3\ns_add_u32 s{sA}, s{sT0}, s{sC}")
        st(f"s_lshl_b32 s{sA}, s{sA}, 12\ns_xor_b32 s{sB}, s{sA}, 0x4000")
        self.srds(st, ((X, 2097152), (WKVS, 16384)))
        st(f"v_lshlrev_b32 v1, 4, v0\ns_lshl_b32 s{sD}, s{sW}, 12\ns_add_u32 m0, s{sD}, {WKV}\nv_mov_b32 v124, v4")
        st("s_waitcnt lgkmcnt(0)")
        ldx = lambda i: st.vm(f"buffer_load_dwordx4 {vr(XP+4*i,4)}, v124, {srd(X)}, s{sA if i < 4 else sB} offen offset:{256*(i % 4)}", ("x", i))
        for i in range(4): ldx(i)
        st.bar("B00")
        ldw = lambda: [st.vm(f"buffer_load_dwordx4 v1, {srd(WKVS)}, s{sD} offen offset:{1024*i} lds", "wkv") for i in range(4)]
        if self.c.sec & 2: ldw()
        st(f"s_and_b32 s{sT0}, s{sW}, 1\ns_lshl_b32 s{sT0}, s{sT0}, 3\ns_add_u32 s{sT0}, s{sT0}, 48\ns_load_dwordx2 {sr(WG,2)}, s[0:1], s{sT0}")
        for b, off in ((WO, 32), (WD, 64), (OUT, 72)):
            st(f"s_load_dwordx2 {sr(b,2)}, s[0:1], {off}")
        self.srds(st, ((WO, 524288), (WG, 1835008), (WD, 1835008), (OUT, 2097152), (WS, WS_SIZE)))
        st(f"s_mov_b32 s{sONE}, 0x3f803f80\ns_mov_b32 s{sLO}, 0x3f80\ns_mov_b32 s{sHI}, 0x3f800000")
        st(f"s_getreg_b32 s{sXCC}, hwreg(HW_REG_XCC_ID, 0, 4)")
        st(f"v_bfe_u32 v5, v0, 1, 3\nv_mul_u32_u24 v5, {TILE}, v5\nv_and_b32 v6, 1, v0\nv_lshl_add_u32 v7, v6, 4, v5")
        st(f"v_cmp_eq_u32 vcc, 0, v6\nv_mov_b32 v8, s{sONE}\ns_nop 0\nv_cndmask_b32 v8, 0, v8, vcc\nv_mov_b32 v9, v8\nv_mov_b32 v10, v8\nv_mov_b32 v11, v8")
        st.ds("ds_write_b128 v7, v[8:11] offset:2048")
        st(f"v_mul_u32_u24 v5, 528, v3\nv_lshl_add_u32 v5, v2, 4, v5\ns_lshl_b32 s{sT0}, s{sC}, 6\ns_xor_b32 s{sT1}, s{sT0}, 256")
        st(f"s_add_u32 s{sT2}, s{sT0}, {XN}\ns_add_u32 s{sT3}, s{sT1}, {XN}\nv_add_u32 v120, s{sT2}, v5\nv_add_u32 v121, s{sT3}, v5")
        st(f"s_lshr_b32 s{sT0}, s{sT0}, 2\ns_lshr_b32 s{sT1}, s{sT1}, 2\ns_add_u32 s{sT0}, s{sT0}, {MISC + 16}\ns_add_u32 s{sT1}, s{sT1}, {MISC + 16}")
        st(f"v_lshl_add_u32 v122, v2, 2, s{sT0}\nv_lshl_add_u32 v123, v2, 2, s{sT1}")
        st.wait_ds()
        self.epoch_load(st)
        self.helper_setup(st)
        st(f"s_lshl_b32 s{sT0}, s{sW}, 2\ns_add_u32 s{sT0}, s{sT0}, {XC}\nv_mov_b32 v230, s{sT0}")
        st(f"v_and_b32 v41, 31, v0\nv_lshlrev_b32 v41, 2, v41\nv_add_u32 v41, {MISC + 16}, v41")
        st(f"v_lshrrev_b32 v14, 5, v0\nv_lshl_add_u32 v14, v14, 9, v1\ns_lshl_b32 s{sT0}, s2, 11\ns_cmp_eq_u32 s{sW}, 1\ns_cselect_b32 s{sT0}, s{sT0}, 0x100000")
        self.stamp(st, "h", "setup", 64)
        def second():
            if not self.c.sec & 2: ldw()
            if not self.c.x1late:
                for i in range(4, 8): ldx(i)
            st.bar("B0")
            if self.c.wo_early == 2: ldo()
        ldo = lambda: [st.vm(f"buffer_load_dwordx4 {vr(232+4*i,4)}, v14, {srd(WO)}, s{sT0} offen offset:{512*i}") for i in range(2)]
        if self.c.wo_early == 1: ldo()
        if not self.c.sec & 1: second()
        def postw():
            st("v_mov_b32 v231, 1")
            st.wait_vm("wkv")
            st.ds("ds_write_b32 v230, v231")
        def red16(a):
            for m in ("quad_perm:[1,0,3,2]", "quad_perm:[2,3,0,1]", "row_half_mirror", "row_mirror"):
                st(f"s_nop 1\nv_add_f32_dpp v{a}, v{a}, v{a} {m} row_mask:0xf bank_mask:0xf")
        for ps in range(2):
            P = XP + 16 * ps
            for i in range(4):
                if ps == 0: st.wait_vm(("x", i))
                for r in range(4):
                    st(f"v_dot2_f32_bf16 v{AC+r%2}, v{P+4*i+r}, s{sONE}, {'0' if i == 0 and r < 2 else 'v%d' % (AC+r%2)}")
            if ps == 0: self.stamp(st, "h", "xland", 193)
            if ps == 0 and self.c.sec & 1: second()
            st(f"s_nop 2\nv_add_f32 v{AC}, v{AC}, v{AC+1}")
            red16(AC)
            st(f"v_mul_f32 v{AC}, {f32(-1.0/512)}, v{AC}")
            st.ds(f"ds_write_b32 v{122+ps}, v{AC}")
            self.stamp(st, "h", f"mean{ps}", 128)
            if ps == 0 and self.c.wcat == 0: postw()
            for r in range(16):
                st(f"v_dot2_f32_bf16 v{XF+2*r}, v{P+r}, s{sLO}, v{AC}\nv_dot2_f32_bf16 v{XF+2*r+1}, v{P+r}, s{sHI}, v{AC}")
            for r in range(16):
                d = AC + 2 + 2 * (r % 2)
                if r < 2: st(f"v_pk_mul_f32 {vr(d,2)}, {vr(XF+2*r,2)}, {vr(XF+2*r,2)}")
                else: st(f"v_pk_fma_f32 {vr(d,2)}, {vr(XF+2*r,2)}, {vr(XF+2*r,2)}, {vr(d,2)}")
            st(f"v_pk_add_f32 {vr(AC+2,2)}, {vr(AC+2,2)}, {vr(AC+4,2)}\nv_add_f32 v{AC+2}, v{AC+2}, v{AC+3}")
            red16(AC + 2)
            self.stamp(st, "h", f"var{ps}", 128)
            if ps == 0 and self.c.wcat == 1: postw()
            st(f"v_mov_b32 v{AC+3}, {f32(1e-5)}\nv_fmac_f32 v{AC+3}, {f32(1.0/512)}, v{AC+2}\nv_rsq_f32 v{AC+2}, v{AC+3}\nv_mov_b32 v231, {ps+2}")
            for i in range(4):
                for r in range(4):
                    st(f"v_pk_mul_f32 {vr(XF+8*i+2*r,2)}, {vr(XF+8*i+2*r,2)}, {vr(AC+2,2)} op_sel_hi:[1,0]")
                for r in range(4):
                    st(f"v_cvt_pk_bf16_f32 v{P+4*i+r}, v{XF+8*i+2*r}, v{XF+8*i+2*r+1}")
                st.ds(f"ds_write_b128 v{120+ps}, {vr(P+4*i,4)} offset:{8448*i}")
            self.stamp(st, "h", f"wr{ps}", 128)
            st.wait_vm("wkv")
            st.wait_ds()
            st("ds_write_b32 v230, v231")
            self.stamp(st, "h", f"ln{ps}", 2240)
            if ps == 0:
                self.epoch_make(st)
                st(f"s_add_u32 s{sXCC}, s{sXCC}, s{sEP}\nv_mov_b32 v31, s{sEP}")
                if self.c.x1late:
                    for i in range(4, 8): ldx(i)
                st.wait_vm(("x", 7))
                self.stamp(st, "h", "p2start", 128)
        st(f"s_cmp_lg_u32 s{sW}, 1\ns_cbranch_scc1 L_nowb1")
        a = 240
        if not self.c.wo_early:
            for i in range(2): st(f"buffer_load_dwordx4 {vr(232+4*i,4)}, v14, {srd(WO)}, s{sT0} offen offset:{512*i}")
        st("s_waitcnt vmcnt(0)")
        for r in range(8): st(f"v_dot2_f32_bf16 v{a}, v{232+r}, s{sONE}, {'0' if r == 0 else 'v%d' % a}")
        st("s_nop 0")
        for m in ("quad_perm:[1,0,3,2]", "quad_perm:[2,3,0,1]", "row_half_mirror", "row_mirror"):
            st(f"s_nop 1\nv_add_f32_dpp v{a}, v{a}, v{a} {m} row_mask:0xf bank_mask:0xf")
        st(f"v_mov_b32 v{a+1}, v{a}\ns_nop 1\nv_permlane16_swap_b32 v{a}, v{a+1}\nv_add_f32 v{a}, v{a}, v{a+1}")
        st(f"v_mul_f32 v{a}, {f32(1.0/512)}, v{a}\nv_mov_b32 v{a+1}, v{a}\ns_nop 1\nv_permlane32_swap_b32 v{a}, v{a+1}")
        st(f"v_cvt_pk_bf16_f32 v{a+4}, v{a}, v{a+1}\nv_lshlrev_b32 v{a+2}, 16, v{a+4}\nv_and_b32 v{a+3}, 0xffff0000, v{a+4}")
        st(f"v_sub_f32 v{a}, v{a}, v{a+2}\nv_sub_f32 v{a+1}, v{a+1}, v{a+3}\nv_cvt_pk_bf16_f32 v{a+5}, v{a}, v{a+1}")
        st(f"v_mov_b32 v{a+6}, s{sEP1}\ns_lshl_b32 s{sT0}, s2, 7\ns_add_u32 s{sF}, s{sT0}, {WS_WB}")
        st.label("L_nowb1")

    def kv_addr(self, st):
        st(f"v_lshrrev_b32 v20, 4, v0\nv_and_b32 v13, 15, v0\nv_lshlrev_b32 v14, 8, v20\nv_lshl_add_u32 v249, v13, 3, v14")
        st(f"s_and_b32 s{sT0}, s{sCB}, 1\ns_lshl_b32 s{sT1}, s{sT0}, 8\ns_add_u32 s{sT2}, s{sT1}, {XN}")
        st(f"v_mul_u32_u24 v15, 528, v20\nv_lshl_add_u32 v15, v13, 4, v15\nv_add_u32 v250, s{sT2}, v15")
        st(f"s_lshl_b32 s{sT2}, s{sT0}, 9\ns_add_u32 s{sT2}, s{sT2}, 1024\ns_cmp_ge_u32 s{sCB}, 2")
        st(f"s_cselect_b32 s{sT1}, s{sT2}, s{sT1}\ns_cselect_b32 s{sT2}, 31, 9\ns_cselect_b32 s{sT3}, 8, 31")
        st(f"v_and_b32 v14, 1, v20\nv_lshlrev_b32 v14, s{sT2}, v14\nv_lshrrev_b32 v15, 1, v20\nv_lshlrev_b32 v15, s{sT3}, v15")
        st(f"v_lshl_add_u32 v14, v13, 4, v14\nv_add3_u32 v251, v14, v15, s{sT1}")
        st(f"s_lshl_b32 s{mKG}, s{sRB}, 11\ns_add_u32 s{mKL}, s{mKG}, {WS_KVL}\ns_add_u32 s{mKG}, s{mKG}, {WS_KV}")
        st(f"s_lshl_b32 s{sT0}, s{sG}, 5\ns_add_u32 s{sT0}, s{sT0}, s{sIDX}\ns_lshl_b32 s{mFL}, s{sT0}, 2\ns_add_u32 s{mFL}, s{mFL}, {WS_FLGL}")
        st(f"s_lshl_b32 s{mFG}, s{sT0}, 7\ns_add_u32 s{mFG}, s{mFG}, {WS_FLG1}")

    def kv_job(self, st):
        WR, AC = 168, 144
        XR = [112 + 4 * j for j in range(8)] + [232 + 4 * j for j in range(4)] + [24 + 4 * j for j in range(4)]
        st("s_setprio 3")
        self.lds_spin(st, "L_wc0", 18, 20, 1, sleep=1)
        for j in range(16):
            for t in range(2): st.ds(f"ds_read_b64_tr_b16 {vr(WR+4*j+2*t,2)}, v249 offset:{WKV + 1024*j + 128*t}")
        self.lds_spin(st, "L_xc0", 18, 20, 2)
        self.stamp(st, "m", "m0xc", 64)
        for j in range(8): st.ds(f"ds_read_b128 {vr(XR[j],4)}, v250 offset:{2112*j}", ("rd", j))
        st(f"s_cmp_ge_u32 s{sCB}, 2\ns_cbranch_scc1 L_vjob")
        lq = list(st.lq)
        for job in ("k", "v"):
            if job == "v": st.label("L_vjob")
            st.lq = list(lq)
            for m in range(16):
                if m < 4:
                    for j in (8 + 2 * m, 9 + 2 * m): st.ds(f"ds_read_b128 {vr(XR[j],4)}, v250 offset:{2112*j}", ("rd", j))
                st.wait_ds(("rd", m))
                a, b = (WR + 4 * m, XR[m]) if job == "k" else (XR[m], WR + 4 * m)
                st(mfma16(AC, a, b, "0" if m == 0 else None))
            st.nop(8)
            if job == "k":
                for r in range(4): st(f"v_mul_f32 v{AC+r}, {f32(0.25 * 1.4426950408889634)}, v{AC+r}")
            for r in (4, 6): st(f"v_cvt_pk_bf16_f32 v{AC+r}, v{AC}, v{AC+1}\nv_cvt_pk_bf16_f32 v{AC+r+1}, v{AC+2}, v{AC+3}")
            sw = "v_permlane32_swap_b32" if job == "k" else "v_permlane16_swap_b32"
            st(f"s_nop 0\n{sw} v{AC+4}, v{AC+6}\n{sw} v{AC+5}, v{AC+7}")
            if job == "k": st("s_branch L_kvst")
        st.label("L_kvst")
        self.stamp(st, "m", "m0kvmf", 64)
        if self.c.kv2: st(f"s_cmp_lg_u32 s{sW}, 0\ns_cbranch_scc1 L_kvx")
        st(f"buffer_store_dwordx4 {vr(AC+4,4)}, v251, {srd(WS)}, s{mKL} offen")
        st(f"buffer_store_dwordx4 {vr(AC+4,4)}, v251, {srd(WS)}, s{mKG} offen sc1")
        st.label("L_kvx")
        st(f"s_setprio {self.c.mprio}")

    def kv_flag(self, st, glob, younger):
        st(f"s_cmp_lg_u32 s{sW}, 0\ns_cbranch_scc1 L_nofl{glob}")
        st(f"v_mov_b32 v19, s{sEP1 if glob else sXCC}\ns_bfm_b64 exec, {32 if glob else 1}, 0\ns_waitcnt vmcnt({younger})")
        self.stamp(st, "m", "m0GF" if glob else "m0LF", 64)
        st.vm(f"buffer_store_dword v19, v16, {srd(WS)}, s{mFG if glob else mFL} offen{' sc1' if glob else ''}", cond=True)
        st("s_mov_b64 exec, -1")
        st.label(f"L_nofl{glob}")

    WOR, WDR, vWS = 128, 48, (24, 25, 13, 27)

    def odd_voffsets(self, st, base, t):
        st(f"s_and_b32 s{sT0}, s{sIDX}, 15\ns_mul_i32 s{sT0}, s{sT0}, 224\ns_lshl_b32 s{sT2}, s{sCB}, 1")
        for p in range(3):
            d = base + p
            st(f"v_add_u32 v{t}, {64*p}, v0\nv_mul_u32_u24 v{t+1}, 10923, v{t}\nv_lshrrev_b32 v{t+1}, 16, v{t+1}\nv_mul_u32_u24 v{d}, 6, v{t+1}")
            st(f"v_sub_u32 v{t}, v{t}, v{d}\nv_cmp_gt_u32 vcc, s{sT2}, v{t}\nv_mul_u32_u24 v{t+1}, 3584, v{t+1}\nv_add_u32 v{d}, 8, v{t}")
            st(f"v_cndmask_b32 v{t}, v{d}, v{t}, vcc\nv_lshlrev_b32 v{t}, 4, v{t}\nv_add3_u32 v{d}, v{t}, v{t+1}, s{sT0}")

    def full_voffset(self, st, d, t):
        st(f"s_and_b32 s{sT0}, s{sIDX}, 15\ns_mul_i32 s{sT0}, s{sT0}, 224\ns_lshl_b32 s{sT1}, s{sCB}, 5\ns_add_u32 s{sT0}, s{sT0}, s{sT1}")
        st(f"v_lshrrev_b32 v{t+1}, 3, v0\nv_and_b32 v{t}, 6, v{t+1}\nv_and_b32 v{d}, 7, v0\nv_xor_b32 v{t}, v{t}, v{d}")
        st(f"v_lshlrev_b32 v{t}, 4, v{t}\nv_mul_u32_u24 v{t+1}, 3584, v{t+1}\nv_add3_u32 v{d}, v{t}, v{t+1}, s{sT0}")

    pace = None
    c_wpos = (1, 4, 6, 9, 11, 14, 16, 19, 21, 24, 26, 29)

    def paced(self, st):
        if self.pace is not None: st(f"s_waitcnt vmcnt({self.pace})")

    def odd_pair(self, st, u0, mask, vbase):
        st(f"s_and_b32 s{sT2}, s{sP+4}, {mask | 1}\ns_xor_b32 s{sT2}, s{sT2}, {u0}\ns_mul_i32 s{sT1}, s{sT2}, 114688")
        st(f"s_lshl_b32 s{sT2}, s{sT2}, 1\ns_and_b32 s{sT3}, s{sW}, 1\ns_add_u32 s{sT2}, s{sT2}, s{sT3}\ns_mul_i32 s{sT2}, s{sT2}, 3072")
        for p in range(3):
            st(f"s_add_u32 m0, s{sT2}, {ODD + 1024*p}\ns_nop 0")
            st.vm(f"buffer_load_dwordx4 v{vbase+p}, {srd(WG)}, s{sT1} offen lds", ("odd", u0))

    def full_unit(self, st, u, v, qs=(0, 1)):
        for q in qs:
            st(f"s_add_u32 m0, s{sP+6}, {slot8(FSLOT[u]) + 1024*q}\ns_add_u32 s{sT1}, s{sP+5}, {(32*u + 8*q) * 3584}")
            self.paced(st)
            st.vm(f"buffer_load_dwordx4 v{v}, {srd(WG)}, s{sT1} offen lds", ("full", u))

    def wd_dma(self, st, J, addr, vD, sbase):
        for q in range(2):
            j = (J & ~1) + q
            ft = 7 * (j % 4) + tile_of(j % 4, j // 4)
            st(f"s_add_u32 m0, s{sbase}, {addr + 1024*q}\ns_add_u32 s{sT1}, s{sP+7}, {ft * 16384 + (J & 1) * 8192}")
            self.paced(st)
            st.vm(f"buffer_load_dwordx4 v{vD}, {srd(WD)}, s{sT1} offen lds", ("wd", J))

    def wd_read(self, st, J, grp, va, off, ns=range(4)):
        for n in ns:
            st.ds(f"ds_read_b64_tr_b16 {vr(grp[n // 2] + 4*(n % 2) + 2*(J & 1), 2)}, v{va[n]} offset:{off}", ("wdr", J))

    def wd_static(self, J): return (self.WDR + 16 * (J // 2), self.WDR + 16 * (J // 2) + 8)

    def wd_addr(self, st, vD, va, t0, sb):
        st(f"v_lshrrev_b32 v{t0}, 3, v0\nv_and_b32 v{t0+1}, 6, v{t0}\nv_and_b32 v{vD}, 7, v0")
        st(f"v_xor_b32 v{vD}, v{vD}, v{t0+1}\nv_lshlrev_b32 v{vD}, 4, v{vD}\nv_lshl_add_u32 v{vD}, v{t0}, 10, v{vD}")
        st(f"v_lshrrev_b32 v{t0}, 2, v0\nv_lshlrev_b32 v{t0}, 7, v{t0}\nv_bfe_u32 v{t0+1}, v0, 3, 2\ns_and_b32 s{sT0}, s{sW}, 1\ns_lshl_b32 s{sT0}, s{sT0}, 1")
        st(f"v_xor_b32 v{t0+1}, s{sT0}, v{t0+1}\nv_lshl_add_u32 v{t0}, v{t0+1}, 5, v{t0}\nv_and_b32 v{t0+1}, 3, v0\nv_lshlrev_b32 v{t0+1}, 3, v{t0+1}")
        st(f"v_add3_u32 v{va[0]}, v{t0}, v{t0+1}, s{sb}")
        for n in range(1, 4): st(f"v_xor_b32 v{va[n]}, {32*n}, v{va[0]}")

    def helper_setup(self, st):
        vL, vP, vR = 1, 2, 3
        st(f"v_and_b32 v{vP}, 7, v0\ns_lshl_b32 s{sT0}, s{sW}, 3\nv_add_u32 v{vP}, s{sT0}, v{vP}\nv_lshlrev_b32 v{vP}, 7, v{vP}")
        st(f"v_lshrrev_b32 v{vR}, 3, v0\nv_lshl_add_u32 v{vP}, v{vR}, 12, v{vP}")
        vWO, vTR, vWD, GU = 4, 5, 6, 16
        st(f"v_lshrrev_b32 v14, 2, v0\nv_lshlrev_b32 v14, 10, v14\nv_and_b32 v15, 3, v0\nv_lshlrev_b32 v15, 4, v15")
        st(f"s_lshl_b32 s{sT0}, s{sCB}, 8\ns_lshl_b32 s{sT1}, s{sW}, 6\ns_add_u32 s{sT0}, s{sT0}, s{sT1}")
        st(f"v_add3_u32 v{vWO}, v14, v15, s{sT0}")
        st(f"s_mul_i32 s{sE}, s{sW}, {STGW}\ns_add_u32 s{sE}, s{sE}, {STG}")
        st(f"v_lshrrev_b32 v14, 5, v0\nv_lshlrev_b32 v14, 8, v14\nv_bfe_u32 v15, v0, 2, 2\nv_lshl_add_u32 v14, v15, 6, v14")
        st(f"v_bfe_u32 v15, v0, 4, 1\nv_lshl_add_u32 v14, v15, 5, v14\nv_and_b32 v15, 3, v0\nv_lshl_add_u32 v14, v15, 3, v14")
        st(f"v_add_u32 v{vTR}, s{sE}, v14")
        self.wd_addr(st, vWD, self.vWS, 14, sE)
        self.odd_voffsets(st, GU, 14)
        self.full_voffset(st, 43, 14)
        st(f"s_lshr_b32 s{sT0}, s{sW}, 1\ns_mul_i32 s{sP+5}, s{sT0}, {16*3584}\ns_lshr_b32 s{sT1}, s{sIDX}, 4\ns_lshl_b32 s{sT1}, s{sT1}, 1\ns_or_b32 s{sT1}, s{sT1}, s{sT0}")
        st(f"s_and_b32 s{sT2}, s{sIDX}, 1\ns_lshl_b32 s{sT2}, s{sT2}, 2\ns_or_b32 s{sP+4}, s{sT1}, s{sT2}")
        st(f"s_lshl_b32 s{sT0}, s{sT0}, 11\ns_and_b32 s{sT1}, s{sW}, 1\ns_lshl_b32 s{sT1}, s{sT1}, 12\ns_add_u32 s{sP+6}, s{sT0}, s{sT1}")
        st(f"v_lshrrev_b32 v14, 4, v0\nv_mul_u32_u24 v14, 3584, v14\nv_bfe_u32 v15, v0, 2, 2\nv_mul_u32_u24 v15, 896, v15\nv_and_b32 v{GU+4}, 3, v0")
        st(f"v_lshlrev_b32 v{GU+4}, 8, v{GU+4}\nv_add3_u32 v{GU+4}, v{GU+4}, v14, v15")
        st(f"s_mul_i32 s{sT0}, s{sW}, {28*16384}\ns_and_b32 s{sT1}, s{sIDX}, 7\ns_lshl_b32 s{sT1}, s{sT1}, 7\ns_add_u32 s{sP+7}, s{sT0}, s{sT1}")
        st(f"v_mov_b32 v26, {MISC}\nv_lshlrev_b32 v23, 7, v0\nv_lshlrev_b32 v47, 2, v0")
        st(f"s_lshl_b32 s{sT0}, s{sRB}, 4\ns_lshl_b32 s{sT1}, s{sCB}, 2\ns_add_u32 s{sT0}, s{sT0}, s{sT1}\ns_add_u32 s{sT0}, s{sT0}, s{sW}\ns_lshl_b32 s{sT1}, s{sT0}, 11\ns_lshl_b32 s{sT0}, s{sT0}, 8")
        for lo, n, sb, base in ((0, 16, sT1, WS_O), (16, 2, sT0, WS_ST), (18, 2, sT0, WS_PM)):
            st(f"s_bfm_b64 exec, {n}, {lo}\ns_add_u32 s{sT2}, s{sb}, {base - 128*lo}\nv_add_u32 v21, s{sT2}, v23")
        st(f"s_lshl_b32 s{sT0}, s{sRB}, 7\ns_add_u32 s{sT0}, s{sT0}, {WS_FLG4}\ns_lshl_b32 s{sT1}, s{sRB}, 6\ns_add_u32 s{sT1}, s{sT1}, {WS_FLG2}")
        st(f"s_bitcmp1_b32 s{sW}, 0\ns_cselect_b32 s{sT1}, s{sT0}, s{sT1}\ns_bfm_b64 exec, 44, 20\nv_mov_b32 v21, s{sT1}\ns_mov_b64 exec, -1\nv_lshlrev_b32 v22, 10, v0")
        self.h_voffset(st, 19, 14)
        st(f"v_and_b32 v14, 31, v0\nv_lshlrev_b32 v14, 10, v14\nv_lshrrev_b32 v15, 5, v0\nv_lshl_add_u32 v40, v15, 4, v14")
        st(f"v_lshrrev_b32 v14, 4, v0\nv_lshlrev_b32 v14, 7, v14\nv_bfe_u32 v15, v0, 1, 1\nv_lshl_add_u32 v14, v15, 6, v14")
        st(f"v_bfe_u32 v15, v0, 2, 2\nv_lshl_add_u32 v14, v15, 3, v14\nv_and_b32 v15, 1, v0\nv_lshl_add_u32 v14, v15, 2, v14\nv_add_u32 v42, {WBL}, v14")

    def helper_attention(self, st):
        vL, vP, vR = 1, 2, 3
        st(f"s_lshl_b32 s{sT1}, s{sG}, 12\ns_add_u32 s{sB}, s{sT1}, {WS_FLG1}")
        st(f"s_mul_i32 s{sC}, s{sW}, {2*TILE}\ns_lshl_b32 s{sD}, s{sW}, 12\ns_add_u32 s{sD}, s{sD}, {WS_KV}")
        st(f"s_cmp_lt_u32 s{sW}, 2\ns_cbranch_scc1 L_x1skip")
        st(f"s_and_b32 s{sT2}, s{sW}, 1\ns_lshl_b32 s{sT0}, s{sT2}, 4\nv_and_b32 v12, 15, v0\nv_add_u32 v12, s{sT0}, v12")
        st(f"v_lshlrev_b32 v14, 7, v12\nv_lshlrev_b32 v12, 2, v12\ns_lshl_b32 s{sT1}, s{sG}, 7\ns_add_u32 s{sT1}, s{sT1}, {WS_FLGL}")
        st(f"s_lshl_b32 s{sE}, s{sG}, 14\ns_lshl_b32 s{sT0}, s{sT2}, 13\ns_add_u32 s{sE}, s{sE}, s{sT0}\ns_add_u32 s{sE}, s{sE}, {WS_KVL}")
        st(f"s_mul_i32 s{sT0}, s{sT2}, {4*TILE}\ns_add_u32 m0, s{sT0}, {RING}")
        st(f"s_lshl_b32 s{sT0}, s{sT2}, 2\ns_add_u32 s{sT0}, s{sT0}, {MISC}\nv_mov_b32 v15, s{sT0}")
        st(f"v_mov_b32 v125, 1\ns_mov_b32 s{sCNT}, {SPINL}\ns_bfm_b64 exec, 16, 0")
        st.label("L_x1l")
        st(f"buffer_load_dword v{vR}, v12, {srd(WS)}, s{sT1} offen sc1")
        st.wait_vm()
        st(f"v_cmp_ne_u32 vcc, s{sXCC}, v{vR}\ns_cbranch_vccz L_x1a_ok")
        st(f"s_sub_u32 s{sCNT}, s{sCNT}, 1\ns_cbranch_scc0 L_x1l")
        st(f"s_mov_b64 exec, -1\ns_sub_u32 s{sE}, s{sE}, {WS_KVL - WS_KV}\nv_mov_b32 v125, 0")
        self.poll(st, "L_x1a", 14, f"s{sB}", vR, 1, exact=True, lanes=16)
        for i in range(8):
            if i in (2, 6): st("s_add_u32 m0, m0, 32\ns_nop 0")
            if i == 4: st(f"s_add_u32 m0, m0, {2*TILE - 32}\ns_add_u32 s{sE}, s{sE}, 4096")
            st(f"buffer_load_dwordx4 v{vL}, {srd(WS)}, s{sE} offen offset:{1024*(i % 4)} sc1 lds")
        self.stamp(st, "h", "w2poll", 2112)
        st("ds_write_b32 v15, v125")
        st.label("L_x1skip")
        self.stamp(st, "h", "x1own")
        def chunk(c):
            st(f"s_add_u32 s{sT0}, s{sG}, {c}\ns_and_b32 s{sT0}, s{sT0}, 7\ns_lshl_b32 s{sT0}, s{sT0}, 14")
            st(f"s_add_u32 m0, s{sC}, {RING + (c % 2) * 8 * TILE}\ns_add_u32 s{sT0}, s{sT0}, s{sD}")
            for i in range(4):
                if i == 2: st("s_add_u32 m0, m0, 32\ns_nop 0")
                st.vm(f"buffer_load_dwordx4 v{vL}, {srd(WS)}, s{sT0} offen offset:{1024*i} sc1 lds", ("kv", c))
        vWO, vTR, vWD, GU = 4, 5, 6, 16
        st(f"s_mul_i32 s{sE}, s{sW}, {STGW}\ns_add_u32 s{sE}, s{sE}, {STG}")
        st(f"s_cmp_lt_u32 s{sW}, 2\ns_cbranch_scc1 L_x1skip2")
        st.wait_vm()
        st.wait_ds()
        st.label("L_x1skip2")
        self.pad(st, 1)
        st.bar("B2")
        self.stamp(st, "h", "cycB2", 32)
        st.ds(f"ds_write_b128 v7, v[8:11] offset:{8*TILE + 2048}")
        st.ds("ds_read_b64 v[28:29], v26")
        st.ds("ds_read_b32 v12, v41")
        st.bar("BQ")
        st(f"s_mov_b32 s{sB}, {WS_FLG1}")
        self.poll(st, "L_x1b", vP, f"s{sB}", vR, 1, exact=True)
        self.stamp(st, "h", "x1a", 81)
        st.wait_ds()
        self.colo_reduce(st, 28)
        st(f"v_mov_b32 v29, s{sEP1}\nv_mov_b32 v8, -1\nv_mov_b32 v9, -1\nv_mov_b32 v10, -1\nv_mov_b32 v11, -1")
        st(f"s_setprio {self.c.hprio}")
        st(f"s_lshl_b32 s{sA}, s{sCB}, 17")
        def wo_dma(j, pos):
            st(f"s_add_u32 m0, s{sE}, {1024*pos}\ns_xor_b32 s{sT1}, s{sA}, {j*16384}")
            st.vm(f"buffer_load_dwordx4 v{vWO}, {srd(WO)}, s{sT1} offen lds", ("wo", j))
        def wo_read(j, pos):
            for t in range(2):
                st.ds(f"ds_read_b64_tr_b16 {vr(self.WOR+4*j+2*t,2)}, v{vTR} offset:{1024*pos + 512*t}")
        vT, vTD, vJ = 23, 27, 30
        incond = [False]
        def touch(buf, v, soff, lanes=64):
            if lanes < 64: st(f"s_bfm_b64 exec, {lanes}, 0")
            st.vm(f"buffer_load_dword v{vJ}, v{v}, {srd(buf)}, {soff} offen{' sc1' if buf in (WS, OUT) else ''}", "tx", cond=incond[0])
            if lanes < 64: st("s_mov_b64 exec, -1")
        def lines(name, soff, n):
            if name[0] == "T": return touch(WS, vT, soff, n)
            if n < 8: st(f"s_bfm_b64 exec, {8*n}, 0")
            for i in range(-(-n // 8)):
                if i == 4: st(f"s_add_u32 {soff}, {soff}, 4096")
                st.vm(f"buffer_store_dwordx4 v[8:11], v{vL}, {srd(WS)}, {soff} offen offset:{1024*(i % 4)} sc1")
            if n < 8: st("s_mov_b64 exec, -1")
        items = [("o", j) for j in range(32)] + [("d", j) for j in range(10)]
        staged = []
        def stage(n):
            assert not staged
            pos = 0
            while items and pos + (1 if items[0][0] == "o" else 2) <= n:
                kind, j = items.pop(0)
                if kind == "o": wo_dma(j, pos)
                else: self.wd_dma(st, j, 1024 * pos, vWD, sE)
                staged.append((kind, j, pos))
                pos += 1 if kind == "o" else 2
        def unstage():
            st.wait_vm(("w" + staged[-1][0], staged[-1][1]))
            for kind, j, pos in staged:
                if kind == "o": wo_read(j, pos)
                else: self.wd_read(st, j, self.wd_static(j), self.vWS, 1024 * pos)
            st.wait_ds()
            staged.clear()
        gid = f"s_lshl_b32 s{sT0}, s{sIDX}, 2\ns_add_u32 s{sT0}, s{sT0}, s{sW}"
        cid = f"s_lshl_b32 s{sT0}, s2, 2\ns_add_u32 s{sT0}, s{sT0}, s{sW}"
        free_hi = [False]
        def op(name):
            if name[0] == "S": stage(int(name[1:]))
            elif name == "R": unstage()
            elif name[0] == "O":
                u, _, mask = name[1:].partition("^")
                assert int(u) < 6 or free_hi[0] or self.c.loose
                self.odd_pair(st, int(u), int(mask or 0), GU)
            elif name[0] == "F": self.full_unit(st, int(name[1:]), 43)
            elif name == "Tkv":
                st(f"{gid}\ns_lshl_b32 s{sT1}, s{sT0}, 10\ns_add_u32 s{sT1}, s{sT1}, {WS_KV}")
                touch(WS, vT, f"s{sT1}", 8)
            elif name == "Tmd":
                st(f"{cid}\ns_mul_i32 s{sT1}, s{sT0}, {14*128}")
                touch(WD, vT, f"s{sT1}", 14)
            elif name in ("Tmg0", "Tmg1"):
                st(f"{cid}\ns_lshr_b32 s{sT0}, s{sT0}, 1\ns_mul_i32 s{sT1}, s{sT0}, {14*128}\ns_add_u32 s{sT1}, s{sT1}, {917504*int(name[3])}")
                touch(WG, vT, f"s{sT1}", 14)
            elif name == "To":
                st(f"{gid}\ns_lshl_b32 s{sT1}, s{sT0}, 12")
                touch(WO, vT, f"s{sT1}", 32)
            elif name[:2] in ("Tf", "Tq"):
                row0 = (96 if name[1] == "f" else 0) + 256 * int(name[2:])
                st(f"{gid}\ns_lshr_b32 s{sT0}, s{sT0}, 1\ns_mul_i32 s{sT1}, s{sT0}, {4*3584}\ns_add_u32 s{sT1}, s{sT1}, {row0*3584 + (0 if name[1] == 'f' else 128)}")
                if name[1] == "q": st("s_mov_b32 exec_lo, 0x77777777\ns_mov_b32 exec_hi, 0x77777777")
                touch(WG, GU + 4, f"s{sT1}")
                if name[1] == "q": st("s_mov_b64 exec, -1")
            elif name[:2] in ("Th", "Ph"):
                a, b = map(int, name[2:].split("-"))
                st(f"s_lshr_b32 s{sT0}, s{sIDX}, 4\ns_lshl_b32 s{sT1}, s{sG}, 1\ns_add_u32 s{sT0}, s{sT0}, s{sT1}\ns_lshl_b32 s{sT0}, s{sT0}, 2\ns_add_u32 s{sT0}, s{sT0}, s{sW}")
                st(f"s_mul_i32 s{sT0}, s{sT0}, 114688\ns_and_b32 s{sT1}, s{sIDX}, 15\ns_mul_i32 s{sT1}, s{sT1}, 7168\ns_add_u32 s{sT0}, s{sT0}, s{sT1}\ns_add_u32 s{sT0}, s{sT0}, {WS_HH + 1024*a}")
                lines(name, f"s{sT0}", 8 * (b - a))
            elif name == "Tx":
                self.h_base(st, sT0)
                touch(OUT, 22, f"s{sT0}", 16)
                touch(WS, 21, "0", 21)
            elif name in ("Cx", "Cf"):
                st(f"s_lshl_b32 s{sT0}, s{sRB}, 4\ns_lshl_b32 s{sT1}, s{sCB}, 2\ns_add_u32 s{sT0}, s{sT0}, s{sT1}\ns_add_u32 s{sT0}, s{sT0}, s{sW}")
                st.wait_vm("tx" if name == "Cx" else "cx")
                st(f"s_cmp_eq_u32 s{sCOLO}, {2 if self.c.force_slow else 1}\ns_cbranch_scc0 L_{name}s")
                for o, sc in ((st, ""), (self.tailcode, " sc1")):
                    if sc: o.label(f"L_{name}s")
                    if name == "Cx":
                        o(f"s_lshl_b32 s{sT1}, s{sT0}, 11\ns_add_u32 s{sT1}, s{sT1}, {WS_O}")
                        for q in range(2): o.vm(f"buffer_store_dwordx4 v[8:11], v{vL}, {srd(WS)}, s{sT1} offen offset:{1024*q}{sc or ' ' + self.c.cf}", "cx")
                        self.h_base(o, sT1)
                        for q in range(2):
                            o.vm(f"buffer_store_dwordx4 v[8:11], v19, {srd(OUT)}, s{sT1} offen{sc}", "cx")
                            if q == 0: o(f"s_add_u32 s{sT1}, s{sT1}, 8192")
                        o("s_bfm_b64 exec, 16, 0")
                        for base in (WS_ST, WS_PM):
                            o(f"s_lshl_b32 s{sT1}, s{sT0}, 8\ns_add_u32 s{sT1}, s{sT1}, {base}")
                            o.vm(f"buffer_store_dwordx4 v[8:11], v{vL}, {srd(WS)}, s{sT1} offen{sc}", "cx")
                    else:
                        o(f"s_lshl_b32 s{sT1}, s{sT0}, 2\ns_add_u32 s{sT1}, s{sT1}, {WS_FLG2}\ns_mov_b64 exec, 1")
                        o.vm(f"buffer_store_dword v29, off, {srd(WS)}, s{sT1}{sc}")
                    o("s_mov_b64 exec, -1")
                    if sc: o(f"s_branch L_{name}d")
                st.label(f"L_{name}d")
            elif name == "K":
                st(f"s_lshl_b32 s{sT0}, s{sG}, 9\ns_lshl_b32 s{sT1}, s{sW}, 7\ns_add_u32 s{sT0}, s{sT0}, s{sT1}\ns_add_u32 s{sT0}, s{sT0}, {WS_FLG2}\ns_setprio 2")
                self.poll(st, "L_clr", 47, f"s{sT0}", vR, 1, exact=True, lanes=32)
                st(f"s_setprio {self.c.hprio}")
            elif name == "X":
                st(f"s_lshl_b32 s{sT0}, s{sRB}, 15\ns_lshl_b32 s{sT1}, s{sCB}, 8\ns_add_u32 s{sT0}, s{sT0}, s{sT1}\ns_lshl_b32 s{sT1}, s{sW}, 6\ns_add_u32 s{sT0}, s{sT0}, s{sT1}")
                for q in range(2):
                    st.vm(f"buffer_load_dwordx4 {vr(32+4*q,4)}, v40, {srd(X)}, s{sT0} offen offset:{32*q}")
            elif name == "B":
                st(f"s_cmp_lg_u32 s{sW}, 3\ns_cbranch_scc1 L_nowb2")
                st(f"s_lshl_b32 s{sT0}, s{sCB}, 13\ns_add_u32 s{sT0}, s{sT0}, {WS_WB}\ns_mov_b32 s{sCNT}, {SPIN}\ns_setprio 2")
                st.label("L_wb")
                st(f"buffer_load_dwordx3 v[44:46], v{vT}, {srd(WS)}, s{sT0} offen sc1\ns_waitcnt vmcnt(0)")
                st(f"v_cmp_ne_u32 vcc, s{sEP1}, v46\ns_cbranch_vccz L_wb_ok\ns_sub_u32 s{sCNT}, s{sCNT}, 1\ns_cbranch_scc0 L_wb")
                st.label("L_wb_ok")
                st(f"s_setprio {self.c.hprio}\nds_write2_b32 v42, v44, v45 offset0:0 offset1:8\ns_waitcnt lgkmcnt(0)")
                st.label("L_nowb2")
            elif name[0] == "W":
                st.wait_vm()
                self.stamp(st, "h", "drain" + name[1:], 16)
            else: raise KeyError(name)
        chunk(1)
        st(f"s_cmp_lg_u32 s{sW}, 1\ns_cbranch_scc1 L_nopub\ns_mov_b64 exec, 0xff")
        st.vm(f"buffer_store_dwordx4 v[244:247], v{vL}, {srd(WS)}, s{sF} offen sc1", cond=True)
        st("s_mov_b64 exec, -1")
        st.label("L_nopub")
        ints = self.c.sched.split("|")
        assert len(ints) == 8
        for c, ops in enumerate(ints):
            if c == 1:
                st(f"{cid}\ns_cmp_lg_u32 s{sT0}, 0\ns_cbranch_scc1 L_noep")
                st(f"s_mov_b32 s{sT1}, {WS_EPOCH}\ns_mov_b64 exec, 1")
                st.vm(f"buffer_store_dword v31, off, {srd(WS)}, s{sT1} sc1", cond=True)
                st("s_mov_b64 exec, -1")
                st.label("L_noep")
            plain, _, stag = ops.partition("[")
            def staggered(par):
                if not stag: return
                st(f"s_xor_b32 s{sT0}, s{sIDX}, s{sG}\ns_bitcmp1_b32 s{sT0}, 0\ns_cbranch_scc{par} L_st{c}_{par}")
                incond[0] = True
                for name in stag.rstrip("]").split(): op(name)
                incond[0] = False
                st.label(f"L_st{c}_{par}")
            staggered(0)
            for name in plain.split(): op(name)
            st.wait_vm(("kv", c + 1))
            staggered(1)
            self.stamp(st, "h", f"arrBA{c}", 2)
            st.bar(f"BA{c}")
            self.stamp(st, "h", f"cycBA{c}", 32)
            if not items and not staged: free_hi[0] = True
            if c + 2 < 8: chunk(c + 2)
        assert self.c.loose or (not items and not staged)
        st("s_setprio 2")
        self.stamp(st, "h", "BA7")

    def helper_phase_c(self, st):
        vL, XR, ACC, BRG, PM = 1, 32, 16, (4, 8, 40, 44), self.WOR
        st(f"s_lshl_b32 s{sT0}, s{sRB}, 2\ns_add_u32 s{sT0}, s{sT0}, s{sCB}\ns_lshl_b32 s{sE}, s{sT0}, 10\ns_lshl_b32 s{sT1}, s{sW}, 2\ns_add_u32 s{sE}, s{sE}, s{sT1}\ns_add_u32 s{sE}, s{sE}, {WS_ST}")
        self.h_base(st, sA)
        st(f"s_add_u32 s{sB}, s{sA}, 8192")
        st.bar("BP")
        st.wait_vm()
        st.bar("BC0")
        st("v_mov_b32 v13, v43\nv_mov_b32 v3, v19")
        rd = lambda j: st.ds(f"ds_read_b128 {vr(BRG[j % 4],4)}, v{vL} offset:{RING + 1024*j}", ("o", j))
        for j in range(3): rd(j)
        for b in (XR, XR + 4): st(f"v_permlane32_swap_b32 v{b}, v{b+2}\nv_permlane32_swap_b32 v{b+1}, v{b+3}")
        for r in range(8): st(f"v_lshlrev_b32 v{ACC+2*r}, 16, v{XR+r}\nv_and_b32 v{ACC+2*r+1}, 0xffff0000, v{XR+r}")
        st(f"v_add_u32 v2, {PML}, v{vL}")
        red = {25: [f"v_add_f32 v{PM}, v{PM}, v{PM+1}", f"v_add_f32 v{PM+2}, v{PM+2}, v{PM+3}", f"v_add_f32 v{PM}, v{PM}, v{PM+2}"],
               26: [f"v_mov_b32 v{PM+1}, v{PM}"], 27: [f"v_permlane32_swap_b32 v{PM}, v{PM+1}", f"v_add_f32 v{PM}, v{PM}, v{PM+1}", f"v_sub_f32 v12, v12, v{PM}"],
               28: ["v_mul_f32 v14, -0.5, v12"]}
        for m in range(32):
            if m == 8:
                self.stamp(st, "h", "own", 1024)
                st.bar("BC1a")
                self.pad(st, 2)
                self.stamp(st, "h", "x2ok", 1027)
                for j in range(8, 11): rd(j)
            st.wait_ds(("o", m))
            st(mfma32(ACC, self.WOR + 4 * m, BRG[m % 4]))
            if m in (13, 21):
                self.stamp(st, "h", f"m{m}", 1024)
                st.bar("BC1b" if m == 13 else "BC1c")
                self.stamp(st, "h", f"m{m}b", 1024)
            if m == 21: st.ds(f"ds_read_b128 {vr(PM,4)}, v2")
            if m in (15, 17) and self.c.cfull > 0: self.full_unit(st, 3, 13, (m // 17,))
            if m in (22, 24) and self.c.cfull > 1: self.full_unit(st, 4, 13, (m // 24,))
            if m + 3 < 32 and not 8 <= m + 3 < 11: rd(m + 3)
            for op in red.get(m, []): st(op)
        self.stamp(st, "h", "m31", 1024)
        st(f"s_cmp_eq_u32 s{sCOLO}, {2 if self.c.force_slow else 1}\ns_cbranch_scc0 L_c_slow")
        self.c_epilogue(st, "")
        st.label("L_c_done")
        st.nbar += 1
        self.stamp(st, "h", "hflag")
        tc = self.tailcode
        tc.label("L_c_slow")
        self.c_epilogue(tc, " sc1")
        tc("s_branch L_c_done")

    def c_epilogue(self, st, sc):
        vL, ACC, P = 1, 16, 40
        st.nop(10)
        for r in range(8):
            st(f"v_pk_add_f32 {vr(ACC+2*r,2)}, {vr(ACC+2*r,2)}, v[12:13] op_sel_hi:[1,0]")
            if r % 4 == 3:
                for i in range(r - 3, r + 1): st(f"v_cvt_pk_bf16_f32 v{P+i}, v{ACC+2*i}, v{ACC+2*i+1}")
                st(f"v_min_u32 v{P+r-3}, -2, v{P+r-3}")
                st.vm(f"buffer_store_dwordx4 {vr(P+r-3,4)}, v3, {srd(OUT)}, s{sA + r//4} offen{sc}")
        st("s_barrier                ; BC2")
        for r in range(8):
            st(f"v_dot2_f32_bf16 v15, v{P+r}, v{P+r}, {'0' if r == 0 else 'v15'}")
        st(f"s_nop 2\nv_permlane32_swap_b32 v14, v15\nv_add_f32 v2, v14, v15\nv_min_u32 v2, -2, v2")
        st.vm(f"buffer_store_dword v2, v{vL}, {srd(WS)}, s{sE} offen{sc or ' ' + self.c.sf}")

    def e_setup(self, st):
        vL, vP, vA = 1, 2, (7, 8, 9, 10)
        st(f"s_lshr_b32 s{sT0}, s{sIDX}, 3\ns_lshl_b32 s{sT1}, s{sG}, 2\ns_add_u32 s{sT0}, s{sT0}, s{sT1}\ns_lshl_b32 s{sA}, s{sT0}, 1")
        st(f"s_mul_i32 s{sT0}, s{sA}, 114688\ns_mul_i32 s{sT1}, s{sW}, {28*1024}\ns_add_u32 s{sT0}, s{sT0}, s{sT1}")
        for p in range(2): st(f"s_add_u32 s{sP+p}, s{sT0}, {WS_HH + 14336*p}")
        st("v_bfe_u32 v14, v0, 4, 1\nv_lshlrev_b32 v14, 9, v14\nv_and_b32 v15, 15, v0\nv_lshl_add_u32 v14, v15, 4, v14\nv_lshrrev_b32 v11, 5, v0")
        st("v_lshl_add_u32 v15, v11, 11, v14\nv_mul_u32_u24 v11, 7168, v11\nv_add_u32 v11, v11, v14")
        st(f"s_lshr_b32 s{sT2}, s{sW}, 1\ns_mul_i32 s{sT0}, s{sT2}, 114688\ns_sub_u32 s{sT1}, 114688, s{sT0}")
        st(f"v_add_u32 v{vA[0]}, s{sT0}, v11\nv_add_u32 v{vA[1]}, s{sT1}, v11\nv_add_u32 v{vA[2]}, 4096, v{vA[0]}\nv_add_u32 v{vA[3]}, 4096, v{vA[1]}")
        st(f"v_bfe_u32 v{vP}, v0, 2, 1\nv_lshlrev_b32 v{vP}, 7, v{vP}\nv_and_b32 v14, 3, v0\nv_lshl_add_u32 v{vP}, v14, 2, v{vP}")
        st(f"v_lshrrev_b32 v14, 3, v0\nv_lshl_add_u32 v{vP}, v14, 28, v{vP}")
        st(f"s_lshl_b32 s{sT0}, s{sA}, 7\ns_lshl_b32 s{sT1}, s{sW}, 4\ns_add_u32 s{sB}, s{sT0}, s{sT1}\ns_add_u32 s{sB}, s{sB}, {WS_FLG4}")
        st(f"s_add_u32 s{sA}, s{sA}, s{sT2}")
        st(f"s_lshl_b32 s{sT0}, s{sA}, 15\ns_lshl_b32 s{sT1}, s{sW}, 13\ns_add_u32 s{sT0}, s{sT0}, s{sT1}\ns_add_u32 s{eO}, s{sT0}, {WS_O}")
        st(f"s_add_u32 s{eO+1}, s{eO}, 4096\ns_xor_b32 s{eO+2}, s{eO}, 0x8000\ns_xor_b32 s{eO+3}, s{eO+1}, 0x8000")
        st(f"s_and_b32 s{sT0}, s{sIDX}, 7\ns_lshl_b32 s{sT0}, s{sT0}, 1\ns_and_b32 s{sT1}, s{sW}, 1\ns_add_u32 s{sT0}, s{sT0}, s{sT1}")
        st(f"s_lshl_b32 s{sC}, s{sT1}, 14\ns_lshl_b32 s{sT1}, s{sA}, 15\ns_add_u32 s{sC}, s{sC}, s{sT1}\ns_and_b32 s{sT2}, s{sIDX}, 7\ns_lshl_b32 s{sT2}, s{sT2}, 7\ns_add_u32 s{sC}, s{sC}, s{sT2}\ns_add_u32 s{sXCC}, s{sC}, 8192")
        st(f"s_lshl_b32 s{sD}, s{sT0}, 6\ns_add_u32 s{sD}, s{sD}, s{sT1}")
        st(f"s_lshl_b32 s{sF}, s{sA}, 12\ns_add_u32 s{sF}, s{sF}, {WS_ST}")
        st(f"v_and_b32 v14, 31, v0\nv_lshlrev_b32 v14, 10, v14\nv_lshrrev_b32 v3, 5, v0\nv_lshl_add_u32 v14, v3, 4, v14")
        st(f"v_and_b32 v11, 15, v0\nv_lshl_add_u32 v11, v3, 4, v11\nv_lshlrev_b32 v11, 4, v11")

    def helper_phase_de(self, st):
        vL, vP, vR = 1, 2, 3
        vWD, vWA, GU = 4, (5, 6, 12, 13), 192
        st(f"v_mov_b32 v{GU}, v13")
        lo = [slot8(8)]
        st(f"s_lshl_b32 s{sE}, s{sW}, 11\ns_add_u32 s{sT1}, s{sE}, {lo[0]}")
        self.wd_addr(st, vWD, vWA, 14, sT1)
        where = {}
        need = {8: 4, 9: 5, 10: 7, 11: 8, 12: 9}
        seen, done = [0], set()
        def dma(j, i):
            assert seen[0] >= need.get(i, 20), (j, i)
            for jj, ii in where.items():
                if ii == i:
                    assert jj in done, (j, jj)
                    st.wait_ds(("wdr", jj))
            where[j] = i
            self.wd_dma(st, j, slot8(i), vWD, sE)
        def read(j, grp, ns=range(4)):
            if slot8(where[j]) - lo[0] > 65535:
                for v in vWA: st(f"v_add_u32 v{v}, 0x8000, v{v}")
                lo[0] += 0x8000
            assert slot8(where[j]) >= lo[0]
            self.wd_read(st, j, grp, vWA, slot8(where[j]) - lo[0], ns)
        wreg = {j: self.wd_static(j) for j in range(18)}
        def rd(js):
            st.wait_vm(("wd", js[-1]))
            for j in js: read(j, wreg[j]); done.add(j)
        vPG, vLD, vN, CK = 200, 201, 202, 204
        st(f"s_lshl_b32 s{sT0}, s{sW}, 2\ns_add_u32 s{sT0}, s{sT0}, {LAND}\nv_mov_b32 v{vLD}, s{sT0}\nv_mov_b32 v{vPG}, {PROG}")
        def prog(n):
            seen[0] = n
            if n in (3, 5, 7, 9, 20): self.stamp(st, "h", f"arr{n}", 4)
            self.lds_spin(st, f"L_pg{n}", vPG, CK, n, sleep=self.c.psleep)
        def land(tag, n):
            st(f"v_mov_b32 v{vN}, {n}")
            st.wait_vm(tag)
            st.ds(f"ds_write_b32 v{vLD}, v{vN}")
        self.e_setup(st)
        st(f"s_setprio {self.c.dprio}")
        self.pace = self.c.pace
        def full(u):
            assert seen[0] >= {7: 2, 8: 3, 9: 3}.get(u, u - 6), u
            self.full_unit(st, u, GU)
        plan = self.c.dplan.split()
        latew = [tuple(map(int, x[1:].split(">"))) for x in plan[len(plan) - self.c.nlate:]]
        for op in plan[:len(plan) - self.c.nlate]:
            a = op[1:]
            if op[0] == "F":
                if int(a) >= 3 + self.c.cfull: full(int(a))
            elif op[0] == "W": dma(*map(int, a.split(">")))
            elif op[0] == "P": prog(int(a))
            elif op[0] == "L": land(("full", int(a) - 1), int(a))
            elif op[0] == "R": rd(list(map(int, a.split(","))))
            elif op == "T":
                st(f"s_setprio {self.c.tprio}")
                self.pace = self.c.pace2
        self.stamp(st, "h", "Dhelp_end", 13)
        ACC, vA = 192, (7, 8, 9, 10)
        free = [16, 24, 32, 40]
        areg = {}
        W0 = 20
        def step(s):
            if s < W0: return s // 2, s % 2
            return W0 // 2 + (s - W0) % 4, 1 if s < W0 + 4 else 0
        def ldA(s):
            areg[s] = r = free.pop(0)
            P, mt = step(s)
            pp, t = P % 2, P // 2
            for mh in range(2):
                if t < self.c.hho: a = f"v15, {srd(WS)}, s{eO + 2*mt + pp} offen offset:{1024*t + 256*mh}"
                else: a = f"v{vA[mt + (2 if t >= 4 else 0)]}, {srd(WS)}, s{sP+pp} offen offset:{1024*(t % 4) + 256*mh}"
                st.vm(f"buffer_load_dwordx4 {vr(r+4*mh,4)}, {a} sc1", ("a", s))
        def gate(t):
            tc = self.near
            st.wait_vm(("poll", t))
            self.notready(st, vR, t + 1)
            st(f"s_and_b64 vcc, vcc, 0xff\ns_cbranch_scc1 L_x4s{t}")
            st.label(f"L_x4r{t}")
            tc.label(f"L_x4s{t}")
            if self.c.diag & 8: tc(f"s_bitset1_b32 s{CODE}, {t}")
            self.poll(tc, f"L_x4p{t}", vP, f"s{sB}", vR, t + 1, lanes=8)
            tc(f"s_branch L_x4r{t}")
        stg = self.stages()
        f0 = stg[0][0]
        pollat = {x[1]: x[0] for x in stg[1:]}
        gateat = {4 * stg[i][0]: stg[i + 1] for i in range(len(stg) - 1)}
        if self.c.diag & 8: st(f"s_mov_b32 s{CODE}, 0")
        assert not latew
        st(f"s_setprio {self.c.pprio}")
        st(f"v_bfe_u32 v4, v0, 4, 1\nv_lshlrev_b32 v4, 12, v4\nv_lshrrev_b32 v{vR}, 5, v0\nv_lshl_add_u32 v4, v{vR}, 11, v4")
        st(f"v_bfe_u32 v{vR}, v0, 3, 1\nv_lshl_add_u32 v4, v{vR}, 10, v4\nv_and_b32 v{vR}, 7, v0\nv_lshl_add_u32 v4, v{vR}, 4, v4")
        self.poll(st, "L_x4", vP, f"s{sB}", vR, f0, lanes=8)
        if self.c.diag & 8: st(f"s_sub_u32 s{CODE}, {SPIN}, s{sCNT}\ns_lshl_b32 s{CODE}, s{CODE}, 8")
        st(f"s_setprio {self.c.eprio}")
        self.stamp(st, "h", "x4ok", 13)
        self.pace = None
        for j in range(4): ldA(j)
        nextA, nextW, DEPTH = 4, 18, self.c.edepth
        hres = None
        assert max(gateat, default=0) <= W0
        def mm(s, nt, nh, mh):
            P, mt = step(s)
            st(mfma16(ACC + 16 * (nt + 2 * mt) + 8 * nh + 4 * mh, wreg[2 * P][nt] + 4 * nh, areg[s] + 4 * mh, "0" if P == 0 else None))
        wneed = lambda J: J & ~1 if J < W0 else W0 + (J - W0) // 2
        def more(s):
            nonlocal nextA, nextW, hres
            if nextW in wreg:
                read(nextW, wreg[nextW], (2, 3)); nextW += 1
            elif nextW < 28 and wneed(nextW) <= s + 3 and (nextW % 2 or len(free) > 1):
                st.wait_vm(("wd", nextW))
                wreg[nextW] = wreg[nextW - 1] if nextW % 2 else (free.pop(0), free.pop(0))
                read(nextW, wreg[nextW], (0, 1))
            elif s in pollat:
                st.vm(f"buffer_load_dword v{vR}, v{vP}, {srd(WS)}, s{sB} offen sc1", ("poll", pollat.pop(s) - 1))
            elif nextA < 28 and nextA <= s + DEPTH and free and (nextA not in gateat or gateat[nextA][2] <= s):
                if nextA in gateat: gate(gateat[nextA][0] - 1)
                ldA(nextA); nextA += 1
            elif latew and nextA >= self.c.lateat:
                dma(*latew.pop(0))
            elif s >= 6 and hres is None and len(free) > 3:
                hres = [free.pop(0) for _ in range(3)]
                for l in hld(): st.vm(l, "h")
        hld = lambda: [f"buffer_load_dwordx4 {vr(hres[0]+4*i,4)}, v4, {srd(OUT)}, s{(sC, sXCC)[i]} offen sc1" for i in range(2)] + \
                      [f"buffer_load_dword v15, v11, {srd(WS)}, s{sF} offen sc1"]
        BUF, vX = RING, (5, 6, 12, 13)
        valu = []
        quad = ((0, 0), (0, 1), (1, 1), (1, 0))
        for s in range(W0 + 4):
            st.wait_vm(("a", s))
            st.wait_ds(("wdr", 2 * step(s)[0] + 1))
            if s % 4 == 0: self.stamp(st, "h", f"Et{s//4}", 8)
            if s == 13:
                assert nextA > 8
                st.wait_vm("h")
                self.validate(st, "L_hr", (hres[0], hres[0] + 4, 15), hres[1], hld())
                res = lambda r: hres[1 + r // 8] + r % 8
                valu += ["v_mov_b32 v11, v15"] + [f"v_permlane32_swap_b32 v{hres[0]+r}, v{hres[0]+r+2}" for r in (0, 1, 4, 5)] + ["v_permlane32_swap_b32 v15, v11"]
                for r in range(8):
                    valu += [f"v_lshlrev_b32 v{res(2*r)}, 16, v{hres[0]+r}", f"v_and_b32 v{res(2*r+1)}, 0xffff0000, v{hres[0]+r}"]
                valu += [f"v_add_f32 v{res(r)}, v{11 if r & 4 else 15}, v{res(r)}" for r in range(16)]
            if s == W0 + 2:
                assert nextW == 28 and not valu
                valu += [f"s_xor_b32 s{sT0}, s{sW}, {a}\ns_mul_i32 s{sT0}, s{sT0}, 12288\ns_add_u32 s{sT0}, s{sT0}, {BUF}\nv_add_u32 v{vX[a]}, s{sT0}, v{vL}" for a in range(4)]
            for i in range(8):
                mm(s, i // 4, *quad[i % 4])
                if s == W0 and i == 0:
                    st(f"v_mov_b32 v4, {PROG}")
                    ck = free.pop(0)
                if s == W0 and i == 2: st.ds(f"ds_read_b128 {vr(ck,4)}, v4", "ck")
                if s == W0 + 1 and i == 7:
                    st.wait_ds("ck")
                    self.lds_min(st, ck, 30)
                    st("s_cbranch_vccnz L_mds")
                    st.label("L_mdr")
                    self.near.label("L_mds")
                    self.lds_spin(self.near, "L_md", 4, ck, 30)
                    self.near("s_branch L_mdr")
                n0 = len(st.lines)
                if i < 7: more(s)
                if len(st.lines) == n0 and i < 7:
                    for _ in range(2 if s < W0 else 1):
                        if valu: st(valu.pop(0))
            free.append(areg[s])
            if s < W0 and s % 2: free += list(wreg[s])
            if s == 17:
                assert len(valu) <= 16
                free.append(hres[0])
            more(s)
        assert nextA == 28 and not valu, nextA
        self.stamp(st, "h", "Et6", 8)
        wrs = [(a, q) for a in (2, 3, 1) for q in (0, 1, 3, 2)]
        def wr():
            a, q = wrs.pop(0)
            st.ds(f"ds_write_b128 v{vX[a]}, {vr(ACC+16*a+4*q,4)} offset:{4096*(a-1) + 1024*q}")
        seq = [(s, nt, x) for nt in (1, 0) for s in range(W0 + 4, W0 + 8) for x in quad]
        for i, (s, nt, x) in enumerate(seq):
            if nt == 1: st.wait_vm(("a", s))
            mm(s, nt, *x)
            if i in eval(self.c.wpos): wr()
        assert not wrs
        self.stamp(st, "h", "Emfma_end", 13)
        st.wait_ds()
        st.bar("BE2")
        for q in range(4):
            for a in (1, 2, 3): st.ds(f"ds_read_b128 {vr(ACC+16*a+4*q,4)}, v{vX[0]} offset:{4096*(a-1) + 1024*q}", ("r", q))
        for r in range(0, 16, 2): st(f"v_pk_add_f32 {vr(ACC+r,2)}, {vr(ACC+r,2)}, {vr(res(r),2)}")
        for q in range(4):
            st.wait_ds(("r", q))
            for r in (4 * q, 4 * q + 2):
                st(f"v_pk_add_f32 {vr(ACC+r,2)}, {vr(ACC+r,2)}, {vr(ACC+16+r,2)}\nv_pk_add_f32 {vr(ACC+32+r,2)}, {vr(ACC+32+r,2)}, {vr(ACC+48+r,2)}")
            for r in (4 * q, 4 * q + 2): st(f"v_pk_add_f32 {vr(ACC+r,2)}, {vr(ACC+r,2)}, {vr(ACC+32+r,2)}")
            b = hres[1 + q // 2]
            for e in range(2): st(f"v_cvt_pk_bf16_f32 v{b+2*(q % 2)+e}, v{ACC+4*q+2*e}, v{ACC+4*q+2*e+1}")
            if q % 2:
                st(f"s_nop 1\nv_permlane16_swap_b32 v{b}, v{b+2}\nv_permlane16_swap_b32 v{b+1}, v{b+3}")
                st.vm(f"buffer_store_dwordx4 {vr(b,4)}, v14, {srd(OUT)}, s{sD} offen offset:{32*(q//2)} {self.c.outf}")
        self.pad(st, 0)
        self.stamp(st, "h", "end", 9)
        if self.c.diag & 8:
            self.nstamp["h"].append("gates")
            st(f"s_waitcnt lgkmcnt(0)\ns_mov_b32 s{sSTAMP + 2*(len(self.nstamp['h'])-1)}, s{CODE}")
        self.dump_stamps(st, "h")

    def build(self):
        p, m, h = Stream(), Stream(), Stream()
        self.prologue(p)
        m.label("L_main")
        self.main_phase_a(m); self.main_attention(m); self.main_publish_o(m); self.main_phase_d(m)
        ms = Stream()
        self.sc, self.sfx = " sc1", "_s"
        ms.label("L_main_slow")
        self.main_publish_o(ms); self.main_phase_d(ms)
        self.sc, self.sfx = "", ""
        self.helper_phase_a(h); self.helper_attention(h); self.helper_phase_c(h); self.helper_phase_de(h)
        assert m.nbar + 1 == h.nbar, (m.nbar, h.nbar)
        ref = open("hdr.ref").read().splitlines()
        hdr = [l for l in ref if l.startswith(";") and "@launch" not in l]
        o = "\n".join(hdr) + f"\n; @launch grid=(256,1,1) block=(512,1,1) lds={LDS_BYTES}\n"
        o += f'.amdgcn_target "amdgcn-amd-amdhsa--gfx950"\n.text\n.globl {NAME}_kernel\n.p2align 8\n.type {NAME}_kernel,@function\n{NAME}_kernel:\n'
        o += p.text() + "\n" + h.text() + "\nL_end:\n    s_endpgm\n" + self.near.text() + "\n" + m.text() + "\nL_codeend:\n" + self.tailcode.text() + "\n" + ms.text() + "\n"
        o += f""".section .rodata,"a"
.p2align 6
.amdhsa_kernel {NAME}_kernel
  .amdhsa_next_free_vgpr 256
  .amdhsa_next_free_sgpr 102
  .amdhsa_accum_offset 256
  .amdhsa_group_segment_fixed_size 0
  .amdhsa_kernarg_size 96
  .amdhsa_user_sgpr_count 2
  .amdhsa_user_sgpr_kernarg_segment_ptr 1
  .amdhsa_system_sgpr_workgroup_id_x 1
.end_amdhsa_kernel
"""
        return o

if __name__ == "__main__":
    import hazcheck, json
    cfg = Cfg()
    out = sys.argv[1]
    for a in sys.argv[2:]:
        k, v = a.split("=")
        setattr(cfg, k, v if isinstance(getattr(cfg, k), str) else int(v))
    g = Gen(cfg)
    txt = g.build()
    open(out, "w").write(txt)
    json.dump(dict(g.nstamp, cyc=cfg.cyc) if g.nstamp else {}, open(out + ".stamps.json", "w"))
    errs = hazcheck.check(txt)
    for e in errs[:40]: print(e)
    print(len(errs), "hazard findings;", len(txt.splitlines()), "lines")
```

```python
import re
from align8 import sizes

SCC_R = ("s_cbranch_scc", "s_cselect", "s_addc", "s_subb")
SCC_W = ("s_cmp", "s_add", "s_sub", "s_and", "s_or", "s_xor", "s_lshl", "s_lshr", "s_bitcmp", "s_min", "s_max", "s_bfe", "s_endpgm")

def scc_dead(lines, i):
    for l in lines[i:]:
        op = l.split()[0] if l.strip() else ""
        if op.startswith(SCC_R) or op == "s_branch": return False
        if op.startswith(SCC_W): return True
    return True

def insert(text, regions, flag):
    lines = text.split("\n")
    bare = re.sub(r"\n\.p2align 12\n(\.fill [^\n]*\n)?", "\n", text)
    sz = sizes(bare.replace("s_branch L_pad0", "s_branch L_walked"))
    end = next(i for i, l in enumerate(lines) if l.startswith(".section"))
    idx = [i for i, l in enumerate(lines[:end]) if l.startswith("    ") and not l.strip().startswith((".", ";"))]
    assert len(idx) == len(sz)
    size = dict(zip(idx, sz))
    spots = []
    for anchor, off, first, last in regions:
        a, f, e = (lines.index(x + ":") for x in (anchor, first, last))
        addr, page, best = off, off // 4096, None
        i = a
        while i < e:
            if i in size:
                if addr // 4096 > page:
                    if i < f: page = addr // 4096
                    else:
                        cands, ad, k = [], addr, i
                        while ad % 4096 <= 56 and k < e:
                            if k in size:
                                prev = max(x for x in idx if x < k)
                                if scc_dead(lines, k): cands.append((0 if "mfma" in lines[prev] else 1, k))
                                ad += size[k]
                            k += 1
                        page = addr // 4096
                        if cands: best = min(cands)[1]
                if i == best:
                    spots.append(i); addr += 8; best = None
                addr += size[i]
            i += 1
    for n, i in enumerate(spots):
        nxt = f"L_pad{n+1}" if n + 1 < len(spots) else "L_walked"
        lines[i] = f"L_pad{n}:\n    s_cmp_eq_u32 s{flag}, 1\n    s_cbranch_scc1 {nxt}\n" + lines[i]
    return "\n".join(lines), len(spots)
```

```python
import sys, struct
from emit import Stream, vr, sr

NAME = "sequential_preLN__grouped_kv_mqa__glu_gated_glu__prompt"

def f32(x): return hex(struct.unpack("<I", struct.pack("<f", x))[0])

WS_KV, WS_KVL, WS_FLG1, WS_FLGL, WS_FLG2, WS_FLG3, WS_FLG4 = 0x0, 0x20000, 0x40000, 0x48000, 0x50000, 0x52000, 0x54000
WS_WB, WS_ST, WS_DIAG, WS_PM, WS_O, WS_H, WS_HH, WS_SIZE = 0x58000, 0x60000, 0xA0000, 0xC0000, 0x100000, 0x300000, 0x500000, 0xC00000
TILE, RING, FS, ODD = 2080, 0, 33280, 57856
XN, WKV, WQST, NWQ = 33280, 16640, 67072, 23
LDS_BYTES = 163840
PML, WBL, MISC = 156160, 163072, 163584
PROG, LAND, XC, WC = MISC + 160, MISC + 176, MISC + 192, MISC + 208
STGW = 14336
STG = WBL - 4 * STGW
def slot8(i): return RING + 8192 * i if i < 4 else FS + 8192 * (i - 4)
FSLOT = (4, 5, 6, 0, 1, 2, 3, 4, 5, 7, 6, 0, 1, 2, 3, 4)
def tile_of(c, i): return (i if i < c else i + 4) if i < 3 else c + i - 3
X, WQ, WKVS, WO, WG, WU, WD, OUT, DBG, WS = 4, 8, 12, 16, 20, 24, 28, 32, 36, 40
sG, sIDX, sRB, sCB, sW, sXCC = 44, 45, 46, 47, 48, 49
sT0, sT1, sT2, sT3, sCNT = 50, 51, 52, 53, 54
sA, sB, sC, sD, sE = 55, 56, 57, 58, 59
sONE, sLO, sHI = 60, 61, 62
sF = 63
CODE = 64
sP = 68
mO, mPM, mF2, mF3, mF4, mST, mHH0, mHH1, mRB, mCHK, mKH, mKG, mKL, mFG, mFL = range(20, 35)
MOUT = WO
eO = WQ
sSTAMP = 76
SPIN = 1 << 17
SPINL = 96
sCOLO = 3
WS_EPOCH = 0x48400
sEP = DBG
sEP1 = DBG + 1
sWALK = DBG + 2
def srd(b): return sr(b, 4)

DOC = """;
;      The shift is 0; the row sums and outputs are range-checked afterwards and a wave that fails the check redoes its
"""

class Cfg:
    diag = False
    tail = 7
    force_fallback = False
    force_slow = False
    npre = 6
    nearly = 120
    tq = 8
    ndeep = 12
    sec = 2
    wo_early = 2
    lfat = 4
    gfat = 5
    jx = 8
    pace = 4
    lag = 16
    wpos = '1,3,6,8,11,13,16,18,20,22,24,26'
    kv2 = 0
    mal = 1
    hal = 0
    pads = 0
    moff = 0
    hoff = 0
    kprio = 1
    asleep = 0
    zig = 0
    ech = 0
    al8 = 0
    bc2at = 1
    stlate = 0
    jitter = 0
    bpat = 1
    psleep = 0
    fake16 = 0
    bal = 0
    balc = 32
    hho = 0
    of = ''
    cf = ''
    sf = ''
    gf = ''
    hfirst = 0
    mprio = 1
    tm = 0
    tkv = 1
    wcat = 1
    nh = 0
    nb = 0
    nmore = 0
    x1late = 0
    align = 0
    lalign = 0
    pmat = 2
    g2early = 1
    stat = 127
    d2 = 0
    d3 = 0
    nlate = 0
    lateat = 8
    wafter = 0
    wper = 4
    la = 7
    cfull = 2
    pprio = 2
    fexec = 0
    dplan = ("L5 P1 F5 F6 P2 F7 P3 F8 L7 F9 P4 F10 L9 W10>8 P5 F11 W11>9 P6 F12 R10 P7 F13 W12>8 R11 W13>10 W14>9 P8 F14 R12 P9 F15 T "
             "W15>8 R13 W16>11 L16 R14 W17>12 W18>10 R15 W19>9 R16 W20>8 R17 W21>11 W22>12 P20 W23>13 W24>14 W25>15 W26>16 W27>17")
    gates = "2,4:2:5,7:9:12"
    lagp = 10
    tprio = 0
    eprio = 0
    fake = 0
    cyc = 0
    dprio = 0
    pace2 = 6
    loose = 0
    hprio = 0
    nt = 0
    swap = 1
    abatch = 1
    edepth = 5
    etile = 5
    sched = "Tkv S6|R S14 X Tmd Tmg0 Tmg1|R S14 F0|R S14 O0^2 F1|R S4 O2^2 O4 F2 R Tx|O8^6 O10^6 Cx|Cf O12^6 O14^6 O6 B|K Tc"
    padto = 0
    padat = 0
    padwg = -1
    probe = ''
    outf = ''
    hhplain = 0

def mfma32(d, a, b, c=None):
    return f"v_mfma_f32_32x32x16_bf16 {vr(d,16)}, {vr(a,4)}, {vr(b,4)}, {vr(d,16) if c is None else c}"
def mfma16(d, a, b, c=None):
    return f"v_mfma_f32_16x16x32_bf16 {vr(d,4)}, {vr(a,4)}, {vr(b,4)}, {vr(d,4) if c is None else c}"
def smf(d, a, b, idx):
    return f"v_smfmac_f32_32x32x32_bf16 {vr(d,16)}, {vr(a,4)}, {vr(b,8)}, v{idx}"

class Gen:
    def __init__(self, cfg):
        self.c = cfg
        self.tailcode = Stream()
        self.near = Stream()
        self.nstamp = {}

    sc, sfx, njit = "", "", 0

    def stamp(self, st, role, name, level=1):
        if self.c.jitter:
            self.njit += 1
            lab = f"L_jit{self.njit}"
            st(f"s_cselect_b32 s97, 1, 0\ns_getreg_b32 s98, hwreg(HW_REG_SHADER_CYCLES)".replace("s_getreg_b32 s98, hwreg(HW_REG_SHADER_CYCLES)", "s_mul_i32 s99, s99, 0x41c64e6d\ns_add_u32 s99, s99, s2\ns_add_u32 s99, s99, s48\ns_add_u32 s99, s99, 12345"))
            st(f"s_bfe_u32 s98, s99, 0x30014\ns_cmp_lg_u32 s98, 0\ns_cbranch_scc1 {lab}x\ns_bfe_u32 s98, s99, {hex(0x10 + (self.c.jitter << 16))}")
            st.label(lab)
            st(f"s_sleep 4\ns_sub_u32 s98, s98, 1\ns_cbranch_scc0 {lab}")
            st.label(lab + "x")
            st("s_cmp_eq_u32 s97, 1")
        if self.c.probe and not self.sc:
            r, a, b, kind = self.c.probe.split(",")
            op = "s_memtime" if kind == "c" else "s_memrealtime"
            if role == r and name == "start": st("s_memrealtime s[100:101]")
            if role == r and name == a: st(f"{op} s[96:97]")
            if role == r and name == b: st(f"{op} s[94:95]")
            if role == r and name == "end":
                if self.c.padwg >= 0: st(f"s_cmp_lg_u32 s2, {self.c.padwg}\ns_cbranch_scc1 L_prbx")
                st("s_waitcnt lgkmcnt(0)\ns_sub_u32 s94, s94, s96")
                st("s_lshr_b32 s94, s94, 1" if kind == "c" else "s_mul_i32 s94, s94, 10")
                st("s_add_u32 s94, s94, 6000")
                st.label("L_prb")
                st("s_memrealtime s[98:99]\ns_waitcnt lgkmcnt(0)\ns_sub_u32 s98, s98, s100\ns_cmp_lt_u32 s98, s94\ns_cbranch_scc1 L_prb")
                st.label("L_prbx")
        if not (self.c.diag & level) or self.sc: return
        l = self.nstamp.setdefault(role, [])
        i = len(l); l.append(name)
        assert i < 13
        st(f"{'s_memtime' if name.startswith('cyc') or self.c.cyc else 's_memrealtime'} {sr(sSTAMP + 2*i, 2)}")

    def dump_stamps(self, st, role):
        if not self.c.diag or self.sc: return
        n = len(self.nstamp[role])
        st("s_waitcnt lgkmcnt(0)")
        st(f"s_lshl_b32 s{sT0}, s2, 3\ns_add_u32 s{sT0}, s{sT0}, s{sW}")
        st(f"s_add_u32 s{sT0}, s{sT0}, {4 if role == 'h' else 0}\ns_lshl_b32 s{sT0}, s{sT0}, 6\ns_add_u32 s{sT0}, s{sT0}, {WS_DIAG}")
        for i in range(n):
            st(f"v_mov_b32 v1, s{sSTAMP + 2*i}")
            st(f"buffer_store_dword v1, off, {srd(WS)}, s{sT0} offset:{4*i}")
        st("s_waitcnt vmcnt(0)")

    def notready(self, st, vdst, need):
        st(f"v_subrev_u32 v{vdst}, s{sEP}, v{vdst}")
        st(f"v_subrev_u32 v{vdst}, {need}, v{vdst}")
        st(f"v_cmp_lt_u32 vcc, {15 - need}, v{vdst}")

    def poll(self, st, name, vaddr, soff, vdst, need, exact=False, lanes=64):
        st(f"s_mov_b32 s{sCNT}, {SPIN}")
        if lanes < 64: st(f"s_bfm_b64 exec, {lanes}, 0")
        st.label(name)
        st(f"buffer_load_dword v{vdst}, v{vaddr}, {srd(WS)}, {soff} offen sc1")
        st.wait_vm()
        if exact: st(f"v_cmp_ne_u32 vcc, s{sEP1}, v{vdst}")
        else: self.notready(st, vdst, need)
        st(f"s_cbranch_vccz {name}_ok")
        st(f"s_sub_u32 s{sCNT}, s{sCNT}, 1")
        st(f"s_cbranch_scc0 {name}")
        st.label(name + "_ok")
        if lanes < 64: st("s_mov_b64 exec, -1")

    def pad(self, st, at):
        if not self.c.padto or self.c.padat != at: return
        if self.c.padwg >= 0: st(f"s_cmp_lg_u32 s2, {self.c.padwg}\ns_cbranch_scc1 L_padx")
        st.label("L_pad")
        st("s_memrealtime s[98:99]\ns_waitcnt lgkmcnt(0)\ns_sub_u32 s98, s98, s100")
        st(f"s_cmp_lt_u32 s98, {self.c.padto * 100}\ns_cbranch_scc1 L_pad")
        st.label("L_padx")

    def lds_min(self, st, r, need):
        st(f"v_min3_u32 v{r}, v{r}, v{r+1}, v{r+2}\nv_min_u32 v{r}, v{r}, v{r+3}\nv_cmp_gt_u32 vcc, {need}, v{r}")

    def lds_spin(self, st, name, va, r, need, sleep=0):
        st(f"s_mov_b32 s{sCNT}, {SPIN * 16}")
        st.label(name)
        st(f"ds_read_b128 {vr(r,4)}, v{va}")
        st.wait_ds()
        self.lds_min(st, r, need)
        st(f"s_cbranch_vccz {name}_ok")
        if sleep: st(f"s_sleep {sleep}")
        st(f"s_sub_u32 s{sCNT}, s{sCNT}, 1\ns_cbranch_scc0 {name}")
        st.label(name + "_ok")

    def validate(self, st, name, regs, tmp, reload, inline=False):
        def test(o):
            r = list(regs)
            while len(r) > 1:
                if len(r) > 2: o(f"v_max3_u32 v{tmp}, v{r[0]}, v{r[1]}, v{r[2]}"); r = [tmp] + r[3:]
                else: o(f"v_max_u32 v{tmp}, v{r[0]}, v{r[1]}"); r = [tmp]
            o(f"v_cmp_eq_u32 vcc, -1, v{r[0]}")
        name += self.sfx
        test(st)
        if inline:
            st(f"s_cbranch_vccz {name}r")
            o = st
        else:
            st(f"s_cbranch_vccnz {name}s")
            st.label(name + "r")
            o = self.tailcode if self.sc else self.near
            o.label(name + "s")
        o(f"s_mov_b32 s{sCNT}, {SPIN}")
        o.label(name + "l")
        if self.c.diag & 512 and not self.sc: o(f"s_add_u32 s{CODE}, s{CODE}, {1 if name[2] == 'g' else 256 if name == 'L_a0' else 65536}")
        for l in reload: o(l)
        o("s_waitcnt vmcnt(0)")
        test(o)
        o(f"s_cbranch_vccz {name}r\ns_sub_u32 s{sCNT}, s{sCNT}, 1\ns_cbranch_scc0 {name}l")
        if inline: st.label(name + "r")
        else: o(f"s_branch {name}r")

    def epoch_load(self, st):
        st(f"s_load_dword s{sEP}, {sr(WS,2)}, {WS_EPOCH}")

    def epoch_make(self, st):
        st(f"s_and_b32 s{sEP}, s{sEP}, 0xfffffff0\ns_add_u32 s{sEP}, s{sEP}, 0x9e3779b0\ns_add_u32 s{sEP1}, s{sEP}, 1")

    def srds(self, st, lst):
        for b, n in lst: st(f"s_mov_b32 s{b+2}, {n}\ns_mov_b32 s{b+3}, 0x20000")

    def prologue(self, st):
        st(f"s_load_dwordx2 {sr(X,2)}, s[0:1], 0\ns_lshr_b32 s{sT2}, s2, 1\ns_and_b32 s{sT2}, s{sT2}, 8\ns_add_u32 s{sT2}, s{sT2}, 16")
        st(f"s_load_dwordx2 {sr(WKVS,2)}, s[0:1], s{sT2}\ns_load_dwordx2 {sr(WS,2)}, s[0:1], 88")
        st("s_cmpk_ge_u32 s2, 256\ns_cbranch_scc1 L_end")
        if self.c.jitter: st("s_memtime s[98:99]\ns_waitcnt lgkmcnt(0)\ns_mov_b32 s99, s98")
        st(f"s_getpc_b64 {sr(CODE,2)}")
        st.label("L_pc")
        st(f"v_readfirstlane_b32 s{sT0}, v0\ns_lshr_b32 s{sIDX}, s2, 3\ns_lshl_b32 s{sT1}, s{sIDX}, 11")
        st(f"s_mov_b32 s{CODE+2}, L_codeend-L_pc\ns_mov_b32 s{CODE+3}, 0x20000\nv_lshrrev_b32 v1, 5, v0\nv_lshlrev_b32 v1, 7, v1")
        st(f"buffer_load_dword v255, v1, {srd(CODE)}, s{sT1} offen")
        st(f"s_and_b32 s{sG}, s2, 7\ns_lshr_b32 s{sT1}, s{sIDX}, 2\ns_lshl_b32 s{sRB}, s{sG}, 3\ns_add_u32 s{sRB}, s{sRB}, s{sT1}")
        st(f"s_and_b32 s{sCB}, s{sIDX}, 3\ns_bfe_u32 s{sW}, s{sT0}, 0x20006\nv_and_b32 v0, 63, v0")
        if self.c.pads: st(f"s_mov_b32 s{sWALK}, 0")
        st(f"s_cmpk_lt_u32 s{sT0}, 256\ns_cbranch_scc{1 - self.c.hfirst} L_main")

    def main_phase_a(self, st):
        st("; ---- main: phase A")
        self.stamp(st, "m", "start", 4095)
        vD, vTR, vXB, vXC = 2, 3, 4, 5
        XR, ACC = 112, 144
        st.vq.append((None, False))
        if self.c.mprio: st(f"s_setprio {self.c.mprio}")
        st(f"s_load_dwordx2 {sr(WQ,2)}, s[0:1], 8\ns_load_dwordx2 {sr(MOUT,2)}, s[0:1], 72")
        st(f"v_and_b32 v12, 15, v0\nv_lshlrev_b32 v12, 2, v12\nv_add_u32 v12, {PROG}, v12\nv_mov_b32 v13, 0\nds_write_b32 v12, v13")
        self.srds(st, ((WQ, 524288), (WKVS, 16384), (WS, WS_SIZE)))
        st(f"s_mov_b32 s{sONE}, 0x3f803f80")
        st(f"v_lshrrev_b32 v10, 2, v0\nv_lshlrev_b32 v10, 10, v10\nv_and_b32 v11, 3, v0\nv_lshlrev_b32 v17, 7, v0\nv_lshlrev_b32 v11, 4, v11")
        st(f"s_lshl_b32 s{sT0}, s{sCB}, 8\ns_lshl_b32 s{sT1}, s{sW}, 6\ns_add_u32 s{sT0}, s{sT0}, s{sT1}")
        st(f"v_add3_u32 v{vD}, v10, v11, s{sT0}\nv_lshlrev_b32 v{self.vK}, 4, v0")
        if self.c.fake & 8:
            st(f"v_lshrrev_b32 v10, 3, v0\nv_lshlrev_b32 v10, 10, v10\nv_and_b32 v11, 7, v0\nv_lshlrev_b32 v11, 4, v11\ns_and_b32 s{sT1}, s{sW}, 1\ns_mul_i32 s{sT1}, s{sT1}, {8192-64}\ns_add_u32 s{sT0}, s{sT0}, s{sT1}\nv_add3_u32 v{vD}, v10, v11, s{sT0}")
        st(f"s_mul_i32 s{sA}, s{sW}, {NWQ*1024}\ns_add_u32 s{sA}, s{sA}, {WQST}")
        st(f"s_lshr_b32 s{sB}, s{sIDX}, 2\ns_lshl_b32 s{sC}, s{sB}, 16")
        st(f"s_lshl_b32 s{sT0}, s{sB}, 1\ns_and_b32 s{sT1}, s{sCB}, 1\ns_add_u32 s{sT0}, s{sT0}, s{sT1}\ns_lshl_b32 s{sT0}, s{sT0}, 2\ns_add_u32 s{sT0}, s{sT0}, s{sW}\ns_lshl_b32 s{sT0}, s{sT0}, 8")
        st(f"s_lshl_b32 s{sT1}, s{sIDX}, 2\ns_add_u32 s{sT1}, s{sT1}, s{sW}\ns_lshl_b32 s{sT2}, s{sT1}, 7\ns_mul_i32 s{sT1}, s{sT1}, {128 * self.c.tq if self.c.nh else 4096}")
        st(f"s_lshl_b32 s{sT3}, s{sG}, 14\ns_add_u32 s{sT2}, s{sT2}, s{sT3}\ns_add_u32 s{sT2}, s{sT2}, {WS_KVL}\ns_lshl_b32 s{sT3}, s{sG}, 7\ns_add_u32 s{sT3}, s{sT3}, {WS_FLGL}")
        st("s_waitcnt lgkmcnt(0)")
        self.epoch_load(st)
        if self.c.tm < 2: st.bar("B00")
        st("s_mov_b64 exec, 3")
        if self.c.tkv: st.vm(f"buffer_load_dword v254, v17, {srd(WKVS)}, s{sT0} offen")
        st("s_mov_b64 exec, 1")
        st.vm(f"buffer_load_dword v253, off, {srd(WS)}, s{sT2} sc1")
        st.vm(f"buffer_load_dword v252, off, {srd(WS)}, s{sT3} sc1")
        if self.c.tm: st(f"s_lshl_b32 s{sT1}, s2, 2\ns_add_u32 s{sT1}, s{sT1}, s{sW}\ns_lshl_b32 s{sT1}, s{sT1}, 9")
        st(f"s_bfm_b64 exec, {4 if self.c.tm else self.c.tq}, 0")
        st.vm(f"buffer_load_dword v248, v17, {srd(WQ)}, s{sT1} offen")
        st("s_mov_b64 exec, -1")
        if self.c.tm == 2: st.bar("B00")
        st(f"v_lshrrev_b32 v10, 5, v0\nv_lshlrev_b32 v11, 9, v10\nv_bfe_u32 v13, v0, 2, 2\nv_lshl_add_u32 v11, v13, 6, v11")
        st(f"v_bfe_u32 v13, v0, 4, 1\nv_lshl_add_u32 v11, v13, 5, v11\nv_and_b32 v13, 3, v0\nv_lshl_add_u32 v11, v13, 3, v11")
        st(f"v_add_u32 v{vTR}, s{sA}, v11")
        st(f"v_mul_u32_u24 v11, 528, v10\nv_and_b32 v13, 31, v0\nv_lshl_add_u32 v11, v13, 4, v11\nv_add_u32 v{vXB}, {XN}, v11")
        st(f"v_mov_b32 v18, {XC}\nv_lshlrev_b32 v16, 2, v0")
        self.kv_addr(st)
        late = Stream()
        self.main_scalars(st, late)
        self.attn_setup(late)
        for l in late.lines[:self.c.nearly]: st(l)
        late.lines = late.lines[self.c.nearly:]
        st("s_waitcnt lgkmcnt(0)")
        self.epoch_make(st)
        st(f"s_getreg_b32 s{sXCC}, hwreg(HW_REG_XCC_ID, 0, 4)\ns_add_u32 s{sXCC}, s{sXCC}, s{sEP}")
        st.bar("B0")
        self.stamp(st, "m", "B0", 64)
        nh, nb = self.c.nh, self.c.nb
        assert nh in (0, self.c.tq)
        gs = (32 - nh) // 8
        rot = [(a, nh + b) for a in range(8) for b in range(gs)]
        seq = [(None, k) for k in range(nb)] + rot[:gs] + [(None, k) for k in range(nb, nh)] + rot[gs:]
        def dma(j):
            a, k = seq[j]
            st(f"s_add_u32 m0, s{sA}, {(j % NWQ)*1024}")
            if a is None: st(f"s_mov_b32 s{sT1}, {k*16384}")
            elif nh == 0: st(f"s_xor_b32 s{sT1}, s{sC}, {j*16384}")
            else: st(f"s_xor_b32 s{sT1}, s{sB}, {a}\ns_mul_i32 s{sT1}, s{sT1}, {gs*16384}\ns_add_u32 s{sT1}, s{sT1}, {k*16384}")
            st.vm(f"buffer_load_dwordx4 v{vD}, {srd(WQ)}, s{sT1} offen lds", ("wq", j))
        nd = self.c.npre
        for j in range(nd): dma(j)
        self.stamp(st, "m", "pre", 64)
        st(f"s_cmp_gt_u32 s{sW}, {self.c.kv2}\ns_cbranch_scc1 L_nokv")
        self.kv_job(st)
        st.label("L_nokv")
        st.vq += [(None, True)] * 2
        for _ in range(self.c.nmore): dma(nd); nd += 1
        fill = [f"v_mov_b32 v{self.vVAL}, s{sEP1}"] + late.lines
        JX, NWR = self.c.jx, 20
        wreg = lambda j: 168 + 4 * (j % NWR)
        nx = nm = 0
        def rdx():
            nonlocal nx
            a, k = seq[nx]
            if a is not None and k == nh:
                st(f"s_xor_b32 s{sT1}, s{sB}, {a}\ns_mul_i32 s{sT1}, s{sT1}, {gs*1056}\nv_add_u32 v{vXC}, s{sT1}, v{vXB}")
            st.ds(f"ds_read_b128 {vr(XR+4*(nx % 8),4)}, v{vXB if a is None else vXC} offset:{k*1056}", ("x", nx)); nx += 1
        def mm():
            nonlocal nm
            st.wait_ds(("x", nm)); st.wait_ds(("w", nm))
            st(mfma32(ACC, wreg(nm), XR + 4 * (nm % 8), "0" if nm == 0 else None))
            nm += 1
            if nx < 32: rdx()
            for _ in range(2):
                if fill: st(fill.pop(0))
            if nm in (9, 20): self.stamp(st, "m", f"q{nm}", 64)
        for j in range(32):
            if j == JX:
                self.lds_spin(st, "L_xc", 18, 20, 3, sleep=self.c.asleep)
                self.stamp(st, "m", "B1m", 2113)
                for _ in range(4): rdx()
            assert j - nm < NWR
            if j == self.c.lfat: self.kv_flag(st, 0, nd - self.c.npre + 1)
            if j == self.c.gfat: self.kv_flag(st, 1, nd - self.c.npre + 1)
            st.wait_vm(("wq", j))
            if j % 4 == 3 or j == 0: self.stamp(st, "m", f"j{j}", 2048)
            o = (j % NWQ) * 1024
            st.ds(f"ds_read_b64_tr_b16 {vr(wreg(j),2)}, v{vTR} offset:{o}")
            st.ds(f"ds_read_b64_tr_b16 {vr(wreg(j)+2,2)}, v{vTR} offset:{o+256}", ("w", j))
            if nd < 32 and nd - NWQ <= j - 2:
                if nd >= NWQ: st.wait_ds(("w", nd - NWQ))
                dma(nd); nd += 1
                if j >= self.c.gfat and nd < min(NWQ, j + self.c.ndeep): dma(nd); nd += 1
            if j >= JX:
                for _ in range(2):
                    if nm < j - 1: mm()
        while nm < 32: mm()
        assert nd == 32
        assert not fill
        self.stamp(st, "m", "Qdone", 2113)

    S, Q, QF, O, OF, KVB, vIDX, vK, vV0, vV1 = (112, 128), 104, 16, (72, 88), (40, 56), (24, 168), 6, 7, 8, 9

    def attn_setup(self, st):
        st(f"v_mov_b32 v{self.vIDX}, 0xdddddddd")
        st("v_and_b32 v12, 31, v0\nv_lshrrev_b32 v13, 5, v0\nv_lshl_add_u32 v13, v13, 4, v12\nv_lshlrev_b32 v13, 4, v13")
        st("v_and_b32 v14, 27, v0\nv_cmp_eq_u32 vcc, 16, v14\nv_mov_b32 v14, 2064\nv_mov_b32 v15, 2048")
        st("v_cndmask_b32 v14, v14, v15, vcc")
        st("v_cmp_gt_u32 vcc, 16, v12\nv_add_u32 v15, 1024, v13\nv_add_u32 v13, 1536, v13")
        st(f"v_cndmask_b32 v{self.vV0}, v14, v15, vcc\nv_cndmask_b32 v{self.vV1}, v14, v13, vcc")
        st(f"v_add_u32 v{self.vV0}, s{mKH}, v{self.vV0}\nv_add_u32 v{self.vV1}, s{mKH}, v{self.vV1}\nv_add_u32 v{self.vKL}, s{mKH}, v{self.vK}")
        st(f"v_mov_b32 v10, {MISC}")
        for r in range(64): st(f"v_mov_b32 v{self.OF[0]+r}, 0")

    vFZ, vVAL, vOW, vWB, vL4, vPW, vKL, vXW = range(160, 168)

    def main_scalars(self, st, late):
        st(f"s_lshl_b32 s{sT0}, s{sRB}, 4\ns_lshl_b32 s{sT1}, s{sCB}, 2\ns_add_u32 s{sT0}, s{sT0}, s{sT1}\ns_add_u32 s{sT2}, s{sT0}, s{sW}")
        st(f"s_lshl_b32 s{mO}, s{sT2}, 11\ns_xor_b32 s{mO}, s{mO}, 2048\ns_add_u32 s{mO}, s{mO}, {WS_O}")
        st(f"s_lshl_b32 s{mPM}, s{sT2}, 8\ns_add_u32 s{mPM}, s{mPM}, {WS_PM}")
        st(f"s_lshr_b32 s{sT0}, s{sIDX}, 4\ns_lshl_b32 s{sT1}, s{sG}, 1\ns_add_u32 s{sT1}, s{sT1}, s{sT0}\ns_lshl_b32 s{sT1}, s{sT1}, 2\ns_add_u32 s{mRB}, s{sT1}, s{sW}")
        st(f"s_lshl_b32 s{sT1}, s{mRB}, 15")
        for i in range(4): st(f"s_add_u32 s{sP+i}, s{sT1}, {8192*i}")
        self.srds(st, ((MOUT, 2097152),))
        st(f"s_lshl_b32 s{mST}, s{mRB}, 12\ns_add_u32 s{mST}, s{mST}, {WS_ST}")
        st(f"s_and_b32 s{sT0}, s{sIDX}, 15\ns_mul_i32 s{mHH0}, s{mRB}, 114688\ns_mul_i32 s{sT1}, s{sT0}, 7168")
        st(f"s_add_u32 s{mHH0}, s{mHH0}, s{sT1}\ns_add_u32 s{mHH0}, s{mHH0}, {WS_HH}\ns_add_u32 s{mHH1}, s{mHH0}, 4096")
        st(f"s_and_b32 s{mKH}, s{sW}, 1\ns_mul_i32 s{mKH}, s{mKH}, {TILE}")
        st(f"s_lshl_b32 s{sT1}, s{mRB}, 7\ns_lshl_b32 s{sT0}, s{sT0}, 2\ns_add_u32 s{mF4}, s{sT1}, s{sT0}\ns_add_u32 s{mF4}, s{mF4}, {WS_FLG4}")
        st(f"s_mov_b32 s{mCHK}, 0")
        st(f"s_xor_b32 s{sE}, s{sW}, 1\ns_lshl_b32 s{sD}, s{sE}, 11\ns_lshl_b32 s{sE}, s{sE}, 7\ns_add_u32 s{sE}, s{sE}, {WBL}")
        late(f"v_cmp_eq_u32 vcc, 0, v0\nv_mov_b32 v{self.vFZ}, 0x80000000\nv_add_u32 v{self.vOW}, s{sD}, v{self.vK}\nv_cndmask_b32_e64 v{self.vFZ}, v{self.vFZ}, 0, vcc")
        late(f"v_lshrrev_b32 v13, 5, v0\nv_lshlrev_b32 v14, 6, v13\nv_add_u32 v{self.vWB}, s{sE}, v14")
        st(f"s_lshl_b32 s{mF2}, s{sW}, 2\ns_add_u32 s{mF2}, s{mF2}, {PML}")
        late(f"v_lshlrev_b32 v{self.vL4}, 2, v0\nv_add_u32 v{self.vPW}, s{mF2}, v{self.vK}\nv_xor_b32 v{self.vXW}, 2048, v{self.vOW}")

    def colo_reduce(self, st, r):
        st(f"v_and_b32 v{r}, v{r}, v{r+1}\ns_nop 0")
        st(f"v_readfirstlane_b32 s{sCOLO}, v{r}")

    def main_attention(self, st):
        st("; ---- main: phase B")
        S, KVB, O, OF = self.S, self.KVB, self.O, self.OF
        Q4, O4 = (self.QF, self.QF + 4, self.Q, self.Q + 4), OF + O
        buf = lambda t: KVB[t % 2]
        off = lambda t: (t % 8) * 2 * TILE
        rdK = lambda t: f"ds_read_b128 {vr(buf(t),4)}, v{self.vKL} offset:{off(t)}"
        rdV0 = lambda t: f"ds_read_b128 {vr(buf(t)+4,4)}, v{self.vV0} offset:{off(t)}"
        rdV1 = lambda t: f"ds_read_b128 {vr(buf(t)+8,4)}, v{self.vV1} offset:{off(t)}"
        def unit(t, q, f0=(), f1=(), f2=(), prev=0, succ=0):
            cur, nxt = S[q % 2], S[1 - q % 2]
            f0, f1, f2 = list(f0), list(f1), list(f2)
            if prev == 0: prev = (t, q - 1) if q else (t - 1, 3)
            if succ == 0: succ = (t + q // 3, (q + 1) % 4)
            e = [f"v_exp_f32 v{cur+i}, v{cur+i}" for i in range(16)]
            pv1 = [smf(O4[prev[1]], buf(prev[0]) + 8, nxt + 8, self.vIDX)] if prev else []
            mq = [mfma32(nxt, buf(succ[0]), Q4[succ[1]], "0")] if succ else []
            pv0 = smf(O4[q], buf(t) + 4, cur, self.vIDX)
            return e[0:2] + pv1 + f0 + e[2:5] + mq, f1 + e[5:11] + [pv0] + f2, e[11:16]
        parts = []
        for t in range(8):
            for q in range(4):
                f0, f1, f2 = [], [], []
                if q == 0 and t == 6: f0, f1 = [f"s_sub_u32 s{sA}, s{sA}, 1"], ["s_cbranch_scc1 L_exit"]
                if q == 1 and t % 4 == 3: f0 = ["s_barrier                ; BA"]
                if q == 2: f0, f1, f2 = [rdK(t + 1)], [rdV0(t + 1)], [rdV1(t + 1)]
                if q == 3: f0, f2 = ["s_waitcnt lgkmcnt(2)"], ["s_waitcnt lgkmcnt(0)"]
                parts += unit(t, q, f0, f1, f2)
        flat = lambda ps: "\n".join(l for p in ps for l in p)
        st.bar("B2")
        self.stamp(st, "m", "B2", 2131)
        self.stamp(st, "m", "cyc0", 32)
        for l in (rdK(0), "ds_read_b64 v[12:13], v10", rdV0(0), rdV1(0)): st(l)
        st(f"s_mov_b32 s{sA}, 3")
        st.nop(6)
        cv = [f"v_cvt_pk_bf16_f32 v{self.QF + r}, v{144+2*r}, v{144+2*r+1}" for r in range(8)]
        st("\n".join(cv[:5]))
        st("s_waitcnt lgkmcnt(2)")
        st(mfma32(S[0], buf(0), Q4[0], "0"))
        st(f"ds_write_b128 v{self.vXW}, {vr(Q4[0],4)} offset:{ODD}")
        st("\n".join(cv[5:]))
        st(f"ds_write_b128 v{self.vXW}, {vr(Q4[1],4)} offset:{ODD + 1024}")
        self.colo_reduce(st, 12)
        st.nop(4)
        rq = [f"ds_read_b128 {vr(Q4[2+q],4)}, v{self.vOW} offset:{ODD + 1024*q}" for q in range(2)]
        st(flat(unit(0, 0, [], ["s_waitcnt lgkmcnt(0)", "s_barrier                ; BQ"], rq, prev=None)))
        st(flat(unit(0, 1, ["s_waitcnt lgkmcnt(0)"], [], [])[:1]))
        if self.c.lalign: st(f".p2align {self.c.lalign}")
        st.label("L_attn")
        st(flat(parts[4:] + parts[:4]))
        st("s_branch L_attn")
        st.label("L_exit")
        R = 208
        wr = lambda q: [f"ds_write_b128 v{self.vXW}, {vr(OF[q]+4*i,4)} offset:{RING + 8192*(q+1) + 1024*i}" for i in range(2)]
        rd = [f"ds_read_b128 {vr(R+8*q+4*i,4)}, v{self.vOW} offset:{RING + 8192*(q+1) + 1024*i}" for q in range(2) for i in range(2)]
        rd.insert(2, f"ds_read_b64 {vr(R+16,2)}, v{self.vOW} offset:{RING + 24576}")
        wl = [f"v_mov_b32 v{OF[0]+9}, v{OF[1]+8}", f"ds_write_b64 v{self.vXW}, {vr(OF[0]+8,2)} offset:{RING + 24576}"]
        w0 = "s_waitcnt lgkmcnt(0)"
        st(flat(unit(6, 0, [], [rdK(7)], [rdV0(7)])[1:]))
        st(flat(unit(6, 1, ["s_waitcnt lgkmcnt(1)"], [rdV1(7)], [], succ=(7, 0))))
        st(flat(unit(7, 0, [w0], ["s_barrier                ; BA"], [], prev=(6, 1))))
        st(flat(unit(7, 1, succ=(6, 2))))
        st(flat(unit(6, 2, wr(0)[:1], wr(0)[1:], wr(1)[:1] + wl[:1], prev=(7, 1))))
        st(flat(unit(6, 3, wr(1)[1:], wl[1:], [], succ=(7, 2))))
        st(flat(unit(7, 2, [w0], ["s_barrier                ; BP"], rd[:3], prev=(6, 3))))
        st(flat(unit(7, 3, rd[3:], [], [w0], succ=None)))
        st("s_nop 0")
        st(f"v_add_f32 v{O[0]+8}, v{O[0]+8}, v{R+16}")
        st(smf(O[1], buf(7) + 8, S[1] + 8, self.vIDX))
        for r in range(8): st(f"v_add_f32 v{O[0]+r}, v{O[0]+r}, v{R+r}")
        st.nop(4)
        st(f"v_add_f32 v{O[1]+8}, v{O[1]+8}, v{R+17}")
        for r in range(0, 8, 2): st(f"v_pk_add_f32 {vr(O[1]+r,2)}, {vr(O[1]+r,2)}, {vr(R+8+r,2)}")
        st.nbar += 10
        self.stamp(st, "m", "attn_end", 1043)
        self.stamp(st, "m", "cyc1", 32)
        st.label("L_norm")
        st(f"s_cmp_eq_u32 s{sCOLO}, {2 if self.c.force_slow else 1}\ns_cbranch_scc0 L_main_slow")
        self.fallback()

    def main_publish_o(self, st):
        st("; ---- main: publish attention output, gather the other heads")
        O, T, WB, sc = self.O, 192, 176, self.sc
        if self.c.diag & 512: st(f"s_mov_b32 s{CODE}, 0")
        st(f"v_rcp_f32 v{T+8}, v{O[0]+8}\ns_movk_i32 s{sT0}, 0x207")
        for r in range(8): st(f"v_mul_f32 v{O[0]+r}, v{T+8}, v{O[0]+r}")
        st(f"v_rcp_f32 v{T+8}, v{O[1]+8}")
        st(f"v_min_f32 v{T+12}, v{O[0]+8}, v{O[1]+8}\nv_add_f32 v{T+13}, v{O[0]+8}, v{O[1]+8}")
        for r in range(0, 8, 2): st(f"v_pk_mul_f32 {vr(O[1]+r,2)}, {vr(O[1]+r,2)}, {vr(T+8,2)} op_sel_hi:[1,0]")
        for r in range(0, 8, 2): st(f"v_pk_fma_f32 {vr(T+10,2)}, {vr(O[0]+r,2)}, {vr(O[1]+r,2)}, {vr(T+10,2) if r else 0}".replace(", 0", ", 0 op_sel_hi:[1,1,0]"))
        st(f"v_cmp_nle_f32 vcc, {f32(2.0**-64)}, v{T+12}")
        st(f"v_add_f32 v{T+10}, v{T+10}, v{T+11}")
        st(f"v_cmp_class_f32_e64 {sr(sT2,2)}, v{T+10}, s{sT0}")
        st(f"s_or_b64 {sr(sT2,2)}, {sr(sT2,2)}, vcc")
        st(f"v_cmp_nge_f32 vcc, {f32(2.0**64)}, v{T+13}")
        for r in range(4): st(f"v_cvt_pk_bf16_f32 v{T+r}, v{O[0]+2*r}, v{O[0]+2*r+1}")
        st(f"s_or_b64 {sr(sT2,2)}, {sr(sT2,2)}, vcc")
        if self.c.force_fallback: st(f"s_or_b64 {sr(sT2,2)}, {sr(sT2,2)}, 1")
        st(f"s_cbranch_scc1 L_unsafe{self.sfx}")
        st.label("L_safe" + self.sfx)
        self.stamp(st, "m", "safe", 1024)
        tc = self.tailcode
        tc.label("L_unsafe" + self.sfx)
        tc(f"s_waitcnt lgkmcnt(0)\ns_cmp_eq_u32 s{mCHK}, 0\ns_cbranch_scc1 L_fallback")
        tc(f"v_min_u32 v{T}, -2, v{T}\nv_cmp_o_f32 vcc, v{O[1]}, v{O[1]}\nv_mov_b32 v{T+9}, 0x7fc00000\ns_nop 0\nv_cndmask_b32 v{O[1]}, v{T+9}, v{O[1]}, vcc")
        tc(f"s_branch L_safe{self.sfx}")
        sto = lambda q: st.vm(f"buffer_store_dwordx4 {vr(T+4*q,4)}, v{self.vK}, {srd(WS)}, s{mO} offen offset:{1024*q}{sc or ' ' + self.c.of}")
        sto(0)
        for i in range(4): st(f"ds_read_b128 {vr(WB+4*i,4)}, v{self.vWB} offset:{16*i}")
        for r in range(4): st(f"v_cvt_pk_bf16_f32 v{T+4+r}, v{O[1]+2*r}, v{O[1]+2*r+1}")
        sto(1)
        self.stamp(st, "m", "Ost", 1025)
        for a in range(1, 4): st(f"s_xor_b32 s{4+a}, s{mO}, {8192*a}\ns_xor_b32 s{8+a}, s{mPM}, {1024*a}")
        st("s_waitcnt lgkmcnt(0)")
        for r in range(8):
            for hl in range(2):
                d = T + 10 + hl + 4 * (r % 2)
                st(f"v_dot2_f32_bf16 v{d}, v{T+r}, v{WB+8*hl+r}, {'0' if r < 2 else 'v%d' % d}")
        for q in range(2): st(f"ds_write_b128 v{self.vOW}, {vr(T+4*q,4)} offset:{RING + 1024*q}")
        st(f"s_nop 0\nv_pk_add_f32 {vr(T+10,2)}, {vr(T+10,2)}, {vr(T+14,2)}\nv_add_f32 v{T+10}, v{T+10}, v{T+11}\nv_min_u32 v{T+10}, -2, v{T+10}")
        G, GP = (lambda a: 208 + 8 * (a - 1)), 232
        ld = lambda a: [f"buffer_load_dwordx4 {vr(G(a)+4*q,4)}, v{self.vK}, {srd(WS)}, s{4+a} offen offset:{1024*q} sc1 {self.c.gf}" for q in range(2)]
        ldp = [f"buffer_load_dword v{GP+a}, v{self.vL4}, {srd(WS)}, s{8+a} offen sc1" for a in range(1, 4)]
        pmst = lambda: st.vm(f"buffer_store_dword v{T+10}, v{self.vL4}, {srd(WS)}, s{mPM} offen{sc or ' ' + self.c.of}")
        if self.c.pmat == 0: pmst()
        st.nop(self.c.d2)
        for l in ld(1): st.vm(l, ("g", 1))
        st("s_waitcnt lgkmcnt(0)")
        st.bar("BC0")
        self.stamp(st, "m", "BC0", 1024)
        for a in (2, 3):
            if self.c.pmat == a - 1: pmst()
            for l in ld(a): st.vm(l, ("g", a))
        if self.c.pmat == 3: pmst()
        self.d_setup(st)
        def take(a):
            st.wait_vm(("g", a))
            if a == 1: self.stamp(st, "m", "g1ret", 1024)
            self.validate(st, f"L_g{a}", (G(a), G(a) + 4), GP, ld(a), inline=True)
            self.stamp(st, "m", f"Gok{a}", 1025 if a == 1 else 1024)
            for q in range(2): st.ds(f"ds_write_b128 v{self.vOW}, {vr(G(a)+4*q,4)} offset:{RING + 8192*a + 1024*q}", ("gw", a))
        take(1)
        for l in ldp: st.vm(l, "gp")
        if self.c.g2early: take(2)
        st.wait_ds(("gw", 1))
        st.bar("BC1a")
        if not self.c.g2early: take(2)
        take(3)
        st.wait_ds(("gw", 2))
        st.bar("BC1b")
        st.wait_vm("gp")
        self.validate(st, "L_gp", (GP + 1, GP + 2, GP + 3), GP, ldp, inline=True)
        st(f"v_add_f32 v{GP+1}, v{GP+1}, v{GP+2}\nv_add_f32 v{T+10}, v{T+10}, v{GP+3}\nv_add_f32 v{T+10}, v{T+10}, v{GP+1}")
        st(f"ds_write_b32 v{self.vPW}, v{T+10}")
        st.wait_ds()
        st.bar("BC1c")

    def fallback(self):
        st = self.tailcode
        S, Q, O, KVB = self.S, self.Q, self.O, self.KVB
        K, V0, V1, NM = KVB[0], KVB[0] + 4, KVB[0] + 8, self.OF
        st.label("L_fallback")
        st(f"s_mov_b32 s{mCHK}, 1\nv_subrev_u32 v{self.vV0}, s{mKH}, v{self.vV0}\nv_subrev_u32 v{self.vV1}, s{mKH}, v{self.vV1}")
        st("v_mov_b32 v10, 0xff800000\nv_mov_b32 v11, 0xff800000")
        st(f"s_mov_b32 s{sT0}, {WS_KV}")
        st.label("L_fb1")
        st(f"buffer_load_dwordx4 {vr(K,4)}, v{self.vK}, {srd(WS)}, s{sT0} offen sc1\ns_waitcnt vmcnt(0)")
        st(mfma32(S[0], K, Q, "0")); st(mfma32(S[1], K, Q + 4, "0"))
        st.nop(12)
        for q in range(2):
            for r in range(0, 16, 2): st(f"v_max3_f32 v{10+q}, v{S[q]+r}, v{S[q]+r+1}, v{10+q}")
        st(f"s_add_u32 s{sT0}, s{sT0}, 2048\ns_cmp_lt_u32 s{sT0}, {WS_KV + 131072}\ns_cbranch_scc1 L_fb1")
        st("v_mov_b32 v12, v10\nv_mov_b32 v13, v11\ns_nop 1")
        st("v_permlane32_swap_b32 v10, v12\nv_permlane32_swap_b32 v11, v13")
        st("v_max_f32 v10, v10, v12\nv_max_f32 v11, v11, v13")
        for q in range(2):
            for r in range(16):
                st(f"v_sub_f32 v{NM[q]+r}, 0, v{10+q}\nv_mov_b32 v{O[q]+r}, 0")
        st(f"v_and_b32 v12, 27, v0\nv_cmp_eq_u32 vcc, 16, v12\nv_mov_b32 v13, s{sONE}\ns_nop 0\nv_cndmask_b32 v13, 0, v13, vcc")
        for r in range(8): st(f"v_mov_b32 v{V0+r}, v13")
        st(f"s_mov_b32 s{sT0}, {WS_KV}\ns_mov_b32 s{sT2}, 0xffff\ns_mov_b32 s{sT3}, 0xffff")
        st.label("L_fb2")
        st(f"buffer_load_dwordx4 {vr(K,4)}, v{self.vK}, {srd(WS)}, s{sT0} offen sc1")
        st(f"s_mov_b64 exec, {sr(sT2,2)}")
        st(f"buffer_load_dwordx4 {vr(V0,4)}, v{self.vV0}, {srd(WS)}, s{sT0} offen sc1")
        st(f"buffer_load_dwordx4 {vr(V1,4)}, v{self.vV1}, {srd(WS)}, s{sT0} offen sc1")
        st("s_mov_b64 exec, -1\ns_waitcnt vmcnt(0)")
        st(mfma32(S[0], K, Q, vr(NM[0], 16))); st(mfma32(S[1], K, Q + 4, vr(NM[1], 16)))
        st.nop(12)
        for q in range(2):
            for r in range(16): st(f"v_exp_f32 v{S[q]+r}, v{S[q]+r}")
        st.nop(2)
        for q in range(2):
            st(smf(O[q], V0, S[q], self.vIDX)); st(smf(O[q], V1, S[q] + 8, self.vIDX))
        st(f"s_add_u32 s{sT0}, s{sT0}, 2048\ns_cmp_lt_u32 s{sT0}, {WS_KV + 131072}\ns_cbranch_scc1 L_fb2")
        st.nop(12)
        st("s_branch L_norm")

    def stages(self):
        return [tuple(map(int, x.split(":"))) for x in self.c.gates.split(",")]

    def h_voffset(self, st, d, t):
        st(f"v_lshrrev_b32 v{d}, 3, v0\nv_lshlrev_b32 v{d}, 10, v{d}\nv_and_b32 v{t}, 7, v0\nv_lshl_add_u32 v{d}, v{t}, 4, v{d}")

    def h_base(self, st, d):
        st(f"s_lshl_b32 s{d}, s{sRB}, 1\ns_and_b32 s{sT3}, s{sW}, 1\ns_add_u32 s{d}, s{d}, s{sT3}\ns_lshl_b32 s{d}, s{d}, 14")
        st(f"s_lshl_b32 s{sT3}, s{sCB}, 2\ns_add_u32 s{sT3}, s{sT3}, s{sW}\ns_lshr_b32 s{sT3}, s{sT3}, 1\ns_lshl_b32 s{sT3}, s{sT3}, 7\ns_add_u32 s{d}, s{d}, s{sT3}")

    def d_setup(self, st):
        vFZ, vVAL, vO, vF = 10, 11, (2, 3), (24, 25, 26, 27)
        st(f"v_mov_b32 v{vFZ}, v{self.vFZ}\nv_mov_b32 v{vVAL}, v{self.vVAL}")
        st("v_lshrrev_b32 v13, 5, v0\nv_bfe_u32 v15, v0, 2, 3\nv_lshl_add_u32 v15, v13, 4, v15\nv_and_b32 v16, 3, v0\nv_lshlrev_b32 v16, 3, v16")
        st(f"v_mul_u32_u24 v17, 96, v15\nv_add_u32 v17, v17, v16\nv_add_u32 v{vO[0]}, {ODD}, v17\nv_add_u32 v{vO[1]}, {ODD + 49152}, v17")
        st(f"v_lshlrev_b32 v17, 7, v15\nv_bfe_u32 v18, v0, 3, 2\nv_lshlrev_b32 v18, 5, v18\nv_add3_u32 v{vF[0]}, v17, v18, v16")
        for i in range(1, 4): st(f"v_xor_b32 v{vF[i]}, {32*i}, v{vF[0]}")
        st("v_lshrrev_b32 v14, 4, v0\nv_lshlrev_b32 v4, 12, v14\nv_bfe_u32 v15, v0, 3, 1\nv_lshl_add_u32 v4, v15, 10, v4\nv_and_b32 v15, 7, v0\nv_lshl_add_u32 v4, v15, 4, v4")
        st("v_and_b32 v15, 15, v0\nv_lshlrev_b32 v15, 4, v15\nv_lshl_add_u32 v5, v14, 10, v15")
        st("v_lshl_add_u32 v6, v13, 8, v15\nv_and_b32 v14, 1, v14\nv_lshl_add_u32 v6, v14, 9, v6")
        vPG, vLD = 14, 15
        st(f"s_lshl_b32 s{sT0}, s{sW}, 2\ns_add_u32 s{sT0}, s{sT0}, {PROG}\nv_mov_b32 v{vPG}, s{sT0}\nv_mov_b32 v{vLD}, {LAND}")

    def main_phase_d(self, st):
        st("; ---- main: phase D")
        T, sc = self.c.tail, self.sc
        ACC, BR, AR, STT = 144, 112, 40, 28
        NBR, LA, NAR = 8, self.c.la, 18
        vFZ, vVAL, vO, vF, vC1, vSD = 10, 11, (2, 3), (24, 25, 26, 27), (8, 9), (17, 18)
        vPG, vLD, vN, CK = 14, 15, 16, 20
        nu = 16 - T
        base = 14 * nu
        order = [(u, mat, n) for u in range(nu) for mat in range(2) for n in range(7)]
        order += [(u, mat, n) for n in range(7) for mat in range(2) for u in range(nu, 16)]
        def rdB(m, ts=(0, 1)):
            u, mat, n = order[m]
            b = BR + 4 * (m % NBR)
            for t in ts:
                if n < 3: va, o = vO[u // 8], (u % 8) * 6144 + mat * 3072 + t * 768 + 32 * n
                else: va, o = vF[n - 3], slot8(FSLOT[u]) + mat * 4096 + t * 1024
                st.ds(f"ds_read_b64_tr_b16 {vr(b+2*t,2)}, v{va} offset:{o}", ("b", m))
        for m in range(LA): rdB(m)
        st.bar("BC2")
        self.stamp(st, "m", "BC2", 1025)
        st.nop(self.c.d3)
        nxt = [0]
        lda = lambda a: f"buffer_load_dwordx4 {vr(AR+4*(a % NAR),4)}, v4, {srd(MOUT)}, s{sP + (a & 2)} offen offset:{128*(a // 4) + 2048*(a & 1)} sc1"
        def ldA(upto):
            while nxt[0] < min(32, upto):
                a = nxt[0]; nxt[0] += 1
                st.vm(lda(a), ("a", a))
        def chk(a, n):
            assert a + n <= nxt[0]
            st.wait_vm(("a", a + n - 1))
            self.validate(st, f"L_a{a}", [AR + 4 * (i % NAR) for i in range(a, a + n)], 13,
                          [lda(i) for i in range(a, min(nxt[0], max(a + n, (a | 7) + 1)))], inline=(a == 0))
        ldA(2)
        if self.c.diag & 1024:
            st.wait_vm(("a", 1))
            self.stamp(st, "m", "a0ret", 1024)
        chk(0, 2)
        self.stamp(st, "m", "x3ok", 1029)
        def run(op): op() if callable(op) else st(op)
        lds_ = [f"buffer_load_dwordx4 {vr(STT+4*i,4)}, v5, {srd(WS)}, s{mST} offen offset:{512 + 256*i} sc1" for i in range(2)]
        def ldst():
            for l in lds_: st.vm(l, "st")
        a, b = STT, STT + 4
        stats = [lambda: st.wait_vm("st"), lambda: self.validate(st, "L_st", range(STT, STT + 8), STT + 8, lds_)]
        stats += [f"v_add_f32 v{x}, v{x}, v{x+1}" for x in (a, a + 2, b, b + 2)] + [f"v_add_f32 v{x}, v{x}, v{x+2}" for x in (a, b)]
        stats += [f"v_permlane16_swap_b32 v{a}, v{b}", f"v_add_f32 v{a}, v{a}, v{b}", f"v_mov_b32 v{b}, v{a}", f"v_mov_b32 v{a+2}, {f32(1e-5)}",
                  f"v_permlane32_swap_b32 v{a}, v{b}", f"v_add_f32 v{a}, v{a}, v{b}", f"v_fmac_f32 v{a+2}, {f32(1.0/512)}, v{a}", f"v_rsq_f32 v{a+3}, v{a+2}"]
        stats += [f"v_mul_f32 v{x}, v{a+2}, v{a+3}" for x in vSD] + [f"v_mul_f32 v{x}, {f32(-1.4426950408889634)}, v{a+3}" for x in vC1]
        stats += [f"v_permlane16_swap_b32 v{vSD[0]}, v{vSD[1]}", f"v_permlane16_swap_b32 v{vC1[0]}, v{vC1[1]}"]
        pub = [1]
        def publish(cnt):
            ops = [f"v_add_u32 v{vVAL}, {cnt - pub[0]}, v{vVAL}"] if cnt > pub[0] else []
            pub[0] = cnt
            ops.append(lambda: st.wait_vm(("hh", cnt - 1)))
            ops.append(lambda: st.vm(f"buffer_store_dword v{vVAL}, v{vFZ}, {srd(WS)}, s{mF4} offen{sc}"))
            ops.append(lambda: self.stamp(st, "m", f"pub{cnt}", 8))
            return ops
        def epilogue(n):
            a = ACC + 16 * n
            ops = [f"v_mul_f32 v{a+j}, v{vC1[j//4]}, v{a+j}" for j in range(8)]
            ops += [f"v_exp_f32 v{a+j}, v{a+j}" for j in range(8)]
            ops += [f"v_fma_f32 v{a+j}, v{a+j}, v{vSD[j//4]}, v{vSD[j//4]}" for j in range(8)]
            ops += [f"v_rcp_f32 v{a+j}, v{a+j}" for j in range(8)]
            ops += [f"v_mul_f32 v{a+j}, v{a+j}, v{a+8+j}" for j in range(8)]
            ops += [f"v_cvt_pk_bf16_f32 v{a+8+j}, v{a+2*j}, v{a+2*j+1}" for j in (0, 2, 1, 3)]
            ops += [f"v_permlane32_swap_b32 v{a+8}, v{a+10}", f"s_nop 0\nv_permlane32_swap_b32 v{a+9}, v{a+11}"]
            return ops
        def store(n):
            a = ACC + 16 * n
            st.vm(f"buffer_store_dwordx4 {vr(a+8,4)}, v6, {srd(WS)}, s{mHH0 if n < 4 else mHH1} offen offset:{1024*(n % 4)} sc1", ("hh", n))
        cost = lambda op: 8 if op.startswith(("v_exp", "v_rcp")) else 4
        fill, first = {}, {}
        put = lambda d, g, op: d.setdefault(g, []).append(op)
        put(first, 0, lambda: ldA(4)); put(first, 6, lambda: ldA(6)); put(first, 16, lambda: ldA(8))
        for u in range(1, nu):
            for g, d in ((2, 2), (16, 4)): put(first, 28 * u + g, lambda x=min(2 * u + NAR, 4 + 4 * u + d): ldA(x))
        put(first, 28 * (nu - 3) + 8, ldst)
        for i, op in enumerate(stats): put(fill, 28 * (nu - 1) + 1 + i, op)
        stages = [x[0] for x in self.stages()]
        for n in range(7):
            ops = epilogue(n)
            g0, ng = 2 * (base + 2 * T * n + T) + 3, 4 * T - 2
            tot, acc = sum(map(cost, ops)), 0
            for op in ops:
                put(fill, g0 + acc * ng // tot, op); acc += cost(op)
            put(first, g0 + ng, lambda n=n: store(n))
            if n + 1 in stages:
                for op in publish(n + 1): put(first, g0 + ng + 2 * self.c.lag, op)
        assert T == 7
        posts = {3: 1, base + 6 * T - 1: 20, 223: 30}
        posts.update({14 * u + 13: u + 2 for u in range(8)})
        checks = {14 * 3 + 3 - LA: 5, 14 * 5 + 3 - LA: 7, 14 * 7 + 3 - LA: 9, base + 6 * T - LA: 16}
        vplan = {11: (2, 2), 14 + 11: (4, 4), 14 * 3 + 11: (8, 4), 14 * 5 + 6: (12, 4), 14 * 6 + 12: (16, 4), 14 * 7 + 5: (20, 4), 14 * 7 + 12: (24, 4), 14 * 8 + 12: (28, 4)}
        near = self.near if not sc else self.tailcode
        for m in range(224):
            u, mat, n = order[m]
            wp = self.c.wper
            if m % wp == 0: st.wait_ds(("b", min(m + wp - 1, 223)))
            for mh in range(2):
                g = 2 * m + mh
                m2, h2 = m, mh ^ (m & 1 if self.c.zig & (1 if m >= base else 2) else 0)
                if self.c.zig & 4 and m >= base and (order[m ^ 1][1:] == order[m][1:]): m2, h2 = (m & ~1) + (mh ^ (m & 1)), m & 1
                u2 = order[m2][0]
                st(mfma16(ACC + 16 * n + 8 * mat + 4 * h2, BR + 4 * (m2 % NBR), AR + 4 * ((2 * u2 + h2) % NAR), "0" if u == 0 else None))
                if g == 0: self.stamp(st, "m", "mfma0", 4)
                for op in first.pop(g, []): run(op)
                if mh == 0 and m in checks:
                    lab = f"L_ld{checks[m]}{self.sfx}"
                    st(f"s_cbranch_vccnz {lab}s")
                    st.label(lab + "r")
                    near.label(lab + "s")
                    self.lds_spin(near, lab, vLD, CK, checks[m])
                    near(f"s_branch {lab}r")
                if m + LA < 224: rdB(m + LA, (mh,))
                if m in posts:
                    if mh == 0: st(f"v_mov_b32 v{vN}, {posts[m]}")
                    else: st.ds(f"ds_write_b32 v{vPG}, v{vN}")
                if mh == 0 and m + 5 in checks: st.ds(f"ds_read_b128 {vr(CK,4)}, v{vLD}", "ck")
                if mh == 1 and m + 1 in checks:
                    st.wait_ds("ck")
                    self.lds_min(st, CK, checks[m + 1])
                assert not (m + 1 in checks and m in vplan)
                if mh == 1 and m in vplan: chk(*vplan[m])
                for op in fill.pop(g, []): run(op)
            if m < base and m % 28 == 27: self.stamp(st, "m", f"u{m // 14}", 4)
            if m == base: self.stamp(st, "m", "tail0", 4)
            if m == base + 2 * T: self.stamp(st, "m", "tail1", 4)
            if m >= base and (m - base) % (2 * T) == 0: self.stamp(st, "m", f"t{(m - base) // (2 * T)}", 256)
        assert nxt[0] == 32
        self.stamp(st, "m", "Dmfma_end", 269)
        for g in sorted(set(first) | set(fill)):
            for op in first.get(g, []) + fill.get(g, []): run(op)
        self.stamp(st, "m", "end", 13)
        if self.c.diag & 512 and not sc:
            self.nstamp["m"].append("retry")
            st(f"s_waitcnt lgkmcnt(0)\ns_mov_b32 s{sSTAMP + 2*(len(self.nstamp['m'])-1)}, s{CODE}")
        self.dump_stamps(st, "m")
        st("s_endpgm")

    def helper_phase_a(self, st):
        st("; ---- helper: phase A")
        self.stamp(st, "h", "start", 4095)
        XP, XF, AC = 48, 80, 112
        st("s_setprio 2")
        if self.c.padto: st("s_memrealtime s[100:101]")
        st.vq.append((None, False))
        st(f"v_lshrrev_b32 v2, 4, v0\nv_and_b32 v3, 15, v0\nv_lshlrev_b32 v4, 10, v2\nv_lshl_add_u32 v4, v3, 4, v4")
        st(f"s_and_b32 s{sT2}, s{sCB}, 1\ns_lshl_b32 s{sC}, s{sT2}, 2\ns_add_u32 s{sC}, s{sC}, s{sW}\ns_lshl_b32 s{sT0}, s{sRB}, 3\ns_add_u32 s{sA}, s{sT0}, s{sC}")
        st(f"s_lshl_b32 s{sA}, s{sA}, 12\ns_xor_b32 s{sB}, s{sA}, 0x4000")
        self.srds(st, ((X, 2097152), (WKVS, 16384)))
        st(f"v_lshlrev_b32 v1, 4, v0\ns_lshl_b32 s{sD}, s{sW}, 12\ns_add_u32 m0, s{sD}, {WKV}\nv_mov_b32 v124, v4")
        st("s_waitcnt lgkmcnt(0)")
        ldx = lambda i: st.vm(f"buffer_load_dwordx4 {vr(XP+4*i,4)}, v124, {srd(X)}, s{sA if i < 4 else sB} offen offset:{256*(i % 4)}", ("x", i))
        for i in range(4): ldx(i)
        st.bar("B00")
        ldw = lambda: [st.vm(f"buffer_load_dwordx4 v1, {srd(WKVS)}, s{sD} offen offset:{1024*i} lds", "wkv") for i in range(4)]
        if self.c.sec & 2: ldw()
        st(f"s_and_b32 s{sT0}, s{sW}, 1\ns_lshl_b32 s{sT0}, s{sT0}, 3\ns_add_u32 s{sT0}, s{sT0}, 48\ns_load_dwordx2 {sr(WG,2)}, s[0:1], s{sT0}")
        for b, off in ((WO, 32), (WD, 64), (OUT, 72)):
            st(f"s_load_dwordx2 {sr(b,2)}, s[0:1], {off}")
        self.srds(st, ((WO, 524288), (WG, 1835008), (WD, 1835008), (OUT, 2097152), (WS, WS_SIZE)))
        st(f"s_mov_b32 s{sONE}, 0x3f803f80\ns_mov_b32 s{sLO}, 0x3f80\ns_mov_b32 s{sHI}, 0x3f800000")
        st(f"s_getreg_b32 s{sXCC}, hwreg(HW_REG_XCC_ID, 0, 4)")
        st(f"v_bfe_u32 v5, v0, 1, 3\nv_mul_u32_u24 v5, {TILE}, v5\nv_and_b32 v6, 1, v0\nv_lshl_add_u32 v7, v6, 4, v5")
        st(f"v_cmp_eq_u32 vcc, 0, v6\nv_mov_b32 v8, s{sONE}\ns_nop 0\nv_cndmask_b32 v8, 0, v8, vcc\nv_mov_b32 v9, v8\nv_mov_b32 v10, v8\nv_mov_b32 v11, v8")
        st.ds("ds_write_b128 v7, v[8:11] offset:2048")
        st(f"v_mul_u32_u24 v5, 528, v3\nv_lshl_add_u32 v5, v2, 4, v5\ns_lshl_b32 s{sT0}, s{sC}, 6\ns_xor_b32 s{sT1}, s{sT0}, 256")
        st(f"s_add_u32 s{sT2}, s{sT0}, {XN}\ns_add_u32 s{sT3}, s{sT1}, {XN}\nv_add_u32 v120, s{sT2}, v5\nv_add_u32 v121, s{sT3}, v5")
        st(f"s_lshr_b32 s{sT0}, s{sT0}, 2\ns_lshr_b32 s{sT1}, s{sT1}, 2\ns_add_u32 s{sT0}, s{sT0}, {MISC + 16}\ns_add_u32 s{sT1}, s{sT1}, {MISC + 16}")
        st(f"v_lshl_add_u32 v122, v2, 2, s{sT0}\nv_lshl_add_u32 v123, v2, 2, s{sT1}")
        st.wait_ds()
        self.epoch_load(st)
        self.helper_setup(st)
        st(f"s_lshl_b32 s{sT0}, s{sW}, 2\ns_add_u32 s{sT0}, s{sT0}, {XC}\nv_mov_b32 v230, s{sT0}")
        st(f"v_and_b32 v41, 31, v0\nv_lshlrev_b32 v41, 2, v41\nv_add_u32 v41, {MISC + 16}, v41")
        st(f"v_lshrrev_b32 v14, 5, v0\nv_lshl_add_u32 v14, v14, 9, v1\ns_lshl_b32 s{sT0}, s2, 11\ns_cmp_eq_u32 s{sW}, 1\ns_cselect_b32 s{sT0}, s{sT0}, 0x100000")
        self.stamp(st, "h", "setup", 64)
        def second():
            if not self.c.sec & 2: ldw()
            if not self.c.x1late:
                for i in range(4, 8): ldx(i)
            st.bar("B0")
            if self.c.wo_early == 2: ldo()
        ldo = lambda: [st.vm(f"buffer_load_dwordx4 {vr(232+4*i,4)}, v14, {srd(WO)}, s{sT0} offen offset:{512*i}") for i in range(2)]
        if self.c.wo_early == 1: ldo()
        if not self.c.sec & 1: second()
        def postw():
            st("v_mov_b32 v231, 1")
            st.wait_vm("wkv")
            st.ds("ds_write_b32 v230, v231")
        def red16(a):
            for m in ("quad_perm:[1,0,3,2]", "quad_perm:[2,3,0,1]", "row_half_mirror", "row_mirror"):
                st(f"s_nop 1\nv_add_f32_dpp v{a}, v{a}, v{a} {m} row_mask:0xf bank_mask:0xf")
        for ps in range(2):
            P = XP + 16 * ps
            for i in range(4):
                if ps == 0: st.wait_vm(("x", i))
                for r in range(4):
                    st(f"v_dot2_f32_bf16 v{AC+r%2}, v{P+4*i+r}, s{sONE}, {'0' if i == 0 and r < 2 else 'v%d' % (AC+r%2)}")
            if ps == 0: self.stamp(st, "h", "xland", 193)
            if ps == 0 and self.c.sec & 1: second()
            st(f"s_nop 2\nv_add_f32 v{AC}, v{AC}, v{AC+1}")
            red16(AC)
            st(f"v_mul_f32 v{AC}, {f32(-1.0/512)}, v{AC}")
            st.ds(f"ds_write_b32 v{122+ps}, v{AC}")
            self.stamp(st, "h", f"mean{ps}", 128)
            if ps == 0 and self.c.wcat == 0: postw()
            for r in range(16):
                st(f"v_dot2_f32_bf16 v{XF+2*r}, v{P+r}, s{sLO}, v{AC}\nv_dot2_f32_bf16 v{XF+2*r+1}, v{P+r}, s{sHI}, v{AC}")
            for r in range(16):
                d = AC + 2 + 2 * (r % 2)
                if r < 2: st(f"v_pk_mul_f32 {vr(d,2)}, {vr(XF+2*r,2)}, {vr(XF+2*r,2)}")
                else: st(f"v_pk_fma_f32 {vr(d,2)}, {vr(XF+2*r,2)}, {vr(XF+2*r,2)}, {vr(d,2)}")
            st(f"v_pk_add_f32 {vr(AC+2,2)}, {vr(AC+2,2)}, {vr(AC+4,2)}\nv_add_f32 v{AC+2}, v{AC+2}, v{AC+3}")
            red16(AC + 2)
            self.stamp(st, "h", f"var{ps}", 128)
            if ps == 0 and self.c.wcat == 1: postw()
            st(f"v_mov_b32 v{AC+3}, {f32(1e-5)}\nv_fmac_f32 v{AC+3}, {f32(1.0/512)}, v{AC+2}\nv_rsq_f32 v{AC+2}, v{AC+3}\nv_mov_b32 v231, {ps+2}")
            for i in range(4):
                for r in range(4):
                    st(f"v_pk_mul_f32 {vr(XF+8*i+2*r,2)}, {vr(XF+8*i+2*r,2)}, {vr(AC+2,2)} op_sel_hi:[1,0]")
                for r in range(4):
                    st(f"v_cvt_pk_bf16_f32 v{P+4*i+r}, v{XF+8*i+2*r}, v{XF+8*i+2*r+1}")
                st.ds(f"ds_write_b128 v{120+ps}, {vr(P+4*i,4)} offset:{8448*i}")
            self.stamp(st, "h", f"wr{ps}", 128)
            st.wait_vm("wkv")
            st.wait_ds()
            st("ds_write_b32 v230, v231")
            self.stamp(st, "h", f"ln{ps}", 2240)
            if ps == 0:
                self.epoch_make(st)
                st(f"s_add_u32 s{sXCC}, s{sXCC}, s{sEP}\nv_mov_b32 v31, s{sEP}")
                if self.c.x1late:
                    for i in range(4, 8): ldx(i)
                st.wait_vm(("x", 7))
                self.stamp(st, "h", "p2start", 128)
        st(f"s_cmp_lg_u32 s{sW}, 1\ns_cbranch_scc1 L_nowb1")
        a = 240
        if not self.c.wo_early:
            for i in range(2): st(f"buffer_load_dwordx4 {vr(232+4*i,4)}, v14, {srd(WO)}, s{sT0} offen offset:{512*i}")
        st("s_waitcnt vmcnt(0)")
        for r in range(8): st(f"v_dot2_f32_bf16 v{a}, v{232+r}, s{sONE}, {'0' if r == 0 else 'v%d' % a}")
        st("s_nop 0")
        for m in ("quad_perm:[1,0,3,2]", "quad_perm:[2,3,0,1]", "row_half_mirror", "row_mirror"):
            st(f"s_nop 1\nv_add_f32_dpp v{a}, v{a}, v{a} {m} row_mask:0xf bank_mask:0xf")
        st(f"v_mov_b32 v{a+1}, v{a}\ns_nop 1\nv_permlane16_swap_b32 v{a}, v{a+1}\nv_add_f32 v{a}, v{a}, v{a+1}")
        st(f"v_mul_f32 v{a}, {f32(1.0/512)}, v{a}\nv_mov_b32 v{a+1}, v{a}\ns_nop 1\nv_permlane32_swap_b32 v{a}, v{a+1}")
        st(f"v_cvt_pk_bf16_f32 v{a+4}, v{a}, v{a+1}\nv_lshlrev_b32 v{a+2}, 16, v{a+4}\nv_and_b32 v{a+3}, 0xffff0000, v{a+4}")
        st(f"v_sub_f32 v{a}, v{a}, v{a+2}\nv_sub_f32 v{a+1}, v{a+1}, v{a+3}\nv_cvt_pk_bf16_f32 v{a+5}, v{a}, v{a+1}")
        st(f"v_mov_b32 v{a+6}, s{sEP1}\ns_lshl_b32 s{sT0}, s2, 7\ns_add_u32 s{sF}, s{sT0}, {WS_WB}")
        st.label("L_nowb1")

    def kv_addr(self, st):
        st(f"v_lshrrev_b32 v20, 4, v0\nv_and_b32 v13, 15, v0\nv_lshlrev_b32 v14, 8, v20\nv_lshl_add_u32 v249, v13, 3, v14")
        st(f"s_and_b32 s{sT0}, s{sCB}, 1\ns_lshl_b32 s{sT1}, s{sT0}, 8\ns_add_u32 s{sT2}, s{sT1}, {XN}")
        st(f"v_mul_u32_u24 v15, 528, v20\nv_lshl_add_u32 v15, v13, 4, v15\nv_add_u32 v250, s{sT2}, v15")
        st(f"s_lshl_b32 s{sT2}, s{sT0}, 9\ns_add_u32 s{sT2}, s{sT2}, 1024\ns_cmp_ge_u32 s{sCB}, 2")
        st(f"s_cselect_b32 s{sT1}, s{sT2}, s{sT1}\ns_cselect_b32 s{sT2}, 31, 9\ns_cselect_b32 s{sT3}, 8, 31")
        st(f"v_and_b32 v14, 1, v20\nv_lshlrev_b32 v14, s{sT2}, v14\nv_lshrrev_b32 v15, 1, v20\nv_lshlrev_b32 v15, s{sT3}, v15")
        st(f"v_lshl_add_u32 v14, v13, 4, v14\nv_add3_u32 v251, v14, v15, s{sT1}")
        st(f"s_lshl_b32 s{mKG}, s{sRB}, 11\ns_add_u32 s{mKL}, s{mKG}, {WS_KVL}\ns_add_u32 s{mKG}, s{mKG}, {WS_KV}")
        st(f"s_lshl_b32 s{sT0}, s{sG}, 5\ns_add_u32 s{sT0}, s{sT0}, s{sIDX}\ns_lshl_b32 s{mFL}, s{sT0}, 2\ns_add_u32 s{mFL}, s{mFL}, {WS_FLGL}")
        st(f"s_lshl_b32 s{mFG}, s{sT0}, 7\ns_add_u32 s{mFG}, s{mFG}, {WS_FLG1}")

    def kv_job(self, st):
        WR, AC = 168, 144
        XR = [112 + 4 * j for j in range(8)] + [232 + 4 * j for j in range(4)] + [24 + 4 * j for j in range(4)]
        if self.c.kprio == 0: st("s_setprio 3")
        self.lds_spin(st, "L_wc0", 18, 20, 1, sleep=self.c.asleep)
        for j in range(16):
            for t in range(2): st.ds(f"ds_read_b64_tr_b16 {vr(WR+4*j+2*t,2)}, v249 offset:{WKV + 1024*j + 128*t}")
        self.lds_spin(st, "L_xc0", 18, 20, 2)
        if self.c.kprio == 1: st("s_setprio 3")
        self.stamp(st, "m", "m0xc", 64)
        for j in range(8): st.ds(f"ds_read_b128 {vr(XR[j],4)}, v250 offset:{2112*j}", ("rd", j))
        st(f"s_cmp_ge_u32 s{sCB}, 2\ns_cbranch_scc1 L_vjob")
        lq = list(st.lq)
        for job in ("k", "v"):
            if job == "v": st.label("L_vjob")
            st.lq = list(lq)
            for m in range(16):
                if m < 4:
                    for j in (8 + 2 * m, 9 + 2 * m): st.ds(f"ds_read_b128 {vr(XR[j],4)}, v250 offset:{2112*j}", ("rd", j))
                st.wait_ds(("rd", m))
                a, b = (WR + 4 * m, XR[m]) if job == "k" else (XR[m], WR + 4 * m)
                st(mfma16(AC, a, b, "0" if m == 0 else None))
            st.nop(8)
            if job == "k":
                for r in range(4): st(f"v_mul_f32 v{AC+r}, {f32(0.25 * 1.4426950408889634)}, v{AC+r}")
            for r in (4, 6): st(f"v_cvt_pk_bf16_f32 v{AC+r}, v{AC}, v{AC+1}\nv_cvt_pk_bf16_f32 v{AC+r+1}, v{AC+2}, v{AC+3}")
            sw = "v_permlane32_swap_b32" if job == "k" else "v_permlane16_swap_b32"
            st(f"s_nop 0\n{sw} v{AC+4}, v{AC+6}\n{sw} v{AC+5}, v{AC+7}")
            if job == "k": st("s_branch L_kvst")
        st.label("L_kvst")
        self.stamp(st, "m", "m0kvmf", 64)
        if self.c.kv2: st(f"s_cmp_lg_u32 s{sW}, 0\ns_cbranch_scc1 L_kvx")
        st(f"buffer_store_dwordx4 {vr(AC+4,4)}, v251, {srd(WS)}, s{mKL} offen")
        st(f"buffer_store_dwordx4 {vr(AC+4,4)}, v251, {srd(WS)}, s{mKG} offen {'' if self.c.fake & 16 else 'sc1'}")
        st.label("L_kvx")
        st(f"s_setprio {self.c.mprio}")

    def kv_flag(self, st, glob, younger):
        st(f"s_cmp_lg_u32 s{sW}, 0\ns_cbranch_scc1 L_nofl{glob}")
        st(f"v_mov_b32 v19, s{sEP1 if glob else sXCC}\ns_bfm_b64 exec, {32 if glob else 1}, 0\ns_waitcnt vmcnt({younger})")
        self.stamp(st, "m", "m0GF" if glob else "m0LF", 64)
        st.vm(f"buffer_store_dword v19, v16, {srd(WS)}, s{mFG if glob else mFL} offen{' sc1' if glob else ''}", cond=True)
        st("s_mov_b64 exec, -1")
        st.label(f"L_nofl{glob}")

    WOR, WDR, vWS = 128, 48, (24, 25, 13, 27)

    def odd_voffsets(self, st, base, t):
        st(f"s_and_b32 s{sT0}, s{sIDX}, 15\ns_mul_i32 s{sT0}, s{sT0}, 224\ns_lshl_b32 s{sT2}, s{sCB}, 1")
        for p in range(3):
            d = base + p
            st(f"v_add_u32 v{t}, {64*p}, v0\nv_mul_u32_u24 v{t+1}, 10923, v{t}\nv_lshrrev_b32 v{t+1}, 16, v{t+1}\nv_mul_u32_u24 v{d}, 6, v{t+1}")
            st(f"v_sub_u32 v{t}, v{t}, v{d}\nv_cmp_gt_u32 vcc, s{sT2}, v{t}\nv_mul_u32_u24 v{t+1}, 3584, v{t+1}\nv_add_u32 v{d}, 8, v{t}")
            st(f"v_cndmask_b32 v{t}, v{d}, v{t}, vcc\nv_lshlrev_b32 v{t}, 4, v{t}\nv_add3_u32 v{d}, v{t}, v{t+1}, s{sT0}")

    def full_voffset(self, st, d, t):
        st(f"s_and_b32 s{sT0}, s{sIDX}, 15\ns_mul_i32 s{sT0}, s{sT0}, 224\ns_lshl_b32 s{sT1}, s{sCB}, 5\ns_add_u32 s{sT0}, s{sT0}, s{sT1}")
        st(f"v_lshrrev_b32 v{t+1}, 3, v0\nv_and_b32 v{t}, 6, v{t+1}\nv_and_b32 v{d}, 7, v0\nv_xor_b32 v{t}, v{t}, v{d}")
        st(f"v_lshlrev_b32 v{t}, 4, v{t}\nv_mul_u32_u24 v{t+1}, 3584, v{t+1}\nv_add3_u32 v{d}, v{t}, v{t+1}, s{sT0}")

    pace = None
    c_wpos = (1, 4, 6, 9, 11, 14, 16, 19, 21, 24, 26, 29)

    def paced(self, st):
        if self.pace is not None: st(f"s_waitcnt vmcnt({self.pace})")

    def odd_pair(self, st, u0, mask, vbase):
        st(f"s_and_b32 s{sT2}, s{sP+4}, {mask | 1}\ns_xor_b32 s{sT2}, s{sT2}, {u0}\ns_mul_i32 s{sT1}, s{sT2}, 114688")
        st(f"s_lshl_b32 s{sT2}, s{sT2}, 1\ns_and_b32 s{sT3}, s{sW}, 1\ns_add_u32 s{sT2}, s{sT2}, s{sT3}\ns_mul_i32 s{sT2}, s{sT2}, 3072")
        for p in range(3):
            st(f"s_add_u32 m0, s{sT2}, {ODD + 1024*p}\ns_nop 0")
            st.vm(f"buffer_load_dwordx4 v{vbase+p}, {srd(WG)}, s{sT1} offen lds", ("odd", u0))

    def full_unit(self, st, u, v, qs=(0, 1)):
        for q in qs:
            st(f"s_add_u32 m0, s{sP+6}, {slot8(FSLOT[u]) + 1024*q}\ns_add_u32 s{sT1}, s{sP+5}, {(32*u + 8*q) * 3584}")
            self.paced(st)
            st.vm(f"buffer_load_dwordx4 v{v}, {srd(WG)}, s{sT1} offen lds", ("full", u))

    def wd_dma(self, st, J, addr, vD, sbase):
        for q in range(2):
            j = (J & ~1) + q
            ft = 7 * (j % 4) + tile_of(j % 4, j // 4)
            st(f"s_add_u32 m0, s{sbase}, {addr + 1024*q}\ns_add_u32 s{sT1}, s{sP+7}, {ft * 16384 + (J & 1) * 8192}")
            self.paced(st)
            st.vm(f"buffer_load_dwordx4 v{vD}, {srd(WD)}, s{sT1} offen lds", ("wd", J))

    def wd_read(self, st, J, grp, va, off, ns=range(4)):
        for n in ns:
            st.ds(f"ds_read_b64_tr_b16 {vr(grp[n // 2] + 4*(n % 2) + 2*(J & 1), 2)}, v{va[n]} offset:{off}", ("wdr", J))

    def wd_static(self, J): return (self.WDR + 16 * (J // 2), self.WDR + 16 * (J // 2) + 8)

    def wd_addr(self, st, vD, va, t0, sb):
        st(f"v_lshrrev_b32 v{t0}, 3, v0\nv_and_b32 v{t0+1}, 6, v{t0}\nv_and_b32 v{vD}, 7, v0")
        st(f"v_xor_b32 v{vD}, v{vD}, v{t0+1}\nv_lshlrev_b32 v{vD}, 4, v{vD}\nv_lshl_add_u32 v{vD}, v{t0}, 10, v{vD}")
        st(f"v_lshrrev_b32 v{t0}, 2, v0\nv_lshlrev_b32 v{t0}, 7, v{t0}\nv_bfe_u32 v{t0+1}, v0, 3, 2\ns_and_b32 s{sT0}, s{sW}, 1\ns_lshl_b32 s{sT0}, s{sT0}, 1")
        st(f"v_xor_b32 v{t0+1}, s{sT0}, v{t0+1}\nv_lshl_add_u32 v{t0}, v{t0+1}, 5, v{t0}\nv_and_b32 v{t0+1}, 3, v0\nv_lshlrev_b32 v{t0+1}, 3, v{t0+1}")
        st(f"v_add3_u32 v{va[0]}, v{t0}, v{t0+1}, s{sb}")
        for n in range(1, 4): st(f"v_xor_b32 v{va[n]}, {32*n}, v{va[0]}")

    def helper_setup(self, st):
        vL, vP, vR = 1, 2, 3
        st(f"v_and_b32 v{vP}, 7, v0\ns_lshl_b32 s{sT0}, s{sW}, 3\nv_add_u32 v{vP}, s{sT0}, v{vP}\nv_lshlrev_b32 v{vP}, 7, v{vP}")
        st(f"v_lshrrev_b32 v{vR}, 3, v0\nv_lshl_add_u32 v{vP}, v{vR}, 12, v{vP}")
        vWO, vTR, vWD, GU = 4, 5, 6, 16
        st(f"v_lshrrev_b32 v14, 2, v0\nv_lshlrev_b32 v14, 10, v14\nv_and_b32 v15, 3, v0\nv_lshlrev_b32 v15, 4, v15")
        st(f"s_lshl_b32 s{sT0}, s{sCB}, 8\ns_lshl_b32 s{sT1}, s{sW}, 6\ns_add_u32 s{sT0}, s{sT0}, s{sT1}")
        st(f"v_add3_u32 v{vWO}, v14, v15, s{sT0}")
        st(f"s_mul_i32 s{sE}, s{sW}, {STGW}\ns_add_u32 s{sE}, s{sE}, {STG}")
        st(f"v_lshrrev_b32 v14, 5, v0\nv_lshlrev_b32 v14, 8, v14\nv_bfe_u32 v15, v0, 2, 2\nv_lshl_add_u32 v14, v15, 6, v14")
        st(f"v_bfe_u32 v15, v0, 4, 1\nv_lshl_add_u32 v14, v15, 5, v14\nv_and_b32 v15, 3, v0\nv_lshl_add_u32 v14, v15, 3, v14")
        st(f"v_add_u32 v{vTR}, s{sE}, v14")
        self.wd_addr(st, vWD, self.vWS, 14, sE)
        self.odd_voffsets(st, GU, 14)
        self.full_voffset(st, 43, 14)
        st(f"s_lshr_b32 s{sT0}, s{sW}, 1\ns_mul_i32 s{sP+5}, s{sT0}, {16*3584}\ns_lshr_b32 s{sT1}, s{sIDX}, 4\ns_lshl_b32 s{sT1}, s{sT1}, 1\ns_or_b32 s{sT1}, s{sT1}, s{sT0}")
        st(f"s_and_b32 s{sT2}, s{sIDX}, 1\ns_lshl_b32 s{sT2}, s{sT2}, 2\ns_or_b32 s{sP+4}, s{sT1}, s{sT2}")
        st(f"s_lshl_b32 s{sT0}, s{sT0}, 11\ns_and_b32 s{sT1}, s{sW}, 1\ns_lshl_b32 s{sT1}, s{sT1}, 12\ns_add_u32 s{sP+6}, s{sT0}, s{sT1}")
        st(f"v_lshrrev_b32 v14, 4, v0\nv_mul_u32_u24 v14, 3584, v14\nv_bfe_u32 v15, v0, 2, 2\nv_mul_u32_u24 v15, 896, v15\nv_and_b32 v{GU+4}, 3, v0")
        st(f"v_lshlrev_b32 v{GU+4}, 8, v{GU+4}\nv_add3_u32 v{GU+4}, v{GU+4}, v14, v15")
        st(f"s_mul_i32 s{sT0}, s{sW}, {28*16384}\ns_and_b32 s{sT1}, s{sIDX}, 7\ns_lshl_b32 s{sT1}, s{sT1}, 7\ns_add_u32 s{sP+7}, s{sT0}, s{sT1}")
        st(f"v_mov_b32 v26, {MISC}\nv_lshlrev_b32 v23, 7, v0\nv_lshlrev_b32 v47, 2, v0")
        st(f"s_lshl_b32 s{sT0}, s{sRB}, 4\ns_lshl_b32 s{sT1}, s{sCB}, 2\ns_add_u32 s{sT0}, s{sT0}, s{sT1}\ns_add_u32 s{sT0}, s{sT0}, s{sW}\ns_lshl_b32 s{sT1}, s{sT0}, 11\ns_lshl_b32 s{sT0}, s{sT0}, 8")
        for lo, n, sb, base in ((0, 16, sT1, WS_O), (16, 2, sT0, WS_ST), (18, 2, sT0, WS_PM)):
            st(f"s_bfm_b64 exec, {n}, {lo}\ns_add_u32 s{sT2}, s{sb}, {base - 128*lo}\nv_add_u32 v21, s{sT2}, v23")
        st(f"s_lshl_b32 s{sT0}, s{sRB}, 7\ns_add_u32 s{sT0}, s{sT0}, {WS_FLG4}\ns_lshl_b32 s{sT1}, s{sRB}, 6\ns_add_u32 s{sT1}, s{sT1}, {WS_FLG2}")
        st(f"s_bitcmp1_b32 s{sW}, 0\ns_cselect_b32 s{sT1}, s{sT0}, s{sT1}\ns_bfm_b64 exec, 44, 20\nv_mov_b32 v21, s{sT1}\ns_mov_b64 exec, -1\nv_lshlrev_b32 v22, 10, v0")
        self.h_voffset(st, 19, 14)
        st(f"v_and_b32 v14, 31, v0\nv_lshlrev_b32 v14, 10, v14\nv_lshrrev_b32 v15, 5, v0\nv_lshl_add_u32 v40, v15, 4, v14")
        st(f"v_lshrrev_b32 v14, 4, v0\nv_lshlrev_b32 v14, 7, v14\nv_bfe_u32 v15, v0, 1, 1\nv_lshl_add_u32 v14, v15, 6, v14")
        st(f"v_bfe_u32 v15, v0, 2, 2\nv_lshl_add_u32 v14, v15, 3, v14\nv_and_b32 v15, 1, v0\nv_lshl_add_u32 v14, v15, 2, v14\nv_add_u32 v42, {WBL}, v14")

    def helper_attention(self, st):
        st("; ---- helper: phase B")
        vL, vP, vR = 1, 2, 3
        st(f"s_lshl_b32 s{sT1}, s{sG}, 12\ns_add_u32 s{sB}, s{sT1}, {WS_FLG1}")
        st(f"s_mul_i32 s{sC}, s{sW}, {2*TILE}\ns_lshl_b32 s{sD}, s{sW}, 12\ns_add_u32 s{sD}, s{sD}, {WS_KV}")
        st(f"s_cmp_lt_u32 s{sW}, 2\ns_cbranch_scc1 L_x1skip")
        st(f"s_and_b32 s{sT2}, s{sW}, 1\ns_lshl_b32 s{sT0}, s{sT2}, 4\nv_and_b32 v12, 15, v0\nv_add_u32 v12, s{sT0}, v12")
        st(f"v_lshlrev_b32 v14, 7, v12\nv_lshlrev_b32 v12, 2, v12\ns_lshl_b32 s{sT1}, s{sG}, 7\ns_add_u32 s{sT1}, s{sT1}, {WS_FLGL}")
        st(f"s_lshl_b32 s{sE}, s{sG}, 14\ns_lshl_b32 s{sT0}, s{sT2}, 13\ns_add_u32 s{sE}, s{sE}, s{sT0}\ns_add_u32 s{sE}, s{sE}, {WS_KVL}")
        st(f"s_mul_i32 s{sT0}, s{sT2}, {4*TILE}\ns_add_u32 m0, s{sT0}, {RING}")
        st(f"s_lshl_b32 s{sT0}, s{sT2}, 2\ns_add_u32 s{sT0}, s{sT0}, {MISC}\nv_mov_b32 v15, s{sT0}")
        st(f"v_mov_b32 v125, 1\ns_mov_b32 s{sCNT}, {SPINL}\ns_bfm_b64 exec, 16, 0")
        st.label("L_x1l")
        st(f"buffer_load_dword v{vR}, v12, {srd(WS)}, s{sT1} offen sc1")
        st.wait_vm()
        st(f"v_cmp_ne_u32 vcc, s{sXCC}, v{vR}\ns_cbranch_vccz L_x1a_ok")
        st(f"s_sub_u32 s{sCNT}, s{sCNT}, 1\ns_cbranch_scc0 L_x1l")
        st(f"s_mov_b64 exec, -1\ns_sub_u32 s{sE}, s{sE}, {WS_KVL - WS_KV}\nv_mov_b32 v125, 0")
        self.poll(st, "L_x1a", 14, f"s{sB}", vR, 1, exact=True, lanes=16)
        for i in range(8):
            if i in (2, 6): st("s_add_u32 m0, m0, 32\ns_nop 0")
            if i == 4: st(f"s_add_u32 m0, m0, {2*TILE - 32}\ns_add_u32 s{sE}, s{sE}, 4096")
            st(f"buffer_load_dwordx4 v{vL}, {srd(WS)}, s{sE} offen offset:{1024*(i % 4)} sc1 lds")
        self.stamp(st, "h", "w2poll", 2112)
        st("ds_write_b32 v15, v125")
        st.label("L_x1skip")
        self.stamp(st, "h", "x1own")
        def chunk(c):
            st(f"s_add_u32 s{sT0}, s{sG}, {c}\ns_and_b32 s{sT0}, s{sT0}, 7\ns_lshl_b32 s{sT0}, s{sT0}, 14")
            st(f"s_add_u32 m0, s{sC}, {RING + (c % 2) * 8 * TILE}\ns_add_u32 s{sT0}, s{sT0}, s{sD}")
            for i in range(4):
                if i == 2: st("s_add_u32 m0, m0, 32\ns_nop 0")
                st.vm(f"buffer_load_dwordx4 v{vL}, {srd(WS)}, s{sT0} offen offset:{1024*i} sc1 lds", ("kv", c))
        vWO, vTR, vWD, GU = 4, 5, 6, 16
        st(f"s_mul_i32 s{sE}, s{sW}, {STGW}\ns_add_u32 s{sE}, s{sE}, {STG}")
        st(f"s_cmp_lt_u32 s{sW}, 2\ns_cbranch_scc1 L_x1skip2")
        st.wait_vm()
        st.wait_ds()
        st.label("L_x1skip2")
        self.pad(st, 1)
        st.bar("B2")
        self.stamp(st, "h", "cycB2", 32)
        st.ds(f"ds_write_b128 v7, v[8:11] offset:{8*TILE + 2048}")
        st.ds("ds_read_b64 v[28:29], v26")
        st.ds("ds_read_b32 v12, v41")
        st.bar("BQ")
        st(f"s_mov_b32 s{sB}, {WS_FLG1}")
        self.poll(st, "L_x1b", vP, f"s{sB}", vR, 1, exact=True)
        self.stamp(st, "h", "x1a", 81)
        st.wait_ds()
        self.colo_reduce(st, 28)
        st(f"v_mov_b32 v29, s{sEP1}\nv_mov_b32 v8, -1\nv_mov_b32 v9, -1\nv_mov_b32 v10, -1\nv_mov_b32 v11, -1")
        st(f"s_setprio {self.c.hprio}")
        st(f"s_lshl_b32 s{sA}, s{sCB}, 17")
        def wo_dma(j, pos):
            st(f"s_add_u32 m0, s{sE}, {1024*pos}\ns_xor_b32 s{sT1}, s{sA}, {j*16384}")
            st.vm(f"buffer_load_dwordx4 v{vWO}, {srd(WO)}, s{sT1} offen lds", ("wo", j))
        def wo_read(j, pos):
            for t in range(2):
                st.ds(f"ds_read_b64_tr_b16 {vr(self.WOR+4*j+2*t,2)}, v{vTR} offset:{1024*pos + 512*t}")
        vT, vTD, vJ = 23, 27, 30
        incond = [False]
        def touch(buf, v, soff, lanes=64):
            if lanes < 64: st(f"s_bfm_b64 exec, {lanes}, 0")
            st.vm(f"buffer_load_dword v{vJ}, v{v}, {srd(buf)}, {soff} offen{' sc1' if buf in (WS, OUT) else ''}", "tx", cond=incond[0])
            if lanes < 64: st("s_mov_b64 exec, -1")
        def lines(name, soff, n):
            if name[0] == "T": return touch(WS, vT, soff, n)
            if n < 8: st(f"s_bfm_b64 exec, {8*n}, 0")
            for i in range(-(-n // 8)):
                if i == 4: st(f"s_add_u32 {soff}, {soff}, 4096")
                st.vm(f"buffer_store_dwordx4 v[8:11], v{vL}, {srd(WS)}, {soff} offen offset:{1024*(i % 4)} sc1")
            if n < 8: st("s_mov_b64 exec, -1")
        items = [("o", j) for j in range(32)] + [("d", j) for j in range(10)]
        staged = []
        def stage(n):
            assert not staged
            pos = 0
            while items and pos + (1 if items[0][0] == "o" else 2) <= n:
                kind, j = items.pop(0)
                if kind == "o": wo_dma(j, pos)
                else: self.wd_dma(st, j, 1024 * pos, vWD, sE)
                staged.append((kind, j, pos))
                pos += 1 if kind == "o" else 2
        def unstage():
            st.wait_vm(("w" + staged[-1][0], staged[-1][1]))
            for kind, j, pos in staged:
                if kind == "o": wo_read(j, pos)
                else: self.wd_read(st, j, self.wd_static(j), self.vWS, 1024 * pos)
            st.wait_ds()
            staged.clear()
        gid = f"s_lshl_b32 s{sT0}, s{sIDX}, 2\ns_add_u32 s{sT0}, s{sT0}, s{sW}"
        cid = f"s_lshl_b32 s{sT0}, s2, 2\ns_add_u32 s{sT0}, s{sT0}, s{sW}"
        free_hi = [False]
        def op(name):
            if name[0] == "S": stage(int(name[1:]))
            elif name == "R": unstage()
            elif name[0] == "O":
                u, _, mask = name[1:].partition("^")
                assert int(u) < 6 or free_hi[0] or self.c.loose
                self.odd_pair(st, int(u), int(mask or 0), GU)
            elif name[0] == "F": self.full_unit(st, int(name[1:]), 43)
            elif name == "Tc":
                st(f"{gid}\ns_lshl_b32 s{sT1}, s{sT0}, 9")
                touch(CODE, vT, f"s{sT1}", 4)
            elif name == "Tkv":
                st(f"{gid}\ns_lshl_b32 s{sT1}, s{sT0}, 10\ns_add_u32 s{sT1}, s{sT1}, {WS_KV}")
                touch(WS, vT, f"s{sT1}", 8)
            elif name == "Tmd":
                st(f"{cid}\ns_mul_i32 s{sT1}, s{sT0}, {14*128}")
                touch(WD, vT, f"s{sT1}", 14)
            elif name in ("Tmg0", "Tmg1"):
                st(f"{cid}\ns_lshr_b32 s{sT0}, s{sT0}, 1\ns_mul_i32 s{sT1}, s{sT0}, {14*128}\ns_add_u32 s{sT1}, s{sT1}, {917504*int(name[3])}")
                touch(WG, vT, f"s{sT1}", 14)
            elif name == "To":
                st(f"{gid}\ns_lshl_b32 s{sT1}, s{sT0}, 12")
                touch(WO, vT, f"s{sT1}", 32)
            elif name[:2] in ("Tf", "Tq"):
                row0 = (96 if name[1] == "f" else 0) + 256 * int(name[2:])
                st(f"{gid}\ns_lshr_b32 s{sT0}, s{sT0}, 1\ns_mul_i32 s{sT1}, s{sT0}, {4*3584}\ns_add_u32 s{sT1}, s{sT1}, {row0*3584 + (0 if name[1] == 'f' else 128)}")
                if name[1] == "q": st("s_mov_b32 exec_lo, 0x77777777\ns_mov_b32 exec_hi, 0x77777777")
                touch(WG, GU + 4, f"s{sT1}")
                if name[1] == "q": st("s_mov_b64 exec, -1")
            elif name[:2] in ("Th", "Ph"):
                a, b = map(int, name[2:].split("-"))
                st(f"s_lshr_b32 s{sT0}, s{sIDX}, 4\ns_lshl_b32 s{sT1}, s{sG}, 1\ns_add_u32 s{sT0}, s{sT0}, s{sT1}\ns_lshl_b32 s{sT0}, s{sT0}, 2\ns_add_u32 s{sT0}, s{sT0}, s{sW}")
                st(f"s_mul_i32 s{sT0}, s{sT0}, 114688\ns_and_b32 s{sT1}, s{sIDX}, 15\ns_mul_i32 s{sT1}, s{sT1}, 7168\ns_add_u32 s{sT0}, s{sT0}, s{sT1}\ns_add_u32 s{sT0}, s{sT0}, {WS_HH + 1024*a}")
                lines(name, f"s{sT0}", 8 * (b - a))
            elif name == "Tx":
                self.h_base(st, sT0)
                touch(OUT, 22, f"s{sT0}", 16)
                touch(WS, 21, "0", 21)
            elif name in ("Cx", "Cf"):
                st(f"s_lshl_b32 s{sT0}, s{sRB}, 4\ns_lshl_b32 s{sT1}, s{sCB}, 2\ns_add_u32 s{sT0}, s{sT0}, s{sT1}\ns_add_u32 s{sT0}, s{sT0}, s{sW}")
                st.wait_vm("tx" if name == "Cx" else "cx")
                st(f"s_cmp_eq_u32 s{sCOLO}, {2 if self.c.force_slow else 1}\ns_cbranch_scc0 L_{name}s")
                for o, sc in ((st, ""), (self.tailcode, " sc1")):
                    if sc: o.label(f"L_{name}s")
                    if name == "Cx":
                        o(f"s_lshl_b32 s{sT1}, s{sT0}, 11\ns_add_u32 s{sT1}, s{sT1}, {WS_O}")
                        for q in range(2): o.vm(f"buffer_store_dwordx4 v[8:11], v{vL}, {srd(WS)}, s{sT1} offen offset:{1024*q}{sc or ' ' + self.c.cf}", "cx")
                        self.h_base(o, sT1)
                        for q in range(2):
                            o.vm(f"buffer_store_dwordx4 v[8:11], v19, {srd(OUT)}, s{sT1} offen{sc}", "cx")
                            if q == 0: o(f"s_add_u32 s{sT1}, s{sT1}, 8192")
                        o("s_bfm_b64 exec, 16, 0")
                        for base in (WS_ST, WS_PM):
                            o(f"s_lshl_b32 s{sT1}, s{sT0}, 8\ns_add_u32 s{sT1}, s{sT1}, {base}")
                            o.vm(f"buffer_store_dwordx4 v[8:11], v{vL}, {srd(WS)}, s{sT1} offen{sc}", "cx")
                    else:
                        o(f"s_lshl_b32 s{sT1}, s{sT0}, 2\ns_add_u32 s{sT1}, s{sT1}, {WS_FLG2}\ns_mov_b64 exec, 1")
                        o.vm(f"buffer_store_dword v29, off, {srd(WS)}, s{sT1}{sc}")
                    o("s_mov_b64 exec, -1")
                    if sc: o(f"s_branch L_{name}d")
                st.label(f"L_{name}d")
            elif name == "K":
                st(f"s_lshl_b32 s{sT0}, s{sG}, 9\ns_lshl_b32 s{sT1}, s{sW}, 7\ns_add_u32 s{sT0}, s{sT0}, s{sT1}\ns_add_u32 s{sT0}, s{sT0}, {WS_FLG2}\ns_setprio 2")
                self.poll(st, "L_clr", 47, f"s{sT0}", vR, 1, exact=True, lanes=32)
                st(f"s_setprio {self.c.hprio}")
            elif name == "X":
                st(f"s_lshl_b32 s{sT0}, s{sRB}, 15\ns_lshl_b32 s{sT1}, s{sCB}, 8\ns_add_u32 s{sT0}, s{sT0}, s{sT1}\ns_lshl_b32 s{sT1}, s{sW}, 6\ns_add_u32 s{sT0}, s{sT0}, s{sT1}")
                for q in range(2):
                    st.vm(f"buffer_load_dwordx4 {vr(32+4*q,4)}, v40, {srd(X)}, s{sT0} offen offset:{32*q}")
            elif name == "B":
                st(f"s_cmp_lg_u32 s{sW}, 3\ns_cbranch_scc1 L_nowb2")
                st(f"s_lshl_b32 s{sT0}, s{sCB}, 13\ns_add_u32 s{sT0}, s{sT0}, {WS_WB}\ns_mov_b32 s{sCNT}, {SPIN}\ns_setprio 2")
                st.label("L_wb")
                st(f"buffer_load_dwordx3 v[44:46], v{vT}, {srd(WS)}, s{sT0} offen sc1\ns_waitcnt vmcnt(0)")
                st(f"v_cmp_ne_u32 vcc, s{sEP1}, v46\ns_cbranch_vccz L_wb_ok\ns_sub_u32 s{sCNT}, s{sCNT}, 1\ns_cbranch_scc0 L_wb")
                st.label("L_wb_ok")
                st(f"s_setprio {self.c.hprio}\nds_write2_b32 v42, v44, v45 offset0:0 offset1:8\ns_waitcnt lgkmcnt(0)")
                st.label("L_nowb2")
            elif name[0] == "W":
                st.wait_vm()
                self.stamp(st, "h", "drain" + name[1:], 16)
            else: raise KeyError(name)
        chunk(1)
        st(f"s_cmp_lg_u32 s{sW}, 1\ns_cbranch_scc1 L_nopub\ns_mov_b64 exec, 0xff")
        st.vm(f"buffer_store_dwordx4 v[244:247], v{vL}, {srd(WS)}, s{sF} offen sc1", cond=True)
        st("s_mov_b64 exec, -1")
        st.label("L_nopub")
        ints = self.c.sched.split("|")
        assert len(ints) == 8
        for c, ops in enumerate(ints):
            if c == 2 and (self.c.pads or self.c.hal):
                st(f"s_branch L_hpage\n.p2align 12\n.fill {self.c.hoff // 4}, 4, 0xbf800000")
                st.label("L_hpage")
            if c and c == self.c.pads:
                st(f"s_cmp_lg_u32 s{sW}, 0\ns_cbranch_scc1 L_nowalk\ns_mov_b32 s{sWALK}, 1\ns_branch L_pad0")
                st.label("L_walked")
                st(f"s_mov_b32 s{sWALK}, 0")
                st.label("L_nowalk")
            if c == 1:
                st(f"{cid}\ns_cmp_lg_u32 s{sT0}, 0\ns_cbranch_scc1 L_noep")
                st(f"s_mov_b32 s{sT1}, {WS_EPOCH}\ns_mov_b64 exec, 1")
                st.vm(f"buffer_store_dword v31, off, {srd(WS)}, s{sT1} sc1", cond=True)
                st("s_mov_b64 exec, -1")
                st.label("L_noep")
            plain, _, stag = ops.partition("[")
            def staggered(par):
                if not stag: return
                st(f"s_xor_b32 s{sT0}, s{sIDX}, s{sG}\ns_bitcmp1_b32 s{sT0}, 0\ns_cbranch_scc{par} L_st{c}_{par}")
                incond[0] = True
                for name in stag.rstrip("]").split(): op(name)
                incond[0] = False
                st.label(f"L_st{c}_{par}")
            staggered(0)
            for name in plain.split(): op(name)
            st.wait_vm(("kv", c + 1))
            staggered(1)
            self.stamp(st, "h", f"arrBA{c}", 2)
            st.bar(f"BA{c}")
            self.stamp(st, "h", f"cycBA{c}", 32)
            if not items and not staged: free_hi[0] = True
            if c + 2 < 8: chunk(c + 2)
        assert self.c.loose or (not items and not staged)
        st("s_setprio 2")
        self.stamp(st, "h", "BA7")

    def helper_phase_c(self, st):
        st("; ---- helper: phase C")
        vL, XR, ACC, BRG, PM = 1, 32, 16, (4, 8, 40, 44), self.WOR
        st.label("L_phc")
        st(f"s_lshl_b32 s{sT0}, s{sRB}, 2\ns_add_u32 s{sT0}, s{sT0}, s{sCB}\ns_lshl_b32 s{sE}, s{sT0}, 10\ns_lshl_b32 s{sT1}, s{sW}, 2\ns_add_u32 s{sE}, s{sE}, s{sT1}\ns_add_u32 s{sE}, s{sE}, {WS_ST}")
        self.h_base(st, sA)
        st(f"s_add_u32 s{sB}, s{sA}, 8192")
        st.bar("BP")
        st.wait_vm()
        st.bar("BC0")
        st("v_mov_b32 v13, v43\nv_mov_b32 v3, v19")
        rd = lambda j: st.ds(f"ds_read_b128 {vr(BRG[j % 4],4)}, v{vL} offset:{RING + 1024*j}", ("o", j))
        for j in range(3): rd(j)
        for b in (XR, XR + 4): st(f"v_permlane32_swap_b32 v{b}, v{b+2}\nv_permlane32_swap_b32 v{b+1}, v{b+3}")
        for r in range(8): st(f"v_lshlrev_b32 v{ACC+2*r}, 16, v{XR+r}\nv_and_b32 v{ACC+2*r+1}, 0xffff0000, v{XR+r}")
        st(f"v_add_u32 v2, {PML}, v{vL}")
        red = {25: [f"v_add_f32 v{PM}, v{PM}, v{PM+1}", f"v_add_f32 v{PM+2}, v{PM+2}, v{PM+3}", f"v_add_f32 v{PM}, v{PM}, v{PM+2}"],
               26: [f"v_mov_b32 v{PM+1}, v{PM}"], 27: [f"v_permlane32_swap_b32 v{PM}, v{PM+1}", f"v_add_f32 v{PM}, v{PM}, v{PM+1}", f"v_sub_f32 v12, v12, v{PM}"],
               28: ["v_mul_f32 v14, -0.5, v12"]}
        for m in range(32):
            if m == 8:
                self.stamp(st, "h", "own", 1024)
                st.bar("BC1a")
                self.pad(st, 2)
                self.stamp(st, "h", "x2ok", 1027)
                for j in range(8, 11): rd(j)
            st.wait_ds(("o", m))
            st(mfma32(ACC, self.WOR + 4 * m, BRG[m % 4]))
            if m in (13, 21):
                self.stamp(st, "h", f"m{m}", 1024)
                st.bar("BC1b" if m == 13 else "BC1c")
                self.stamp(st, "h", f"m{m}b", 1024)
            if m == 21: st.ds(f"ds_read_b128 {vr(PM,4)}, v2")
            if m in (15, 17) and self.c.cfull > 0: self.full_unit(st, 3, 13, (m // 17,))
            if m in (22, 24) and self.c.cfull > 1: self.full_unit(st, 4, 13, (m // 24,))
            if m + 3 < 32 and not 8 <= m + 3 < 11: rd(m + 3)
            for op in red.get(m, []): st(op)
        self.stamp(st, "h", "m31", 1024)
        st(f"s_cmp_eq_u32 s{sCOLO}, {2 if self.c.force_slow else 1}\ns_cbranch_scc0 L_c_slow")
        self.c_epilogue(st, "")
        st.label("L_c_done")
        st.nbar += 1
        self.stamp(st, "h", "hflag")
        tc = self.tailcode
        tc.label("L_c_slow")
        self.c_epilogue(tc, " sc1")
        tc("s_branch L_c_done")

    def c_epilogue(self, st, sc):
        vL, ACC, P = 1, 16, 40
        st.nop(10)
        for r in range(8):
            st(f"v_pk_add_f32 {vr(ACC+2*r,2)}, {vr(ACC+2*r,2)}, v[12:13] op_sel_hi:[1,0]")
            if r % 4 == 3:
                for i in range(r - 3, r + 1): st(f"v_cvt_pk_bf16_f32 v{P+i}, v{ACC+2*i}, v{ACC+2*i+1}")
                st(f"v_min_u32 v{P+r-3}, -2, v{P+r-3}")
                st.vm(f"buffer_store_dwordx4 {vr(P+r-3,4)}, v3, {srd(OUT)}, s{sA + r//4} offen{sc}")
        st("s_barrier                ; BC2")
        st.nop(self.c.stlate)
        for r in range(8):
            st(f"v_dot2_f32_bf16 v15, v{P+r}, v{P+r}, {'0' if r == 0 else 'v15'}")
        st(f"s_nop 2\nv_permlane32_swap_b32 v14, v15\nv_add_f32 v2, v14, v15\nv_min_u32 v2, -2, v2")
        st.vm(f"buffer_store_dword v2, v{vL}, {srd(WS)}, s{sE} offen{sc or ' ' + self.c.sf}")

    def e_setup(self, st):
        vL, vP, vA = 1, 2, (7, 8, 9, 10)
        st(f"s_lshr_b32 s{sT0}, s{sIDX}, 3\ns_lshl_b32 s{sT1}, s{sG}, 2\ns_add_u32 s{sT0}, s{sT0}, s{sT1}\ns_lshl_b32 s{sA}, s{sT0}, 1")
        st(f"s_mul_i32 s{sT0}, s{sA}, 114688\ns_mul_i32 s{sT1}, s{sW}, {28*1024}\ns_add_u32 s{sT0}, s{sT0}, s{sT1}")
        for p in range(2): st(f"s_add_u32 s{sP+p}, s{sT0}, {WS_HH + 14336*p}")
        st("v_bfe_u32 v14, v0, 4, 1\nv_lshlrev_b32 v14, 9, v14\nv_and_b32 v15, 15, v0\nv_lshl_add_u32 v14, v15, 4, v14\nv_lshrrev_b32 v11, 5, v0")
        st("v_lshl_add_u32 v15, v11, 11, v14\nv_mul_u32_u24 v11, 7168, v11\nv_add_u32 v11, v11, v14")
        st(f"s_lshr_b32 s{sT2}, s{sW}, 1\ns_mul_i32 s{sT0}, s{sT2}, 114688\ns_sub_u32 s{sT1}, 114688, s{sT0}")
        st(f"v_add_u32 v{vA[0]}, s{sT0}, v11\nv_add_u32 v{vA[1]}, s{sT1}, v11\nv_add_u32 v{vA[2]}, 4096, v{vA[0]}\nv_add_u32 v{vA[3]}, 4096, v{vA[1]}")
        st(f"v_bfe_u32 v{vP}, v0, 2, 1\nv_lshlrev_b32 v{vP}, 7, v{vP}\nv_and_b32 v14, 3, v0\nv_lshl_add_u32 v{vP}, v14, 2, v{vP}")
        st(f"v_lshrrev_b32 v14, 3, v0\nv_lshl_add_u32 v{vP}, v14, 28, v{vP}")
        st(f"s_lshl_b32 s{sT0}, s{sA}, 7\ns_lshl_b32 s{sT1}, s{sW}, 4\ns_add_u32 s{sB}, s{sT0}, s{sT1}\ns_add_u32 s{sB}, s{sB}, {WS_FLG4}")
        st(f"s_add_u32 s{sA}, s{sA}, s{sT2}")
        st(f"s_lshl_b32 s{sT0}, s{sA}, 15\ns_lshl_b32 s{sT1}, s{sW}, 13\ns_add_u32 s{sT0}, s{sT0}, s{sT1}\ns_add_u32 s{eO}, s{sT0}, {WS_O}")
        st(f"s_add_u32 s{eO+1}, s{eO}, 4096\ns_xor_b32 s{eO+2}, s{eO}, 0x8000\ns_xor_b32 s{eO+3}, s{eO+1}, 0x8000")
        st(f"s_and_b32 s{sT0}, s{sIDX}, 7\ns_lshl_b32 s{sT0}, s{sT0}, 1\ns_and_b32 s{sT1}, s{sW}, 1\ns_add_u32 s{sT0}, s{sT0}, s{sT1}")
        st(f"s_lshl_b32 s{sC}, s{sT1}, 14\ns_lshl_b32 s{sT1}, s{sA}, 15\ns_add_u32 s{sC}, s{sC}, s{sT1}\ns_and_b32 s{sT2}, s{sIDX}, 7\ns_lshl_b32 s{sT2}, s{sT2}, 7\ns_add_u32 s{sC}, s{sC}, s{sT2}\ns_add_u32 s{sXCC}, s{sC}, 8192")
        st(f"s_lshl_b32 s{sD}, s{sT0}, 6\ns_add_u32 s{sD}, s{sD}, s{sT1}")
        st(f"s_lshl_b32 s{sF}, s{sA}, 12\ns_add_u32 s{sF}, s{sF}, {WS_ST}")
        st(f"v_and_b32 v14, 31, v0\nv_lshlrev_b32 v14, 10, v14\nv_lshrrev_b32 v3, 5, v0\nv_lshl_add_u32 v14, v3, 4, v14")
        st(f"v_and_b32 v11, 15, v0\nv_lshl_add_u32 v11, v3, 4, v11\nv_lshlrev_b32 v11, 4, v11")

    def helper_phase_de(self, st):
        st("; ---- helper: phases D and E")
        vL, vP, vR = 1, 2, 3
        vWD, vWA, GU = 4, (5, 6, 12, 13), 192
        st(f"v_mov_b32 v{GU}, v13")
        lo = [slot8(8)]
        st(f"s_lshl_b32 s{sE}, s{sW}, 11\ns_add_u32 s{sT1}, s{sE}, {lo[0]}")
        self.wd_addr(st, vWD, vWA, 14, sT1)
        where = {}
        need = {8: 4, 9: 5, 10: 7, 11: 8, 12: 9}
        seen, done = [0], set()
        def dma(j, i):
            assert seen[0] >= need.get(i, 20), (j, i)
            for jj, ii in where.items():
                if ii == i:
                    assert jj in done, (j, jj)
                    st.wait_ds(("wdr", jj))
            where[j] = i
            self.wd_dma(st, j, slot8(i), vWD, sE)
        def read(j, grp, ns=range(4)):
            if slot8(where[j]) - lo[0] > 65535:
                for v in vWA: st(f"v_add_u32 v{v}, 0x8000, v{v}")
                lo[0] += 0x8000
            assert slot8(where[j]) >= lo[0]
            self.wd_read(st, j, grp, vWA, slot8(where[j]) - lo[0], ns)
        wreg = {j: self.wd_static(j) for j in range(18)}
        def rd(js):
            st.wait_vm(("wd", js[-1]))
            for j in js: read(j, wreg[j]); done.add(j)
        vPG, vLD, vN, CK = 200, 201, 202, 204
        st(f"s_lshl_b32 s{sT0}, s{sW}, 2\ns_add_u32 s{sT0}, s{sT0}, {LAND}\nv_mov_b32 v{vLD}, s{sT0}\nv_mov_b32 v{vPG}, {PROG}")
        def prog(n):
            seen[0] = n
            if n in (3, 5, 7, 9, 20): self.stamp(st, "h", f"arr{n}", 4)
            self.lds_spin(st, f"L_pg{n}", vPG, CK, n, sleep=self.c.psleep)
        def land(tag, n):
            st(f"v_mov_b32 v{vN}, {n}")
            st.wait_vm(tag)
            st.ds(f"ds_write_b32 v{vLD}, v{vN}")
        self.e_setup(st)
        st(f"s_setprio {self.c.dprio}")
        self.pace = self.c.pace
        def full(u):
            assert seen[0] >= {7: 2, 8: 3, 9: 3}.get(u, u - 6), u
            self.full_unit(st, u, GU)
        plan = self.c.dplan.split()
        latew = [tuple(map(int, x[1:].split(">"))) for x in plan[len(plan) - self.c.nlate:]]
        for op in plan[:len(plan) - self.c.nlate]:
            a = op[1:]
            if op[0] == "F":
                if int(a) >= 3 + self.c.cfull: full(int(a))
            elif op[0] == "W": dma(*map(int, a.split(">")))
            elif op[0] == "P": prog(int(a))
            elif op[0] == "L": land(("full", int(a) - 1), int(a))
            elif op[0] == "R": rd(list(map(int, a.split(","))))
            elif op == "T":
                st(f"s_setprio {self.c.tprio}")
                self.pace = self.c.pace2
        self.stamp(st, "h", "Dhelp_end", 13)
        ACC, vA = 192, (7, 8, 9, 10)
        free = [16, 24, 32, 40]
        areg = {}
        W0 = 20
        ech = self.c.ech
        def step(s):
            if ech:
                if s < W0: t, mt, mh = s // 4, s // 2 % 2, s % 2
                else: t, mt, mh = W0 // 4 + (s - W0) // 2 % 2, 1 if s < W0 + 4 else 0, s % 2
                return [(2 * t + e, mt, mh) for e in range(2)]
            P, mt = (s // 2, s % 2) if s < W0 else (W0 // 2 + (s - W0) % 4, 1 if s < W0 + 4 else 0)
            return [(P, mt, e) for e in range(2)]
        def ldA(s):
            areg[s] = r = free.pop(0)
            for e, (P, mt, mh) in enumerate(step(s)):
                pp, t = P % 2, P // 2
                st.vm(f"buffer_load_dwordx4 {vr(r+4*e,4)}, v{vA[mt + (2 if t >= 4 else 0)]}, {srd(WS)}, s{sP+pp} offen offset:{1024*(t % 4) + 256*mh} sc1", ("a", s))
        def gate(t):
            tc = self.near
            st.wait_vm(("poll", t))
            self.notready(st, vR, t + 1)
            st(f"s_and_b64 vcc, vcc, 0xff\ns_cbranch_scc1 L_x4s{t}")
            st.label(f"L_x4r{t}")
            tc.label(f"L_x4s{t}")
            if self.c.diag & 8: tc(f"s_bitset1_b32 s{CODE}, {t}")
            self.poll(tc, f"L_x4p{t}", vP, f"s{sB}", vR, t + 1, lanes=8)
            tc(f"s_branch L_x4r{t}")
        stg = self.stages()
        f0 = stg[0][0]
        pollat = {x[1]: x[0] for x in stg[1:]}
        gateat = {4 * stg[i][0]: stg[i + 1] for i in range(len(stg) - 1)}
        if self.c.diag & 8: st(f"s_mov_b32 s{CODE}, 0")
        assert not latew
        st(f"s_setprio {self.c.pprio}")
        st(f"v_bfe_u32 v4, v0, 4, 1\nv_lshlrev_b32 v4, 12, v4\nv_lshrrev_b32 v{vR}, 5, v0\nv_lshl_add_u32 v4, v{vR}, 11, v4")
        st(f"v_bfe_u32 v{vR}, v0, 3, 1\nv_lshl_add_u32 v4, v{vR}, 10, v4\nv_and_b32 v{vR}, 7, v0\nv_lshl_add_u32 v4, v{vR}, 4, v4")
        self.poll(st, "L_x4", vP, f"s{sB}", vR, f0, lanes=8)
        if self.c.diag & 8: st(f"s_sub_u32 s{CODE}, {SPIN}, s{sCNT}\ns_lshl_b32 s{CODE}, s{CODE}, 8")
        st(f"s_setprio {self.c.eprio}")
        self.stamp(st, "h", "x4ok", 13)
        self.pace = None
        for j in range(4): ldA(j)
        nextA, nextW, DEPTH = 4, 18, self.c.edepth
        hres = None
        assert max(gateat, default=0) <= W0
        started = set()
        def mm(s, nt, nh, e):
            P, mt, mh = step(s)[e]
            d = ACC + 16 * (nt + 2 * mt) + 8 * nh + 4 * mh
            st(mfma16(d, wreg[2 * P][nt] + 4 * nh, areg[s] + 4 * e, None if d in started else "0"))
            started.add(d)
        wneed = lambda J: min(s for s in range(28) if any(J // 2 == x[0] for x in step(s)))
        wlast = lambda P: max(s for s in range(28) if any(P == x[0] for x in step(s)))
        def more(s):
            nonlocal nextA, nextW, hres
            if nextW in wreg:
                read(nextW, wreg[nextW], (2, 3)); nextW += 1
            elif nextW < 28 and wneed(nextW) <= s + 3 and (nextW % 2 or len(free) > 1):
                st.wait_vm(("wd", nextW))
                wreg[nextW] = wreg[nextW - 1] if nextW % 2 else (free.pop(0), free.pop(0))
                read(nextW, wreg[nextW], (0, 1))
            elif s in pollat:
                st.vm(f"buffer_load_dword v{vR}, v{vP}, {srd(WS)}, s{sB} offen sc1", ("poll", pollat.pop(s) - 1))
            elif nextA < 28 and nextA <= s + DEPTH and free and (nextA not in gateat or gateat[nextA][2] <= s):
                if nextA in gateat: gate(gateat[nextA][0] - 1)
                ldA(nextA); nextA += 1
            elif latew and nextA >= self.c.lateat:
                dma(*latew.pop(0))
            elif s >= 6 and hres is None and len(free) > 3:
                hres = [free.pop(0) for _ in range(3)]
                for l in hld(): st.vm(l, "h")
        hld = lambda: [f"buffer_load_dwordx4 {vr(hres[0]+4*i,4)}, v4, {srd(OUT)}, s{(sC, sXCC)[i]} offen sc1" for i in range(2)] + \
                      [f"buffer_load_dword v15, v11, {srd(WS)}, s{sF} offen sc1"]
        BUF, vX = RING, (5, 6, 12, 13)
        valu = []
        quad = ((0, 0), (0, 1), (1, 1), (1, 0))
        for s in range(W0 + 4):
            st.wait_vm(("a", s))
            assert nextW > 2 * step(s)[1][0] + 1
            st.wait_ds(("wdr", 2 * step(s)[1][0] + 1))
            if s % 4 == 0: self.stamp(st, "h", f"Et{s//4}", 8)
            if s == 13:
                assert nextA > 8
                st.wait_vm("h")
                self.validate(st, "L_hr", (hres[0], hres[0] + 4, 15), hres[1], hld())
                res = lambda r: hres[1 + r // 8] + r % 8
                valu += ["v_mov_b32 v11, v15"] + [f"v_permlane32_swap_b32 v{hres[0]+r}, v{hres[0]+r+2}" for r in (0, 1, 4, 5)] + ["v_permlane32_swap_b32 v15, v11"]
                for r in range(8):
                    valu += [f"v_lshlrev_b32 v{res(2*r)}, 16, v{hres[0]+r}", f"v_and_b32 v{res(2*r+1)}, 0xffff0000, v{hres[0]+r}"]
                valu += [f"v_add_f32 v{res(r)}, v{11 if r & 4 else 15}, v{res(r)}" for r in range(16)]
            if s == W0 + 2:
                assert nextW == 28 and not valu
                valu += [f"s_xor_b32 s{sT0}, s{sW}, {a}\ns_mul_i32 s{sT0}, s{sT0}, 12288\ns_add_u32 s{sT0}, s{sT0}, {BUF}\nv_add_u32 v{vX[a]}, s{sT0}, v{vL}" for a in range(4)]
            for i in range(8):
                mm(s, i // 4, *quad[i % 4])
                if s == W0 and i == 0:
                    st(f"v_mov_b32 v4, {PROG}")
                    ck = free.pop(0)
                if s == W0 and i == 2: st.ds(f"ds_read_b128 {vr(ck,4)}, v4", "ck")
                if s == W0 + 1 and i == 7:
                    st.wait_ds("ck")
                    self.lds_min(st, ck, 30)
                    st("s_cbranch_vccnz L_mds")
                    st.label("L_mdr")
                    self.near.label("L_mds")
                    self.lds_spin(self.near, "L_md", 4, ck, 30)
                    self.near("s_branch L_mdr")
                n0 = len(st.lines)
                if i < 7: more(s)
                if len(st.lines) == n0 and i < 7:
                    for _ in range(2 if s < W0 else 1):
                        if valu: st(valu.pop(0))
            free.append(areg[s])
            for P in range(14):
                if wlast(P) == s: free += list(wreg[2 * P])
            if s == 17:
                assert len(valu) <= 16
                free.append(hres[0])
            more(s)
        assert nextA == 28 and not valu, nextA
        self.stamp(st, "h", "Et6", 8)
        wrs = [(a, q) for a in (2, 3, 1) for q in ((0, 2, 1, 3) if ech else (0, 1, 3, 2))]
        def wr():
            a, q = wrs.pop(0)
            st.ds(f"ds_write_b128 v{vX[a]}, {vr(ACC+16*a+4*q,4)} offset:{4096*(a-1) + 1024*q}")
        seq = [(s, nt, x) for nt in (1, 0) for s in range(W0 + 4, W0 + 8) for x in quad]
        for i, (s, nt, x) in enumerate(seq):
            if nt == 1: st.wait_vm(("a", s))
            mm(s, nt, *x)
            if i in eval(self.c.wpos): wr()
        assert not wrs
        self.stamp(st, "h", "Emfma_end", 13)
        st.wait_ds()
        st.bar("BE2")
        for q in range(4):
            for a in (1, 2, 3): st.ds(f"ds_read_b128 {vr(ACC+16*a+4*q,4)}, v{vX[0]} offset:{4096*(a-1) + 1024*q}", ("r", q))
        for r in range(0, 16, 2): st(f"v_pk_add_f32 {vr(ACC+r,2)}, {vr(ACC+r,2)}, {vr(res(r),2)}")
        for q in range(4):
            st.wait_ds(("r", q))
            for r in (4 * q, 4 * q + 2):
                st(f"v_pk_add_f32 {vr(ACC+r,2)}, {vr(ACC+r,2)}, {vr(ACC+16+r,2)}\nv_pk_add_f32 {vr(ACC+32+r,2)}, {vr(ACC+32+r,2)}, {vr(ACC+48+r,2)}")
            for r in (4 * q, 4 * q + 2): st(f"v_pk_add_f32 {vr(ACC+r,2)}, {vr(ACC+r,2)}, {vr(ACC+32+r,2)}")
            b = hres[1 + q // 2]
            for e in range(2): st(f"v_cvt_pk_bf16_f32 v{b+2*(q % 2)+e}, v{ACC+4*q+2*e}, v{ACC+4*q+2*e+1}")
            if q % 2:
                st(f"s_nop 1\nv_permlane16_swap_b32 v{b}, v{b+2}\nv_permlane16_swap_b32 v{b+1}, v{b+3}")
                st.vm(f"buffer_store_dwordx4 {vr(b,4)}, v14, {srd(OUT)}, s{sD} offen offset:{32*(q//2)} {self.c.outf}")
        self.pad(st, 0)
        self.stamp(st, "h", "end", 9)
        if self.c.diag & 8:
            self.nstamp["h"].append("gates")
            st(f"s_waitcnt lgkmcnt(0)\ns_mov_b32 s{sSTAMP + 2*(len(self.nstamp['h'])-1)}, s{CODE}")
        self.dump_stamps(st, "h")

    def build(self):
        p, m, h = Stream(), Stream(), Stream()
        self.prologue(p)
        if self.c.pads or self.c.mal: m(".p2align 12" + (f"\n.fill {self.c.moff // 4}, 4, 0xbf800000" if self.c.moff else ""))
        m.label("L_main")
        self.main_phase_a(m); self.main_attention(m); self.main_publish_o(m); self.main_phase_d(m)
        ms = Stream()
        self.sc, self.sfx = " sc1", "_s"
        ms.label("L_main_slow")
        self.main_publish_o(ms); self.main_phase_d(ms)
        self.sc, self.sfx = "", ""
        self.helper_phase_a(h); self.helper_attention(h); self.helper_phase_c(h); self.helper_phase_de(h)
        assert m.nbar + 1 == h.nbar, (m.nbar, h.nbar)
        ref = open("hdr.ref").read().splitlines()
        hdr = [l for l in ref if l.startswith(";") and "@launch" not in l]
        o = "\n".join(hdr) + f"\n; @launch grid=(256,1,1) block=(512,1,1) lds={LDS_BYTES}\n"
        o += DOC
        o += f'.amdgcn_target "amdgcn-amd-amdhsa--gfx950"\n.text\n.globl {NAME}_kernel\n.p2align 8\n.type {NAME}_kernel,@function\n{NAME}_kernel:\n'
        o += p.text() + "\n" + h.text() + "\nL_end:\n    s_endpgm\n" + self.near.text() + "\n" + m.text() + "\nL_codeend:\n" + self.tailcode.text() + "\n" + ms.text() + "\n"
        o += f""".section .rodata,"a"
.p2align 6
.amdhsa_kernel {NAME}_kernel
  .amdhsa_next_free_vgpr 256
  .amdhsa_next_free_sgpr 102
  .amdhsa_accum_offset 256
  .amdhsa_group_segment_fixed_size 0
  .amdhsa_kernarg_size 96
  .amdhsa_user_sgpr_count 2
  .amdhsa_user_sgpr_kernarg_segment_ptr 1
  .amdhsa_system_sgpr_workgroup_id_x 1
.end_amdhsa_kernel
"""
        if self.c.pads:
            import pagepad
            o, n = pagepad.insert(o, (("L_hpage", self.c.hoff, "L_phc", "L_end"), ("L_main", self.c.moff, "L_exit", "L_codeend")), sWALK)
            assert n
        if self.c.al8:
            import align8
            o = align8.align(o, ("L_attn", "L_norm"), self.c.al8 % 10, self.c.al8 >= 10)
        return o

if __name__ == "__main__":
    import hazcheck, json
    cfg = Cfg()
    out = sys.argv[1]
    for a in sys.argv[2:]:
        k, v = a.split("=")
        setattr(cfg, k, v if isinstance(getattr(cfg, k), str) else int(v))
    g = Gen(cfg)
    txt = g.build()
    open(out, "w").write(txt)
    json.dump(dict(g.nstamp, cyc=cfg.cyc) if g.nstamp else {}, open(out + ".stamps.json", "w"))
    errs = hazcheck.check(txt)
    for e in errs[:40]: print(e)
    print(len(errs), "hazard findings;", len(txt.splitlines()), "lines")
```

```python
import sys, struct
from emit import Stream, vr, sr

NAME = "sequential_preLN__grouped_kv_mqa__glu_gated_glu__prompt"

def f32(x): return hex(struct.unpack("<I", struct.pack("<f", x))[0])

WS_KV, WS_KVL, WS_FLG1, WS_FLGL, WS_FLG2, WS_FLG3, WS_FLG4 = 0x0, 0x20000, 0x40000, 0x48000, 0x50000, 0x52000, 0x54000
WS_WB, WS_ST, WS_DIAG, WS_PM, WS_O, WS_H, WS_HH, WS_SIZE = 0x58000, 0x60000, 0xA0000, 0xC0000, 0x100000, 0x300000, 0x500000, 0xC00000
TILE, RING, FS, ODD = 2080, 0, 33280, 57856
XN, WKV, WQST, NWQ = 33280, 16640, 67072, 23
LDS_BYTES = 163840
PML, WBL, MISC = 156160, 163072, 163584
PROG, LAND, XC, WC = MISC + 160, MISC + 176, MISC + 192, MISC + 208
STGW = 14336
STG = WBL - 4 * STGW
def slot8(i): return RING + 8192 * i if i < 4 else FS + 8192 * (i - 4)
FSLOT = (4, 5, 6, 0, 1, 2, 3, 4, 5, 7, 6, 0, 1, 2, 3, 4)
def tile_of(c, i): return (i if i < c else i + 4) if i < 3 else c + i - 3
X, WQ, WKVS, WO, WG, WU, WD, OUT, DBG, WS = 4, 8, 12, 16, 20, 24, 28, 32, 36, 40
sG, sIDX, sRB, sCB, sW, sXCC = 44, 45, 46, 47, 48, 49
sT0, sT1, sT2, sT3, sCNT = 50, 51, 52, 53, 54
sA, sB, sC, sD, sE = 55, 56, 57, 58, 59
sONE, sLO, sHI = 60, 61, 62
sF = 63
CODE = 64
sP = 68
mO, mPM, mF2, mF3, mF4, mST, mHH0, mHH1, mRB, mCHK, mKH, mKG, mKL, mFG, mFL = range(20, 35)
MOUT = WO
eO = WQ
sSTAMP = 76
SPIN = 1 << 17
SPINL = 96
sCOLO = 3
WS_EPOCH = 0x48400
sEP = DBG
sEP1 = DBG + 1
sWALK = DBG + 2
def srd(b): return sr(b, 4)

DOC = """;
;      The shift is 0; the row sums and outputs are range-checked afterwards and a wave that fails the check redoes its
"""

class Cfg:
    diag = False
    tail = 7
    force_fallback = False
    force_slow = False
    npre = 6
    nearly = 120
    tq = 8
    ndeep = 12
    sec = 2
    wo_early = 2
    lfat = 4
    gfat = 5
    jx = 8
    pace = 4
    lag = 16
    wpos = '1,3,6,8,11,13,16,18,20,22,24,26'
    kv2 = 0
    npoll = 0
    wbat = 0
    wbw = 3
    mal = 1
    hal = 0
    pads = 0
    moff = 0
    hoff = 0
    kprio = 1
    asleep = 0
    zig = 0
    ech = 0
    al8 = 0
    bc2at = 1
    stlate = 0
    jitter = 0
    bpat = 1
    psleep = 0
    fake16 = 0
    bal = 0
    balc = 32
    hho = 0
    of = ''
    cf = ''
    sf = ''
    gf = ''
    hfirst = 0
    mprio = 1
    tm = 0
    tkv = 1
    wcat = 1
    nh = 0
    nb = 0
    nmore = 0
    x1late = 0
    align = 0
    lalign = 0
    pmat = 2
    g2early = 1
    stat = 127
    d2 = 0
    d3 = 0
    nlate = 0
    lateat = 8
    wafter = 0
    wper = 4
    la = 7
    cfull = 2
    pprio = 2
    fexec = 0
    dplan = ("L5 P1 F5 F6 P2 F7 P3 F8 L7 F9 P4 F10 L9 W10>8 P5 F11 W11>9 P6 F12 R10 P7 F13 W12>8 R11 W13>10 W14>9 P8 F14 R12 P9 F15 T "
             "W15>8 R13 W16>11 L16 R14 W17>12 W18>10 R15 W19>9 R16 W20>8 R17 W21>11 W22>12 P20 W23>13 W24>14 W25>15 W26>16 W27>17")
    gates = "2,4:2:5,7:9:12"
    lagp = 10
    tprio = 0
    eprio = 0
    fake = 0
    cyc = 0
    dprio = 0
    pace2 = 6
    loose = 0
    hprio = 0
    nt = 0
    swap = 1
    abatch = 1
    edepth = 5
    etile = 5
    sched = "Tkv S6|R S14 X Tmd Tmg0 Tmg1|R S14 F0|R S14 O0^2 F1|R S4 O2^2 O4 F2 R Tx|O8^6 O10^6 Cx|Cf O12^6 O14^6 O6 B|K Tc"
    padto = 0
    padat = 0
    padwg = -1
    probe = ''
    outf = ''
    hhplain = 0

def mfma32(d, a, b, c=None):
    return f"v_mfma_f32_32x32x16_bf16 {vr(d,16)}, {vr(a,4)}, {vr(b,4)}, {vr(d,16) if c is None else c}"
def mfma16(d, a, b, c=None):
    return f"v_mfma_f32_16x16x32_bf16 {vr(d,4)}, {vr(a,4)}, {vr(b,4)}, {vr(d,4) if c is None else c}"
def smf(d, a, b, idx):
    return f"v_smfmac_f32_32x32x32_bf16 {vr(d,16)}, {vr(a,4)}, {vr(b,8)}, v{idx}"

class Gen:
    def __init__(self, cfg):
        self.c = cfg
        self.tailcode = Stream()
        self.near = Stream()
        self.nstamp = {}

    sc, sfx, njit = "", "", 0

    def stamp(self, st, role, name, level=1):
        if self.c.jitter:
            self.njit += 1
            lab = f"L_jit{self.njit}"
            st(f"s_cselect_b32 s97, 1, 0\ns_getreg_b32 s98, hwreg(HW_REG_SHADER_CYCLES)".replace("s_getreg_b32 s98, hwreg(HW_REG_SHADER_CYCLES)", "s_mul_i32 s99, s99, 0x41c64e6d\ns_add_u32 s99, s99, s2\ns_add_u32 s99, s99, s48\ns_add_u32 s99, s99, 12345"))
            st(f"s_bfe_u32 s98, s99, 0x30014\ns_cmp_lg_u32 s98, 0\ns_cbranch_scc1 {lab}x\ns_bfe_u32 s98, s99, {hex(0x10 + (self.c.jitter << 16))}")
            st.label(lab)
            st(f"s_sleep 4\ns_sub_u32 s98, s98, 1\ns_cbranch_scc0 {lab}")
            st.label(lab + "x")
            st("s_cmp_eq_u32 s97, 1")
        if self.c.probe and not self.sc:
            r, a, b, kind = self.c.probe.split(",")
            op = "s_memtime" if kind == "c" else "s_memrealtime"
            if role == r and name == "start": st("s_memrealtime s[100:101]")
            if role == r and name == a: st(f"{op} s[96:97]")
            if role == r and name == b: st(f"{op} s[94:95]")
            if role == r and name == "end":
                if self.c.padwg >= 0: st(f"s_cmp_lg_u32 s2, {self.c.padwg}\ns_cbranch_scc1 L_prbx")
                st("s_waitcnt lgkmcnt(0)\ns_sub_u32 s94, s94, s96")
                st("s_lshr_b32 s94, s94, 1" if kind == "c" else "s_mul_i32 s94, s94, 10")
                st("s_add_u32 s94, s94, 6000")
                st.label("L_prb")
                st("s_memrealtime s[98:99]\ns_waitcnt lgkmcnt(0)\ns_sub_u32 s98, s98, s100\ns_cmp_lt_u32 s98, s94\ns_cbranch_scc1 L_prb")
                st.label("L_prbx")
        if not (self.c.diag & level) or self.sc: return
        l = self.nstamp.setdefault(role, [])
        i = len(l); l.append(name)
        assert i < 13
        st(f"{'s_memtime' if name.startswith('cyc') or self.c.cyc else 's_memrealtime'} {sr(sSTAMP + 2*i, 2)}")

    def dump_stamps(self, st, role):
        if not self.c.diag or self.sc: return
        n = len(self.nstamp[role])
        st("s_waitcnt lgkmcnt(0)")
        st(f"s_lshl_b32 s{sT0}, s2, 3\ns_add_u32 s{sT0}, s{sT0}, s{sW}")
        st(f"s_add_u32 s{sT0}, s{sT0}, {4 if role == 'h' else 0}\ns_lshl_b32 s{sT0}, s{sT0}, 6\ns_add_u32 s{sT0}, s{sT0}, {WS_DIAG}")
        for i in range(n):
            st(f"v_mov_b32 v1, s{sSTAMP + 2*i}")
            st(f"buffer_store_dword v1, off, {srd(WS)}, s{sT0} offset:{4*i}")
        st("s_waitcnt vmcnt(0)")

    def notready(self, st, vdst, need):
        st(f"v_subrev_u32 v{vdst}, s{sEP}, v{vdst}")
        st(f"v_subrev_u32 v{vdst}, {need}, v{vdst}")
        st(f"v_cmp_lt_u32 vcc, {15 - need}, v{vdst}")

    def poll(self, st, name, vaddr, soff, vdst, need, exact=False, lanes=64):
        st(f"s_mov_b32 s{sCNT}, {SPIN}")
        if lanes < 64: st(f"s_bfm_b64 exec, {lanes}, 0")
        st.label(name)
        st(f"buffer_load_dword v{vdst}, v{vaddr}, {srd(WS)}, {soff} offen sc1")
        st.wait_vm()
        if exact: st(f"v_cmp_ne_u32 vcc, s{sEP1}, v{vdst}")
        else: self.notready(st, vdst, need)
        st(f"s_cbranch_vccz {name}_ok")
        st(f"s_sub_u32 s{sCNT}, s{sCNT}, 1")
        st(f"s_cbranch_scc0 {name}")
        st.label(name + "_ok")
        if lanes < 64: st("s_mov_b64 exec, -1")

    def pad(self, st, at):
        if not self.c.padto or self.c.padat != at: return
        if self.c.padwg >= 0: st(f"s_cmp_lg_u32 s2, {self.c.padwg}\ns_cbranch_scc1 L_padx")
        st.label("L_pad")
        st("s_memrealtime s[98:99]\ns_waitcnt lgkmcnt(0)\ns_sub_u32 s98, s98, s100")
        st(f"s_cmp_lt_u32 s98, {self.c.padto * 100}\ns_cbranch_scc1 L_pad")
        st.label("L_padx")

    def lds_min(self, st, r, need):
        st(f"v_min3_u32 v{r}, v{r}, v{r+1}, v{r+2}\nv_min_u32 v{r}, v{r}, v{r+3}\nv_cmp_gt_u32 vcc, {need}, v{r}")

    def lds_spin(self, st, name, va, r, need, sleep=0):
        st(f"s_mov_b32 s{sCNT}, {SPIN * 16}")
        st.label(name)
        st(f"ds_read_b128 {vr(r,4)}, v{va}")
        st.wait_ds()
        self.lds_min(st, r, need)
        st(f"s_cbranch_vccz {name}_ok")
        if sleep: st(f"s_sleep {sleep}")
        st(f"s_sub_u32 s{sCNT}, s{sCNT}, 1\ns_cbranch_scc0 {name}")
        st.label(name + "_ok")

    def validate(self, st, name, regs, tmp, reload, inline=False):
        def test(o):
            r = list(regs)
            while len(r) > 1:
                if len(r) > 2: o(f"v_max3_u32 v{tmp}, v{r[0]}, v{r[1]}, v{r[2]}"); r = [tmp] + r[3:]
                else: o(f"v_max_u32 v{tmp}, v{r[0]}, v{r[1]}"); r = [tmp]
            o(f"v_cmp_eq_u32 vcc, -1, v{r[0]}")
        name += self.sfx
        test(st)
        if inline:
            st(f"s_cbranch_vccz {name}r")
            o = st
        else:
            st(f"s_cbranch_vccnz {name}s")
            st.label(name + "r")
            o = self.tailcode if self.sc else self.near
            o.label(name + "s")
        o(f"s_mov_b32 s{sCNT}, {SPIN}")
        o.label(name + "l")
        if self.c.diag & 512 and not self.sc: o(f"s_add_u32 s{CODE}, s{CODE}, {1 if name[2] == 'g' else 256 if name == 'L_a0' else 65536}")
        for l in reload: o(l)
        o("s_waitcnt vmcnt(0)")
        test(o)
        o(f"s_cbranch_vccz {name}r\ns_sub_u32 s{sCNT}, s{sCNT}, 1\ns_cbranch_scc0 {name}l")
        if inline: st.label(name + "r")
        else: o(f"s_branch {name}r")

    def epoch_load(self, st):
        st(f"s_load_dword s{sEP}, {sr(WS,2)}, {WS_EPOCH}")

    def epoch_make(self, st):
        st(f"s_and_b32 s{sEP}, s{sEP}, 0xfffffff0\ns_add_u32 s{sEP}, s{sEP}, 0x9e3779b0\ns_add_u32 s{sEP1}, s{sEP}, 1")

    def srds(self, st, lst):
        for b, n in lst: st(f"s_mov_b32 s{b+2}, {n}\ns_mov_b32 s{b+3}, 0x20000")

    def prologue(self, st):
        st(f"s_load_dwordx2 {sr(X,2)}, s[0:1], 0\ns_lshr_b32 s{sT2}, s2, 1\ns_and_b32 s{sT2}, s{sT2}, 8\ns_add_u32 s{sT2}, s{sT2}, 16")
        st(f"s_load_dwordx2 {sr(WKVS,2)}, s[0:1], s{sT2}\ns_load_dwordx2 {sr(WS,2)}, s[0:1], 88")
        st("s_cmpk_ge_u32 s2, 256\ns_cbranch_scc1 L_end")
        if self.c.jitter: st("s_memtime s[98:99]\ns_waitcnt lgkmcnt(0)\ns_mov_b32 s99, s98")
        st(f"s_getpc_b64 {sr(CODE,2)}")
        st.label("L_pc")
        st(f"v_readfirstlane_b32 s{sT0}, v0\ns_lshr_b32 s{sIDX}, s2, 3\ns_lshl_b32 s{sT1}, s{sIDX}, 11")
        st(f"s_mov_b32 s{CODE+2}, L_codeend-L_pc\ns_mov_b32 s{CODE+3}, 0x20000\nv_lshrrev_b32 v1, 5, v0\nv_lshlrev_b32 v1, 7, v1")
        st(f"buffer_load_dword v255, v1, {srd(CODE)}, s{sT1} offen")
        st(f"s_and_b32 s{sG}, s2, 7\ns_lshr_b32 s{sT1}, s{sIDX}, 2\ns_lshl_b32 s{sRB}, s{sG}, 3\ns_add_u32 s{sRB}, s{sRB}, s{sT1}")
        st(f"s_and_b32 s{sCB}, s{sIDX}, 3\ns_bfe_u32 s{sW}, s{sT0}, 0x20006\nv_and_b32 v0, 63, v0")
        if self.c.pads: st(f"s_mov_b32 s{sWALK}, 0")
        st(f"s_cmpk_lt_u32 s{sT0}, 256\ns_cbranch_scc{1 - self.c.hfirst} L_main")

    def main_phase_a(self, st):
        st("; ---- main: phase A")
        self.stamp(st, "m", "start", 4095)
        vD, vTR, vXB, vXC = 2, 3, 4, 5
        XR, ACC = 112, 144
        st.vq.append((None, False))
        if self.c.mprio: st(f"s_setprio {self.c.mprio}")
        st(f"s_load_dwordx2 {sr(WQ,2)}, s[0:1], 8\ns_load_dwordx2 {sr(MOUT,2)}, s[0:1], 72")
        st(f"v_and_b32 v12, 15, v0\nv_lshlrev_b32 v12, 2, v12\nv_add_u32 v12, {PROG}, v12\nv_mov_b32 v13, 0\nds_write_b32 v12, v13")
        self.srds(st, ((WQ, 524288), (WKVS, 16384), (WS, WS_SIZE)))
        st(f"s_mov_b32 s{sONE}, 0x3f803f80")
        st(f"v_lshrrev_b32 v10, 2, v0\nv_lshlrev_b32 v10, 10, v10\nv_and_b32 v11, 3, v0\nv_lshlrev_b32 v17, 7, v0\nv_lshlrev_b32 v11, 4, v11")
        st(f"s_lshl_b32 s{sT0}, s{sCB}, 8\ns_lshl_b32 s{sT1}, s{sW}, 6\ns_add_u32 s{sT0}, s{sT0}, s{sT1}")
        st(f"v_add3_u32 v{vD}, v10, v11, s{sT0}\nv_lshlrev_b32 v{self.vK}, 4, v0")
        if self.c.fake & 8:
            st(f"v_lshrrev_b32 v10, 3, v0\nv_lshlrev_b32 v10, 10, v10\nv_and_b32 v11, 7, v0\nv_lshlrev_b32 v11, 4, v11\ns_and_b32 s{sT1}, s{sW}, 1\ns_mul_i32 s{sT1}, s{sT1}, {8192-64}\ns_add_u32 s{sT0}, s{sT0}, s{sT1}\nv_add3_u32 v{vD}, v10, v11, s{sT0}")
        st(f"s_mul_i32 s{sA}, s{sW}, {NWQ*1024}\ns_add_u32 s{sA}, s{sA}, {WQST}")
        st(f"s_lshr_b32 s{sB}, s{sIDX}, 2\ns_lshl_b32 s{sC}, s{sB}, 16")
        st(f"s_lshl_b32 s{sT0}, s{sB}, 1\ns_and_b32 s{sT1}, s{sCB}, 1\ns_add_u32 s{sT0}, s{sT0}, s{sT1}\ns_lshl_b32 s{sT0}, s{sT0}, 2\ns_add_u32 s{sT0}, s{sT0}, s{sW}\ns_lshl_b32 s{sT0}, s{sT0}, 8")
        st(f"s_lshl_b32 s{sT1}, s{sIDX}, 2\ns_add_u32 s{sT1}, s{sT1}, s{sW}\ns_lshl_b32 s{sT2}, s{sT1}, 7\ns_mul_i32 s{sT1}, s{sT1}, {128 * self.c.tq if self.c.nh else 4096}")
        st(f"s_lshl_b32 s{sT3}, s{sG}, 14\ns_add_u32 s{sT2}, s{sT2}, s{sT3}\ns_add_u32 s{sT2}, s{sT2}, {WS_KVL}\ns_lshl_b32 s{sT3}, s{sG}, 7\ns_add_u32 s{sT3}, s{sT3}, {WS_FLGL}")
        st("s_waitcnt lgkmcnt(0)")
        self.epoch_load(st)
        if self.c.tm < 2: st.bar("B00")
        st("s_mov_b64 exec, 3")
        if self.c.tkv: st.vm(f"buffer_load_dword v254, v17, {srd(WKVS)}, s{sT0} offen")
        st("s_mov_b64 exec, 1")
        st.vm(f"buffer_load_dword v253, off, {srd(WS)}, s{sT2} sc1")
        st.vm(f"buffer_load_dword v252, off, {srd(WS)}, s{sT3} sc1")
        if self.c.tm: st(f"s_lshl_b32 s{sT1}, s2, 2\ns_add_u32 s{sT1}, s{sT1}, s{sW}\ns_lshl_b32 s{sT1}, s{sT1}, 9")
        st(f"s_bfm_b64 exec, {4 if self.c.tm else self.c.tq}, 0")
        st.vm(f"buffer_load_dword v248, v17, {srd(WQ)}, s{sT1} offen")
        st("s_mov_b64 exec, -1")
        if self.c.tm == 2: st.bar("B00")
        st(f"v_lshrrev_b32 v10, 5, v0\nv_lshlrev_b32 v11, 9, v10\nv_bfe_u32 v13, v0, 2, 2\nv_lshl_add_u32 v11, v13, 6, v11")
        st(f"v_bfe_u32 v13, v0, 4, 1\nv_lshl_add_u32 v11, v13, 5, v11\nv_and_b32 v13, 3, v0\nv_lshl_add_u32 v11, v13, 3, v11")
        st(f"v_add_u32 v{vTR}, s{sA}, v11")
        st(f"v_mul_u32_u24 v11, 528, v10\nv_and_b32 v13, 31, v0\nv_lshl_add_u32 v11, v13, 4, v11\nv_add_u32 v{vXB}, {XN}, v11")
        st(f"v_mov_b32 v18, {XC}\nv_lshlrev_b32 v16, 2, v0")
        self.kv_addr(st)
        late = Stream()
        self.main_scalars(st, late)
        self.attn_setup(late)
        for l in late.lines[:self.c.nearly]: st(l)
        late.lines = late.lines[self.c.nearly:]
        st("s_waitcnt lgkmcnt(0)")
        self.epoch_make(st)
        st(f"s_getreg_b32 s{sXCC}, hwreg(HW_REG_XCC_ID, 0, 4)\ns_add_u32 s{sXCC}, s{sXCC}, s{sEP}")
        st.bar("B0")
        self.stamp(st, "m", "B0", 64)
        nh, nb = self.c.nh, self.c.nb
        assert nh in (0, self.c.tq)
        gs = (32 - nh) // 8
        rot = [(a, nh + b) for a in range(8) for b in range(gs)]
        seq = [(None, k) for k in range(nb)] + rot[:gs] + [(None, k) for k in range(nb, nh)] + rot[gs:]
        def dma(j):
            a, k = seq[j]
            st(f"s_add_u32 m0, s{sA}, {(j % NWQ)*1024}")
            if a is None: st(f"s_mov_b32 s{sT1}, {k*16384}")
            elif nh == 0: st(f"s_xor_b32 s{sT1}, s{sC}, {j*16384}")
            else: st(f"s_xor_b32 s{sT1}, s{sB}, {a}\ns_mul_i32 s{sT1}, s{sT1}, {gs*16384}\ns_add_u32 s{sT1}, s{sT1}, {k*16384}")
            st.vm(f"buffer_load_dwordx4 v{vD}, {srd(WQ)}, s{sT1} offen lds", ("wq", j))
        nd = self.c.npre
        for j in range(nd): dma(j)
        self.stamp(st, "m", "pre", 64)
        st(f"s_cmp_gt_u32 s{sW}, {self.c.kv2}\ns_cbranch_scc1 L_nokv")
        self.kv_job(st)
        st.label("L_nokv")
        st.vq += [(None, True)] * 2
        for _ in range(self.c.nmore): dma(nd); nd += 1
        fill = [f"v_mov_b32 v{self.vVAL}, s{sEP1}"] + late.lines
        JX, NWR = self.c.jx, 20
        wreg = lambda j: 168 + 4 * (j % NWR)
        nx = nm = 0
        def rdx():
            nonlocal nx
            a, k = seq[nx]
            if a is not None and k == nh:
                st(f"s_xor_b32 s{sT1}, s{sB}, {a}\ns_mul_i32 s{sT1}, s{sT1}, {gs*1056}\nv_add_u32 v{vXC}, s{sT1}, v{vXB}")
            st.ds(f"ds_read_b128 {vr(XR+4*(nx % 8),4)}, v{vXB if a is None else vXC} offset:{k*1056}", ("x", nx)); nx += 1
        def mm():
            nonlocal nm
            st.wait_ds(("x", nm)); st.wait_ds(("w", nm))
            if self.c.fake & 64:
                for h in range(2): st(mfma16(ACC + 8 * (nm % 2) + 4 * h, wreg(max(nm - h, 0)), XR + 4 * (nm % 8), "0" if nm < 2 else None))
            else: st(mfma32(ACC, wreg(nm), XR + 4 * (nm % 8), "0" if nm == 0 else None))
            nm += 1
            if nx < 32: rdx()
            for _ in range(2):
                if fill: st(fill.pop(0))
            if nm in (9, 20): self.stamp(st, "m", f"q{nm}", 64)
        for j in range(32):
            if j == JX:
                self.lds_spin(st, "L_xc", 18, 20, 3, sleep=self.c.asleep)
                self.stamp(st, "m", "B1m", 2113)
                for _ in range(4): rdx()
            assert j - nm < NWR
            if j == self.c.lfat: self.kv_flag(st, 0, nd - self.c.npre + 1)
            if j == self.c.gfat: self.kv_flag(st, 1, nd - self.c.npre + 1)
            st.wait_vm(("wq", j))
            if j % 4 == 3 or j == 0: self.stamp(st, "m", f"j{j}", 2048)
            o = (j % NWQ) * 1024
            st.ds(f"ds_read_b64_tr_b16 {vr(wreg(j),2)}, v{vTR} offset:{o}")
            st.ds(f"ds_read_b64_tr_b16 {vr(wreg(j)+2,2)}, v{vTR} offset:{o+256}", ("w", j))
            if nd < 32 and nd - NWQ <= j - 2:
                if nd >= NWQ: st.wait_ds(("w", nd - NWQ))
                dma(nd); nd += 1
                if j >= self.c.gfat and nd < min(NWQ, j + self.c.ndeep): dma(nd); nd += 1
            if j >= JX:
                for _ in range(2):
                    if nm < j - 1: mm()
        while nm < 32: mm()
        assert nd == 32
        assert not fill
        self.stamp(st, "m", "Qdone", 2113)

    S, Q, QF, O, OF, KVB, vIDX, vK, vV0, vV1 = (112, 128), 104, 16, (72, 88), (40, 56), (24, 168), 6, 7, 8, 9

    def attn_setup(self, st):
        st(f"v_mov_b32 v{self.vIDX}, 0xdddddddd")
        st("v_and_b32 v12, 31, v0\nv_lshrrev_b32 v13, 5, v0\nv_lshl_add_u32 v13, v13, 4, v12\nv_lshlrev_b32 v13, 4, v13")
        st("v_and_b32 v14, 27, v0\nv_cmp_eq_u32 vcc, 16, v14\nv_mov_b32 v14, 2064\nv_mov_b32 v15, 2048")
        st("v_cndmask_b32 v14, v14, v15, vcc")
        st("v_cmp_gt_u32 vcc, 16, v12\nv_add_u32 v15, 1024, v13\nv_add_u32 v13, 1536, v13")
        st(f"v_cndmask_b32 v{self.vV0}, v14, v15, vcc\nv_cndmask_b32 v{self.vV1}, v14, v13, vcc")
        st(f"v_add_u32 v{self.vV0}, s{mKH}, v{self.vV0}\nv_add_u32 v{self.vV1}, s{mKH}, v{self.vV1}\nv_add_u32 v{self.vKL}, s{mKH}, v{self.vK}")
        st(f"v_mov_b32 v10, {MISC}")
        for r in range(64): st(f"v_mov_b32 v{self.OF[0]+r}, 0")

    vFZ, vVAL, vOW, vWB, vL4, vPW, vKL, vXW = range(160, 168)

    def main_scalars(self, st, late):
        st(f"s_lshl_b32 s{sT0}, s{sRB}, 4\ns_lshl_b32 s{sT1}, s{sCB}, 2\ns_add_u32 s{sT0}, s{sT0}, s{sT1}\ns_add_u32 s{sT2}, s{sT0}, s{sW}")
        st(f"s_lshl_b32 s{mO}, s{sT2}, 11\ns_xor_b32 s{mO}, s{mO}, 2048\ns_add_u32 s{mO}, s{mO}, {WS_O}")
        st(f"s_lshl_b32 s{mPM}, s{sT2}, 8\ns_add_u32 s{mPM}, s{mPM}, {WS_PM}")
        st(f"s_lshr_b32 s{sT0}, s{sIDX}, 4\ns_lshl_b32 s{sT1}, s{sG}, 1\ns_add_u32 s{sT1}, s{sT1}, s{sT0}\ns_lshl_b32 s{sT1}, s{sT1}, 2\ns_add_u32 s{mRB}, s{sT1}, s{sW}")
        st(f"s_lshl_b32 s{sT1}, s{mRB}, 15")
        for i in range(4): st(f"s_add_u32 s{sP+i}, s{sT1}, {8192*i}")
        self.srds(st, ((MOUT, 2097152),))
        st(f"s_lshl_b32 s{mST}, s{mRB}, 12\ns_add_u32 s{mST}, s{mST}, {WS_ST}")
        st(f"s_and_b32 s{sT0}, s{sIDX}, 15\ns_mul_i32 s{mHH0}, s{mRB}, 114688\ns_mul_i32 s{sT1}, s{sT0}, 7168")
        st(f"s_add_u32 s{mHH0}, s{mHH0}, s{sT1}\ns_add_u32 s{mHH0}, s{mHH0}, {WS_HH}\ns_add_u32 s{mHH1}, s{mHH0}, 4096")
        st(f"s_and_b32 s{mKH}, s{sW}, 1\ns_mul_i32 s{mKH}, s{mKH}, {TILE}")
        st(f"s_lshl_b32 s{sT1}, s{mRB}, 7\ns_lshl_b32 s{sT0}, s{sT0}, 2\ns_add_u32 s{mF4}, s{sT1}, s{sT0}\ns_add_u32 s{mF4}, s{mF4}, {WS_FLG4}")
        st(f"s_mov_b32 s{mCHK}, 0")
        st(f"s_xor_b32 s{sE}, s{sW}, 1\ns_lshl_b32 s{sD}, s{sE}, 11\ns_lshl_b32 s{sE}, s{sE}, 7\ns_add_u32 s{sE}, s{sE}, {WBL}")
        late(f"v_cmp_eq_u32 vcc, 0, v0\nv_mov_b32 v{self.vFZ}, 0x80000000\nv_add_u32 v{self.vOW}, s{sD}, v{self.vK}\nv_cndmask_b32_e64 v{self.vFZ}, v{self.vFZ}, 0, vcc")
        late(f"v_lshrrev_b32 v13, 5, v0\nv_lshlrev_b32 v14, 6, v13\nv_add_u32 v{self.vWB}, s{sE}, v14")
        st(f"s_lshl_b32 s{mF2}, s{sW}, 2\ns_add_u32 s{mF2}, s{mF2}, {PML}")
        late(f"v_lshlrev_b32 v{self.vL4}, 2, v0\nv_add_u32 v{self.vPW}, s{mF2}, v{self.vK}\nv_xor_b32 v{self.vXW}, 2048, v{self.vOW}")

    def colo_reduce(self, st, r):
        st(f"v_and_b32 v{r}, v{r}, v{r+1}\ns_nop 0")
        st(f"v_readfirstlane_b32 s{sCOLO}, v{r}")

    def main_attention(self, st):
        st("; ---- main: phase B")
        S, KVB, O, OF = self.S, self.KVB, self.O, self.OF
        Q4, O4 = (self.QF, self.QF + 4, self.Q, self.Q + 4), OF + O
        buf = lambda t: KVB[t % 2]
        off = lambda t: (t % 8) * 2 * TILE
        rdK = lambda t: f"ds_read_b128 {vr(buf(t),4)}, v{self.vKL} offset:{off(t)}"
        rdV0 = lambda t: f"ds_read_b128 {vr(buf(t)+4,4)}, v{self.vV0} offset:{off(t)}"
        rdV1 = lambda t: f"ds_read_b128 {vr(buf(t)+8,4)}, v{self.vV1} offset:{off(t)}"
        def unit(t, q, f0=(), f1=(), f2=(), prev=0, succ=0):
            cur, nxt = S[q % 2], S[1 - q % 2]
            f0, f1, f2 = list(f0), list(f1), list(f2)
            if prev == 0: prev = (t, q - 1) if q else (t - 1, 3)
            if succ == 0: succ = (t + q // 3, (q + 1) % 4)
            e = [f"v_exp_f32 v{cur+i}, v{cur+i}" for i in range(16)]
            pv1 = [smf(O4[prev[1]], buf(prev[0]) + 8, nxt + 8, self.vIDX)] if prev else []
            mq = [mfma32(nxt, buf(succ[0]), Q4[succ[1]], "0")] if succ else []
            pv0 = smf(O4[q], buf(t) + 4, cur, self.vIDX)
            return e[0:2] + pv1 + f0 + e[2:5] + mq, f1 + e[5:11] + [pv0] + f2, e[11:16]
        parts = []
        for t in range(8):
            for q in range(4):
                f0, f1, f2 = [], [], []
                if q == 0 and t == 6: f0, f1 = [f"s_sub_u32 s{sA}, s{sA}, 1"], ["s_cbranch_scc1 L_exit"]
                if q == 1 and t % 4 == 3: f0 = ["s_barrier                ; BA"]
                if q == 2 and not (self.c.fake & 256 and t % 4 >= 2): f0, f1, f2 = [rdK(t + 1)], [rdV0(t + 1)], [rdV1(t + 1)]
                if q == 3: f0, f2 = ["s_waitcnt lgkmcnt(2)"], ["s_waitcnt lgkmcnt(0)"]
                parts += unit(t, q, f0, f1, f2)
        flat = lambda ps: "\n".join(l for p in ps for l in p)
        st.bar("B2")
        self.stamp(st, "m", "B2", 2131)
        self.stamp(st, "m", "cyc0", 32)
        for l in (rdK(0), "ds_read_b64 v[12:13], v10", rdV0(0), rdV1(0)): st(l)
        st(f"s_mov_b32 s{sA}, 3")
        st.nop(6)
        cv = [f"v_cvt_pk_bf16_f32 v{self.QF + r}, v{144+2*r}, v{144+2*r+1}" for r in range(8)]
        st("\n".join(cv[:5]))
        st("s_waitcnt lgkmcnt(2)")
        st(mfma32(S[0], buf(0), Q4[0], "0"))
        st(f"ds_write_b128 v{self.vXW}, {vr(Q4[0],4)} offset:{ODD}")
        st("\n".join(cv[5:]))
        st(f"ds_write_b128 v{self.vXW}, {vr(Q4[1],4)} offset:{ODD + 1024}")
        self.colo_reduce(st, 12)
        st.nop(4)
        rq = [f"ds_read_b128 {vr(Q4[2+q],4)}, v{self.vOW} offset:{ODD + 1024*q}" for q in range(2)]
        st(flat(unit(0, 0, [], ["s_waitcnt lgkmcnt(0)", "s_barrier                ; BQ"], rq, prev=None)))
        st(flat(unit(0, 1, ["s_waitcnt lgkmcnt(0)"], [], [])[:1]))
        if self.c.lalign: st(f".p2align {self.c.lalign}")
        st.label("L_attn")
        st(flat(parts[4:] + parts[:4]))
        st("s_branch L_attn")
        st.label("L_exit")
        R = 208
        wr = lambda q: [f"ds_write_b128 v{self.vXW}, {vr(OF[q]+4*i,4)} offset:{RING + 8192*(q+1) + 1024*i}" for i in range(2)]
        rd = [f"ds_read_b128 {vr(R+8*q+4*i,4)}, v{self.vOW} offset:{RING + 8192*(q+1) + 1024*i}" for q in range(2) for i in range(2)]
        rd.insert(2, f"ds_read_b64 {vr(R+16,2)}, v{self.vOW} offset:{RING + 24576}")
        wl = [f"v_mov_b32 v{OF[0]+9}, v{OF[1]+8}", f"ds_write_b64 v{self.vXW}, {vr(OF[0]+8,2)} offset:{RING + 24576}"]
        w0 = "s_waitcnt lgkmcnt(0)"
        st(flat(unit(6, 0, [], [rdK(7)], [rdV0(7)])[1:]))
        st(flat(unit(6, 1, ["s_waitcnt lgkmcnt(1)"], [rdV1(7)], [], succ=(7, 0))))
        st(flat(unit(7, 0, [w0], ["s_barrier                ; BA"], [], prev=(6, 1))))
        st(flat(unit(7, 1, succ=(6, 2))))
        st(flat(unit(6, 2, wr(0)[:1], wr(0)[1:], wr(1)[:1] + wl[:1], prev=(7, 1))))
        st(flat(unit(6, 3, wr(1)[1:], wl[1:], [], succ=(7, 2))))
        st(flat(unit(7, 2, [w0], ["s_barrier                ; BP"], rd[:3], prev=(6, 3))))
        st(flat(unit(7, 3, rd[3:], [], [w0], succ=None)))
        st("s_nop 0")
        st(f"v_add_f32 v{O[0]+8}, v{O[0]+8}, v{R+16}")
        st(smf(O[1], buf(7) + 8, S[1] + 8, self.vIDX))
        for r in range(8): st(f"v_add_f32 v{O[0]+r}, v{O[0]+r}, v{R+r}")
        st.nop(4)
        st(f"v_add_f32 v{O[1]+8}, v{O[1]+8}, v{R+17}")
        for r in range(0, 8, 2): st(f"v_pk_add_f32 {vr(O[1]+r,2)}, {vr(O[1]+r,2)}, {vr(R+8+r,2)}")
        st.nbar += 10
        self.stamp(st, "m", "attn_end", 1043)
        self.stamp(st, "m", "cyc1", 32)
        st.label("L_norm")
        st(f"s_cmp_eq_u32 s{sCOLO}, {2 if self.c.force_slow else 1}\ns_cbranch_scc0 L_main_slow")
        self.fallback()

    def main_publish_o(self, st):
        st("; ---- main: publish attention output, gather the other heads")
        O, T, WB, sc = self.O, 192, 176, self.sc
        if self.c.diag & 512: st(f"s_mov_b32 s{CODE}, 0")
        st(f"v_rcp_f32 v{T+8}, v{O[0]+8}\ns_movk_i32 s{sT0}, 0x207")
        for r in range(8): st(f"v_mul_f32 v{O[0]+r}, v{T+8}, v{O[0]+r}")
        st(f"v_rcp_f32 v{T+8}, v{O[1]+8}")
        st(f"v_min_f32 v{T+12}, v{O[0]+8}, v{O[1]+8}\nv_add_f32 v{T+13}, v{O[0]+8}, v{O[1]+8}")
        for r in range(0, 8, 2): st(f"v_pk_mul_f32 {vr(O[1]+r,2)}, {vr(O[1]+r,2)}, {vr(T+8,2)} op_sel_hi:[1,0]")
        for r in range(0, 8, 2): st(f"v_pk_fma_f32 {vr(T+10,2)}, {vr(O[0]+r,2)}, {vr(O[1]+r,2)}, {vr(T+10,2) if r else 0}".replace(", 0", ", 0 op_sel_hi:[1,1,0]"))
        st(f"v_cmp_nle_f32 vcc, {f32(2.0**-64)}, v{T+12}")
        st(f"v_add_f32 v{T+10}, v{T+10}, v{T+11}")
        st(f"v_cmp_class_f32_e64 {sr(sT2,2)}, v{T+10}, s{sT0}")
        st(f"s_or_b64 {sr(sT2,2)}, {sr(sT2,2)}, vcc")
        st(f"v_cmp_nge_f32 vcc, {f32(2.0**64)}, v{T+13}")
        for r in range(4): st(f"v_cvt_pk_bf16_f32 v{T+r}, v{O[0]+2*r}, v{O[0]+2*r+1}")
        st(f"s_or_b64 {sr(sT2,2)}, {sr(sT2,2)}, vcc")
        if self.c.force_fallback: st(f"s_or_b64 {sr(sT2,2)}, {sr(sT2,2)}, 1")
        st(f"s_cbranch_scc1 L_unsafe{self.sfx}")
        st.label("L_safe" + self.sfx)
        self.stamp(st, "m", "safe", 1024)
        tc = self.tailcode
        tc.label("L_unsafe" + self.sfx)
        tc(f"s_waitcnt lgkmcnt(0)\ns_cmp_eq_u32 s{mCHK}, 0\ns_cbranch_scc1 L_fallback")
        tc(f"v_min_u32 v{T}, -2, v{T}\nv_cmp_o_f32 vcc, v{O[1]}, v{O[1]}\nv_mov_b32 v{T+9}, 0x7fc00000\ns_nop 0\nv_cndmask_b32 v{O[1]}, v{T+9}, v{O[1]}, vcc")
        tc(f"s_branch L_safe{self.sfx}")
        sto = lambda q: st.vm(f"buffer_store_dwordx4 {vr(T+4*q,4)}, v{self.vK}, {srd(WS)}, s{mO} offen offset:{1024*q}{sc or ' ' + self.c.of}")
        sto(0)
        for i in range(4): st(f"ds_read_b128 {vr(WB+4*i,4)}, v{self.vWB} offset:{16*i}")
        for r in range(4): st(f"v_cvt_pk_bf16_f32 v{T+4+r}, v{O[1]+2*r}, v{O[1]+2*r+1}")
        sto(1)
        self.stamp(st, "m", "Ost", 1025)
        for a in range(1, 4): st(f"s_xor_b32 s{4+a}, s{mO}, {8192*a}\ns_xor_b32 s{8+a}, s{mPM}, {1024*a}")
        st("s_waitcnt lgkmcnt(0)")
        for r in range(8):
            for hl in range(2):
                d = T + 10 + hl + 4 * (r % 2)
                st(f"v_dot2_f32_bf16 v{d}, v{T+r}, v{WB+8*hl+r}, {'0' if r < 2 else 'v%d' % d}")
        for q in range(2): st(f"ds_write_b128 v{self.vOW}, {vr(T+4*q,4)} offset:{RING + 1024*q}")
        st(f"s_nop 0\nv_pk_add_f32 {vr(T+10,2)}, {vr(T+10,2)}, {vr(T+14,2)}\nv_add_f32 v{T+10}, v{T+10}, v{T+11}\nv_min_u32 v{T+10}, -2, v{T+10}")
        G, GP = (lambda a: 208 + 8 * (a - 1)), 232
        ld = lambda a: [f"buffer_load_dwordx4 {vr(G(a)+4*q,4)}, v{self.vK}, {srd(WS)}, s{4+a} offen offset:{1024*q} sc1 {self.c.gf}" for q in range(2)]
        ldp = [f"buffer_load_dword v{GP+a}, v{self.vL4}, {srd(WS)}, s{8+a} offen sc1" for a in range(1, 4)]
        pmst = lambda: st.vm(f"buffer_store_dword v{T+10}, v{self.vL4}, {srd(WS)}, s{mPM} offen{sc or ' ' + self.c.of}")
        if self.c.pmat == 0: pmst()
        st.nop(self.c.d2)
        for l in ld(1): st.vm(l, ("g", 1))
        st("s_waitcnt lgkmcnt(0)")
        st.bar("BC0")
        self.stamp(st, "m", "BC0", 1024)
        for a in (2, 3):
            if self.c.pmat == a - 1: pmst()
            for l in ld(a): st.vm(l, ("g", a))
        if self.c.pmat == 3: pmst()
        self.d_setup(st)
        def take(a):
            st.wait_vm(("g", a))
            if a == 1: self.stamp(st, "m", "g1ret", 1024)
            self.validate(st, f"L_g{a}", (G(a), G(a) + 4), GP, ld(a), inline=True)
            self.stamp(st, "m", f"Gok{a}", 1025 if a == 1 else 1024)
            for q in range(2): st.ds(f"ds_write_b128 v{self.vOW}, {vr(G(a)+4*q,4)} offset:{RING + 8192*a + 1024*q}", ("gw", a))
        take(1)
        for l in ldp: st.vm(l, "gp")
        if self.c.g2early: take(2)
        st.wait_ds(("gw", 1))
        st.bar("BC1a")
        if not self.c.g2early: take(2)
        take(3)
        st.wait_ds(("gw", 2))
        st.bar("BC1b")
        st.wait_vm("gp")
        self.validate(st, "L_gp", (GP + 1, GP + 2, GP + 3), GP, ldp, inline=True)
        st(f"v_add_f32 v{GP+1}, v{GP+1}, v{GP+2}\nv_add_f32 v{T+10}, v{T+10}, v{GP+3}\nv_add_f32 v{T+10}, v{T+10}, v{GP+1}")
        st(f"ds_write_b32 v{self.vPW}, v{T+10}")
        st.wait_ds()
        st.bar("BC1c")

    def fallback(self):
        st = self.tailcode
        S, Q, O, KVB = self.S, self.Q, self.O, self.KVB
        K, V0, V1, NM = KVB[0], KVB[0] + 4, KVB[0] + 8, self.OF
        st.label("L_fallback")
        st(f"s_mov_b32 s{mCHK}, 1\nv_subrev_u32 v{self.vV0}, s{mKH}, v{self.vV0}\nv_subrev_u32 v{self.vV1}, s{mKH}, v{self.vV1}")
        st("v_mov_b32 v10, 0xff800000\nv_mov_b32 v11, 0xff800000")
        st(f"s_mov_b32 s{sT0}, {WS_KV}")
        st.label("L_fb1")
        st(f"buffer_load_dwordx4 {vr(K,4)}, v{self.vK}, {srd(WS)}, s{sT0} offen sc1\ns_waitcnt vmcnt(0)")
        st(mfma32(S[0], K, Q, "0")); st(mfma32(S[1], K, Q + 4, "0"))
        st.nop(12)
        for q in range(2):
            for r in range(0, 16, 2): st(f"v_max3_f32 v{10+q}, v{S[q]+r}, v{S[q]+r+1}, v{10+q}")
        st(f"s_add_u32 s{sT0}, s{sT0}, 2048\ns_cmp_lt_u32 s{sT0}, {WS_KV + 131072}\ns_cbranch_scc1 L_fb1")
        st("v_mov_b32 v12, v10\nv_mov_b32 v13, v11\ns_nop 1")
        st("v_permlane32_swap_b32 v10, v12\nv_permlane32_swap_b32 v11, v13")
        st("v_max_f32 v10, v10, v12\nv_max_f32 v11, v11, v13")
        for q in range(2):
            for r in range(16):
                st(f"v_sub_f32 v{NM[q]+r}, 0, v{10+q}\nv_mov_b32 v{O[q]+r}, 0")
        st(f"v_and_b32 v12, 27, v0\nv_cmp_eq_u32 vcc, 16, v12\nv_mov_b32 v13, s{sONE}\ns_nop 0\nv_cndmask_b32 v13, 0, v13, vcc")
        for r in range(8): st(f"v_mov_b32 v{V0+r}, v13")
        st(f"s_mov_b32 s{sT0}, {WS_KV}\ns_mov_b32 s{sT2}, 0xffff\ns_mov_b32 s{sT3}, 0xffff")
        st.label("L_fb2")
        st(f"buffer_load_dwordx4 {vr(K,4)}, v{self.vK}, {srd(WS)}, s{sT0} offen sc1")
        st(f"s_mov_b64 exec, {sr(sT2,2)}")
        st(f"buffer_load_dwordx4 {vr(V0,4)}, v{self.vV0}, {srd(WS)}, s{sT0} offen sc1")
        st(f"buffer_load_dwordx4 {vr(V1,4)}, v{self.vV1}, {srd(WS)}, s{sT0} offen sc1")
        st("s_mov_b64 exec, -1\ns_waitcnt vmcnt(0)")
        st(mfma32(S[0], K, Q, vr(NM[0], 16))); st(mfma32(S[1], K, Q + 4, vr(NM[1], 16)))
        st.nop(12)
        for q in range(2):
            for r in range(16): st(f"v_exp_f32 v{S[q]+r}, v{S[q]+r}")
        st.nop(2)
        for q in range(2):
            st(smf(O[q], V0, S[q], self.vIDX)); st(smf(O[q], V1, S[q] + 8, self.vIDX))
        st(f"s_add_u32 s{sT0}, s{sT0}, 2048\ns_cmp_lt_u32 s{sT0}, {WS_KV + 131072}\ns_cbranch_scc1 L_fb2")
        st.nop(12)
        st("s_branch L_norm")

    def stages(self):
        return [tuple(map(int, x.split(":"))) for x in self.c.gates.split(",")]

    def h_voffset(self, st, d, t):
        st(f"v_lshrrev_b32 v{d}, 3, v0\nv_lshlrev_b32 v{d}, 10, v{d}\nv_and_b32 v{t}, 7, v0\nv_lshl_add_u32 v{d}, v{t}, 4, v{d}")

    def h_base(self, st, d):
        st(f"s_lshl_b32 s{d}, s{sRB}, 1\ns_and_b32 s{sT3}, s{sW}, 1\ns_add_u32 s{d}, s{d}, s{sT3}\ns_lshl_b32 s{d}, s{d}, 14")
        st(f"s_lshl_b32 s{sT3}, s{sCB}, 2\ns_add_u32 s{sT3}, s{sT3}, s{sW}\ns_lshr_b32 s{sT3}, s{sT3}, 1\ns_lshl_b32 s{sT3}, s{sT3}, 7\ns_add_u32 s{d}, s{d}, s{sT3}")

    def d_setup(self, st):
        vFZ, vVAL, vO, vF = 10, 11, (2, 3), (24, 25, 26, 27)
        st(f"v_mov_b32 v{vFZ}, v{self.vFZ}\nv_mov_b32 v{vVAL}, v{self.vVAL}")
        st("v_lshrrev_b32 v13, 5, v0\nv_bfe_u32 v15, v0, 2, 3\nv_lshl_add_u32 v15, v13, 4, v15\nv_and_b32 v16, 3, v0\nv_lshlrev_b32 v16, 3, v16")
        st(f"v_mul_u32_u24 v17, 96, v15\nv_add_u32 v17, v17, v16\nv_add_u32 v{vO[0]}, {ODD}, v17\nv_add_u32 v{vO[1]}, {ODD + 49152}, v17")
        st(f"v_lshlrev_b32 v17, 7, v15\nv_bfe_u32 v18, v0, 3, 2\nv_lshlrev_b32 v18, 5, v18\nv_add3_u32 v{vF[0]}, v17, v18, v16")
        for i in range(1, 4): st(f"v_xor_b32 v{vF[i]}, {32*i}, v{vF[0]}")
        st("v_lshrrev_b32 v14, 4, v0\nv_lshlrev_b32 v4, 12, v14\nv_bfe_u32 v15, v0, 3, 1\nv_lshl_add_u32 v4, v15, 10, v4\nv_and_b32 v15, 7, v0\nv_lshl_add_u32 v4, v15, 4, v4")
        st("v_and_b32 v15, 15, v0\nv_lshlrev_b32 v15, 4, v15\nv_lshl_add_u32 v5, v14, 10, v15")
        st("v_lshl_add_u32 v6, v13, 8, v15\nv_and_b32 v14, 1, v14\nv_lshl_add_u32 v6, v14, 9, v6")
        vPG, vLD = 14, 15
        st(f"s_lshl_b32 s{sT0}, s{sW}, 2\ns_add_u32 s{sT0}, s{sT0}, {PROG}\nv_mov_b32 v{vPG}, s{sT0}\nv_mov_b32 v{vLD}, {LAND}")

    def main_phase_d(self, st):
        st("; ---- main: phase D")
        T, sc = self.c.tail, self.sc
        ACC, BR, AR, STT = 144, 112, 40, 28
        NBR, LA, NAR = 8, self.c.la, 18
        vFZ, vVAL, vO, vF, vC1, vSD = 10, 11, (2, 3), (24, 25, 26, 27), (8, 9), (17, 18)
        vPG, vLD, vN, CK = 14, 15, 16, 20
        nu = 16 - T
        base = 14 * nu
        order = [(u, mat, n) for u in range(nu) for mat in range(2) for n in range(7)]
        order += [(u, mat, n) for n in range(7) for mat in range(2) for u in range(nu, 16)]
        def rdB(m, ts=(0, 1)):
            u, mat, n = order[m]
            b = BR + 4 * (m % NBR)
            for t in ts:
                if n < 3: va, o = vO[u // 8], (u % 8) * 6144 + mat * 3072 + t * 768 + 32 * n
                else: va, o = vF[n - 3], slot8(FSLOT[u]) + mat * 4096 + t * 1024
                st.ds(f"ds_read_b64_tr_b16 {vr(b+2*t,2)}, v{va} offset:{o}", ("b", m))
        for m in range(LA): rdB(m)
        st.bar("BC2")
        self.stamp(st, "m", "BC2", 1025)
        st.nop(self.c.d3)
        nxt = [0]
        lda = lambda a: f"buffer_load_dwordx4 {vr(AR+4*(a % NAR),4)}, v4, {srd(MOUT)}, s{sP + (a & 2)} offen offset:{128*(a // 4) + 2048*(a & 1)} sc1"
        def ldA(upto):
            while nxt[0] < min(32, upto):
                a = nxt[0]; nxt[0] += 1
                st.vm(lda(a), ("a", a))
        def chk(a, n):
            assert a + n <= nxt[0]
            st.wait_vm(("a", a + n - 1))
            self.validate(st, f"L_a{a}", [AR + 4 * (i % NAR) for i in range(a, a + n)], 13,
                          [lda(i) for i in range(a, min(nxt[0], max(a + n, (a | 7) + 1)))], inline=(a == 0))
        ldA(2)
        if self.c.diag & 1024:
            st.wait_vm(("a", 1))
            self.stamp(st, "m", "a0ret", 1024)
        chk(0, 2)
        self.stamp(st, "m", "x3ok", 1029)
        def run(op): op() if callable(op) else st(op)
        lds_ = [f"buffer_load_dwordx4 {vr(STT+4*i,4)}, v5, {srd(WS)}, s{mST} offen offset:{512 + 256*i} sc1" for i in range(2)]
        def ldst():
            for l in lds_: st.vm(l, "st")
        a, b = STT, STT + 4
        stats = [lambda: st.wait_vm("st"), lambda: self.validate(st, "L_st", range(STT, STT + 8), STT + 8, lds_)]
        stats += [f"v_add_f32 v{x}, v{x}, v{x+1}" for x in (a, a + 2, b, b + 2)] + [f"v_add_f32 v{x}, v{x}, v{x+2}" for x in (a, b)]
        stats += [f"v_permlane16_swap_b32 v{a}, v{b}", f"v_add_f32 v{a}, v{a}, v{b}", f"v_mov_b32 v{b}, v{a}", f"v_mov_b32 v{a+2}, {f32(1e-5)}",
                  f"v_permlane32_swap_b32 v{a}, v{b}", f"v_add_f32 v{a}, v{a}, v{b}", f"v_fmac_f32 v{a+2}, {f32(1.0/512)}, v{a}", f"v_rsq_f32 v{a+3}, v{a+2}"]
        stats += [f"v_sqrt_f32 v{x}, v{a+2}" for x in vSD] + [f"v_mul_f32 v{x}, {f32(-1.4426950408889634)}, v{a+3}" for x in vC1]
        stats += [f"v_permlane16_swap_b32 v{vSD[0]}, v{vSD[1]}", f"v_permlane16_swap_b32 v{vC1[0]}, v{vC1[1]}"]
        pub = [1]
        def publish(cnt):
            ops = [f"v_add_u32 v{vVAL}, {cnt - pub[0]}, v{vVAL}"] if cnt > pub[0] else []
            pub[0] = cnt
            ops.append(lambda: st.wait_vm(("hh", cnt - 1)))
            ops.append(lambda: st.vm(f"buffer_store_dword v{vVAL}, v{vFZ}, {srd(WS)}, s{mF4} offen{sc}"))
            ops.append(lambda: self.stamp(st, "m", f"pub{cnt}", 8))
            return ops
        def epilogue(n):
            a = ACC + 16 * n
            ops = [f"v_mul_f32 v{a+j}, v{vC1[j//4]}, v{a+j}" for j in range(8)]
            ops += [f"v_exp_f32 v{a+j}, v{a+j}" for j in range(8)]
            ops += [f"v_fma_f32 v{a+j}, v{a+j}, v{vSD[j//4]}, v{vSD[j//4]}" for j in range(8)]
            ops += [f"v_rcp_f32 v{a+j}, v{a+j}" for j in range(8)]
            ops += [f"v_mul_f32 v{a+j}, v{a+j}, v{a+8+j}" for j in range(8)]
            ops += [f"v_cvt_pk_bf16_f32 v{a+8+j}, v{a+2*j}, v{a+2*j+1}" for j in (0, 2, 1, 3)]
            ops += [f"v_permlane32_swap_b32 v{a+8}, v{a+10}", f"s_nop 0\nv_permlane32_swap_b32 v{a+9}, v{a+11}"]
            return ops
        def store(n):
            a = ACC + 16 * n
            st.vm(f"buffer_store_dwordx4 {vr(a+8,4)}, v6, {srd(WS)}, s{mHH0 if n < 4 else mHH1} offen offset:{1024*(n % 4)} sc1", ("hh", n))
        cost = lambda op: 8 if op.startswith(("v_exp", "v_rcp")) else 4
        fill, first = {}, {}
        put = lambda d, g, op: d.setdefault(g, []).append(op)
        put(first, 0, lambda: ldA(4)); put(first, 6, lambda: ldA(6)); put(first, 16, lambda: ldA(8))
        for u in range(1, nu):
            for g, d in ((2, 2), (16, 4)): put(first, 28 * u + g, lambda x=min(2 * u + NAR, 4 + 4 * u + d): ldA(x))
        put(first, 28 * (nu - 3) + 8, ldst)
        for i, op in enumerate(stats): put(fill, 28 * (nu - 1) + 1 + i, op)
        stages = [x[0] for x in self.stages()]
        for n in range(7):
            ops = epilogue(n)
            g0, ng = 2 * (base + 2 * T * n + T) + 3, 4 * T - 2
            tot, acc = sum(map(cost, ops)), 0
            for op in ops:
                put(fill, g0 + acc * ng // tot, op); acc += cost(op)
            put(first, g0 + ng, lambda n=n: store(n))
            if n + 1 in stages:
                for op in publish(n + 1): put(first, g0 + ng + 2 * self.c.lag, op)
        assert T == 7
        posts = {3: 1, base + 6 * T - 1: 20, 223: 30}
        posts.update({14 * u + 13: u + 2 for u in range(8)})
        checks = {14 * 3 + 3 - LA: 5, 14 * 5 + 3 - LA: 7, 14 * 7 + 3 - LA: 9, base + 6 * T - LA: 16}
        vplan = {11: (2, 2), 14 + 11: (4, 4), 14 * 3 + 11: (8, 4), 14 * 5 + 6: (12, 4), 14 * 6 + 12: (16, 4), 14 * 7 + 5: (20, 4), 14 * 7 + 12: (24, 4), 14 * 8 + 12: (28, 4)}
        near = self.near if not sc else self.tailcode
        for m in range(224):
            u, mat, n = order[m]
            wp = self.c.wper
            if m % wp == 0: st.wait_ds(("b", min(m + wp - 1, 223)))
            for mh in range(2):
                g = 2 * m + mh
                m2, h2 = m, mh ^ (m & 1 if self.c.zig & (1 if m >= base else 2) else 0)
                if self.c.zig & 4 and m >= base and (order[m ^ 1][1:] == order[m][1:]): m2, h2 = (m & ~1) + (mh ^ (m & 1)), m & 1
                u2 = order[m2][0]
                st(mfma16(ACC + 16 * n + 8 * mat + 4 * h2, BR + 4 * (m2 % NBR), AR + 4 * ((2 * u2 + h2) % NAR), "0" if u == 0 else None))
                if g == 0: self.stamp(st, "m", "mfma0", 4)
                for op in first.pop(g, []): run(op)
                if mh == 0 and m in checks:
                    lab = f"L_ld{checks[m]}{self.sfx}"
                    st(f"s_cbranch_vccnz {lab}s")
                    st.label(lab + "r")
                    near.label(lab + "s")
                    self.lds_spin(near, lab, vLD, CK, checks[m])
                    near(f"s_branch {lab}r")
                if m + LA < 224: rdB(m + LA, (mh,))
                if m in posts:
                    if mh == 0: st(f"v_mov_b32 v{vN}, {posts[m]}")
                    else: st.ds(f"ds_write_b32 v{vPG}, v{vN}")
                if mh == 0 and m + 5 in checks: st.ds(f"ds_read_b128 {vr(CK,4)}, v{vLD}", "ck")
                if mh == 1 and m + 1 in checks:
                    st.wait_ds("ck")
                    self.lds_min(st, CK, checks[m + 1])
                assert not (m + 1 in checks and m in vplan)
                if mh == 1 and m in vplan: chk(*vplan[m])
                for op in fill.pop(g, []): run(op)
            if m < base and m % 28 == 27: self.stamp(st, "m", f"u{m // 14}", 4)
            if m == base: self.stamp(st, "m", "tail0", 4)
            if m == base + 2 * T: self.stamp(st, "m", "tail1", 4)
            if m >= base and (m - base) % (2 * T) == 0: self.stamp(st, "m", f"t{(m - base) // (2 * T)}", 256)
        assert nxt[0] == 32
        self.stamp(st, "m", "Dmfma_end", 269)
        for g in sorted(set(first) | set(fill)):
            for op in first.get(g, []) + fill.get(g, []): run(op)
        self.stamp(st, "m", "end", 13)
        if self.c.diag & 512 and not sc:
            self.nstamp["m"].append("retry")
            st(f"s_waitcnt lgkmcnt(0)\ns_mov_b32 s{sSTAMP + 2*(len(self.nstamp['m'])-1)}, s{CODE}")
        self.dump_stamps(st, "m")
        st("s_endpgm")

    def helper_phase_a(self, st):
        st("; ---- helper: phase A")
        self.stamp(st, "h", "start", 4095)
        XP, XF, AC = 48, 80, 112
        st("s_setprio 2")
        if self.c.padto: st("s_memrealtime s[100:101]")
        st.vq.append((None, False))
        st(f"v_lshrrev_b32 v2, 4, v0\nv_and_b32 v3, 15, v0\nv_lshlrev_b32 v4, 10, v2\nv_lshl_add_u32 v4, v3, 4, v4")
        st(f"s_and_b32 s{sT2}, s{sCB}, 1\ns_lshl_b32 s{sC}, s{sT2}, 2\ns_add_u32 s{sC}, s{sC}, s{sW}\ns_lshl_b32 s{sT0}, s{sRB}, 3\ns_add_u32 s{sA}, s{sT0}, s{sC}")
        st(f"s_lshl_b32 s{sA}, s{sA}, 12\ns_xor_b32 s{sB}, s{sA}, 0x4000")
        self.srds(st, ((X, 2097152), (WKVS, 16384)))
        st(f"v_lshlrev_b32 v1, 4, v0\ns_lshl_b32 s{sD}, s{sW}, 12\ns_add_u32 m0, s{sD}, {WKV}\nv_mov_b32 v124, v4")
        st("s_waitcnt lgkmcnt(0)")
        ldx = lambda i: st.vm(f"buffer_load_dwordx4 {vr(XP+4*i,4)}, v124, {srd(X)}, s{sA if i < 4 else sB} offen offset:{256*(i % 4)}", ("x", i))
        for i in range(4): ldx(i)
        st.bar("B00")
        ldw = lambda: [st.vm(f"buffer_load_dwordx4 v1, {srd(WKVS)}, s{sD} offen offset:{1024*i} lds", "wkv") for i in range(4)]
        if self.c.sec & 2: ldw()
        st(f"s_and_b32 s{sT0}, s{sW}, 1\ns_lshl_b32 s{sT0}, s{sT0}, 3\ns_add_u32 s{sT0}, s{sT0}, 48\ns_load_dwordx2 {sr(WG,2)}, s[0:1], s{sT0}")
        for b, off in ((WO, 32), (WD, 64), (OUT, 72)):
            st(f"s_load_dwordx2 {sr(b,2)}, s[0:1], {off}")
        self.srds(st, ((WO, 524288), (WG, 1835008), (WD, 1835008), (OUT, 2097152), (WS, WS_SIZE)))
        st(f"s_mov_b32 s{sONE}, 0x3f803f80\ns_mov_b32 s{sLO}, 0x3f80\ns_mov_b32 s{sHI}, 0x3f800000")
        st(f"s_getreg_b32 s{sXCC}, hwreg(HW_REG_XCC_ID, 0, 4)")
        st(f"v_bfe_u32 v5, v0, 1, 3\nv_mul_u32_u24 v5, {TILE}, v5\nv_and_b32 v6, 1, v0\nv_lshl_add_u32 v7, v6, 4, v5")
        st(f"v_cmp_eq_u32 vcc, 0, v6\nv_mov_b32 v8, s{sONE}\ns_nop 0\nv_cndmask_b32 v8, 0, v8, vcc\nv_mov_b32 v9, v8\nv_mov_b32 v10, v8\nv_mov_b32 v11, v8")
        st.ds("ds_write_b128 v7, v[8:11] offset:2048")
        st(f"v_mul_u32_u24 v5, 528, v3\nv_lshl_add_u32 v5, v2, 4, v5\ns_lshl_b32 s{sT0}, s{sC}, 6\ns_xor_b32 s{sT1}, s{sT0}, 256")
        st(f"s_add_u32 s{sT2}, s{sT0}, {XN}\ns_add_u32 s{sT3}, s{sT1}, {XN}\nv_add_u32 v120, s{sT2}, v5\nv_add_u32 v121, s{sT3}, v5")
        st(f"s_lshr_b32 s{sT0}, s{sT0}, 2\ns_lshr_b32 s{sT1}, s{sT1}, 2\ns_add_u32 s{sT0}, s{sT0}, {MISC + 16}\ns_add_u32 s{sT1}, s{sT1}, {MISC + 16}")
        st(f"v_lshl_add_u32 v122, v2, 2, s{sT0}\nv_lshl_add_u32 v123, v2, 2, s{sT1}")
        st.wait_ds()
        self.epoch_load(st)
        self.helper_setup(st)
        st(f"s_lshl_b32 s{sT0}, s{sW}, 2\ns_add_u32 s{sT0}, s{sT0}, {XC}\nv_mov_b32 v230, s{sT0}")
        st(f"v_and_b32 v41, 31, v0\nv_lshlrev_b32 v41, 2, v41\nv_add_u32 v41, {MISC + 16}, v41")
        st(f"v_lshrrev_b32 v14, 5, v0\nv_lshl_add_u32 v14, v14, 9, v1\ns_lshl_b32 s{sT0}, s2, 11\ns_cmp_eq_u32 s{sW}, 1\ns_cselect_b32 s{sT0}, s{sT0}, 0x100000")
        self.stamp(st, "h", "setup", 64)
        def second():
            if not self.c.sec & 2: ldw()
            if not self.c.x1late:
                for i in range(4, 8): ldx(i)
            st.bar("B0")
            if self.c.wo_early == 2: ldo()
        ldo = lambda: [st.vm(f"buffer_load_dwordx4 {vr(232+4*i,4)}, v14, {srd(WO)}, s{sT0} offen offset:{512*i}") for i in range(2)]
        if self.c.wo_early == 1: ldo()
        if not self.c.sec & 1: second()
        def postw():
            st("v_mov_b32 v231, 1")
            st.wait_vm("wkv")
            st.ds("ds_write_b32 v230, v231")
        def red16(a):
            for m in ("quad_perm:[1,0,3,2]", "quad_perm:[2,3,0,1]", "row_half_mirror", "row_mirror"):
                st(f"s_nop 1\nv_add_f32_dpp v{a}, v{a}, v{a} {m} row_mask:0xf bank_mask:0xf")
        for ps in range(2):
            P = XP + 16 * ps
            for i in range(4):
                if ps == 0: st.wait_vm(("x", i))
                for r in range(4):
                    st(f"v_dot2_f32_bf16 v{AC+r%2}, v{P+4*i+r}, s{sONE}, {'0' if i == 0 and r < 2 else 'v%d' % (AC+r%2)}")
            if ps == 0: self.stamp(st, "h", "xland", 193)
            if ps == 0 and self.c.sec & 1: second()
            st(f"s_nop 2\nv_add_f32 v{AC}, v{AC}, v{AC+1}")
            red16(AC)
            st(f"v_mul_f32 v{AC}, {f32(-1.0/512)}, v{AC}")
            st.ds(f"ds_write_b32 v{122+ps}, v{AC}")
            self.stamp(st, "h", f"mean{ps}", 128)
            if ps == 0 and self.c.wcat == 0: postw()
            for r in range(16):
                st(f"v_dot2_f32_bf16 v{XF+2*r}, v{P+r}, s{sLO}, v{AC}\nv_dot2_f32_bf16 v{XF+2*r+1}, v{P+r}, s{sHI}, v{AC}")
            for r in range(16):
                d = AC + 2 + 2 * (r % 2)
                if r < 2: st(f"v_pk_mul_f32 {vr(d,2)}, {vr(XF+2*r,2)}, {vr(XF+2*r,2)}")
                else: st(f"v_pk_fma_f32 {vr(d,2)}, {vr(XF+2*r,2)}, {vr(XF+2*r,2)}, {vr(d,2)}")
            st(f"v_pk_add_f32 {vr(AC+2,2)}, {vr(AC+2,2)}, {vr(AC+4,2)}\nv_add_f32 v{AC+2}, v{AC+2}, v{AC+3}")
            red16(AC + 2)
            self.stamp(st, "h", f"var{ps}", 128)
            if ps == 0 and self.c.wcat == 1: postw()
            st(f"v_mov_b32 v{AC+3}, {f32(1e-5)}\nv_fmac_f32 v{AC+3}, {f32(1.0/512)}, v{AC+2}\nv_rsq_f32 v{AC+2}, v{AC+3}\nv_mov_b32 v231, {ps+2}")
            for i in range(4):
                for r in range(4):
                    st(f"v_pk_mul_f32 {vr(XF+8*i+2*r,2)}, {vr(XF+8*i+2*r,2)}, {vr(AC+2,2)} op_sel_hi:[1,0]")
                for r in range(4):
                    st(f"v_cvt_pk_bf16_f32 v{P+4*i+r}, v{XF+8*i+2*r}, v{XF+8*i+2*r+1}")
                st.ds(f"ds_write_b128 v{120+ps}, {vr(P+4*i,4)} offset:{8448*i}")
            self.stamp(st, "h", f"wr{ps}", 128)
            st.wait_vm("wkv")
            st.wait_ds()
            st("ds_write_b32 v230, v231")
            self.stamp(st, "h", f"ln{ps}", 2240)
            if ps == 0:
                self.epoch_make(st)
                st(f"s_add_u32 s{sXCC}, s{sXCC}, s{sEP}\nv_mov_b32 v31, s{sEP}")
                if self.c.x1late:
                    for i in range(4, 8): ldx(i)
                st.wait_vm(("x", 7))
                self.stamp(st, "h", "p2start", 128)
        st(f"s_cmp_lg_u32 s{sW}, 1\ns_cbranch_scc1 L_nowb1")
        a = 240
        if not self.c.wo_early:
            for i in range(2): st(f"buffer_load_dwordx4 {vr(232+4*i,4)}, v14, {srd(WO)}, s{sT0} offen offset:{512*i}")
        st("s_waitcnt vmcnt(0)")
        for r in range(8): st(f"v_dot2_f32_bf16 v{a}, v{232+r}, s{sONE}, {'0' if r == 0 else 'v%d' % a}")
        st("s_nop 0")
        for m in ("quad_perm:[1,0,3,2]", "quad_perm:[2,3,0,1]", "row_half_mirror", "row_mirror"):
            st(f"s_nop 1\nv_add_f32_dpp v{a}, v{a}, v{a} {m} row_mask:0xf bank_mask:0xf")
        st(f"v_mov_b32 v{a+1}, v{a}\ns_nop 1\nv_permlane16_swap_b32 v{a}, v{a+1}\nv_add_f32 v{a}, v{a}, v{a+1}")
        st(f"v_mul_f32 v{a}, {f32(1.0/512)}, v{a}\nv_mov_b32 v{a+1}, v{a}\ns_nop 1\nv_permlane32_swap_b32 v{a}, v{a+1}")
        st(f"v_cvt_pk_bf16_f32 v{a+4}, v{a}, v{a+1}\nv_lshlrev_b32 v{a+2}, 16, v{a+4}\nv_and_b32 v{a+3}, 0xffff0000, v{a+4}")
        st(f"v_sub_f32 v{a}, v{a}, v{a+2}\nv_sub_f32 v{a+1}, v{a+1}, v{a+3}\nv_cvt_pk_bf16_f32 v{a+5}, v{a}, v{a+1}")
        st(f"v_mov_b32 v{a+6}, s{sEP1}\ns_lshl_b32 s{sT0}, s2, 7\ns_add_u32 s{sF}, s{sT0}, {WS_WB}")
        st.label("L_nowb1")

    def kv_addr(self, st):
        st(f"v_lshrrev_b32 v20, 4, v0\nv_and_b32 v13, 15, v0\nv_lshlrev_b32 v14, 8, v20\nv_lshl_add_u32 v249, v13, 3, v14")
        st(f"s_and_b32 s{sT0}, s{sCB}, 1\ns_lshl_b32 s{sT1}, s{sT0}, 8\ns_add_u32 s{sT2}, s{sT1}, {XN}")
        st(f"v_mul_u32_u24 v15, 528, v20\nv_lshl_add_u32 v15, v13, 4, v15\nv_add_u32 v250, s{sT2}, v15")
        st(f"s_lshl_b32 s{sT2}, s{sT0}, 9\ns_add_u32 s{sT2}, s{sT2}, 1024\ns_cmp_ge_u32 s{sCB}, 2")
        st(f"s_cselect_b32 s{sT1}, s{sT2}, s{sT1}\ns_cselect_b32 s{sT2}, 31, 9\ns_cselect_b32 s{sT3}, 8, 31")
        st(f"v_and_b32 v14, 1, v20\nv_lshlrev_b32 v14, s{sT2}, v14\nv_lshrrev_b32 v15, 1, v20\nv_lshlrev_b32 v15, s{sT3}, v15")
        st(f"v_lshl_add_u32 v14, v13, 4, v14\nv_add3_u32 v251, v14, v15, s{sT1}")
        st(f"s_lshl_b32 s{mKG}, s{sRB}, 11\ns_add_u32 s{mKL}, s{mKG}, {WS_KVL}\ns_add_u32 s{mKG}, s{mKG}, {WS_KV}")
        st(f"s_lshl_b32 s{sT0}, s{sG}, 5\ns_add_u32 s{sT0}, s{sT0}, s{sIDX}\ns_lshl_b32 s{mFL}, s{sT0}, 2\ns_add_u32 s{mFL}, s{mFL}, {WS_FLGL}")
        st(f"s_lshl_b32 s{mFG}, s{sT0}, 7\ns_add_u32 s{mFG}, s{mFG}, {WS_FLG1}")

    def kv_job(self, st):
        WR, AC = 168, 144
        XR = [112 + 4 * j for j in range(8)] + [232 + 4 * j for j in range(4)] + [24 + 4 * j for j in range(4)]
        if self.c.kprio == 0: st("s_setprio 3")
        self.lds_spin(st, "L_wc0", 18, 20, 1, sleep=self.c.asleep)
        for j in range(16):
            for t in range(2): st.ds(f"ds_read_b64_tr_b16 {vr(WR+4*j+2*t,2)}, v249 offset:{WKV + 1024*j + 128*t}")
        self.lds_spin(st, "L_xc0", 18, 20, 2)
        if self.c.kprio == 1: st("s_setprio 3")
        self.stamp(st, "m", "m0xc", 64)
        for j in range(8): st.ds(f"ds_read_b128 {vr(XR[j],4)}, v250 offset:{2112*j}", ("rd", j))
        st(f"s_cmp_ge_u32 s{sCB}, 2\ns_cbranch_scc1 L_vjob")
        lq = list(st.lq)
        for job in ("k", "v"):
            if job == "v": st.label("L_vjob")
            st.lq = list(lq)
            for m in range(16):
                if m < 4:
                    for j in (8 + 2 * m, 9 + 2 * m): st.ds(f"ds_read_b128 {vr(XR[j],4)}, v250 offset:{2112*j}", ("rd", j))
                st.wait_ds(("rd", m))
                a, b = (WR + 4 * m, XR[m]) if job == "k" else (XR[m], WR + 4 * m)
                st(mfma16(AC, a, b, "0" if m == 0 else None))
            st.nop(8)
            if job == "k":
                for r in range(4): st(f"v_mul_f32 v{AC+r}, {f32(0.25 * 1.4426950408889634)}, v{AC+r}")
            for r in (4, 6): st(f"v_cvt_pk_bf16_f32 v{AC+r}, v{AC}, v{AC+1}\nv_cvt_pk_bf16_f32 v{AC+r+1}, v{AC+2}, v{AC+3}")
            sw = "v_permlane32_swap_b32" if job == "k" else "v_permlane16_swap_b32"
            st(f"s_nop 0\n{sw} v{AC+4}, v{AC+6}\n{sw} v{AC+5}, v{AC+7}")
            if job == "k": st("s_branch L_kvst")
        st.label("L_kvst")
        self.stamp(st, "m", "m0kvmf", 64)
        if self.c.kv2: st(f"s_cmp_lg_u32 s{sW}, 0\ns_cbranch_scc1 L_kvx")
        st(f"buffer_store_dwordx4 {vr(AC+4,4)}, v251, {srd(WS)}, s{mKL} offen")
        st(f"buffer_store_dwordx4 {vr(AC+4,4)}, v251, {srd(WS)}, s{mKG} offen {'' if self.c.fake & 16 else 'sc1'}")
        st.label("L_kvx")
        st(f"s_setprio {self.c.mprio}")

    def kv_flag(self, st, glob, younger):
        st(f"s_cmp_lg_u32 s{sW}, 0\ns_cbranch_scc1 L_nofl{glob}")
        st(f"v_mov_b32 v19, s{sEP1 if glob else sXCC}\ns_bfm_b64 exec, {32 if glob else 1}, 0\ns_waitcnt vmcnt({younger})")
        self.stamp(st, "m", "m0GF" if glob else "m0LF", 64)
        st.vm(f"buffer_store_dword v19, v16, {srd(WS)}, s{mFG if glob else mFL} offen{' sc1' if glob else ''}", cond=True)
        st("s_mov_b64 exec, -1")
        st.label(f"L_nofl{glob}")

    WOR, WDR, vWS = 128, 48, (24, 25, 13, 27)

    def odd_voffsets(self, st, base, t):
        st(f"s_and_b32 s{sT0}, s{sIDX}, 15\ns_mul_i32 s{sT0}, s{sT0}, 224\ns_lshl_b32 s{sT2}, s{sCB}, 1")
        for p in range(3):
            d = base + p
            st(f"v_add_u32 v{t}, {64*p}, v0\nv_mul_u32_u24 v{t+1}, 10923, v{t}\nv_lshrrev_b32 v{t+1}, 16, v{t+1}\nv_mul_u32_u24 v{d}, 6, v{t+1}")
            st(f"v_sub_u32 v{t}, v{t}, v{d}\nv_cmp_gt_u32 vcc, s{sT2}, v{t}\nv_mul_u32_u24 v{t+1}, 3584, v{t+1}\nv_add_u32 v{d}, 8, v{t}")
            st(f"v_cndmask_b32 v{t}, v{d}, v{t}, vcc\nv_lshlrev_b32 v{t}, 4, v{t}\nv_add3_u32 v{d}, v{t}, v{t+1}, s{sT0}")

            if self.c.fake & 128: st(f"s_mul_i32 s{sT1}, s{sT0}, 32\nv_lshlrev_b32 v{d}, 4, v0\nv_add_u32 v{d}, s{sT1}, v{d}\nv_add_u32 v{d}, {1024*p}, v{d}")

    def full_voffset(self, st, d, t):
        st(f"s_and_b32 s{sT0}, s{sIDX}, 15\ns_mul_i32 s{sT0}, s{sT0}, 224\ns_lshl_b32 s{sT1}, s{sCB}, 5\ns_add_u32 s{sT0}, s{sT0}, s{sT1}")
        st(f"v_lshrrev_b32 v{t+1}, 3, v0\nv_and_b32 v{t}, 6, v{t+1}\nv_and_b32 v{d}, 7, v0\nv_xor_b32 v{t}, v{t}, v{d}")
        st(f"v_lshlrev_b32 v{t}, 4, v{t}\nv_mul_u32_u24 v{t+1}, 3584, v{t+1}\nv_add3_u32 v{d}, v{t}, v{t+1}, s{sT0}")

    pace = None
    c_wpos = (1, 4, 6, 9, 11, 14, 16, 19, 21, 24, 26, 29)

    def paced(self, st):
        if self.pace is not None: st(f"s_waitcnt vmcnt({self.pace})")

    def odd_pair(self, st, u0, mask, vbase):
        st(f"s_and_b32 s{sT2}, s{sP+4}, {mask | 1}\ns_xor_b32 s{sT2}, s{sT2}, {u0}\ns_mul_i32 s{sT1}, s{sT2}, 114688")
        st(f"s_lshl_b32 s{sT2}, s{sT2}, 1\ns_and_b32 s{sT3}, s{sW}, 1\ns_add_u32 s{sT2}, s{sT2}, s{sT3}\ns_mul_i32 s{sT2}, s{sT2}, 3072")
        for p in range(3):
            st(f"s_add_u32 m0, s{sT2}, {ODD + 1024*p}\ns_nop 0")
            st.vm(f"buffer_load_dwordx4 v{vbase+p}, {srd(WG)}, s{sT1} offen lds", ("odd", u0))

    def full_unit(self, st, u, v, qs=(0, 1)):
        for q in qs:
            st(f"s_add_u32 m0, s{sP+6}, {slot8(FSLOT[u]) + 1024*q}\ns_add_u32 s{sT1}, s{sP+5}, {(32*u + 8*q) * 3584}")
            self.paced(st)
            st.vm(f"buffer_load_dwordx4 v{v}, {srd(WG)}, s{sT1} offen lds", ("full", u))

    def wd_dma(self, st, J, addr, vD, sbase):
        for q in range(2):
            j = (J & ~1) + q
            ft = 7 * (j % 4) + tile_of(j % 4, j // 4)
            st(f"s_add_u32 m0, s{sbase}, {addr + 1024*q}\ns_add_u32 s{sT1}, s{sP+7}, {ft * 16384 + (J & 1) * 8192}")
            self.paced(st)
            st.vm(f"buffer_load_dwordx4 v{vD}, {srd(WD)}, s{sT1} offen lds", ("wd", J))

    def wd_read(self, st, J, grp, va, off, ns=range(4)):
        for n in ns:
            st.ds(f"ds_read_b64_tr_b16 {vr(grp[n // 2] + 4*(n % 2) + 2*(J & 1), 2)}, v{va[n]} offset:{off}", ("wdr", J))

    def wd_static(self, J): return (self.WDR + 16 * (J // 2), self.WDR + 16 * (J // 2) + 8)

    def wd_addr(self, st, vD, va, t0, sb):
        st(f"v_lshrrev_b32 v{t0}, 3, v0\nv_and_b32 v{t0+1}, 6, v{t0}\nv_and_b32 v{vD}, 7, v0")
        st(f"v_xor_b32 v{vD}, v{vD}, v{t0+1}\nv_lshlrev_b32 v{vD}, 4, v{vD}\nv_lshl_add_u32 v{vD}, v{t0}, 10, v{vD}")
        st(f"v_lshrrev_b32 v{t0}, 2, v0\nv_lshlrev_b32 v{t0}, 7, v{t0}\nv_bfe_u32 v{t0+1}, v0, 3, 2\ns_and_b32 s{sT0}, s{sW}, 1\ns_lshl_b32 s{sT0}, s{sT0}, 1")
        st(f"v_xor_b32 v{t0+1}, s{sT0}, v{t0+1}\nv_lshl_add_u32 v{t0}, v{t0+1}, 5, v{t0}\nv_and_b32 v{t0+1}, 3, v0\nv_lshlrev_b32 v{t0+1}, 3, v{t0+1}")
        st(f"v_add3_u32 v{va[0]}, v{t0}, v{t0+1}, s{sb}")
        for n in range(1, 4): st(f"v_xor_b32 v{va[n]}, {32*n}, v{va[0]}")

    def helper_setup(self, st):
        vL, vP, vR = 1, 2, 3
        st(f"v_and_b32 v{vP}, 7, v0\ns_lshl_b32 s{sT0}, s{sW}, 3\nv_add_u32 v{vP}, s{sT0}, v{vP}\nv_lshlrev_b32 v{vP}, 7, v{vP}")
        st(f"v_lshrrev_b32 v{vR}, 3, v0\nv_lshl_add_u32 v{vP}, v{vR}, 12, v{vP}")
        vWO, vTR, vWD, GU = 4, 5, 6, 16
        st(f"v_lshrrev_b32 v14, 2, v0\nv_lshlrev_b32 v14, 10, v14\nv_and_b32 v15, 3, v0\nv_lshlrev_b32 v15, 4, v15")
        st(f"s_lshl_b32 s{sT0}, s{sCB}, 8\ns_lshl_b32 s{sT1}, s{sW}, 6\ns_add_u32 s{sT0}, s{sT0}, s{sT1}")
        st(f"v_add3_u32 v{vWO}, v14, v15, s{sT0}")
        st(f"s_mul_i32 s{sE}, s{sW}, {STGW}\ns_add_u32 s{sE}, s{sE}, {STG}")
        st(f"v_lshrrev_b32 v14, 5, v0\nv_lshlrev_b32 v14, 8, v14\nv_bfe_u32 v15, v0, 2, 2\nv_lshl_add_u32 v14, v15, 6, v14")
        st(f"v_bfe_u32 v15, v0, 4, 1\nv_lshl_add_u32 v14, v15, 5, v14\nv_and_b32 v15, 3, v0\nv_lshl_add_u32 v14, v15, 3, v14")
        st(f"v_add_u32 v{vTR}, s{sE}, v14")
        self.wd_addr(st, vWD, self.vWS, 14, sE)
        self.odd_voffsets(st, GU, 14)
        self.full_voffset(st, 43, 14)
        st(f"s_lshr_b32 s{sT0}, s{sW}, 1\ns_mul_i32 s{sP+5}, s{sT0}, {16*3584}\ns_lshr_b32 s{sT1}, s{sIDX}, 4\ns_lshl_b32 s{sT1}, s{sT1}, 1\ns_or_b32 s{sT1}, s{sT1}, s{sT0}")
        st(f"s_and_b32 s{sT2}, s{sIDX}, 1\ns_lshl_b32 s{sT2}, s{sT2}, 2\ns_or_b32 s{sP+4}, s{sT1}, s{sT2}")
        st(f"s_lshl_b32 s{sT0}, s{sT0}, 11\ns_and_b32 s{sT1}, s{sW}, 1\ns_lshl_b32 s{sT1}, s{sT1}, 12\ns_add_u32 s{sP+6}, s{sT0}, s{sT1}")
        st(f"v_lshrrev_b32 v14, 4, v0\nv_mul_u32_u24 v14, 3584, v14\nv_bfe_u32 v15, v0, 2, 2\nv_mul_u32_u24 v15, 896, v15\nv_and_b32 v{GU+4}, 3, v0")
        st(f"v_lshlrev_b32 v{GU+4}, 8, v{GU+4}\nv_add3_u32 v{GU+4}, v{GU+4}, v14, v15")
        st(f"s_mul_i32 s{sT0}, s{sW}, {28*16384}\ns_and_b32 s{sT1}, s{sIDX}, 7\ns_lshl_b32 s{sT1}, s{sT1}, 7\ns_add_u32 s{sP+7}, s{sT0}, s{sT1}")
        st(f"v_mov_b32 v26, {MISC}\nv_lshlrev_b32 v23, 7, v0\nv_lshlrev_b32 v47, 2, v0")
        st(f"s_lshl_b32 s{sT0}, s{sRB}, 4\ns_lshl_b32 s{sT1}, s{sCB}, 2\ns_add_u32 s{sT0}, s{sT0}, s{sT1}\ns_add_u32 s{sT0}, s{sT0}, s{sW}\ns_lshl_b32 s{sT1}, s{sT0}, 11\ns_lshl_b32 s{sT0}, s{sT0}, 8")
        for lo, n, sb, base in ((0, 16, sT1, WS_O), (16, 2, sT0, WS_ST), (18, 2, sT0, WS_PM)):
            st(f"s_bfm_b64 exec, {n}, {lo}\ns_add_u32 s{sT2}, s{sb}, {base - 128*lo}\nv_add_u32 v21, s{sT2}, v23")
        st(f"s_lshl_b32 s{sT0}, s{sRB}, 7\ns_add_u32 s{sT0}, s{sT0}, {WS_FLG4}\ns_lshl_b32 s{sT1}, s{sRB}, 6\ns_add_u32 s{sT1}, s{sT1}, {WS_FLG2}")
        st(f"s_bitcmp1_b32 s{sW}, 0\ns_cselect_b32 s{sT1}, s{sT0}, s{sT1}\ns_bfm_b64 exec, 44, 20\nv_mov_b32 v21, s{sT1}\ns_mov_b64 exec, -1\nv_lshlrev_b32 v22, 10, v0")
        self.h_voffset(st, 19, 14)
        st(f"v_and_b32 v14, 31, v0\nv_lshlrev_b32 v14, 10, v14\nv_lshrrev_b32 v15, 5, v0\nv_lshl_add_u32 v40, v15, 4, v14")
        st(f"v_lshrrev_b32 v14, 4, v0\nv_lshlrev_b32 v14, 7, v14\nv_bfe_u32 v15, v0, 1, 1\nv_lshl_add_u32 v14, v15, 6, v14")
        st(f"v_bfe_u32 v15, v0, 2, 2\nv_lshl_add_u32 v14, v15, 3, v14\nv_and_b32 v15, 1, v0\nv_lshl_add_u32 v14, v15, 2, v14\nv_add_u32 v42, {WBL}, v14")

    def helper_attention(self, st):
        st("; ---- helper: phase B")
        vL, vP, vR = 1, 2, 3
        st(f"s_lshl_b32 s{sT1}, s{sG}, 12\ns_add_u32 s{sB}, s{sT1}, {WS_FLG1}")
        st(f"s_mul_i32 s{sC}, s{sW}, {2*TILE}\ns_lshl_b32 s{sD}, s{sW}, 12\ns_add_u32 s{sD}, s{sD}, {WS_KV}")
        st(f"s_cmp_lt_u32 s{sW}, 2\ns_cbranch_scc1 L_x1skip")
        st(f"s_and_b32 s{sT2}, s{sW}, 1\ns_lshl_b32 s{sT0}, s{sT2}, 4\nv_and_b32 v12, 15, v0\nv_add_u32 v12, s{sT0}, v12")
        st(f"v_lshlrev_b32 v14, 7, v12\nv_lshlrev_b32 v12, 2, v12\ns_lshl_b32 s{sT1}, s{sG}, 7\ns_add_u32 s{sT1}, s{sT1}, {WS_FLGL}")
        st(f"s_lshl_b32 s{sE}, s{sG}, 14\ns_lshl_b32 s{sT0}, s{sT2}, 13\ns_add_u32 s{sE}, s{sE}, s{sT0}\ns_add_u32 s{sE}, s{sE}, {WS_KVL}")
        st(f"s_mul_i32 s{sT0}, s{sT2}, {4*TILE}\ns_add_u32 m0, s{sT0}, {RING}")
        st(f"s_lshl_b32 s{sT0}, s{sT2}, 2\ns_add_u32 s{sT0}, s{sT0}, {MISC}\nv_mov_b32 v15, s{sT0}")
        st(f"v_mov_b32 v125, 1\ns_mov_b32 s{sCNT}, {SPINL}\ns_bfm_b64 exec, 16, 0")
        st.label("L_x1l")
        st(f"buffer_load_dword v{vR}, v12, {srd(WS)}, s{sT1} offen sc1")
        st.wait_vm()
        st(f"v_cmp_ne_u32 vcc, s{sXCC}, v{vR}\ns_cbranch_vccz L_x1a_ok")
        st(f"s_sub_u32 s{sCNT}, s{sCNT}, 1\ns_cbranch_scc0 L_x1l")
        st(f"s_mov_b64 exec, -1\ns_sub_u32 s{sE}, s{sE}, {WS_KVL - WS_KV}\nv_mov_b32 v125, 0")
        self.poll(st, "L_x1a", 14, f"s{sB}", vR, 1, exact=True, lanes=16)
        for i in range(8):
            if i in (2, 6): st("s_add_u32 m0, m0, 32\ns_nop 0")
            if i == 4: st(f"s_add_u32 m0, m0, {2*TILE - 32}\ns_add_u32 s{sE}, s{sE}, 4096")
            st(f"buffer_load_dwordx4 v{vL}, {srd(WS)}, s{sE} offen offset:{1024*(i % 4)} sc1 lds")
        self.stamp(st, "h", "w2poll", 2112)
        st("ds_write_b32 v15, v125")
        st.label("L_x1skip")
        self.stamp(st, "h", "x1own")
        def chunk(c):
            st(f"s_add_u32 s{sT0}, s{sG}, {c}\ns_and_b32 s{sT0}, s{sT0}, 7\ns_lshl_b32 s{sT0}, s{sT0}, 14")
            st(f"s_add_u32 m0, s{sC}, {RING + (c % 2) * 8 * TILE}\ns_add_u32 s{sT0}, s{sT0}, s{sD}")
            for i in range(4):
                if i == 2: st("s_add_u32 m0, m0, 32\ns_nop 0")
                st.vm(f"buffer_load_dwordx4 v{vL}, {srd(WS)}, s{sT0} offen offset:{1024*i} sc1 lds", ("kv", c))
        vWO, vTR, vWD, GU = 4, 5, 6, 16
        st(f"s_mul_i32 s{sE}, s{sW}, {STGW}\ns_add_u32 s{sE}, s{sE}, {STG}")
        st(f"s_cmp_lt_u32 s{sW}, 2\ns_cbranch_scc1 L_x1skip2")
        st.wait_vm()
        st.wait_ds()
        st.label("L_x1skip2")
        self.pad(st, 1)
        st.bar("B2")
        self.stamp(st, "h", "cycB2", 32)
        st.ds(f"ds_write_b128 v7, v[8:11] offset:{8*TILE + 2048}")
        st.ds("ds_read_b64 v[28:29], v26")
        st.ds("ds_read_b32 v12, v41")
        st.bar("BQ")
        st(f"s_mov_b32 s{sB}, {WS_FLG1}")
        self.poll(st, "L_x1b", vP, f"s{sB}", vR, 1, exact=True)
        self.stamp(st, "h", "x1a", 81)
        st.wait_ds()
        self.colo_reduce(st, 28)
        st(f"v_mov_b32 v29, s{sEP1}\nv_mov_b32 v8, -1\nv_mov_b32 v9, -1\nv_mov_b32 v10, -1\nv_mov_b32 v11, -1")
        st(f"s_setprio {self.c.hprio}")
        st(f"s_lshl_b32 s{sA}, s{sCB}, 17")
        def wo_dma(j, pos):
            st(f"s_add_u32 m0, s{sE}, {1024*pos}\ns_xor_b32 s{sT1}, s{sA}, {j*16384}")
            st.vm(f"buffer_load_dwordx4 v{vWO}, {srd(WO)}, s{sT1} offen lds", ("wo", j))
        def wo_read(j, pos):
            for t in range(2):
                st.ds(f"ds_read_b64_tr_b16 {vr(self.WOR+4*j+2*t,2)}, v{vTR} offset:{1024*pos + 512*t}")
        vT, vTD, vJ = 23, 27, 30
        incond = [False]
        def touch(buf, v, soff, lanes=64):
            if lanes < 64: st(f"s_bfm_b64 exec, {lanes}, 0")
            st.vm(f"buffer_load_dword v{vJ}, v{v}, {srd(buf)}, {soff} offen{' sc1' if buf in (WS, OUT) else ''}", "tx", cond=incond[0])
            if lanes < 64: st("s_mov_b64 exec, -1")
        def lines(name, soff, n):
            if name[0] == "T": return touch(WS, vT, soff, n)
            if n < 8: st(f"s_bfm_b64 exec, {8*n}, 0")
            for i in range(-(-n // 8)):
                if i == 4: st(f"s_add_u32 {soff}, {soff}, 4096")
                st.vm(f"buffer_store_dwordx4 v[8:11], v{vL}, {srd(WS)}, {soff} offen offset:{1024*(i % 4)} sc1")
            if n < 8: st("s_mov_b64 exec, -1")
        items = [("o", j) for j in range(32)] + [("d", j) for j in range(10)]
        staged = []
        def stage(n):
            assert not staged
            pos = 0
            while items and pos + (1 if items[0][0] == "o" else 2) <= n:
                kind, j = items.pop(0)
                if kind == "o": wo_dma(j, pos)
                else: self.wd_dma(st, j, 1024 * pos, vWD, sE)
                staged.append((kind, j, pos))
                pos += 1 if kind == "o" else 2
        def unstage():
            st.wait_vm(("w" + staged[-1][0], staged[-1][1]))
            for kind, j, pos in staged:
                if kind == "o": wo_read(j, pos)
                else: self.wd_read(st, j, self.wd_static(j), self.vWS, 1024 * pos)
            st.wait_ds()
            staged.clear()
        gid = f"s_lshl_b32 s{sT0}, s{sIDX}, 2\ns_add_u32 s{sT0}, s{sT0}, s{sW}"
        cid = f"s_lshl_b32 s{sT0}, s2, 2\ns_add_u32 s{sT0}, s{sT0}, s{sW}"
        free_hi = [False]
        def op(name):
            if name[0] == "S": stage(int(name[1:]))
            elif name == "R": unstage()
            elif name[0] == "O":
                u, _, mask = name[1:].partition("^")
                assert int(u) < 6 or free_hi[0] or self.c.loose
                self.odd_pair(st, int(u), int(mask or 0), GU)
            elif name[0] == "F": self.full_unit(st, int(name[1:]), 43)
            elif name == "Tc":
                st(f"{gid}\ns_lshl_b32 s{sT1}, s{sT0}, 9")
                touch(CODE, vT, f"s{sT1}", 4)
            elif name[:2] == "Td":
                a, b = map(int, name[2:].split("-"))
                st(f"{gid}\ns_lshr_b32 s{sT1}, s{sT0}, 3\ns_and_b32 s{sT2}, s{sT1}, 3\ns_mul_i32 s{sT1}, s{sT1}, 7\ns_add_u32 s{sT1}, s{sT1}, s{sT2}\ns_lshl_b32 s{sT1}, s{sT1}, 14")
                st(f"s_and_b32 s{sT0}, s{sT0}, 7\ns_mul_i32 s{sT0}, s{sT0}, {2048*(b-a)}\ns_add_u32 s{sT1}, s{sT1}, s{sT0}\ns_add_u32 s{sT1}, s{sT1}, {16384*a}")
                touch(WD, vT, f"s{sT1}", 16 * (b - a))
            elif name == "Te":
                st(f"{gid}\ns_lshr_b32 s{sT1}, s{sT0}, 5\ns_mul_i32 s{sT1}, s{sT1}, 28\ns_bitcmp1_b32 s{sT0}, 4\ns_cselect_b32 s{sT2}, 23, 20\ns_add_u32 s{sT1}, s{sT1}, s{sT2}")
                st(f"s_lshl_b32 s{sT1}, s{sT1}, 14\ns_and_b32 s{sT0}, s{sT0}, 15\ns_lshl_b32 s{sT0}, s{sT0}, 10\ns_add_u32 s{sT1}, s{sT1}, s{sT0}")
                touch(WD, vT, f"s{sT1}", 8)
            elif name == "Ts":
                st(f"{gid}\ns_mul_i32 s{sT1}, s{sT0}, {14*1024}\ns_add_u32 s{sT1}, s{sT1}, 384")
                touch(WD, 22, f"s{sT1}", 14)
            elif name == "Tr":
                st(f"{gid}\ns_lshr_b32 s{sT0}, s{sT0}, 1\ns_mul_i32 s{sT1}, s{sT0}, {23*1024}\ns_add_u32 s{sT1}, s{sT1}, {96*3584 + 384}")
                touch(WG, 22, f"s{sT1}", 23)
            elif name == "Tkv":
                st(f"{gid}\ns_lshl_b32 s{sT1}, s{sT0}, 10\ns_add_u32 s{sT1}, s{sT1}, {WS_KV}")
                touch(WS, vT, f"s{sT1}", 8)
            elif name == "Tmd":
                st(f"{cid}\ns_mul_i32 s{sT1}, s{sT0}, {14*128}")
                touch(WD, vT, f"s{sT1}", 14)
            elif name in ("Tmg0", "Tmg1"):
                st(f"{cid}\ns_lshr_b32 s{sT0}, s{sT0}, 1\ns_mul_i32 s{sT1}, s{sT0}, {14*128}\ns_add_u32 s{sT1}, s{sT1}, {917504*int(name[3])}")
                touch(WG, vT, f"s{sT1}", 14)
            elif name == "To":
                st(f"{gid}\ns_lshl_b32 s{sT1}, s{sT0}, 12")
                touch(WO, vT, f"s{sT1}", 32)
            elif name[:2] in ("Tf", "Tq"):
                row0 = (96 if name[1] == "f" else 0) + 256 * int(name[2:])
                st(f"{gid}\ns_lshr_b32 s{sT0}, s{sT0}, 1\ns_mul_i32 s{sT1}, s{sT0}, {4*3584}\ns_add_u32 s{sT1}, s{sT1}, {row0*3584 + (0 if name[1] == 'f' else 128)}")
                if name[1] == "q": st("s_mov_b32 exec_lo, 0x77777777\ns_mov_b32 exec_hi, 0x77777777")
                touch(WG, GU + 4, f"s{sT1}")
                if name[1] == "q": st("s_mov_b64 exec, -1")
            elif name[:2] in ("Th", "Ph"):
                a, b = map(int, name[2:].split("-"))
                st(f"s_lshr_b32 s{sT0}, s{sIDX}, 4\ns_lshl_b32 s{sT1}, s{sG}, 1\ns_add_u32 s{sT0}, s{sT0}, s{sT1}\ns_lshl_b32 s{sT0}, s{sT0}, 2\ns_add_u32 s{sT0}, s{sT0}, s{sW}")
                st(f"s_mul_i32 s{sT0}, s{sT0}, 114688\ns_and_b32 s{sT1}, s{sIDX}, 15\ns_mul_i32 s{sT1}, s{sT1}, 7168\ns_add_u32 s{sT0}, s{sT0}, s{sT1}\ns_add_u32 s{sT0}, s{sT0}, {WS_HH + 1024*a}")
                lines(name, f"s{sT0}", 8 * (b - a))
            elif name == "Tx":
                self.h_base(st, sT0)
                touch(OUT, 22, f"s{sT0}", 16)
                touch(WS, 21, "0", 21)
            elif name in ("Cx", "Cf"):
                st(f"s_lshl_b32 s{sT0}, s{sRB}, 4\ns_lshl_b32 s{sT1}, s{sCB}, 2\ns_add_u32 s{sT0}, s{sT0}, s{sT1}\ns_add_u32 s{sT0}, s{sT0}, s{sW}")
                st.wait_vm("tx" if name == "Cx" else "cx")
                st(f"s_cmp_eq_u32 s{sCOLO}, {2 if self.c.force_slow else 1}\ns_cbranch_scc0 L_{name}s")
                for o, sc in ((st, ""), (self.tailcode, " sc1")):
                    if sc: o.label(f"L_{name}s")
                    if name == "Cx":
                        o(f"s_lshl_b32 s{sT1}, s{sT0}, 11\ns_add_u32 s{sT1}, s{sT1}, {WS_O}")
                        for q in range(2): o.vm(f"buffer_store_dwordx4 v[8:11], v{vL}, {srd(WS)}, s{sT1} offen offset:{1024*q}{sc or ' ' + self.c.cf}", "cx")
                        self.h_base(o, sT1)
                        for q in range(2):
                            o.vm(f"buffer_store_dwordx4 v[8:11], v19, {srd(OUT)}, s{sT1} offen{sc}", "cx")
                            if q == 0: o(f"s_add_u32 s{sT1}, s{sT1}, 8192")
                        o("s_bfm_b64 exec, 16, 0")
                        for base in (WS_ST, WS_PM):
                            o(f"s_lshl_b32 s{sT1}, s{sT0}, 8\ns_add_u32 s{sT1}, s{sT1}, {base}")
                            o.vm(f"buffer_store_dwordx4 v[8:11], v{vL}, {srd(WS)}, s{sT1} offen{sc}", "cx")
                    else:
                        o(f"s_lshl_b32 s{sT1}, s{sT0}, 2\ns_add_u32 s{sT1}, s{sT1}, {WS_FLG2}\ns_mov_b64 exec, 1")
                        o.vm(f"buffer_store_dword v29, off, {srd(WS)}, s{sT1}{sc}")
                    o("s_mov_b64 exec, -1")
                    if sc: o(f"s_branch L_{name}d")
                st.label(f"L_{name}d")
            elif name == "K":
                st(f"s_lshl_b32 s{sT0}, s{sG}, 9\ns_lshl_b32 s{sT1}, s{sW}, 7\ns_add_u32 s{sT0}, s{sT0}, s{sT1}\ns_add_u32 s{sT0}, s{sT0}, {WS_FLG2}\ns_setprio 2")
                self.poll(st, "L_clr", 47, f"s{sT0}", vR, 1, exact=True, lanes=32)
                st(f"s_setprio {self.c.hprio}")
            elif name == "X":
                st(f"s_lshl_b32 s{sT0}, s{sRB}, 15\ns_lshl_b32 s{sT1}, s{sCB}, 8\ns_add_u32 s{sT0}, s{sT0}, s{sT1}\ns_lshl_b32 s{sT1}, s{sW}, 6\ns_add_u32 s{sT0}, s{sT0}, s{sT1}")
                for q in range(2):
                    st.vm(f"buffer_load_dwordx4 {vr(32+4*q,4)}, v40, {srd(X)}, s{sT0} offen offset:{32*q}")
            elif name == "B":
                st(f"s_cmp_lg_u32 s{sW}, 3\ns_cbranch_scc1 L_nowb2")
                st(f"s_lshl_b32 s{sT0}, s{sCB}, 13\ns_add_u32 s{sT0}, s{sT0}, {WS_WB}\ns_mov_b32 s{sCNT}, {SPIN}\ns_setprio 2")
                st.label("L_wb")
                st(f"buffer_load_dwordx3 v[44:46], v{vT}, {srd(WS)}, s{sT0} offen sc1\ns_waitcnt vmcnt(0)")
                st(f"v_cmp_ne_u32 vcc, s{sEP1}, v46\ns_cbranch_vccz L_wb_ok\ns_sub_u32 s{sCNT}, s{sCNT}, 1\ns_cbranch_scc0 L_wb")
                st.label("L_wb_ok")
                st(f"s_setprio {self.c.hprio}\nds_write2_b32 v42, v44, v45 offset0:0 offset1:8\ns_waitcnt lgkmcnt(0)")
                st.label("L_nowb2")
            elif name[0] == "W":
                st.wait_vm()
                self.stamp(st, "h", "drain" + name[1:], 16)
            else: raise KeyError(name)
        chunk(1)
        st(f"s_cmp_lg_u32 s{sW}, 1\ns_cbranch_scc1 L_nopub\ns_mov_b64 exec, 0xff")
        st.vm(f"buffer_store_dwordx4 v[244:247], v{vL}, {srd(WS)}, s{sF} offen sc1", cond=True)
        st("s_mov_b64 exec, -1")
        st.label("L_nopub")
        ints = self.c.sched.split("|")
        assert len(ints) == 8
        for c, ops in enumerate(ints):
            if c == 2 and (self.c.pads or self.c.hal):
                st(f"s_branch L_hpage\n.p2align 12\n.fill {self.c.hoff // 4}, 4, 0xbf800000")
                st.label("L_hpage")
            if c and c == self.c.pads:
                st(f"s_cmp_lg_u32 s{sW}, 0\ns_cbranch_scc1 L_nowalk\ns_mov_b32 s{sWALK}, 1\ns_branch L_pad0")
                st.label("L_walked")
                st(f"s_mov_b32 s{sWALK}, 0")
                st.label("L_nowalk")
            if c == 1:
                st(f"{cid}\ns_cmp_lg_u32 s{sT0}, 0\ns_cbranch_scc1 L_noep")
                st(f"s_mov_b32 s{sT1}, {WS_EPOCH}\ns_mov_b64 exec, 1")
                st.vm(f"buffer_store_dword v31, off, {srd(WS)}, s{sT1} sc1", cond=True)
                st("s_mov_b64 exec, -1")
                st.label("L_noep")
            plain, _, stag = ops.partition("[")
            def staggered(par):
                if not stag: return
                st(f"s_xor_b32 s{sT0}, s{sIDX}, s{sG}\ns_bitcmp1_b32 s{sT0}, 0\ns_cbranch_scc{par} L_st{c}_{par}")
                incond[0] = True
                for name in stag.rstrip("]").split(): op(name)
                incond[0] = False
                st.label(f"L_st{c}_{par}")
            staggered(0)
            for name in plain.split(): op(name)
            st.wait_vm(("kv", c + 1))
            staggered(1)
            self.stamp(st, "h", f"arrBA{c}", 2)
            st.bar(f"BA{c}")
            self.stamp(st, "h", f"cycBA{c}", 32)
            if not items and not staged: free_hi[0] = True
            if c + 2 < 8: chunk(c + 2)
        assert self.c.loose or (not items and not staged)
        st("s_setprio 2")
        self.stamp(st, "h", "BA7")

    def helper_phase_c(self, st):
        st("; ---- helper: phase C")
        vL, XR, ACC, BRG, PM = 1, 32, 16, (4, 8, 40, 44), self.WOR
        st.label("L_phc")
        st(f"s_lshl_b32 s{sT0}, s{sRB}, 2\ns_add_u32 s{sT0}, s{sT0}, s{sCB}\ns_lshl_b32 s{sE}, s{sT0}, 10\ns_lshl_b32 s{sT1}, s{sW}, 2\ns_add_u32 s{sE}, s{sE}, s{sT1}\ns_add_u32 s{sE}, s{sE}, {WS_ST}")
        self.h_base(st, sA)
        st(f"s_add_u32 s{sB}, s{sA}, 8192")
        st.bar("BP")
        st.wait_vm()
        st.bar("BC0")
        st("v_mov_b32 v13, v43\nv_mov_b32 v3, v19")
        rd = lambda j: st.ds(f"ds_read_b128 {vr(BRG[j % 4],4)}, v{vL} offset:{RING + 1024*j}", ("o", j))
        for j in range(3): rd(j)
        for b in (XR, XR + 4): st(f"v_permlane32_swap_b32 v{b}, v{b+2}\nv_permlane32_swap_b32 v{b+1}, v{b+3}")
        for r in range(8): st(f"v_lshlrev_b32 v{ACC+2*r}, 16, v{XR+r}\nv_and_b32 v{ACC+2*r+1}, 0xffff0000, v{XR+r}")
        st(f"v_add_u32 v2, {PML}, v{vL}")
        red = {25: [f"v_add_f32 v{PM}, v{PM}, v{PM+1}", f"v_add_f32 v{PM+2}, v{PM+2}, v{PM+3}", f"v_add_f32 v{PM}, v{PM}, v{PM+2}"],
               26: [f"v_mov_b32 v{PM+1}, v{PM}"], 27: [f"v_permlane32_swap_b32 v{PM}, v{PM+1}", f"v_add_f32 v{PM}, v{PM}, v{PM+1}", f"v_sub_f32 v12, v12, v{PM}"],
               28: ["v_mul_f32 v14, -0.5, v12"]}
        for m in range(32):
            if m == 8:
                self.stamp(st, "h", "own", 1024)
                st.bar("BC1a")
                self.pad(st, 2)
                self.stamp(st, "h", "x2ok", 1027)
                for j in range(8, 11): rd(j)
            st.wait_ds(("o", m))
            if self.c.fake & 32:
                for h in range(2): st(mfma16(ACC + 8 * (m % 2) + 4 * h, self.WOR + 4 * (m ^ h), BRG[m % 4]))
            else: st(mfma32(ACC, self.WOR + 4 * m, BRG[m % 4]))
            if m in (13, 21):
                self.stamp(st, "h", f"m{m}", 1024)
                st.bar("BC1b" if m == 13 else "BC1c")
                self.stamp(st, "h", f"m{m}b", 1024)
            if m == 21: st.ds(f"ds_read_b128 {vr(PM,4)}, v2")
            if m in (15, 17) and self.c.cfull > 0: self.full_unit(st, 3, 13, (m // 17,))
            if m in (22, 24) and self.c.cfull > 1: self.full_unit(st, 4, 13, (m // 24,))
            if m + 3 < 32 and not 8 <= m + 3 < 11: rd(m + 3)
            for op in red.get(m, []): st(op)
        self.stamp(st, "h", "m31", 1024)
        st(f"s_cmp_eq_u32 s{sCOLO}, {2 if self.c.force_slow else 1}\ns_cbranch_scc0 L_c_slow")
        self.c_epilogue(st, "")
        st.label("L_c_done")
        st.nbar += 1
        self.stamp(st, "h", "hflag")
        tc = self.tailcode
        tc.label("L_c_slow")
        self.c_epilogue(tc, " sc1")
        tc("s_branch L_c_done")

    def c_epilogue(self, st, sc):
        vL, ACC, P = 1, 16, 40
        st.nop(10)
        for r in range(8):
            st(f"v_pk_add_f32 {vr(ACC+2*r,2)}, {vr(ACC+2*r,2)}, v[12:13] op_sel_hi:[1,0]")
            if r % 4 == 3:
                for i in range(r - 3, r + 1): st(f"v_cvt_pk_bf16_f32 v{P+i}, v{ACC+2*i}, v{ACC+2*i+1}")
                st(f"v_min_u32 v{P+r-3}, -2, v{P+r-3}")
                st.vm(f"buffer_store_dwordx4 {vr(P+r-3,4)}, v3, {srd(OUT)}, s{sA + r//4} offen{sc}")
        st("s_barrier                ; BC2")
        st.nop(self.c.stlate)
        for r in range(8):
            st(f"v_dot2_f32_bf16 v15, v{P+r}, v{P+r}, {'0' if r == 0 else 'v15'}")
        st(f"s_nop 2\nv_permlane32_swap_b32 v14, v15\nv_add_f32 v2, v14, v15\nv_min_u32 v2, -2, v2")
        st.vm(f"buffer_store_dword v2, v{vL}, {srd(WS)}, s{sE} offen{sc or ' ' + self.c.sf}")

    def e_setup(self, st):
        vL, vP, vA = 1, 2, (7, 8, 9, 10)
        st(f"s_lshr_b32 s{sT0}, s{sIDX}, 3\ns_lshl_b32 s{sT1}, s{sG}, 2\ns_add_u32 s{sT0}, s{sT0}, s{sT1}\ns_lshl_b32 s{sA}, s{sT0}, 1")
        st(f"s_mul_i32 s{sT0}, s{sA}, 114688\ns_mul_i32 s{sT1}, s{sW}, {28*1024}\ns_add_u32 s{sT0}, s{sT0}, s{sT1}")
        for p in range(2): st(f"s_add_u32 s{sP+p}, s{sT0}, {WS_HH + 14336*p}")
        st("v_bfe_u32 v14, v0, 4, 1\nv_lshlrev_b32 v14, 9, v14\nv_and_b32 v15, 15, v0\nv_lshl_add_u32 v14, v15, 4, v14\nv_lshrrev_b32 v11, 5, v0")
        st("v_bfe_u32 v15, v0, 4, 1\nv_lshlrev_b32 v15, 12, v15\nv_lshl_add_u32 v15, v11, 11, v15\nv_mul_u32_u24 v11, 7168, v11\nv_add_u32 v11, v11, v14")
        st("v_bfe_u32 v14, v0, 3, 1\nv_lshl_add_u32 v15, v14, 10, v15\nv_and_b32 v14, 7, v0\nv_lshl_add_u32 v15, v14, 4, v15")
        st(f"s_lshr_b32 s{sT2}, s{sW}, 1\ns_mul_i32 s{sT0}, s{sT2}, 114688\ns_sub_u32 s{sT1}, 114688, s{sT0}")
        st(f"v_add_u32 v{vA[0]}, s{sT0}, v11\nv_add_u32 v{vA[1]}, s{sT1}, v11\nv_add_u32 v{vA[2]}, 4096, v{vA[0]}\nv_add_u32 v{vA[3]}, 4096, v{vA[1]}")
        st(f"v_bfe_u32 v{vP}, v0, 2, 1\nv_lshlrev_b32 v{vP}, 7, v{vP}\nv_and_b32 v14, 3, v0\nv_lshl_add_u32 v{vP}, v14, 2, v{vP}")
        st(f"v_lshrrev_b32 v14, 3, v0\nv_lshl_add_u32 v{vP}, v14, 28, v{vP}")
        st(f"s_lshl_b32 s{sT0}, s{sA}, 7\ns_lshl_b32 s{sT1}, s{sW}, 4\ns_add_u32 s{sB}, s{sT0}, s{sT1}\ns_add_u32 s{sB}, s{sB}, {WS_FLG4}")
        st(f"s_add_u32 s{sA}, s{sA}, s{sT2}")
        st(f"s_and_b32 s{sT0}, s{sIDX}, 7\ns_lshl_b32 s{sT0}, s{sT0}, 1\ns_and_b32 s{sT1}, s{sW}, 1\ns_add_u32 s{sT0}, s{sT0}, s{sT1}")
        st(f"s_lshl_b32 s{sC}, s{sT1}, 14\ns_lshl_b32 s{sT1}, s{sA}, 15\ns_add_u32 s{sC}, s{sC}, s{sT1}\ns_and_b32 s{sT2}, s{sIDX}, 7\ns_lshl_b32 s{sT2}, s{sT2}, 7\ns_add_u32 s{sC}, s{sC}, s{sT2}\ns_add_u32 s{sXCC}, s{sC}, 8192")
        st(f"s_lshl_b32 s{sD}, s{sT0}, 6\ns_add_u32 s{sD}, s{sD}, s{sT1}")
        st(f"s_lshl_b32 s{sF}, s{sA}, 12\ns_add_u32 s{sF}, s{sF}, {WS_ST}")
        st(f"v_and_b32 v14, 31, v0\nv_lshlrev_b32 v14, 10, v14\nv_lshrrev_b32 v3, 5, v0\nv_lshl_add_u32 v14, v3, 4, v14")
        st(f"v_and_b32 v11, 15, v0\nv_lshl_add_u32 v11, v3, 4, v11\nv_lshlrev_b32 v11, 4, v11")

    def helper_phase_de(self, st):
        st("; ---- helper: phases D and E")
        vL, vP, vR = 1, 2, 3
        vWD, vWA, GU = 4, (5, 6, 12, 13), 192
        st(f"v_mov_b32 v{GU}, v13")
        lo = [slot8(8)]
        st(f"s_lshl_b32 s{sE}, s{sW}, 11\ns_add_u32 s{sT1}, s{sE}, {lo[0]}")
        self.wd_addr(st, vWD, vWA, 14, sT1)
        where = {}
        need = {8: 4, 9: 5, 10: 7, 11: 8, 12: 9}
        seen, done = [0], set()
        def dma(j, i):
            assert seen[0] >= need.get(i, 20), (j, i)
            for jj, ii in where.items():
                if ii == i:
                    assert jj in done, (j, jj)
                    st.wait_ds(("wdr", jj))
            where[j] = i
            self.wd_dma(st, j, slot8(i), vWD, sE)
        def read(j, grp, ns=range(4)):
            if slot8(where[j]) - lo[0] > 65535:
                for v in vWA: st(f"v_add_u32 v{v}, 0x8000, v{v}")
                lo[0] += 0x8000
            assert slot8(where[j]) >= lo[0]
            self.wd_read(st, j, grp, vWA, slot8(where[j]) - lo[0], ns)
        wreg = {j: self.wd_static(j) for j in range(18)}
        def rd(js):
            st.wait_vm(("wd", js[-1]))
            for j in js: read(j, wreg[j]); done.add(j)
        vPG, vLD, vN, CK = 200, 201, 202, 204
        st(f"s_lshl_b32 s{sT0}, s{sW}, 2\ns_add_u32 s{sT0}, s{sT0}, {LAND}\nv_mov_b32 v{vLD}, s{sT0}\nv_mov_b32 v{vPG}, {PROG}")
        def prog(n):
            seen[0] = n
            if n in (3, 5, 7, 9, 20): self.stamp(st, "h", f"arr{n}", 4)
            self.lds_spin(st, f"L_pg{n}", vPG, CK, n, sleep=self.c.psleep)
        def land(tag, n):
            st(f"v_mov_b32 v{vN}, {n}")
            st.wait_vm(tag)
            st.ds(f"ds_write_b32 v{vLD}, v{vN}")
        self.e_setup(st)
        st(f"s_setprio {self.c.dprio}")
        self.pace = self.c.pace
        def full(u):
            assert seen[0] >= {7: 2, 8: 3, 9: 3}.get(u, u - 6), u
            self.full_unit(st, u, GU)
        plan = self.c.dplan.split()
        latew = [tuple(map(int, x[1:].split(">"))) for x in plan[len(plan) - self.c.nlate:]]
        for i, op in enumerate(plan[:len(plan) - self.c.nlate]):
            if i == len(plan) - self.c.npoll: st.vm(f"buffer_load_dword v{vR}, v{vP}, {srd(WS)}, s{sB} offen sc1", ("poll", self.stages()[0][0] - 1))
            a = op[1:]
            if op[0] == "F":
                if int(a) >= 3 + self.c.cfull: full(int(a))
            elif op[0] == "W": dma(*map(int, a.split(">")))
            elif op[0] == "P": prog(int(a))
            elif op[0] == "L": land(("full", int(a) - 1), int(a))
            elif op[0] == "R": rd(list(map(int, a.split(","))))
            elif op == "T":
                st(f"s_setprio {self.c.tprio}")
                self.pace = self.c.pace2
        self.stamp(st, "h", "Dhelp_end", 13)
        ACC, vA = 192, (7, 8, 9, 10)
        free = [16, 24, 32, 40]
        areg = {}
        W0 = 20
        ech = self.c.ech
        def step(s):
            if ech:
                if s < W0: t, mt, mh = s // 4, s // 2 % 2, s % 2
                else: t, mt, mh = W0 // 4 + (s - W0) // 2 % 2, 1 if s < W0 + 4 else 0, s % 2
                return [(2 * t + e, mt, mh) for e in range(2)]
            P, mt = (s // 2, s % 2) if s < W0 else (W0 // 2 + (s - W0) % 4, 1 if s < W0 + 4 else 0)
            return [(P, mt, e) for e in range(2)]
        def ldA(s):
            areg[s] = r = free.pop(0)
            for e, (P, mt, mh) in enumerate(step(s)):
                pp, t = P % 2, P // 2
                st.vm(f"buffer_load_dwordx4 {vr(r+4*e,4)}, v{vA[mt + (2 if t >= 4 else 0)]}, {srd(WS)}, s{sP+pp} offen offset:{1024*(t % 4) + 256*mh} sc1", ("a", s))
        def gate(t):
            tc = self.near
            st.wait_vm(("poll", t))
            self.notready(st, vR, t + 1)
            st(f"s_and_b64 vcc, vcc, 0xff\ns_cbranch_scc1 L_x4s{t}")
            st.label(f"L_x4r{t}")
            tc.label(f"L_x4s{t}")
            if self.c.diag & 8: tc(f"s_bitset1_b32 s{CODE}, {t}")
            self.poll(tc, f"L_x4p{t}", vP, f"s{sB}", vR, t + 1, lanes=8)
            tc(f"s_branch L_x4r{t}")
        stg = self.stages()
        f0 = stg[0][0]
        pollat = {x[1]: x[0] for x in stg[1:]}
        gateat = {4 * stg[i][0]: stg[i + 1] for i in range(len(stg) - 1)}
        if self.c.diag & 8: st(f"s_mov_b32 s{CODE}, 0")
        assert not latew
        st(f"s_setprio {self.c.pprio}")
        if self.c.npoll: gate(f0 - 1)
        else: self.poll(st, "L_x4", vP, f"s{sB}", vR, f0, lanes=8)
        if self.c.diag & 8: st(f"s_sub_u32 s{CODE}, {SPIN}, s{sCNT}\ns_lshl_b32 s{CODE}, s{CODE}, 8")
        st(f"s_setprio {self.c.eprio}")
        self.stamp(st, "h", "x4ok", 13)
        self.pace = None
        for j in range(4): ldA(j)
        st("v_mov_b32 v4, v15")
        nextA, nextW, DEPTH = 4, 18, self.c.edepth
        hres = None
        assert max(gateat, default=0) <= W0
        def writeback(counted):
            st(f"s_lshl_b32 s{sT0}, s{sIDX}, 2\ns_add_u32 s{sT0}, s{sT0}, s{sW}\ns_cmp_eq_u32 s{sT0}, {self.c.wbw}\ns_cbranch_scc1 L_wbs")
            if counted: st.vm(f"buffer_load_dword v{vR}, off, {srd(WS)}, s{WS+2}")
            st.label("L_wbr")
            self.near.label("L_wbs")
            self.near("buffer_wbl2 sc1\ns_branch L_wbr")
        started = set()
        def mm(s, nt, nh, e):
            P, mt, mh = step(s)[e]
            d = ACC + 16 * (nt + 2 * mt) + 8 * nh + 4 * mh
            st(mfma16(d, wreg[2 * P][nt] + 4 * nh, areg[s] + 4 * e, None if d in started else "0"))
            started.add(d)
        wneed = lambda J: min(s for s in range(28) if any(J // 2 == x[0] for x in step(s)))
        wlast = lambda P: max(s for s in range(28) if any(P == x[0] for x in step(s)))
        def more(s):
            nonlocal nextA, nextW, hres
            if nextW in wreg:
                read(nextW, wreg[nextW], (2, 3)); nextW += 1
            elif nextW < 28 and wneed(nextW) <= s + 3 and (nextW % 2 or len(free) > 1):
                st.wait_vm(("wd", nextW))
                wreg[nextW] = wreg[nextW - 1] if nextW % 2 else (free.pop(0), free.pop(0))
                read(nextW, wreg[nextW], (0, 1))
            elif s in pollat:
                st.vm(f"buffer_load_dword v{vR}, v{vP}, {srd(WS)}, s{sB} offen sc1", ("poll", pollat.pop(s) - 1))
            elif nextA < 28 and nextA <= s + DEPTH and free and (nextA not in gateat or gateat[nextA][2] <= s):
                if nextA in gateat: gate(gateat[nextA][0] - 1)
                ldA(nextA); nextA += 1
                if nextA == self.c.wbat: writeback(True)
            elif latew and nextA >= self.c.lateat:
                dma(*latew.pop(0))
            elif s >= 6 and hres is None and len(free) > 3:
                hres = [free.pop(0) for _ in range(3)]
                for l in hld(): st.vm(l, "h")
        hld = lambda: [f"buffer_load_dwordx4 {vr(hres[0]+4*i,4)}, v4, {srd(OUT)}, s{(sC, sXCC)[i]} offen sc1" for i in range(2)] + \
                      [f"buffer_load_dword v15, v11, {srd(WS)}, s{sF} offen sc1"]
        BUF, vX = RING, (5, 6, 12, 13)
        valu = []
        quad = ((0, 0), (0, 1), (1, 1), (1, 0))
        for s in range(W0 + 4):
            st.wait_vm(("a", s))
            assert nextW > 2 * step(s)[1][0] + 1
            st.wait_ds(("wdr", 2 * step(s)[1][0] + 1))
            if s % 4 == 0: self.stamp(st, "h", f"Et{s//4}", 8)
            if s == 13:
                assert nextA > 8
                st.wait_vm("h")
                self.validate(st, "L_hr", (hres[0], hres[0] + 4, 15), hres[1], hld())
                res = lambda r: hres[1 + r // 8] + r % 8
                valu += ["v_mov_b32 v11, v15"] + [f"v_permlane32_swap_b32 v{hres[0]+r}, v{hres[0]+r+2}" for r in (0, 1, 4, 5)] + ["v_permlane32_swap_b32 v15, v11"]
                for r in range(8):
                    valu += [f"v_lshlrev_b32 v{res(2*r)}, 16, v{hres[0]+r}", f"v_and_b32 v{res(2*r+1)}, 0xffff0000, v{hres[0]+r}"]
                valu += [f"v_add_f32 v{res(r)}, v{11 if r & 4 else 15}, v{res(r)}" for r in range(16)]
            if s == W0 + 2:
                assert nextW == 28 and not valu
                valu += [f"s_xor_b32 s{sT0}, s{sW}, {a}\ns_mul_i32 s{sT0}, s{sT0}, 12288\ns_add_u32 s{sT0}, s{sT0}, {BUF}\nv_add_u32 v{vX[a]}, s{sT0}, v{vL}" for a in range(4)]
            for i in range(8):
                mm(s, i // 4, *quad[i % 4])
                if s == W0 and i == 0:
                    st(f"v_mov_b32 v4, {PROG}")
                    ck = free.pop(0)
                if s == W0 and i == 2: st.ds(f"ds_read_b128 {vr(ck,4)}, v4", "ck")
                if s == W0 + 1 and i == 7:
                    st.wait_ds("ck")
                    self.lds_min(st, ck, 30)
                    st("s_cbranch_vccnz L_mds")
                    st.label("L_mdr")
                    self.near.label("L_mds")
                    self.lds_spin(self.near, "L_md", 4, ck, 30)
                    self.near("s_branch L_mdr")
                n0 = len(st.lines)
                if i < 7: more(s)
                if len(st.lines) == n0 and i < 7:
                    for _ in range(2 if s < W0 else 1):
                        if valu: st(valu.pop(0))
            free.append(areg[s])
            for P in range(14):
                if wlast(P) == s: free += list(wreg[2 * P])
            if s == 17:
                assert len(valu) <= 16
                free.append(hres[0])
            more(s)
        assert nextA == 28 and not valu, nextA
        self.stamp(st, "h", "Et6", 8)
        wrs = [(a, q) for a in (2, 3, 1) for q in ((0, 2, 1, 3) if ech else (0, 1, 3, 2))]
        def wr():
            a, q = wrs.pop(0)
            st.ds(f"ds_write_b128 v{vX[a]}, {vr(ACC+16*a+4*q,4)} offset:{4096*(a-1) + 1024*q}")
        seq = [(s, nt, x) for nt in (1, 0) for s in range(W0 + 4, W0 + 8) for x in quad]
        for i, (s, nt, x) in enumerate(seq):
            if nt == 1: st.wait_vm(("a", s))
            mm(s, nt, *x)
            if i == 12 and self.c.wbat == 29: writeback(False)
            if i in eval(self.c.wpos): wr()
        assert not wrs
        self.stamp(st, "h", "Emfma_end", 13)
        st.wait_ds()
        st.bar("BE2")
        for q in range(4):
            for a in (1, 2, 3): st.ds(f"ds_read_b128 {vr(ACC+16*a+4*q,4)}, v{vX[0]} offset:{4096*(a-1) + 1024*q}", ("r", q))
        for r in range(0, 16, 2): st(f"v_pk_add_f32 {vr(ACC+r,2)}, {vr(ACC+r,2)}, {vr(res(r),2)}")
        for q in range(4):
            st.wait_ds(("r", q))
            for r in (4 * q, 4 * q + 2):
                st(f"v_pk_add_f32 {vr(ACC+r,2)}, {vr(ACC+r,2)}, {vr(ACC+16+r,2)}\nv_pk_add_f32 {vr(ACC+32+r,2)}, {vr(ACC+32+r,2)}, {vr(ACC+48+r,2)}")
            for r in (4 * q, 4 * q + 2): st(f"v_pk_add_f32 {vr(ACC+r,2)}, {vr(ACC+r,2)}, {vr(ACC+32+r,2)}")
            b = hres[1 + q // 2]
            for e in range(2): st(f"v_cvt_pk_bf16_f32 v{b+2*(q % 2)+e}, v{ACC+4*q+2*e}, v{ACC+4*q+2*e+1}")
            if q % 2:
                st(f"s_nop 1\nv_permlane16_swap_b32 v{b}, v{b+2}\nv_permlane16_swap_b32 v{b+1}, v{b+3}")
                st.vm(f"buffer_store_dwordx4 {vr(b,4)}, v14, {srd(OUT)}, s{sD} offen offset:{32*(q//2)} {self.c.outf}")
        self.pad(st, 0)
        self.stamp(st, "h", "end", 9)
        if self.c.diag & 8:
            self.nstamp["h"].append("gates")
            st(f"s_waitcnt lgkmcnt(0)\ns_mov_b32 s{sSTAMP + 2*(len(self.nstamp['h'])-1)}, s{CODE}")
        self.dump_stamps(st, "h")

    def build(self):
        p, m, h = Stream(), Stream(), Stream()
        self.prologue(p)
        if self.c.pads or self.c.mal: m(".p2align 12" + (f"\n.fill {self.c.moff // 4}, 4, 0xbf800000" if self.c.moff else ""))
        m.label("L_main")
        self.main_phase_a(m); self.main_attention(m); self.main_publish_o(m); self.main_phase_d(m)
        ms = Stream()
        self.sc, self.sfx = " sc1", "_s"
        ms.label("L_main_slow")
        self.main_publish_o(ms); self.main_phase_d(ms)
        self.sc, self.sfx = "", ""
        self.helper_phase_a(h); self.helper_attention(h); self.helper_phase_c(h); self.helper_phase_de(h)
        assert m.nbar + 1 == h.nbar, (m.nbar, h.nbar)
        ref = open("hdr.ref").read().splitlines()
        hdr = [l for l in ref if l.startswith(";") and "@launch" not in l]
        o = "\n".join(hdr) + f"\n; @launch grid=(256,1,1) block=(512,1,1) lds={LDS_BYTES}\n"
        o += DOC
        o += f'.amdgcn_target "amdgcn-amd-amdhsa--gfx950"\n.text\n.globl {NAME}_kernel\n.p2align 8\n.type {NAME}_kernel,@function\n{NAME}_kernel:\n'
        o += p.text() + "\n" + h.text() + "\nL_end:\n    s_endpgm\n" + self.near.text() + "\n" + m.text() + "\nL_codeend:\n" + self.tailcode.text() + "\n" + ms.text() + "\n"
        o += f""".section .rodata,"a"
.p2align 6
.amdhsa_kernel {NAME}_kernel
  .amdhsa_next_free_vgpr 256
  .amdhsa_next_free_sgpr 102
  .amdhsa_accum_offset 256
  .amdhsa_group_segment_fixed_size 0
  .amdhsa_kernarg_size 96
  .amdhsa_user_sgpr_count 2
  .amdhsa_user_sgpr_kernarg_segment_ptr 1
  .amdhsa_system_sgpr_workgroup_id_x 1
.end_amdhsa_kernel
"""
        if self.c.pads:
            import pagepad
            o, n = pagepad.insert(o, (("L_hpage", self.c.hoff, "L_phc", "L_end"), ("L_main", self.c.moff, "L_exit", "L_codeend")), sWALK)
            assert n
        if self.c.al8:
            import align8
            o = align8.align(o, ("L_attn", "L_norm"), self.c.al8 % 10, self.c.al8 >= 10)
        return o

if __name__ == "__main__":
    import hazcheck, json
    cfg = Cfg()
    out = sys.argv[1]
    for a in sys.argv[2:]:
        k, v = a.split("=")
        setattr(cfg, k, v if isinstance(getattr(cfg, k), str) else int(v))
    g = Gen(cfg)
    txt = g.build()
    open(out, "w").write(txt)
    json.dump(dict(g.nstamp, cyc=cfg.cyc) if g.nstamp else {}, open(out + ".stamps.json", "w"))
    errs = hazcheck.check(txt)
    for e in errs[:40]: print(e)
    print(len(errs), "hazard findings;", len(txt.splitlines()), "lines")
```

```python
import sys, struct
from emit import Stream, vr, sr

NAME = "sequential_preLN__grouped_kv_mqa__glu_gated_glu__prompt"

def f32(x): return hex(struct.unpack("<I", struct.pack("<f", x))[0])

WS_KV, WS_KVL, WS_FLG1, WS_FLGL, WS_FLG2, WS_FLG3, WS_FLG4 = 0x0, 0x20000, 0x40000, 0x48000, 0x50000, 0x52000, 0x54000
WS_WB, WS_ST, WS_DIAG, WS_PM, WS_O, WS_H, WS_HH, WS_SIZE = 0x58000, 0x60000, 0xA0000, 0xC0000, 0x100000, 0x300000, 0x500000, 0xC00000
TILE, RING, FS, ODD = 2080, 0, 33280, 57856
XN, WKV, WQST, NWQ = 33280, 16640, 67072, 23
LDS_BYTES = 163840
PML, WBL, MISC = 156160, 163072, 163584
PROG, LAND, XC, WC = MISC + 160, MISC + 176, MISC + 192, MISC + 208
STGW = 14336
STG = WBL - 4 * STGW
def slot8(i): return RING + 8192 * i if i < 4 else FS + 8192 * (i - 4)
FSLOT = (4, 5, 6, 0, 1, 2, 3, 4, 5, 7, 6, 0, 1, 2, 3, 4)
def tile_of(c, i): return (i if i < c else i + 4) if i < 3 else c + i - 3
X, WQ, WKVS, WO, WG, WU, WD, OUT, DBG, WS = 4, 8, 12, 16, 20, 24, 28, 32, 36, 40
sG, sIDX, sRB, sCB, sW, sXCC = 44, 45, 46, 47, 48, 49
sT0, sT1, sT2, sT3, sCNT = 50, 51, 52, 53, 54
sA, sB, sC, sD, sE = 55, 56, 57, 58, 59
sONE, sLO, sHI = 60, 61, 62
sF = 63
CODE = 64
sP = 68
mO, mPM, mF2, mF3, mF4, mST, mHH0, mHH1, mRB, mCHK, mKH, mKG, mKL, mFG, mFL = range(20, 35)
MOUT = WO
eO = WQ
sSTAMP = 76
SPIN = 1 << 17
SPINL = 96
sCOLO = 3
WS_EPOCH = 0x48400
sEP = DBG
sEP1 = DBG + 1
sWALK = DBG + 2
def srd(b): return sr(b, 4)

DOC = """;
;      The shift is 0; the row sums and outputs are range-checked afterwards and a wave that fails the check redoes its
"""

class Cfg:
    diag = False
    tail = 7
    force_fallback = False
    force_slow = False
    npre = 6
    nearly = 120
    tq = 8
    ndeep = 12
    sec = 2
    wo_early = 2
    lfat = 4
    gfat = 5
    jx = 8
    pace = 4
    lag = 16
    wpos = '1,3,6,8,11,13,16,18,20,22,24,26'
    kv2 = 0
    tcd = 0
    cpf = 2
    npoll = 0
    wbat = 0
    wbw = 3
    mal = 1
    hal = 0
    pads = 0
    moff = 0
    hoff = 0
    kprio = 1
    asleep = 0
    zig = 0
    ech = 0
    al8 = 0
    bc2at = 1
    stlate = 0
    jitter = 0
    bpat = 1
    psleep = 0
    fake16 = 0
    bal = 0
    balc = 32
    hho = 0
    of = ''
    cf = ''
    sf = ''
    gf = ''
    hfirst = 0
    mprio = 1
    tm = 0
    tkv = 1
    wcat = 1
    nh = 0
    nb = 0
    nmore = 0
    x1late = 0
    align = 0
    lalign = 0
    pmat = 2
    g2early = 1
    stat = 127
    d2 = 0
    d3 = 0
    nlate = 0
    lateat = 8
    wafter = 0
    wper = 4
    la = 7
    cfull = 2
    pprio = 2
    fexec = 0
    dplan = ("L5 P1 F5 F6 P2 F7 P3 F8 L7 F9 P4 F10 L9 W10>8 P5 F11 W11>9 P6 F12 R10 P7 F13 W12>8 R11 W13>10 W14>9 P8 F14 R12 P9 F15 T "
             "W15>8 R13 W16>11 L16 R14 W17>12 W18>10 R15 W19>9 R16 W20>8 R17 W21>11 W22>12 P20 W23>13 W24>14 W25>15 W26>16 W27>17")
    gates = "2,4:2:5,7:9:12"
    lagp = 10
    tprio = 0
    eprio = 0
    fake = 0
    cyc = 0
    dprio = 0
    pace2 = 6
    loose = 0
    hprio = 0
    nt = 0
    swap = 1
    abatch = 1
    edepth = 5
    etile = 5
    sched = "Tkv S6|R S14 X Tmd Tmg0 Tmg1|R S14 F0|R S14 O0^2 F1|R S4 O2^2 O4 F2 R Tx|O8^6 O10^6 Cx|Cf O12^6 O14^6 O6 B|K Tc Ts Tr"
    padto = 0
    padat = 0
    padwg = -1
    probe = ''
    outf = ''
    hhplain = 0

def mfma32(d, a, b, c=None):
    return f"v_mfma_f32_32x32x16_bf16 {vr(d,16)}, {vr(a,4)}, {vr(b,4)}, {vr(d,16) if c is None else c}"
def mfma16(d, a, b, c=None):
    return f"v_mfma_f32_16x16x32_bf16 {vr(d,4)}, {vr(a,4)}, {vr(b,4)}, {vr(d,4) if c is None else c}"
def smf(d, a, b, idx):
    return f"v_smfmac_f32_32x32x32_bf16 {vr(d,16)}, {vr(a,4)}, {vr(b,8)}, v{idx}"

class Gen:
    def __init__(self, cfg):
        self.c = cfg
        self.tailcode = Stream()
        self.near = Stream()
        self.nstamp = {}

    sc, sfx, njit = "", "", 0

    def stamp(self, st, role, name, level=1):
        if self.c.jitter:
            self.njit += 1
            lab = f"L_jit{self.njit}"
            st(f"s_cselect_b32 s97, 1, 0\ns_getreg_b32 s98, hwreg(HW_REG_SHADER_CYCLES)".replace("s_getreg_b32 s98, hwreg(HW_REG_SHADER_CYCLES)", "s_mul_i32 s99, s99, 0x41c64e6d\ns_add_u32 s99, s99, s2\ns_add_u32 s99, s99, s48\ns_add_u32 s99, s99, 12345"))
            st(f"s_bfe_u32 s98, s99, 0x30014\ns_cmp_lg_u32 s98, 0\ns_cbranch_scc1 {lab}x\ns_bfe_u32 s98, s99, {hex(0x10 + (self.c.jitter << 16))}")
            st.label(lab)
            st(f"s_sleep 4\ns_sub_u32 s98, s98, 1\ns_cbranch_scc0 {lab}")
            st.label(lab + "x")
            st("s_cmp_eq_u32 s97, 1")
        if self.c.probe and not self.sc:
            r, a, b, kind = self.c.probe.split(",")
            op = "s_memtime" if kind == "c" else "s_memrealtime"
            if role == r and name == "start": st("s_memrealtime s[100:101]")
            if role == r and name == a: st(f"{op} s[96:97]")
            if role == r and name == b: st(f"{op} s[94:95]")
            if role == r and name == "end":
                if self.c.padwg >= 0: st(f"s_cmp_lg_u32 s2, {self.c.padwg}\ns_cbranch_scc1 L_prbx")
                st("s_waitcnt lgkmcnt(0)\ns_sub_u32 s94, s94, s96")
                st("s_lshr_b32 s94, s94, 1" if kind == "c" else "s_mul_i32 s94, s94, 10")
                st("s_add_u32 s94, s94, 6000")
                st.label("L_prb")
                st("s_memrealtime s[98:99]\ns_waitcnt lgkmcnt(0)\ns_sub_u32 s98, s98, s100\ns_cmp_lt_u32 s98, s94\ns_cbranch_scc1 L_prb")
                st.label("L_prbx")
        if not (self.c.diag & level) or self.sc: return
        l = self.nstamp.setdefault(role, [])
        i = len(l); l.append(name)
        assert i < 13
        st(f"{'s_memtime' if name.startswith('cyc') or self.c.cyc else 's_memrealtime'} {sr(sSTAMP + 2*i, 2)}")

    def dump_stamps(self, st, role):
        if not self.c.diag or self.sc: return
        n = len(self.nstamp[role])
        st("s_waitcnt lgkmcnt(0)")
        st(f"s_lshl_b32 s{sT0}, s2, 3\ns_add_u32 s{sT0}, s{sT0}, s{sW}")
        st(f"s_add_u32 s{sT0}, s{sT0}, {4 if role == 'h' else 0}\ns_lshl_b32 s{sT0}, s{sT0}, 6\ns_add_u32 s{sT0}, s{sT0}, {WS_DIAG}")
        for i in range(n):
            st(f"v_mov_b32 v1, s{sSTAMP + 2*i}")
            st(f"buffer_store_dword v1, off, {srd(WS)}, s{sT0} offset:{4*i}")
        st("s_waitcnt vmcnt(0)")

    def notready(self, st, vdst, need):
        st(f"v_subrev_u32 v{vdst}, s{sEP}, v{vdst}")
        st(f"v_subrev_u32 v{vdst}, {need}, v{vdst}")
        st(f"v_cmp_lt_u32 vcc, {15 - need}, v{vdst}")

    def poll(self, st, name, vaddr, soff, vdst, need, exact=False, lanes=64):
        st(f"s_mov_b32 s{sCNT}, {SPIN}")
        if lanes < 64: st(f"s_bfm_b64 exec, {lanes}, 0")
        st.label(name)
        st(f"buffer_load_dword v{vdst}, v{vaddr}, {srd(WS)}, {soff} offen sc1")
        st.wait_vm()
        if exact: st(f"v_cmp_ne_u32 vcc, s{sEP1}, v{vdst}")
        else: self.notready(st, vdst, need)
        st(f"s_cbranch_vccz {name}_ok")
        st(f"s_sub_u32 s{sCNT}, s{sCNT}, 1")
        st(f"s_cbranch_scc0 {name}")
        st.label(name + "_ok")
        if lanes < 64: st("s_mov_b64 exec, -1")

    def pad(self, st, at):
        if not self.c.padto or self.c.padat != at: return
        if self.c.padwg >= 0: st(f"s_cmp_lg_u32 s2, {self.c.padwg}\ns_cbranch_scc1 L_padx")
        st.label("L_pad")
        st("s_memrealtime s[98:99]\ns_waitcnt lgkmcnt(0)\ns_sub_u32 s98, s98, s100")
        st(f"s_cmp_lt_u32 s98, {self.c.padto * 100}\ns_cbranch_scc1 L_pad")
        st.label("L_padx")

    def lds_min(self, st, r, need):
        st(f"v_min3_u32 v{r}, v{r}, v{r+1}, v{r+2}\nv_min_u32 v{r}, v{r}, v{r+3}\nv_cmp_gt_u32 vcc, {need}, v{r}")

    def lds_spin(self, st, name, va, r, need, sleep=0):
        st(f"s_mov_b32 s{sCNT}, {SPIN * 16}")
        st.label(name)
        st(f"ds_read_b128 {vr(r,4)}, v{va}")
        st.wait_ds()
        self.lds_min(st, r, need)
        st(f"s_cbranch_vccz {name}_ok")
        if sleep: st(f"s_sleep {sleep}")
        st(f"s_sub_u32 s{sCNT}, s{sCNT}, 1\ns_cbranch_scc0 {name}")
        st.label(name + "_ok")

    def validate(self, st, name, regs, tmp, reload, inline=False):
        def test(o):
            r = list(regs)
            while len(r) > 1:
                if len(r) > 2: o(f"v_max3_u32 v{tmp}, v{r[0]}, v{r[1]}, v{r[2]}"); r = [tmp] + r[3:]
                else: o(f"v_max_u32 v{tmp}, v{r[0]}, v{r[1]}"); r = [tmp]
            o(f"v_cmp_eq_u32 vcc, -1, v{r[0]}")
        name += self.sfx
        test(st)
        if inline:
            st(f"s_cbranch_vccz {name}r")
            o = st
        else:
            st(f"s_cbranch_vccnz {name}s")
            st.label(name + "r")
            o = self.tailcode if self.sc else self.near
            o.label(name + "s")
        o(f"s_mov_b32 s{sCNT}, {SPIN}")
        o.label(name + "l")
        if self.c.diag & 512 and not self.sc: o(f"s_add_u32 s{CODE}, s{CODE}, {1 if name[2] == 'g' else 256 if name == 'L_a0' else 65536}")
        for l in reload: o(l)
        o("s_waitcnt vmcnt(0)")
        test(o)
        o(f"s_cbranch_vccz {name}r\ns_sub_u32 s{sCNT}, s{sCNT}, 1\ns_cbranch_scc0 {name}l")
        if inline: st.label(name + "r")
        else: o(f"s_branch {name}r")

    def epoch_load(self, st):
        st(f"s_load_dword s{sEP}, {sr(WS,2)}, {WS_EPOCH}")

    def epoch_make(self, st):
        st(f"s_and_b32 s{sEP}, s{sEP}, 0xfffffff0\ns_add_u32 s{sEP}, s{sEP}, 0x9e3779b0\ns_add_u32 s{sEP1}, s{sEP}, 1")

    def srds(self, st, lst):
        for b, n in lst: st(f"s_mov_b32 s{b+2}, {n}\ns_mov_b32 s{b+3}, 0x20000")

    def prologue(self, st):
        if self.c.diag & 4096:
            self.nstamp = {"m": ["start"], "h": ["start"]}
            st(f"s_memtime {sr(sSTAMP,2)}")
        st(f"s_load_dwordx2 {sr(X,2)}, s[0:1], 0\ns_lshr_b32 s{sT2}, s2, 1\ns_and_b32 s{sT2}, s{sT2}, 8\ns_add_u32 s{sT2}, s{sT2}, 16")
        st(f"s_load_dwordx2 {sr(WKVS,2)}, s[0:1], s{sT2}\ns_load_dwordx2 {sr(WS,2)}, s[0:1], 88")
        st("s_cmpk_ge_u32 s2, 256\ns_cbranch_scc1 L_end")
        if self.c.jitter: st("s_memtime s[98:99]\ns_waitcnt lgkmcnt(0)\ns_mov_b32 s99, s98")
        st(f"s_getpc_b64 {sr(CODE,2)}")
        st.label("L_pc")
        st(f"v_readfirstlane_b32 s{sT0}, v0\ns_lshr_b32 s{sIDX}, s2, 3\ns_lshl_b32 s{sT1}, s{sIDX}, 11")
        if self.c.cpf == 1:
            st(f"s_mov_b32 s{CODE+2}, L_codeend-L_pc\ns_mov_b32 s{CODE+3}, 0x20000\nv_lshrrev_b32 v1, 5, v0\nv_lshlrev_b32 v1, 7, v1")
            st(f"buffer_load_dword v255, v1, {srd(CODE)}, s{sT1} offen")
        elif self.c.cpf == 2:
            st(f"v_lshrrev_b32 v2, 5, v0\nv_lshl_add_u32 v2, v2, 7, s{sT1}\nv_min_u32 v2, L_codeend-L_pc-4, v2\nv_mov_b32 v3, 0")
            st(f"v_lshl_add_u64 v[2:3], v[2:3], 0, {sr(CODE,2)}\nglobal_load_dword v255, v[2:3], off")
        st(f"s_and_b32 s{sG}, s2, 7\ns_lshr_b32 s{sT1}, s{sIDX}, 2\ns_lshl_b32 s{sRB}, s{sG}, 3\ns_add_u32 s{sRB}, s{sRB}, s{sT1}")
        st(f"s_and_b32 s{sCB}, s{sIDX}, 3\ns_bfe_u32 s{sW}, s{sT0}, 0x20006\nv_and_b32 v0, 63, v0")
        if self.c.pads: st(f"s_mov_b32 s{sWALK}, 0")
        st(f"s_cmpk_lt_u32 s{sT0}, 256\ns_cbranch_scc{1 - self.c.hfirst} L_main")

    def main_phase_a(self, st):
        st("; ---- main: phase A")
        self.stamp(st, "m", "start", 4095)
        vD, vTR, vXB, vXC = 2, 3, 4, 5
        XR, ACC = 112, 144
        self.stamp(st, "m", "role", 4096)
        st.vq.append((None, False))
        if self.c.mprio: st(f"s_setprio {self.c.mprio}")
        st(f"s_load_dwordx2 {sr(WQ,2)}, s[0:1], 8\ns_load_dwordx2 {sr(MOUT,2)}, s[0:1], 72")
        st(f"v_and_b32 v12, 15, v0\nv_lshlrev_b32 v12, 2, v12\nv_add_u32 v12, {PROG}, v12\nv_mov_b32 v13, 0\nds_write_b32 v12, v13")
        self.srds(st, ((WQ, 524288), (WKVS, 16384), (WS, WS_SIZE)))
        st(f"s_mov_b32 s{sONE}, 0x3f803f80")
        st(f"v_lshrrev_b32 v10, 2, v0\nv_lshlrev_b32 v10, 10, v10\nv_and_b32 v11, 3, v0\nv_lshlrev_b32 v17, 7, v0\nv_lshlrev_b32 v11, 4, v11")
        st(f"s_lshl_b32 s{sT0}, s{sCB}, 8\ns_lshl_b32 s{sT1}, s{sW}, 6\ns_add_u32 s{sT0}, s{sT0}, s{sT1}")
        st(f"v_add3_u32 v{vD}, v10, v11, s{sT0}\nv_lshlrev_b32 v{self.vK}, 4, v0")
        if self.c.fake & 8:
            st(f"v_lshrrev_b32 v10, 3, v0\nv_lshlrev_b32 v10, 10, v10\nv_and_b32 v11, 7, v0\nv_lshlrev_b32 v11, 4, v11\ns_and_b32 s{sT1}, s{sW}, 1\ns_mul_i32 s{sT1}, s{sT1}, {8192-64}\ns_add_u32 s{sT0}, s{sT0}, s{sT1}\nv_add3_u32 v{vD}, v10, v11, s{sT0}")
        st(f"s_mul_i32 s{sA}, s{sW}, {NWQ*1024}\ns_add_u32 s{sA}, s{sA}, {WQST}")
        st(f"s_lshr_b32 s{sB}, s{sIDX}, 2\ns_lshl_b32 s{sC}, s{sB}, 16")
        st(f"s_lshl_b32 s{sT0}, s{sB}, 1\ns_and_b32 s{sT1}, s{sCB}, 1\ns_add_u32 s{sT0}, s{sT0}, s{sT1}\ns_lshl_b32 s{sT0}, s{sT0}, 2\ns_add_u32 s{sT0}, s{sT0}, s{sW}\ns_lshl_b32 s{sT0}, s{sT0}, 8")
        st(f"s_lshl_b32 s{sT1}, s{sIDX}, 2\ns_add_u32 s{sT1}, s{sT1}, s{sW}\ns_lshl_b32 s{sT2}, s{sT1}, 7\ns_mul_i32 s{sT1}, s{sT1}, {128 * self.c.tq if self.c.nh else 4096}")
        st(f"s_lshl_b32 s{sT3}, s{sG}, 14\ns_add_u32 s{sT2}, s{sT2}, s{sT3}\ns_add_u32 s{sT2}, s{sT2}, {WS_KVL}\ns_lshl_b32 s{sT3}, s{sG}, 7\ns_add_u32 s{sT3}, s{sT3}, {WS_FLGL}")
        st("s_waitcnt lgkmcnt(0)")
        self.stamp(st, "m", "karg", 4096)
        self.epoch_load(st)
        if self.c.tm < 2: st.bar("B00")
        self.stamp(st, "m", "B00", 4096)
        st("s_mov_b64 exec, 3")
        if self.c.tkv: st.vm(f"buffer_load_dword v254, v17, {srd(WKVS)}, s{sT0} offen")
        st("s_mov_b64 exec, 1")
        st.vm(f"buffer_load_dword v253, off, {srd(WS)}, s{sT2} sc1")
        st.vm(f"buffer_load_dword v252, off, {srd(WS)}, s{sT3} sc1")
        if self.c.tm: st(f"s_lshl_b32 s{sT1}, s2, 2\ns_add_u32 s{sT1}, s{sT1}, s{sW}\ns_lshl_b32 s{sT1}, s{sT1}, 9")
        st(f"s_bfm_b64 exec, {4 if self.c.tm else self.c.tq}, 0")
        st.vm(f"buffer_load_dword v248, v17, {srd(WQ)}, s{sT1} offen")
        st("s_mov_b64 exec, -1")
        if self.c.tm == 2: st.bar("B00")
        self.stamp(st, "m", "touched", 4096)
        st(f"v_lshrrev_b32 v10, 5, v0\nv_lshlrev_b32 v11, 9, v10\nv_bfe_u32 v13, v0, 2, 2\nv_lshl_add_u32 v11, v13, 6, v11")
        st(f"v_bfe_u32 v13, v0, 4, 1\nv_lshl_add_u32 v11, v13, 5, v11\nv_and_b32 v13, 3, v0\nv_lshl_add_u32 v11, v13, 3, v11")
        st(f"v_add_u32 v{vTR}, s{sA}, v11")
        st(f"v_mul_u32_u24 v11, 528, v10\nv_and_b32 v13, 31, v0\nv_lshl_add_u32 v11, v13, 4, v11\nv_add_u32 v{vXB}, {XN}, v11")
        st(f"v_mov_b32 v18, {XC}\nv_lshlrev_b32 v16, 2, v0")
        self.kv_addr(st)
        late = Stream()
        self.main_scalars(st, late)
        self.attn_setup(late)
        for l in late.lines[:self.c.nearly]: st(l)
        late.lines = late.lines[self.c.nearly:]
        self.stamp(st, "m", "msetup", 4096)
        st("s_waitcnt lgkmcnt(0)")
        self.stamp(st, "m", "epoch", 4096)
        self.epoch_make(st)
        st(f"s_getreg_b32 s{sXCC}, hwreg(HW_REG_XCC_ID, 0, 4)\ns_add_u32 s{sXCC}, s{sXCC}, s{sEP}")
        st.bar("B0")
        self.stamp(st, "m", "B0", 4160)
        nh, nb = self.c.nh, self.c.nb
        assert nh in (0, self.c.tq)
        gs = (32 - nh) // 8
        rot = [(a, nh + b) for a in range(8) for b in range(gs)]
        seq = [(None, k) for k in range(nb)] + rot[:gs] + [(None, k) for k in range(nb, nh)] + rot[gs:]
        def dma(j):
            a, k = seq[j]
            st(f"s_add_u32 m0, s{sA}, {(j % NWQ)*1024}")
            if a is None: st(f"s_mov_b32 s{sT1}, {k*16384}")
            elif nh == 0: st(f"s_xor_b32 s{sT1}, s{sC}, {j*16384}")
            else: st(f"s_xor_b32 s{sT1}, s{sB}, {a}\ns_mul_i32 s{sT1}, s{sT1}, {gs*16384}\ns_add_u32 s{sT1}, s{sT1}, {k*16384}")
            st.vm(f"buffer_load_dwordx4 v{vD}, {srd(WQ)}, s{sT1} offen lds", ("wq", j))
        nd = self.c.npre
        for j in range(nd): dma(j)
        self.stamp(st, "m", "pre", 64)
        st(f"s_cmp_gt_u32 s{sW}, {self.c.kv2}\ns_cbranch_scc1 L_nokv")
        self.kv_job(st)
        st.label("L_nokv")
        st.vq += [(None, True)] * 2
        for _ in range(self.c.nmore): dma(nd); nd += 1
        fill = [f"v_mov_b32 v{self.vVAL}, s{sEP1}"] + late.lines
        JX, NWR = self.c.jx, 20
        wreg = lambda j: 168 + 4 * (j % NWR)
        nx = nm = 0
        def rdx():
            nonlocal nx
            a, k = seq[nx]
            if a is not None and k == nh:
                st(f"s_xor_b32 s{sT1}, s{sB}, {a}\ns_mul_i32 s{sT1}, s{sT1}, {gs*1056}\nv_add_u32 v{vXC}, s{sT1}, v{vXB}")
            st.ds(f"ds_read_b128 {vr(XR+4*(nx % 8),4)}, v{vXB if a is None else vXC} offset:{k*1056}", ("x", nx)); nx += 1
        def mm():
            nonlocal nm
            st.wait_ds(("x", nm)); st.wait_ds(("w", nm))
            if self.c.fake & 64:
                for h in range(2): st(mfma16(ACC + 8 * (nm % 2) + 4 * h, wreg(max(nm - h, 0)), XR + 4 * (nm % 8), "0" if nm < 2 else None))
            else: st(mfma32(ACC, wreg(nm), XR + 4 * (nm % 8), "0" if nm == 0 else None))
            nm += 1
            if nx < 32: rdx()
            for _ in range(2):
                if fill: st(fill.pop(0))
            if nm in (9, 20): self.stamp(st, "m", f"q{nm}", 64)
        for j in range(32):
            if j == JX:
                self.lds_spin(st, "L_xc", 18, 20, 3, sleep=self.c.asleep)
                self.stamp(st, "m", "B1m", 2113)
                for _ in range(4): rdx()
            assert j - nm < NWR
            if j == self.c.lfat: self.kv_flag(st, 0, nd - self.c.npre + 1)
            if j == self.c.gfat: self.kv_flag(st, 1, nd - self.c.npre + 1)
            st.wait_vm(("wq", j))
            if j % 4 == 3 or j == 0: self.stamp(st, "m", f"j{j}", 2048)
            o = (j % NWQ) * 1024
            st.ds(f"ds_read_b64_tr_b16 {vr(wreg(j),2)}, v{vTR} offset:{o}")
            st.ds(f"ds_read_b64_tr_b16 {vr(wreg(j)+2,2)}, v{vTR} offset:{o+256}", ("w", j))
            if nd < 32 and nd - NWQ <= j - 2:
                if nd >= NWQ: st.wait_ds(("w", nd - NWQ))
                dma(nd); nd += 1
                if j >= self.c.gfat and nd < min(NWQ, j + self.c.ndeep): dma(nd); nd += 1
            if j >= JX:
                for _ in range(2):
                    if nm < j - 1: mm()
        while nm < 32: mm()
        assert nd == 32
        assert not fill
        self.stamp(st, "m", "Qdone", 2113)

    S, Q, QF, O, OF, KVB, vIDX, vK, vV0, vV1 = (112, 128), 104, 16, (72, 88), (40, 56), (24, 168), 6, 7, 8, 9

    def attn_setup(self, st):
        st(f"v_mov_b32 v{self.vIDX}, 0xdddddddd")
        st("v_and_b32 v12, 31, v0\nv_lshrrev_b32 v13, 5, v0\nv_lshl_add_u32 v13, v13, 4, v12\nv_lshlrev_b32 v13, 4, v13")
        st("v_and_b32 v14, 27, v0\nv_cmp_eq_u32 vcc, 16, v14\nv_mov_b32 v14, 2064\nv_mov_b32 v15, 2048")
        st("v_cndmask_b32 v14, v14, v15, vcc")
        st("v_cmp_gt_u32 vcc, 16, v12\nv_add_u32 v15, 1024, v13\nv_add_u32 v13, 1536, v13")
        st(f"v_cndmask_b32 v{self.vV0}, v14, v15, vcc\nv_cndmask_b32 v{self.vV1}, v14, v13, vcc")
        st(f"v_add_u32 v{self.vV0}, s{mKH}, v{self.vV0}\nv_add_u32 v{self.vV1}, s{mKH}, v{self.vV1}\nv_add_u32 v{self.vKL}, s{mKH}, v{self.vK}")
        st(f"v_mov_b32 v10, {MISC}")
        for r in range(64): st(f"v_mov_b32 v{self.OF[0]+r}, 0")

    vFZ, vVAL, vOW, vWB, vL4, vPW, vKL, vXW = range(160, 168)

    def main_scalars(self, st, late):
        st(f"s_lshl_b32 s{sT0}, s{sRB}, 4\ns_lshl_b32 s{sT1}, s{sCB}, 2\ns_add_u32 s{sT0}, s{sT0}, s{sT1}\ns_add_u32 s{sT2}, s{sT0}, s{sW}")
        st(f"s_lshl_b32 s{mO}, s{sT2}, 11\ns_xor_b32 s{mO}, s{mO}, 2048\ns_add_u32 s{mO}, s{mO}, {WS_O}")
        st(f"s_lshl_b32 s{mPM}, s{sT2}, 8\ns_add_u32 s{mPM}, s{mPM}, {WS_PM}")
        st(f"s_lshr_b32 s{sT0}, s{sIDX}, 4\ns_lshl_b32 s{sT1}, s{sG}, 1\ns_add_u32 s{sT1}, s{sT1}, s{sT0}\ns_lshl_b32 s{sT1}, s{sT1}, 2\ns_add_u32 s{mRB}, s{sT1}, s{sW}")
        st(f"s_lshl_b32 s{sT1}, s{mRB}, 15")
        for i in range(4): st(f"s_add_u32 s{sP+i}, s{sT1}, {8192*i}")
        self.srds(st, ((MOUT, 2097152),))
        st(f"s_lshl_b32 s{mST}, s{mRB}, 12\ns_add_u32 s{mST}, s{mST}, {WS_ST}")
        st(f"s_and_b32 s{sT0}, s{sIDX}, 15\ns_mul_i32 s{mHH0}, s{mRB}, 114688\ns_mul_i32 s{sT1}, s{sT0}, 7168")
        st(f"s_add_u32 s{mHH0}, s{mHH0}, s{sT1}\ns_add_u32 s{mHH0}, s{mHH0}, {WS_HH}\ns_add_u32 s{mHH1}, s{mHH0}, 4096")
        st(f"s_and_b32 s{mKH}, s{sW}, 1\ns_mul_i32 s{mKH}, s{mKH}, {TILE}")
        st(f"s_lshl_b32 s{sT1}, s{mRB}, 7\ns_lshl_b32 s{sT0}, s{sT0}, 2\ns_add_u32 s{mF4}, s{sT1}, s{sT0}\ns_add_u32 s{mF4}, s{mF4}, {WS_FLG4}")
        st(f"s_mov_b32 s{mCHK}, 0")
        st(f"s_xor_b32 s{sE}, s{sW}, 1\ns_lshl_b32 s{sD}, s{sE}, 11\ns_lshl_b32 s{sE}, s{sE}, 7\ns_add_u32 s{sE}, s{sE}, {WBL}")
        late(f"v_cmp_eq_u32 vcc, 0, v0\nv_mov_b32 v{self.vFZ}, 0x80000000\nv_add_u32 v{self.vOW}, s{sD}, v{self.vK}\nv_cndmask_b32_e64 v{self.vFZ}, v{self.vFZ}, 0, vcc")
        late(f"v_lshrrev_b32 v13, 5, v0\nv_lshlrev_b32 v14, 6, v13\nv_add_u32 v{self.vWB}, s{sE}, v14")
        st(f"s_lshl_b32 s{mF2}, s{sW}, 2\ns_add_u32 s{mF2}, s{mF2}, {PML}")
        late(f"v_lshlrev_b32 v{self.vL4}, 2, v0\nv_add_u32 v{self.vPW}, s{mF2}, v{self.vK}\nv_xor_b32 v{self.vXW}, 2048, v{self.vOW}")

    def colo_reduce(self, st, r):
        st(f"v_and_b32 v{r}, v{r}, v{r+1}\ns_nop 0")
        st(f"v_readfirstlane_b32 s{sCOLO}, v{r}")

    def main_attention(self, st):
        st("; ---- main: phase B")
        S, KVB, O, OF = self.S, self.KVB, self.O, self.OF
        Q4, O4 = (self.QF, self.QF + 4, self.Q, self.Q + 4), OF + O
        buf = lambda t: KVB[t % 2]
        off = lambda t: (t % 8) * 2 * TILE
        rdK = lambda t: f"ds_read_b128 {vr(buf(t),4)}, v{self.vKL} offset:{off(t)}"
        rdV0 = lambda t: f"ds_read_b128 {vr(buf(t)+4,4)}, v{self.vV0} offset:{off(t)}"
        rdV1 = lambda t: f"ds_read_b128 {vr(buf(t)+8,4)}, v{self.vV1} offset:{off(t)}"
        def unit(t, q, f0=(), f1=(), f2=(), prev=0, succ=0):
            cur, nxt = S[q % 2], S[1 - q % 2]
            f0, f1, f2 = list(f0), list(f1), list(f2)
            if prev == 0: prev = (t, q - 1) if q else (t - 1, 3)
            if succ == 0: succ = (t + q // 3, (q + 1) % 4)
            e = [f"v_exp_f32 v{cur+i}, v{cur+i}" for i in range(16)]
            pv1 = [smf(O4[prev[1]], buf(prev[0]) + 8, nxt + 8, self.vIDX)] if prev else []
            mq = [mfma32(nxt, buf(succ[0]), Q4[succ[1]], "0")] if succ else []
            pv0 = smf(O4[q], buf(t) + 4, cur, self.vIDX)
            return e[0:2] + pv1 + f0 + e[2:5] + mq, f1 + e[5:11] + [pv0] + f2, e[11:16]
        parts = []
        for t in range(8):
            for q in range(4):
                f0, f1, f2 = [], [], []
                if q == 0 and t == 6: f0, f1 = [f"s_sub_u32 s{sA}, s{sA}, 1"], ["s_cbranch_scc1 L_exit"]
                if q == 1 and t % 4 == 3: f0 = ["s_barrier                ; BA"]
                if q == 2 and not (self.c.fake & 256 and t % 4 >= 2): f0, f1, f2 = [rdK(t + 1)], [rdV0(t + 1)], [rdV1(t + 1)]
                if q == 3: f0, f2 = ["s_waitcnt lgkmcnt(2)"], ["s_waitcnt lgkmcnt(0)"]
                parts += unit(t, q, f0, f1, f2)
        flat = lambda ps: "\n".join(l for p in ps for l in p)
        st.bar("B2")
        self.stamp(st, "m", "B2", 2131)
        self.stamp(st, "m", "cyc0", 32)
        for l in (rdK(0), "ds_read_b64 v[12:13], v10", rdV0(0), rdV1(0)): st(l)
        st(f"s_mov_b32 s{sA}, 3")
        st.nop(6)
        cv = [f"v_cvt_pk_bf16_f32 v{self.QF + r}, v{144+2*r}, v{144+2*r+1}" for r in range(8)]
        st("\n".join(cv[:5]))
        st("s_waitcnt lgkmcnt(2)")
        st(mfma32(S[0], buf(0), Q4[0], "0"))
        st(f"ds_write_b128 v{self.vXW}, {vr(Q4[0],4)} offset:{ODD}")
        st("\n".join(cv[5:]))
        st(f"ds_write_b128 v{self.vXW}, {vr(Q4[1],4)} offset:{ODD + 1024}")
        self.colo_reduce(st, 12)
        st.nop(4)
        rq = [f"ds_read_b128 {vr(Q4[2+q],4)}, v{self.vOW} offset:{ODD + 1024*q}" for q in range(2)]
        st(flat(unit(0, 0, [], ["s_waitcnt lgkmcnt(0)", "s_barrier                ; BQ"], rq, prev=None)))
        st(flat(unit(0, 1, ["s_waitcnt lgkmcnt(0)"], [], [])[:1]))
        if self.c.lalign: st(f".p2align {self.c.lalign}")
        st.label("L_attn")
        st(flat(parts[4:] + parts[:4]))
        st("s_branch L_attn")
        st.label("L_exit")
        R = 208
        wr = lambda q: [f"ds_write_b128 v{self.vXW}, {vr(OF[q]+4*i,4)} offset:{RING + 8192*(q+1) + 1024*i}" for i in range(2)]
        rd = [f"ds_read_b128 {vr(R+8*q+4*i,4)}, v{self.vOW} offset:{RING + 8192*(q+1) + 1024*i}" for q in range(2) for i in range(2)]
        rd.insert(2, f"ds_read_b64 {vr(R+16,2)}, v{self.vOW} offset:{RING + 24576}")
        wl = [f"v_mov_b32 v{OF[0]+9}, v{OF[1]+8}", f"ds_write_b64 v{self.vXW}, {vr(OF[0]+8,2)} offset:{RING + 24576}"]
        w0 = "s_waitcnt lgkmcnt(0)"
        st(flat(unit(6, 0, [], [rdK(7)], [rdV0(7)])[1:]))
        st(flat(unit(6, 1, ["s_waitcnt lgkmcnt(1)"], [rdV1(7)], [], succ=(7, 0))))
        st(flat(unit(7, 0, [w0], ["s_barrier                ; BA"], [], prev=(6, 1))))
        st(flat(unit(7, 1, succ=(6, 2))))
        st(flat(unit(6, 2, wr(0)[:1], wr(0)[1:], wr(1)[:1] + wl[:1], prev=(7, 1))))
        st(flat(unit(6, 3, wr(1)[1:], wl[1:], [], succ=(7, 2))))
        st(flat(unit(7, 2, [w0], ["s_barrier                ; BP"], rd[:3], prev=(6, 3))))
        st(flat(unit(7, 3, rd[3:], [], [w0], succ=None)))
        st("s_nop 0")
        st(f"v_add_f32 v{O[0]+8}, v{O[0]+8}, v{R+16}")
        st(smf(O[1], buf(7) + 8, S[1] + 8, self.vIDX))
        for r in range(8): st(f"v_add_f32 v{O[0]+r}, v{O[0]+r}, v{R+r}")
        st.nop(4)
        st(f"v_add_f32 v{O[1]+8}, v{O[1]+8}, v{R+17}")
        for r in range(0, 8, 2): st(f"v_pk_add_f32 {vr(O[1]+r,2)}, {vr(O[1]+r,2)}, {vr(R+8+r,2)}")
        st.nbar += 10
        self.stamp(st, "m", "attn_end", 1043)
        self.stamp(st, "m", "cyc1", 32)
        st.label("L_norm")
        st(f"s_cmp_eq_u32 s{sCOLO}, {2 if self.c.force_slow else 1}\ns_cbranch_scc0 L_main_slow")
        self.fallback()

    def main_publish_o(self, st):
        st("; ---- main: publish attention output, gather the other heads")
        O, T, WB, sc = self.O, 192, 176, self.sc
        if self.c.diag & 512: st(f"s_mov_b32 s{CODE}, 0")
        st(f"v_rcp_f32 v{T+8}, v{O[0]+8}\ns_movk_i32 s{sT0}, 0x207")
        for r in range(8): st(f"v_mul_f32 v{O[0]+r}, v{T+8}, v{O[0]+r}")
        st(f"v_rcp_f32 v{T+8}, v{O[1]+8}")
        st(f"v_min_f32 v{T+12}, v{O[0]+8}, v{O[1]+8}\nv_add_f32 v{T+13}, v{O[0]+8}, v{O[1]+8}")
        for r in range(0, 8, 2): st(f"v_pk_mul_f32 {vr(O[1]+r,2)}, {vr(O[1]+r,2)}, {vr(T+8,2)} op_sel_hi:[1,0]")
        for r in range(0, 8, 2): st(f"v_pk_fma_f32 {vr(T+10,2)}, {vr(O[0]+r,2)}, {vr(O[1]+r,2)}, {vr(T+10,2) if r else 0}".replace(", 0", ", 0 op_sel_hi:[1,1,0]"))
        st(f"v_cmp_nle_f32 vcc, {f32(2.0**-64)}, v{T+12}")
        st(f"v_add_f32 v{T+10}, v{T+10}, v{T+11}")
        st(f"v_cmp_class_f32_e64 {sr(sT2,2)}, v{T+10}, s{sT0}")
        st(f"s_or_b64 {sr(sT2,2)}, {sr(sT2,2)}, vcc")
        st(f"v_cmp_nge_f32 vcc, {f32(2.0**64)}, v{T+13}")
        for r in range(4): st(f"v_cvt_pk_bf16_f32 v{T+r}, v{O[0]+2*r}, v{O[0]+2*r+1}")
        st(f"s_or_b64 {sr(sT2,2)}, {sr(sT2,2)}, vcc")
        if self.c.force_fallback: st(f"s_or_b64 {sr(sT2,2)}, {sr(sT2,2)}, 1")
        st(f"s_cbranch_scc1 L_unsafe{self.sfx}")
        st.label("L_safe" + self.sfx)
        self.stamp(st, "m", "safe", 1024)
        tc = self.tailcode
        tc.label("L_unsafe" + self.sfx)
        tc(f"s_waitcnt lgkmcnt(0)\ns_cmp_eq_u32 s{mCHK}, 0\ns_cbranch_scc1 L_fallback")
        tc(f"v_min_u32 v{T}, -2, v{T}\nv_cmp_o_f32 vcc, v{O[1]}, v{O[1]}\nv_mov_b32 v{T+9}, 0x7fc00000\ns_nop 0\nv_cndmask_b32 v{O[1]}, v{T+9}, v{O[1]}, vcc")
        tc(f"s_branch L_safe{self.sfx}")
        sto = lambda q: st.vm(f"buffer_store_dwordx4 {vr(T+4*q,4)}, v{self.vK}, {srd(WS)}, s{mO} offen offset:{1024*q}{sc or ' ' + self.c.of}")
        sto(0)
        for i in range(4): st(f"ds_read_b128 {vr(WB+4*i,4)}, v{self.vWB} offset:{16*i}")
        for r in range(4): st(f"v_cvt_pk_bf16_f32 v{T+4+r}, v{O[1]+2*r}, v{O[1]+2*r+1}")
        sto(1)
        self.stamp(st, "m", "Ost", 1025)
        for a in range(1, 4): st(f"s_xor_b32 s{4+a}, s{mO}, {8192*a}\ns_xor_b32 s{8+a}, s{mPM}, {1024*a}")
        st("s_waitcnt lgkmcnt(0)")
        for r in range(8):
            for hl in range(2):
                d = T + 10 + hl + 4 * (r % 2)
                st(f"v_dot2_f32_bf16 v{d}, v{T+r}, v{WB+8*hl+r}, {'0' if r < 2 else 'v%d' % d}")
        for q in range(2): st(f"ds_write_b128 v{self.vOW}, {vr(T+4*q,4)} offset:{RING + 1024*q}")
        st(f"s_nop 0\nv_pk_add_f32 {vr(T+10,2)}, {vr(T+10,2)}, {vr(T+14,2)}\nv_add_f32 v{T+10}, v{T+10}, v{T+11}\nv_min_u32 v{T+10}, -2, v{T+10}")
        G, GP = (lambda a: 208 + 8 * (a - 1)), 232
        ld = lambda a: [f"buffer_load_dwordx4 {vr(G(a)+4*q,4)}, v{self.vK}, {srd(WS)}, s{4+a} offen offset:{1024*q} sc1 {self.c.gf}" for q in range(2)]
        ldp = [f"buffer_load_dword v{GP+a}, v{self.vL4}, {srd(WS)}, s{8+a} offen sc1" for a in range(1, 4)]
        pmst = lambda: st.vm(f"buffer_store_dword v{T+10}, v{self.vL4}, {srd(WS)}, s{mPM} offen{sc or ' ' + self.c.of}")
        if self.c.pmat == 0: pmst()
        st.nop(self.c.d2)
        for l in ld(1): st.vm(l, ("g", 1))
        st("s_waitcnt lgkmcnt(0)")
        st.bar("BC0")
        self.stamp(st, "m", "BC0", 1024)
        for a in (2, 3):
            if self.c.pmat == a - 1: pmst()
            for l in ld(a): st.vm(l, ("g", a))
        if self.c.pmat == 3: pmst()
        self.d_setup(st)
        def take(a):
            st.wait_vm(("g", a))
            if a == 1: self.stamp(st, "m", "g1ret", 1024)
            self.validate(st, f"L_g{a}", (G(a), G(a) + 4), GP, ld(a), inline=True)
            self.stamp(st, "m", f"Gok{a}", 1025 if a == 1 else 1024)
            for q in range(2): st.ds(f"ds_write_b128 v{self.vOW}, {vr(G(a)+4*q,4)} offset:{RING + 8192*a + 1024*q}", ("gw", a))
        take(1)
        for l in ldp: st.vm(l, "gp")
        if self.c.g2early: take(2)
        st.wait_ds(("gw", 1))
        st.bar("BC1a")
        if not self.c.g2early: take(2)
        take(3)
        st.wait_ds(("gw", 2))
        st.bar("BC1b")
        st.wait_vm("gp")
        self.validate(st, "L_gp", (GP + 1, GP + 2, GP + 3), GP, ldp, inline=True)
        st(f"v_add_f32 v{GP+1}, v{GP+1}, v{GP+2}\nv_add_f32 v{T+10}, v{T+10}, v{GP+3}\nv_add_f32 v{T+10}, v{T+10}, v{GP+1}")
        st(f"ds_write_b32 v{self.vPW}, v{T+10}")
        st.wait_ds()
        st.bar("BC1c")

    def fallback(self):
        st = self.tailcode
        S, Q, O, KVB = self.S, self.Q, self.O, self.KVB
        K, V0, V1, NM = KVB[0], KVB[0] + 4, KVB[0] + 8, self.OF
        st.label("L_fallback")
        st(f"s_mov_b32 s{mCHK}, 1\nv_subrev_u32 v{self.vV0}, s{mKH}, v{self.vV0}\nv_subrev_u32 v{self.vV1}, s{mKH}, v{self.vV1}")
        st("v_mov_b32 v10, 0xff800000\nv_mov_b32 v11, 0xff800000")
        st(f"s_mov_b32 s{sT0}, {WS_KV}")
        st.label("L_fb1")
        st(f"buffer_load_dwordx4 {vr(K,4)}, v{self.vK}, {srd(WS)}, s{sT0} offen sc1\ns_waitcnt vmcnt(0)")
        st(mfma32(S[0], K, Q, "0")); st(mfma32(S[1], K, Q + 4, "0"))
        st.nop(12)
        for q in range(2):
            for r in range(0, 16, 2): st(f"v_max3_f32 v{10+q}, v{S[q]+r}, v{S[q]+r+1}, v{10+q}")
        st(f"s_add_u32 s{sT0}, s{sT0}, 2048\ns_cmp_lt_u32 s{sT0}, {WS_KV + 131072}\ns_cbranch_scc1 L_fb1")
        st("v_mov_b32 v12, v10\nv_mov_b32 v13, v11\ns_nop 1")
        st("v_permlane32_swap_b32 v10, v12\nv_permlane32_swap_b32 v11, v13")
        st("v_max_f32 v10, v10, v12\nv_max_f32 v11, v11, v13")
        for q in range(2):
            for r in range(16):
                st(f"v_sub_f32 v{NM[q]+r}, 0, v{10+q}\nv_mov_b32 v{O[q]+r}, 0")
        st(f"v_and_b32 v12, 27, v0\nv_cmp_eq_u32 vcc, 16, v12\nv_mov_b32 v13, s{sONE}\ns_nop 0\nv_cndmask_b32 v13, 0, v13, vcc")
        for r in range(8): st(f"v_mov_b32 v{V0+r}, v13")
        st(f"s_mov_b32 s{sT0}, {WS_KV}\ns_mov_b32 s{sT2}, 0xffff\ns_mov_b32 s{sT3}, 0xffff")
        st.label("L_fb2")
        st(f"buffer_load_dwordx4 {vr(K,4)}, v{self.vK}, {srd(WS)}, s{sT0} offen sc1")
        st(f"s_mov_b64 exec, {sr(sT2,2)}")
        st(f"buffer_load_dwordx4 {vr(V0,4)}, v{self.vV0}, {srd(WS)}, s{sT0} offen sc1")
        st(f"buffer_load_dwordx4 {vr(V1,4)}, v{self.vV1}, {srd(WS)}, s{sT0} offen sc1")
        st("s_mov_b64 exec, -1\ns_waitcnt vmcnt(0)")
        st(mfma32(S[0], K, Q, vr(NM[0], 16))); st(mfma32(S[1], K, Q + 4, vr(NM[1], 16)))
        st.nop(12)
        for q in range(2):
            for r in range(16): st(f"v_exp_f32 v{S[q]+r}, v{S[q]+r}")
        st.nop(2)
        for q in range(2):
            st(smf(O[q], V0, S[q], self.vIDX)); st(smf(O[q], V1, S[q] + 8, self.vIDX))
        st(f"s_add_u32 s{sT0}, s{sT0}, 2048\ns_cmp_lt_u32 s{sT0}, {WS_KV + 131072}\ns_cbranch_scc1 L_fb2")
        st.nop(12)
        st("s_branch L_norm")

    def stages(self):
        return [tuple(map(int, x.split(":"))) for x in self.c.gates.split(",")]

    def h_voffset(self, st, d, t):
        st(f"v_lshrrev_b32 v{d}, 3, v0\nv_lshlrev_b32 v{d}, 10, v{d}\nv_and_b32 v{t}, 7, v0\nv_lshl_add_u32 v{d}, v{t}, 4, v{d}")

    def h_base(self, st, d):
        st(f"s_lshl_b32 s{d}, s{sRB}, 1\ns_and_b32 s{sT3}, s{sW}, 1\ns_add_u32 s{d}, s{d}, s{sT3}\ns_lshl_b32 s{d}, s{d}, 14")
        st(f"s_lshl_b32 s{sT3}, s{sCB}, 2\ns_add_u32 s{sT3}, s{sT3}, s{sW}\ns_lshr_b32 s{sT3}, s{sT3}, 1\ns_lshl_b32 s{sT3}, s{sT3}, 7\ns_add_u32 s{d}, s{d}, s{sT3}")

    def d_setup(self, st):
        vFZ, vVAL, vO, vF = 10, 11, (2, 3), (24, 25, 26, 27)
        st(f"v_mov_b32 v{vFZ}, v{self.vFZ}\nv_mov_b32 v{vVAL}, v{self.vVAL}")
        st("v_lshrrev_b32 v13, 5, v0\nv_bfe_u32 v15, v0, 2, 3\nv_lshl_add_u32 v15, v13, 4, v15\nv_and_b32 v16, 3, v0\nv_lshlrev_b32 v16, 3, v16")
        st(f"v_mul_u32_u24 v17, 96, v15\nv_add_u32 v17, v17, v16\nv_add_u32 v{vO[0]}, {ODD}, v17\nv_add_u32 v{vO[1]}, {ODD + 49152}, v17")
        st(f"v_lshlrev_b32 v17, 7, v15\nv_bfe_u32 v18, v0, 3, 2\nv_lshlrev_b32 v18, 5, v18\nv_add3_u32 v{vF[0]}, v17, v18, v16")
        for i in range(1, 4): st(f"v_xor_b32 v{vF[i]}, {32*i}, v{vF[0]}")
        st("v_lshrrev_b32 v14, 4, v0\nv_lshlrev_b32 v4, 12, v14\nv_bfe_u32 v15, v0, 3, 1\nv_lshl_add_u32 v4, v15, 10, v4\nv_and_b32 v15, 7, v0\nv_lshl_add_u32 v4, v15, 4, v4")
        st("v_and_b32 v15, 15, v0\nv_lshlrev_b32 v15, 4, v15\nv_lshl_add_u32 v5, v14, 10, v15")
        st("v_lshl_add_u32 v6, v13, 8, v15\nv_and_b32 v14, 1, v14\nv_lshl_add_u32 v6, v14, 9, v6")
        vPG, vLD = 14, 15
        st(f"s_lshl_b32 s{sT0}, s{sW}, 2\ns_add_u32 s{sT0}, s{sT0}, {PROG}\nv_mov_b32 v{vPG}, s{sT0}\nv_mov_b32 v{vLD}, {LAND}")

    def main_phase_d(self, st):
        st("; ---- main: phase D")
        T, sc = self.c.tail, self.sc
        ACC, BR, AR, STT = 144, 112, 40, 28
        NBR, LA, NAR = 8, self.c.la, 18
        vFZ, vVAL, vO, vF, vC1, vSD = 10, 11, (2, 3), (24, 25, 26, 27), (8, 9), (17, 18)
        vPG, vLD, vN, CK = 14, 15, 16, 20
        nu = 16 - T
        base = 14 * nu
        order = [(u, mat, n) for u in range(nu) for mat in range(2) for n in range(7)]
        order += [(u, mat, n) for n in range(7) for mat in range(2) for u in range(nu, 16)]
        def rdB(m, ts=(0, 1)):
            u, mat, n = order[m]
            b = BR + 4 * (m % NBR)
            for t in ts:
                if n < 3: va, o = vO[u // 8], (u % 8) * 6144 + mat * 3072 + t * 768 + 32 * n
                else: va, o = vF[n - 3], slot8(FSLOT[u]) + mat * 4096 + t * 1024
                st.ds(f"ds_read_b64_tr_b16 {vr(b+2*t,2)}, v{va} offset:{o}", ("b", m))
        for m in range(LA): rdB(m)
        st.bar("BC2")
        self.stamp(st, "m", "BC2", 1025)
        st.nop(self.c.d3)
        nxt = [0]
        lda = lambda a: f"buffer_load_dwordx4 {vr(AR+4*(a % NAR),4)}, v4, {srd(MOUT)}, s{sP + (a & 2)} offen offset:{128*(a // 4) + 2048*(a & 1)} sc1"
        def ldA(upto):
            while nxt[0] < min(32, upto):
                a = nxt[0]; nxt[0] += 1
                st.vm(lda(a), ("a", a))
        def chk(a, n):
            assert a + n <= nxt[0]
            st.wait_vm(("a", a + n - 1))
            self.validate(st, f"L_a{a}", [AR + 4 * (i % NAR) for i in range(a, a + n)], 13,
                          [lda(i) for i in range(a, min(nxt[0], max(a + n, (a | 7) + 1)))], inline=(a == 0))
        ldA(2)
        if self.c.diag & 1024:
            st.wait_vm(("a", 1))
            self.stamp(st, "m", "a0ret", 1024)
        chk(0, 2)
        self.stamp(st, "m", "x3ok", 1029)
        def run(op): op() if callable(op) else st(op)
        lds_ = [f"buffer_load_dwordx4 {vr(STT+4*i,4)}, v5, {srd(WS)}, s{mST} offen offset:{512 + 256*i} sc1" for i in range(2)]
        def ldst():
            for l in lds_: st.vm(l, "st")
        a, b = STT, STT + 4
        stats = [lambda: st.wait_vm("st"), lambda: self.validate(st, "L_st", range(STT, STT + 8), STT + 8, lds_)]
        stats += [f"v_add_f32 v{x}, v{x}, v{x+1}" for x in (a, a + 2, b, b + 2)] + [f"v_add_f32 v{x}, v{x}, v{x+2}" for x in (a, b)]
        stats += [f"v_permlane16_swap_b32 v{a}, v{b}", f"v_add_f32 v{a}, v{a}, v{b}", f"v_mov_b32 v{b}, v{a}", f"v_mov_b32 v{a+2}, {f32(1e-5)}",
                  f"v_permlane32_swap_b32 v{a}, v{b}", f"v_add_f32 v{a}, v{a}, v{b}", f"v_fmac_f32 v{a+2}, {f32(1.0/512)}, v{a}", f"v_rsq_f32 v{a+3}, v{a+2}"]
        stats += [f"v_sqrt_f32 v{x}, v{a+2}" for x in vSD] + [f"v_mul_f32 v{x}, {f32(-1.4426950408889634)}, v{a+3}" for x in vC1]
        stats += [f"v_permlane16_swap_b32 v{vSD[0]}, v{vSD[1]}", f"v_permlane16_swap_b32 v{vC1[0]}, v{vC1[1]}"]
        pub = [1]
        def publish(cnt):
            ops = [f"v_add_u32 v{vVAL}, {cnt - pub[0]}, v{vVAL}"] if cnt > pub[0] else []
            pub[0] = cnt
            ops.append(lambda: st.wait_vm(("hh", cnt - 1)))
            ops.append(lambda: st.vm(f"buffer_store_dword v{vVAL}, v{vFZ}, {srd(WS)}, s{mF4} offen{sc}"))
            ops.append(lambda: self.stamp(st, "m", f"pub{cnt}", 8))
            return ops
        def epilogue(n):
            a = ACC + 16 * n
            ops = [f"v_mul_f32 v{a+j}, v{vC1[j//4]}, v{a+j}" for j in range(8)]
            ops += [f"v_exp_f32 v{a+j}, v{a+j}" for j in range(8)]
            ops += [f"v_fma_f32 v{a+j}, v{a+j}, v{vSD[j//4]}, v{vSD[j//4]}" for j in range(8)]
            ops += [f"v_rcp_f32 v{a+j}, v{a+j}" for j in range(8)]
            ops += [f"v_mul_f32 v{a+j}, v{a+j}, v{a+8+j}" for j in range(8)]
            ops += [f"v_cvt_pk_bf16_f32 v{a+8+j}, v{a+2*j}, v{a+2*j+1}" for j in (0, 2, 1, 3)]
            ops += [f"v_permlane32_swap_b32 v{a+8}, v{a+10}", f"s_nop 0\nv_permlane32_swap_b32 v{a+9}, v{a+11}"]
            return ops
        def store(n):
            a = ACC + 16 * n
            st.vm(f"buffer_store_dwordx4 {vr(a+8,4)}, v6, {srd(WS)}, s{mHH0 if n < 4 else mHH1} offen offset:{1024*(n % 4)} sc1", ("hh", n))
        cost = lambda op: 8 if op.startswith(("v_exp", "v_rcp")) else 4
        fill, first = {}, {}
        put = lambda d, g, op: d.setdefault(g, []).append(op)
        put(first, 0, lambda: ldA(4)); put(first, 6, lambda: ldA(6)); put(first, 16, lambda: ldA(8))
        for u in range(1, nu):
            for g, d in ((2, 2), (16, 4)): put(first, 28 * u + g, lambda x=min(2 * u + NAR, 4 + 4 * u + d): ldA(x))
        put(first, 28 * (nu - 3) + 8, ldst)
        for i, op in enumerate(stats): put(fill, 28 * (nu - 1) + 1 + i, op)
        stages = [x[0] for x in self.stages()]
        for n in range(7):
            ops = epilogue(n)
            g0, ng = 2 * (base + 2 * T * n + T) + 3, 4 * T - 2
            tot, acc = sum(map(cost, ops)), 0
            for op in ops:
                put(fill, g0 + acc * ng // tot, op); acc += cost(op)
            put(first, g0 + ng, lambda n=n: store(n))
            if n + 1 in stages:
                for op in publish(n + 1): put(first, g0 + ng + 2 * self.c.lag, op)
        assert T == 7
        posts = {3: 1, base + 6 * T - 1: 20, 223: 30}
        posts.update({14 * u + 13: u + 2 for u in range(8)})
        checks = {14 * 3 + 3 - LA: 5, 14 * 5 + 3 - LA: 7, 14 * 7 + 3 - LA: 9, base + 6 * T - LA: 16}
        vplan = {11: (2, 2), 14 + 11: (4, 4), 14 * 3 + 11: (8, 4), 14 * 5 + 6: (12, 4), 14 * 6 + 12: (16, 4), 14 * 7 + 5: (20, 4), 14 * 7 + 12: (24, 4), 14 * 8 + 12: (28, 4)}
        near = self.near if not sc else self.tailcode
        for m in range(224):
            u, mat, n = order[m]
            wp = self.c.wper
            if m % wp == 0: st.wait_ds(("b", min(m + wp - 1, 223)))
            for mh in range(2):
                g = 2 * m + mh
                m2, h2 = m, mh ^ (m & 1 if self.c.zig & (1 if m >= base else 2) else 0)
                if self.c.zig & 4 and m >= base and (order[m ^ 1][1:] == order[m][1:]): m2, h2 = (m & ~1) + (mh ^ (m & 1)), m & 1
                u2 = order[m2][0]
                st(mfma16(ACC + 16 * n + 8 * mat + 4 * h2, BR + 4 * (m2 % NBR), AR + 4 * ((2 * u2 + h2) % NAR), "0" if u == 0 else None))
                if g == 0: self.stamp(st, "m", "mfma0", 4)
                for op in first.pop(g, []): run(op)
                if mh == 0 and m in checks:
                    lab = f"L_ld{checks[m]}{self.sfx}"
                    st(f"s_cbranch_vccnz {lab}s")
                    st.label(lab + "r")
                    near.label(lab + "s")
                    self.lds_spin(near, lab, vLD, CK, checks[m])
                    near(f"s_branch {lab}r")
                if m + LA < 224: rdB(m + LA, (mh,))
                if m in posts:
                    if mh == 0: st(f"v_mov_b32 v{vN}, {posts[m]}")
                    else: st.ds(f"ds_write_b32 v{vPG}, v{vN}")
                if mh == 0 and m + 5 in checks: st.ds(f"ds_read_b128 {vr(CK,4)}, v{vLD}", "ck")
                if mh == 1 and m + 1 in checks:
                    st.wait_ds("ck")
                    self.lds_min(st, CK, checks[m + 1])
                assert not (m + 1 in checks and m in vplan)
                if mh == 1 and m in vplan: chk(*vplan[m])
                for op in fill.pop(g, []): run(op)
            if m < base and m % 28 == 27: self.stamp(st, "m", f"u{m // 14}", 4)
            if m == base: self.stamp(st, "m", "tail0", 4)
            if m == base + 2 * T: self.stamp(st, "m", "tail1", 4)
            if m >= base and (m - base) % (2 * T) == 0: self.stamp(st, "m", f"t{(m - base) // (2 * T)}", 256)
        assert nxt[0] == 32
        self.stamp(st, "m", "Dmfma_end", 269)
        for g in sorted(set(first) | set(fill)):
            for op in first.get(g, []) + fill.get(g, []): run(op)
        self.stamp(st, "m", "end", 13)
        if self.c.diag & 512 and not sc:
            self.nstamp["m"].append("retry")
            st(f"s_waitcnt lgkmcnt(0)\ns_mov_b32 s{sSTAMP + 2*(len(self.nstamp['m'])-1)}, s{CODE}")
        self.dump_stamps(st, "m")
        st("s_endpgm")

    def helper_phase_a(self, st):
        st("; ---- helper: phase A")
        self.stamp(st, "h", "start", 4095)
        XP, XF, AC = 48, 80, 112
        self.stamp(st, "h", "role", 4096)
        st("s_setprio 2")
        if self.c.padto: st("s_memrealtime s[100:101]")
        st.vq.append((None, False))
        st(f"v_lshrrev_b32 v2, 4, v0\nv_and_b32 v3, 15, v0\nv_lshlrev_b32 v4, 10, v2\nv_lshl_add_u32 v4, v3, 4, v4")
        st(f"s_and_b32 s{sT2}, s{sCB}, 1\ns_lshl_b32 s{sC}, s{sT2}, 2\ns_add_u32 s{sC}, s{sC}, s{sW}\ns_lshl_b32 s{sT0}, s{sRB}, 3\ns_add_u32 s{sA}, s{sT0}, s{sC}")
        st(f"s_lshl_b32 s{sA}, s{sA}, 12\ns_xor_b32 s{sB}, s{sA}, 0x4000")
        self.srds(st, ((X, 2097152), (WKVS, 16384)))
        st(f"v_lshlrev_b32 v1, 4, v0\ns_lshl_b32 s{sD}, s{sW}, 12\ns_add_u32 m0, s{sD}, {WKV}\nv_mov_b32 v124, v4")
        st("s_waitcnt lgkmcnt(0)")
        ldx = lambda i: st.vm(f"buffer_load_dwordx4 {vr(XP+4*i,4)}, v124, {srd(X)}, s{sA if i < 4 else sB} offen offset:{256*(i % 4)}", ("x", i))
        self.stamp(st, "h", "karg", 4096)
        for i in range(4): ldx(i)
        self.stamp(st, "h", "x0iss", 4096)
        st.bar("B00")
        ldw = lambda: [st.vm(f"buffer_load_dwordx4 v1, {srd(WKVS)}, s{sD} offen offset:{1024*i} lds", "wkv") for i in range(4)]
        if self.c.sec & 2: ldw()
        self.stamp(st, "h", "wiss", 4096)
        st(f"s_and_b32 s{sT0}, s{sW}, 1\ns_lshl_b32 s{sT0}, s{sT0}, 3\ns_add_u32 s{sT0}, s{sT0}, 48\ns_load_dwordx2 {sr(WG,2)}, s[0:1], s{sT0}")
        for b, off in ((WO, 32), (WD, 64), (OUT, 72)):
            st(f"s_load_dwordx2 {sr(b,2)}, s[0:1], {off}")
        self.srds(st, ((WO, 524288), (WG, 1835008), (WD, 1835008), (OUT, 2097152), (WS, WS_SIZE)))
        st(f"s_mov_b32 s{sONE}, 0x3f803f80\ns_mov_b32 s{sLO}, 0x3f80\ns_mov_b32 s{sHI}, 0x3f800000")
        st(f"s_getreg_b32 s{sXCC}, hwreg(HW_REG_XCC_ID, 0, 4)")
        st(f"v_bfe_u32 v5, v0, 1, 3\nv_mul_u32_u24 v5, {TILE}, v5\nv_and_b32 v6, 1, v0\nv_lshl_add_u32 v7, v6, 4, v5")
        st(f"v_cmp_eq_u32 vcc, 0, v6\nv_mov_b32 v8, s{sONE}\ns_nop 0\nv_cndmask_b32 v8, 0, v8, vcc\nv_mov_b32 v9, v8\nv_mov_b32 v10, v8\nv_mov_b32 v11, v8")
        st.ds("ds_write_b128 v7, v[8:11] offset:2048")
        st(f"v_mul_u32_u24 v5, 528, v3\nv_lshl_add_u32 v5, v2, 4, v5\ns_lshl_b32 s{sT0}, s{sC}, 6\ns_xor_b32 s{sT1}, s{sT0}, 256")
        st(f"s_add_u32 s{sT2}, s{sT0}, {XN}\ns_add_u32 s{sT3}, s{sT1}, {XN}\nv_add_u32 v120, s{sT2}, v5\nv_add_u32 v121, s{sT3}, v5")
        st(f"s_lshr_b32 s{sT0}, s{sT0}, 2\ns_lshr_b32 s{sT1}, s{sT1}, 2\ns_add_u32 s{sT0}, s{sT0}, {MISC + 16}\ns_add_u32 s{sT1}, s{sT1}, {MISC + 16}")
        st(f"v_lshl_add_u32 v122, v2, 2, s{sT0}\nv_lshl_add_u32 v123, v2, 2, s{sT1}")
        st.wait_ds()
        self.epoch_load(st)
        self.helper_setup(st)
        st(f"s_lshl_b32 s{sT0}, s{sW}, 2\ns_add_u32 s{sT0}, s{sT0}, {XC}\nv_mov_b32 v230, s{sT0}")
        st(f"v_and_b32 v41, 31, v0\nv_lshlrev_b32 v41, 2, v41\nv_add_u32 v41, {MISC + 16}, v41")
        st(f"v_lshrrev_b32 v14, 5, v0\nv_lshl_add_u32 v14, v14, 9, v1\ns_lshl_b32 s{sT0}, s2, 11\ns_cmp_eq_u32 s{sW}, 1\ns_cselect_b32 s{sT0}, s{sT0}, 0x100000")
        self.stamp(st, "h", "setup", 4160)
        def second():
            if not self.c.sec & 2: ldw()
            if not self.c.x1late:
                for i in range(4, 8): ldx(i)
            st.bar("B0")
            if self.c.wo_early == 2: ldo()
        ldo = lambda: [st.vm(f"buffer_load_dwordx4 {vr(232+4*i,4)}, v14, {srd(WO)}, s{sT0} offen offset:{512*i}") for i in range(2)]
        if self.c.wo_early == 1: ldo()
        if not self.c.sec & 1: second()
        def postw():
            st("v_mov_b32 v231, 1")
            st.wait_vm("wkv")
            st.ds("ds_write_b32 v230, v231")
        def red16(a):
            for m in ("quad_perm:[1,0,3,2]", "quad_perm:[2,3,0,1]", "row_half_mirror", "row_mirror"):
                st(f"s_nop 1\nv_add_f32_dpp v{a}, v{a}, v{a} {m} row_mask:0xf bank_mask:0xf")
        for ps in range(2):
            P = XP + 16 * ps
            for i in range(4):
                if ps == 0: st.wait_vm(("x", i))
                for r in range(4):
                    st(f"v_dot2_f32_bf16 v{AC+r%2}, v{P+4*i+r}, s{sONE}, {'0' if i == 0 and r < 2 else 'v%d' % (AC+r%2)}")
            if ps == 0: self.stamp(st, "h", "xland", 4289)
            if ps == 0 and self.c.sec & 1: second()
            st(f"s_nop 2\nv_add_f32 v{AC}, v{AC}, v{AC+1}")
            red16(AC)
            st(f"v_mul_f32 v{AC}, {f32(-1.0/512)}, v{AC}")
            st.ds(f"ds_write_b32 v{122+ps}, v{AC}")
            self.stamp(st, "h", f"mean{ps}", 128)
            if ps == 0 and self.c.wcat == 0: postw()
            for r in range(16):
                st(f"v_dot2_f32_bf16 v{XF+2*r}, v{P+r}, s{sLO}, v{AC}\nv_dot2_f32_bf16 v{XF+2*r+1}, v{P+r}, s{sHI}, v{AC}")
            for r in range(16):
                d = AC + 2 + 2 * (r % 2)
                if r < 2: st(f"v_pk_mul_f32 {vr(d,2)}, {vr(XF+2*r,2)}, {vr(XF+2*r,2)}")
                else: st(f"v_pk_fma_f32 {vr(d,2)}, {vr(XF+2*r,2)}, {vr(XF+2*r,2)}, {vr(d,2)}")
            st(f"v_pk_add_f32 {vr(AC+2,2)}, {vr(AC+2,2)}, {vr(AC+4,2)}\nv_add_f32 v{AC+2}, v{AC+2}, v{AC+3}")
            red16(AC + 2)
            self.stamp(st, "h", f"var{ps}", 128)
            if ps == 0 and self.c.wcat == 1: postw()
            st(f"v_mov_b32 v{AC+3}, {f32(1e-5)}\nv_fmac_f32 v{AC+3}, {f32(1.0/512)}, v{AC+2}\nv_rsq_f32 v{AC+2}, v{AC+3}\nv_mov_b32 v231, {ps+2}")
            for i in range(4):
                for r in range(4):
                    st(f"v_pk_mul_f32 {vr(XF+8*i+2*r,2)}, {vr(XF+8*i+2*r,2)}, {vr(AC+2,2)} op_sel_hi:[1,0]")
                for r in range(4):
                    st(f"v_cvt_pk_bf16_f32 v{P+4*i+r}, v{XF+8*i+2*r}, v{XF+8*i+2*r+1}")
                st.ds(f"ds_write_b128 v{120+ps}, {vr(P+4*i,4)} offset:{8448*i}")
            self.stamp(st, "h", f"wr{ps}", 128)
            st.wait_vm("wkv")
            st.wait_ds()
            st("ds_write_b32 v230, v231")
            self.stamp(st, "h", f"ln{ps}", 2240)
            if ps == 0:
                self.epoch_make(st)
                st(f"s_add_u32 s{sXCC}, s{sXCC}, s{sEP}\nv_mov_b32 v31, s{sEP}")
                if self.c.x1late:
                    for i in range(4, 8): ldx(i)
                st.wait_vm(("x", 7))
                self.stamp(st, "h", "p2start", 128)
        st(f"s_cmp_lg_u32 s{sW}, 1\ns_cbranch_scc1 L_nowb1")
        a = 240
        if not self.c.wo_early:
            for i in range(2): st(f"buffer_load_dwordx4 {vr(232+4*i,4)}, v14, {srd(WO)}, s{sT0} offen offset:{512*i}")
        st("s_waitcnt vmcnt(0)")
        for r in range(8): st(f"v_dot2_f32_bf16 v{a}, v{232+r}, s{sONE}, {'0' if r == 0 else 'v%d' % a}")
        st("s_nop 0")
        for m in ("quad_perm:[1,0,3,2]", "quad_perm:[2,3,0,1]", "row_half_mirror", "row_mirror"):
            st(f"s_nop 1\nv_add_f32_dpp v{a}, v{a}, v{a} {m} row_mask:0xf bank_mask:0xf")
        st(f"v_mov_b32 v{a+1}, v{a}\ns_nop 1\nv_permlane16_swap_b32 v{a}, v{a+1}\nv_add_f32 v{a}, v{a}, v{a+1}")
        st(f"v_mul_f32 v{a}, {f32(1.0/512)}, v{a}\nv_mov_b32 v{a+1}, v{a}\ns_nop 1\nv_permlane32_swap_b32 v{a}, v{a+1}")
        st(f"v_cvt_pk_bf16_f32 v{a+4}, v{a}, v{a+1}\nv_lshlrev_b32 v{a+2}, 16, v{a+4}\nv_and_b32 v{a+3}, 0xffff0000, v{a+4}")
        st(f"v_sub_f32 v{a}, v{a}, v{a+2}\nv_sub_f32 v{a+1}, v{a+1}, v{a+3}\nv_cvt_pk_bf16_f32 v{a+5}, v{a}, v{a+1}")
        st(f"v_mov_b32 v{a+6}, s{sEP1}\ns_lshl_b32 s{sT0}, s2, 7\ns_add_u32 s{sF}, s{sT0}, {WS_WB}")
        st.label("L_nowb1")

    def kv_addr(self, st):
        st(f"v_lshrrev_b32 v20, 4, v0\nv_and_b32 v13, 15, v0\nv_lshlrev_b32 v14, 8, v20\nv_lshl_add_u32 v249, v13, 3, v14")
        st(f"s_and_b32 s{sT0}, s{sCB}, 1\ns_lshl_b32 s{sT1}, s{sT0}, 8\ns_add_u32 s{sT2}, s{sT1}, {XN}")
        st(f"v_mul_u32_u24 v15, 528, v20\nv_lshl_add_u32 v15, v13, 4, v15\nv_add_u32 v250, s{sT2}, v15")
        st(f"s_lshl_b32 s{sT2}, s{sT0}, 9\ns_add_u32 s{sT2}, s{sT2}, 1024\ns_cmp_ge_u32 s{sCB}, 2")
        st(f"s_cselect_b32 s{sT1}, s{sT2}, s{sT1}\ns_cselect_b32 s{sT2}, 31, 9\ns_cselect_b32 s{sT3}, 8, 31")
        st(f"v_and_b32 v14, 1, v20\nv_lshlrev_b32 v14, s{sT2}, v14\nv_lshrrev_b32 v15, 1, v20\nv_lshlrev_b32 v15, s{sT3}, v15")
        st(f"v_lshl_add_u32 v14, v13, 4, v14\nv_add3_u32 v251, v14, v15, s{sT1}")
        st(f"s_lshl_b32 s{mKG}, s{sRB}, 11\ns_add_u32 s{mKL}, s{mKG}, {WS_KVL}\ns_add_u32 s{mKG}, s{mKG}, {WS_KV}")
        st(f"s_lshl_b32 s{sT0}, s{sG}, 5\ns_add_u32 s{sT0}, s{sT0}, s{sIDX}\ns_lshl_b32 s{mFL}, s{sT0}, 2\ns_add_u32 s{mFL}, s{mFL}, {WS_FLGL}")
        st(f"s_lshl_b32 s{mFG}, s{sT0}, 7\ns_add_u32 s{mFG}, s{mFG}, {WS_FLG1}")

    def kv_job(self, st):
        WR, AC = 168, 144
        XR = [112 + 4 * j for j in range(8)] + [232 + 4 * j for j in range(4)] + [24 + 4 * j for j in range(4)]
        if self.c.kprio == 0: st("s_setprio 3")
        self.lds_spin(st, "L_wc0", 18, 20, 1, sleep=self.c.asleep)
        for j in range(16):
            for t in range(2): st.ds(f"ds_read_b64_tr_b16 {vr(WR+4*j+2*t,2)}, v249 offset:{WKV + 1024*j + 128*t}")
        self.lds_spin(st, "L_xc0", 18, 20, 2)
        if self.c.kprio == 1: st("s_setprio 3")
        self.stamp(st, "m", "m0xc", 64)
        for j in range(8): st.ds(f"ds_read_b128 {vr(XR[j],4)}, v250 offset:{2112*j}", ("rd", j))
        st(f"s_cmp_ge_u32 s{sCB}, 2\ns_cbranch_scc1 L_vjob")
        lq = list(st.lq)
        for job in ("k", "v"):
            if job == "v": st.label("L_vjob")
            st.lq = list(lq)
            for m in range(16):
                if m < 4:
                    for j in (8 + 2 * m, 9 + 2 * m): st.ds(f"ds_read_b128 {vr(XR[j],4)}, v250 offset:{2112*j}", ("rd", j))
                st.wait_ds(("rd", m))
                a, b = (WR + 4 * m, XR[m]) if job == "k" else (XR[m], WR + 4 * m)
                st(mfma16(AC, a, b, "0" if m == 0 else None))
            st.nop(8)
            if job == "k":
                for r in range(4): st(f"v_mul_f32 v{AC+r}, {f32(0.25 * 1.4426950408889634)}, v{AC+r}")
            for r in (4, 6): st(f"v_cvt_pk_bf16_f32 v{AC+r}, v{AC}, v{AC+1}\nv_cvt_pk_bf16_f32 v{AC+r+1}, v{AC+2}, v{AC+3}")
            sw = "v_permlane32_swap_b32" if job == "k" else "v_permlane16_swap_b32"
            st(f"s_nop 0\n{sw} v{AC+4}, v{AC+6}\n{sw} v{AC+5}, v{AC+7}")
            if job == "k": st("s_branch L_kvst")
        st.label("L_kvst")
        self.stamp(st, "m", "m0kvmf", 64)
        if self.c.kv2: st(f"s_cmp_lg_u32 s{sW}, 0\ns_cbranch_scc1 L_kvx")
        st(f"buffer_store_dwordx4 {vr(AC+4,4)}, v251, {srd(WS)}, s{mKL} offen")
        st(f"buffer_store_dwordx4 {vr(AC+4,4)}, v251, {srd(WS)}, s{mKG} offen {'' if self.c.fake & 16 else 'sc1'}")
        st.label("L_kvx")
        st(f"s_setprio {self.c.mprio}")

    def kv_flag(self, st, glob, younger):
        st(f"s_cmp_lg_u32 s{sW}, 0\ns_cbranch_scc1 L_nofl{glob}")
        st(f"v_mov_b32 v19, s{sEP1 if glob else sXCC}\ns_bfm_b64 exec, {32 if glob else 1}, 0\ns_waitcnt vmcnt({younger})")
        self.stamp(st, "m", "m0GF" if glob else "m0LF", 64)
        st.vm(f"buffer_store_dword v19, v16, {srd(WS)}, s{mFG if glob else mFL} offen{' sc1' if glob else ''}", cond=True)
        st("s_mov_b64 exec, -1")
        st.label(f"L_nofl{glob}")

    WOR, WDR, vWS = 128, 48, (24, 25, 13, 27)

    def odd_voffsets(self, st, base, t):
        st(f"s_and_b32 s{sT0}, s{sIDX}, 15\ns_mul_i32 s{sT0}, s{sT0}, 224\ns_lshl_b32 s{sT2}, s{sCB}, 1")
        for p in range(3):
            d = base + p
            st(f"v_add_u32 v{t}, {64*p}, v0\nv_mul_u32_u24 v{t+1}, 10923, v{t}\nv_lshrrev_b32 v{t+1}, 16, v{t+1}\nv_mul_u32_u24 v{d}, 6, v{t+1}")
            st(f"v_sub_u32 v{t}, v{t}, v{d}\nv_cmp_gt_u32 vcc, s{sT2}, v{t}\nv_mul_u32_u24 v{t+1}, 3584, v{t+1}\nv_add_u32 v{d}, 8, v{t}")
            st(f"v_cndmask_b32 v{t}, v{d}, v{t}, vcc\nv_lshlrev_b32 v{t}, 4, v{t}\nv_add3_u32 v{d}, v{t}, v{t+1}, s{sT0}")

            if self.c.fake & 128: st(f"s_mul_i32 s{sT1}, s{sT0}, 32\nv_lshlrev_b32 v{d}, 4, v0\nv_add_u32 v{d}, s{sT1}, v{d}\nv_add_u32 v{d}, {1024*p}, v{d}")

    def full_voffset(self, st, d, t):
        st(f"s_and_b32 s{sT0}, s{sIDX}, 15\ns_mul_i32 s{sT0}, s{sT0}, 224\ns_lshl_b32 s{sT1}, s{sCB}, 5\ns_add_u32 s{sT0}, s{sT0}, s{sT1}")
        st(f"v_lshrrev_b32 v{t+1}, 3, v0\nv_and_b32 v{t}, 6, v{t+1}\nv_and_b32 v{d}, 7, v0\nv_xor_b32 v{t}, v{t}, v{d}")
        st(f"v_lshlrev_b32 v{t}, 4, v{t}\nv_mul_u32_u24 v{t+1}, 3584, v{t+1}\nv_add3_u32 v{d}, v{t}, v{t+1}, s{sT0}")

    pace = None
    c_wpos = (1, 4, 6, 9, 11, 14, 16, 19, 21, 24, 26, 29)

    def paced(self, st):
        if self.pace is not None: st(f"s_waitcnt vmcnt({self.pace})")

    def odd_pair(self, st, u0, mask, vbase):
        st(f"s_and_b32 s{sT2}, s{sP+4}, {mask | 1}\ns_xor_b32 s{sT2}, s{sT2}, {u0}\ns_mul_i32 s{sT1}, s{sT2}, 114688")
        st(f"s_lshl_b32 s{sT2}, s{sT2}, 1\ns_and_b32 s{sT3}, s{sW}, 1\ns_add_u32 s{sT2}, s{sT2}, s{sT3}\ns_mul_i32 s{sT2}, s{sT2}, 3072")
        for p in range(3):
            st(f"s_add_u32 m0, s{sT2}, {ODD + 1024*p}\ns_nop 0")
            st.vm(f"buffer_load_dwordx4 v{vbase+p}, {srd(WG)}, s{sT1} offen lds", ("odd", u0))

    def full_unit(self, st, u, v, qs=(0, 1)):
        for q in qs:
            st(f"s_add_u32 m0, s{sP+6}, {slot8(FSLOT[u]) + 1024*q}\ns_add_u32 s{sT1}, s{sP+5}, {(32*u + 8*q) * 3584}")
            self.paced(st)
            st.vm(f"buffer_load_dwordx4 v{v}, {srd(WG)}, s{sT1} offen lds", ("full", u))

    def wd_dma(self, st, J, addr, vD, sbase):
        for q in range(2):
            j = (J & ~1) + q
            ft = 7 * (j % 4) + tile_of(j % 4, j // 4)
            st(f"s_add_u32 m0, s{sbase}, {addr + 1024*q}\ns_add_u32 s{sT1}, s{sP+7}, {ft * 16384 + (J & 1) * 8192}")
            self.paced(st)
            st.vm(f"buffer_load_dwordx4 v{vD}, {srd(WD)}, s{sT1} offen lds", ("wd", J))

    def wd_read(self, st, J, grp, va, off, ns=range(4)):
        for n in ns:
            st.ds(f"ds_read_b64_tr_b16 {vr(grp[n // 2] + 4*(n % 2) + 2*(J & 1), 2)}, v{va[n]} offset:{off}", ("wdr", J))

    def wd_static(self, J): return (self.WDR + 16 * (J // 2), self.WDR + 16 * (J // 2) + 8)

    def wd_addr(self, st, vD, va, t0, sb):
        st(f"v_lshrrev_b32 v{t0}, 3, v0\nv_and_b32 v{t0+1}, 6, v{t0}\nv_and_b32 v{vD}, 7, v0")
        st(f"v_xor_b32 v{vD}, v{vD}, v{t0+1}\nv_lshlrev_b32 v{vD}, 4, v{vD}\nv_lshl_add_u32 v{vD}, v{t0}, 10, v{vD}")
        st(f"v_lshrrev_b32 v{t0}, 2, v0\nv_lshlrev_b32 v{t0}, 7, v{t0}\nv_bfe_u32 v{t0+1}, v0, 3, 2\ns_and_b32 s{sT0}, s{sW}, 1\ns_lshl_b32 s{sT0}, s{sT0}, 1")
        st(f"v_xor_b32 v{t0+1}, s{sT0}, v{t0+1}\nv_lshl_add_u32 v{t0}, v{t0+1}, 5, v{t0}\nv_and_b32 v{t0+1}, 3, v0\nv_lshlrev_b32 v{t0+1}, 3, v{t0+1}")
        st(f"v_add3_u32 v{va[0]}, v{t0}, v{t0+1}, s{sb}")
        for n in range(1, 4): st(f"v_xor_b32 v{va[n]}, {32*n}, v{va[0]}")

    def helper_setup(self, st):
        vL, vP, vR = 1, 2, 3
        st(f"v_and_b32 v{vP}, 7, v0\ns_lshl_b32 s{sT0}, s{sW}, 3\nv_add_u32 v{vP}, s{sT0}, v{vP}\nv_lshlrev_b32 v{vP}, 7, v{vP}")
        st(f"v_lshrrev_b32 v{vR}, 3, v0\nv_lshl_add_u32 v{vP}, v{vR}, 12, v{vP}")
        vWO, vTR, vWD, GU = 4, 5, 6, 16
        st(f"v_lshrrev_b32 v14, 2, v0\nv_lshlrev_b32 v14, 10, v14\nv_and_b32 v15, 3, v0\nv_lshlrev_b32 v15, 4, v15")
        st(f"s_lshl_b32 s{sT0}, s{sCB}, 8\ns_lshl_b32 s{sT1}, s{sW}, 6\ns_add_u32 s{sT0}, s{sT0}, s{sT1}")
        st(f"v_add3_u32 v{vWO}, v14, v15, s{sT0}")
        st(f"s_mul_i32 s{sE}, s{sW}, {STGW}\ns_add_u32 s{sE}, s{sE}, {STG}")
        st(f"v_lshrrev_b32 v14, 5, v0\nv_lshlrev_b32 v14, 8, v14\nv_bfe_u32 v15, v0, 2, 2\nv_lshl_add_u32 v14, v15, 6, v14")
        st(f"v_bfe_u32 v15, v0, 4, 1\nv_lshl_add_u32 v14, v15, 5, v14\nv_and_b32 v15, 3, v0\nv_lshl_add_u32 v14, v15, 3, v14")
        st(f"v_add_u32 v{vTR}, s{sE}, v14")
        self.wd_addr(st, vWD, self.vWS, 14, sE)
        self.odd_voffsets(st, GU, 14)
        self.full_voffset(st, 43, 14)
        st(f"s_lshr_b32 s{sT0}, s{sW}, 1\ns_mul_i32 s{sP+5}, s{sT0}, {16*3584}\ns_lshr_b32 s{sT1}, s{sIDX}, 4\ns_lshl_b32 s{sT1}, s{sT1}, 1\ns_or_b32 s{sT1}, s{sT1}, s{sT0}")
        st(f"s_and_b32 s{sT2}, s{sIDX}, 1\ns_lshl_b32 s{sT2}, s{sT2}, 2\ns_or_b32 s{sP+4}, s{sT1}, s{sT2}")
        st(f"s_lshl_b32 s{sT0}, s{sT0}, 11\ns_and_b32 s{sT1}, s{sW}, 1\ns_lshl_b32 s{sT1}, s{sT1}, 12\ns_add_u32 s{sP+6}, s{sT0}, s{sT1}")
        st(f"v_lshrrev_b32 v14, 4, v0\nv_mul_u32_u24 v14, 3584, v14\nv_bfe_u32 v15, v0, 2, 2\nv_mul_u32_u24 v15, 896, v15\nv_and_b32 v{GU+4}, 3, v0")
        st(f"v_lshlrev_b32 v{GU+4}, 8, v{GU+4}\nv_add3_u32 v{GU+4}, v{GU+4}, v14, v15")
        st(f"s_mul_i32 s{sT0}, s{sW}, {28*16384}\ns_and_b32 s{sT1}, s{sIDX}, 7\ns_lshl_b32 s{sT1}, s{sT1}, 7\ns_add_u32 s{sP+7}, s{sT0}, s{sT1}")
        st(f"v_mov_b32 v26, {MISC}\nv_lshlrev_b32 v23, 7, v0\nv_lshlrev_b32 v47, 2, v0")
        st(f"s_lshl_b32 s{sT0}, s{sRB}, 4\ns_lshl_b32 s{sT1}, s{sCB}, 2\ns_add_u32 s{sT0}, s{sT0}, s{sT1}\ns_add_u32 s{sT0}, s{sT0}, s{sW}\ns_lshl_b32 s{sT1}, s{sT0}, 11\ns_lshl_b32 s{sT0}, s{sT0}, 8")
        for lo, n, sb, base in ((0, 16, sT1, WS_O), (16, 2, sT0, WS_ST), (18, 2, sT0, WS_PM)):
            st(f"s_bfm_b64 exec, {n}, {lo}\ns_add_u32 s{sT2}, s{sb}, {base - 128*lo}\nv_add_u32 v21, s{sT2}, v23")
        st(f"s_lshl_b32 s{sT0}, s{sRB}, 7\ns_add_u32 s{sT0}, s{sT0}, {WS_FLG4}\ns_lshl_b32 s{sT1}, s{sRB}, 6\ns_add_u32 s{sT1}, s{sT1}, {WS_FLG2}")
        st(f"s_bitcmp1_b32 s{sW}, 0\ns_cselect_b32 s{sT1}, s{sT0}, s{sT1}\ns_bfm_b64 exec, 44, 20\nv_mov_b32 v21, s{sT1}\ns_mov_b64 exec, -1\nv_lshlrev_b32 v22, 10, v0")
        self.h_voffset(st, 19, 14)
        st(f"v_and_b32 v14, 31, v0\nv_lshlrev_b32 v14, 10, v14\nv_lshrrev_b32 v15, 5, v0\nv_lshl_add_u32 v40, v15, 4, v14")
        st(f"v_lshrrev_b32 v14, 4, v0\nv_lshlrev_b32 v14, 7, v14\nv_bfe_u32 v15, v0, 1, 1\nv_lshl_add_u32 v14, v15, 6, v14")
        st(f"v_bfe_u32 v15, v0, 2, 2\nv_lshl_add_u32 v14, v15, 3, v14\nv_and_b32 v15, 1, v0\nv_lshl_add_u32 v14, v15, 2, v14\nv_add_u32 v42, {WBL}, v14")

    def helper_attention(self, st):
        st("; ---- helper: phase B")
        vL, vP, vR = 1, 2, 3
        st(f"s_lshl_b32 s{sT1}, s{sG}, 12\ns_add_u32 s{sB}, s{sT1}, {WS_FLG1}")
        st(f"s_mul_i32 s{sC}, s{sW}, {2*TILE}\ns_lshl_b32 s{sD}, s{sW}, 12\ns_add_u32 s{sD}, s{sD}, {WS_KV}")
        st(f"s_cmp_lt_u32 s{sW}, 2\ns_cbranch_scc1 L_x1skip")
        st(f"s_and_b32 s{sT2}, s{sW}, 1\ns_lshl_b32 s{sT0}, s{sT2}, 4\nv_and_b32 v12, 15, v0\nv_add_u32 v12, s{sT0}, v12")
        st(f"v_lshlrev_b32 v14, 7, v12\nv_lshlrev_b32 v12, 2, v12\ns_lshl_b32 s{sT1}, s{sG}, 7\ns_add_u32 s{sT1}, s{sT1}, {WS_FLGL}")
        st(f"s_lshl_b32 s{sE}, s{sG}, 14\ns_lshl_b32 s{sT0}, s{sT2}, 13\ns_add_u32 s{sE}, s{sE}, s{sT0}\ns_add_u32 s{sE}, s{sE}, {WS_KVL}")
        st(f"s_mul_i32 s{sT0}, s{sT2}, {4*TILE}\ns_add_u32 m0, s{sT0}, {RING}")
        st(f"s_lshl_b32 s{sT0}, s{sT2}, 2\ns_add_u32 s{sT0}, s{sT0}, {MISC}\nv_mov_b32 v15, s{sT0}")
        st(f"v_mov_b32 v125, 1\ns_mov_b32 s{sCNT}, {SPINL}\ns_bfm_b64 exec, 16, 0")
        st.label("L_x1l")
        st(f"buffer_load_dword v{vR}, v12, {srd(WS)}, s{sT1} offen sc1")
        st.wait_vm()
        st(f"v_cmp_ne_u32 vcc, s{sXCC}, v{vR}\ns_cbranch_vccz L_x1a_ok")
        st(f"s_sub_u32 s{sCNT}, s{sCNT}, 1\ns_cbranch_scc0 L_x1l")
        st(f"s_mov_b64 exec, -1\ns_sub_u32 s{sE}, s{sE}, {WS_KVL - WS_KV}\nv_mov_b32 v125, 0")
        self.poll(st, "L_x1a", 14, f"s{sB}", vR, 1, exact=True, lanes=16)
        for i in range(8):
            if i in (2, 6): st("s_add_u32 m0, m0, 32\ns_nop 0")
            if i == 4: st(f"s_add_u32 m0, m0, {2*TILE - 32}\ns_add_u32 s{sE}, s{sE}, 4096")
            st(f"buffer_load_dwordx4 v{vL}, {srd(WS)}, s{sE} offen offset:{1024*(i % 4)} sc1 lds")
        self.stamp(st, "h", "w2poll", 2112)
        st("ds_write_b32 v15, v125")
        st.label("L_x1skip")
        if self.c.cpf == 2:
            st(f"s_lshl_b32 s{sT0}, s{sIDX}, 2\ns_add_u32 s{sT0}, s{sT0}, s{sW}\ns_lshl_b32 s{sT0}, s{sT0}, 9\nv_add_u32 v14, s{sT0}, v23")
            st(f"v_min_u32 v14, L_codeend-L_pc-4, v14\nv_mov_b32 v15, 0\nv_lshl_add_u64 v[14:15], v[14:15], 0, {sr(CODE,2)}")
        self.stamp(st, "h", "x1own")
        def chunk(c):
            st(f"s_add_u32 s{sT0}, s{sG}, {c}\ns_and_b32 s{sT0}, s{sT0}, 7\ns_lshl_b32 s{sT0}, s{sT0}, 14")
            st(f"s_add_u32 m0, s{sC}, {RING + (c % 2) * 8 * TILE}\ns_add_u32 s{sT0}, s{sT0}, s{sD}")
            for i in range(4):
                if i == 2: st("s_add_u32 m0, m0, 32\ns_nop 0")
                st.vm(f"buffer_load_dwordx4 v{vL}, {srd(WS)}, s{sT0} offen offset:{1024*i} sc1 lds", ("kv", c))
        vWO, vTR, vWD, GU = 4, 5, 6, 16
        st(f"s_mul_i32 s{sE}, s{sW}, {STGW}\ns_add_u32 s{sE}, s{sE}, {STG}")
        st(f"s_cmp_lt_u32 s{sW}, 2\ns_cbranch_scc1 L_x1skip2")
        st.wait_vm()
        st.wait_ds()
        st.label("L_x1skip2")
        self.pad(st, 1)
        st.bar("B2")
        self.stamp(st, "h", "cycB2", 32)
        st.ds(f"ds_write_b128 v7, v[8:11] offset:{8*TILE + 2048}")
        st.ds("ds_read_b64 v[28:29], v26")
        st.ds("ds_read_b32 v12, v41")
        st.bar("BQ")
        st(f"s_mov_b32 s{sB}, {WS_FLG1}")
        self.poll(st, "L_x1b", vP, f"s{sB}", vR, 1, exact=True)
        self.stamp(st, "h", "x1a", 81)
        st.wait_ds()
        self.colo_reduce(st, 28)
        st(f"v_mov_b32 v29, s{sEP1}\nv_mov_b32 v8, -1\nv_mov_b32 v9, -1\nv_mov_b32 v10, -1\nv_mov_b32 v11, -1")
        st(f"s_setprio {self.c.hprio}")
        st(f"s_lshl_b32 s{sA}, s{sCB}, 17")
        def wo_dma(j, pos):
            st(f"s_add_u32 m0, s{sE}, {1024*pos}\ns_xor_b32 s{sT1}, s{sA}, {j*16384}")
            st.vm(f"buffer_load_dwordx4 v{vWO}, {srd(WO)}, s{sT1} offen lds", ("wo", j))
        def wo_read(j, pos):
            for t in range(2):
                st.ds(f"ds_read_b64_tr_b16 {vr(self.WOR+4*j+2*t,2)}, v{vTR} offset:{1024*pos + 512*t}")
        vT, vTD, vJ = 23, 27, 30
        incond = [False]
        def touch(buf, v, soff, lanes=64):
            if lanes < 64: st(f"s_bfm_b64 exec, {lanes}, 0")
            st.vm(f"buffer_load_dword v{vJ}, v{v}, {srd(buf)}, {soff} offen{' sc1' if buf in (WS, OUT) else ''}", "tx", cond=incond[0])
            if lanes < 64: st("s_mov_b64 exec, -1")
        def lines(name, soff, n):
            if name[0] == "T": return touch(WS, vT, soff, n)
            if n < 8: st(f"s_bfm_b64 exec, {8*n}, 0")
            for i in range(-(-n // 8)):
                if i == 4: st(f"s_add_u32 {soff}, {soff}, 4096")
                st.vm(f"buffer_store_dwordx4 v[8:11], v{vL}, {srd(WS)}, {soff} offen offset:{1024*(i % 4)} sc1")
            if n < 8: st("s_mov_b64 exec, -1")
        items = [("o", j) for j in range(32)] + [("d", j) for j in range(10)]
        staged = []
        def stage(n):
            assert not staged
            pos = 0
            while items and pos + (1 if items[0][0] == "o" else 2) <= n:
                kind, j = items.pop(0)
                if kind == "o": wo_dma(j, pos)
                else: self.wd_dma(st, j, 1024 * pos, vWD, sE)
                staged.append((kind, j, pos))
                pos += 1 if kind == "o" else 2
        def unstage():
            st.wait_vm(("w" + staged[-1][0], staged[-1][1]))
            for kind, j, pos in staged:
                if kind == "o": wo_read(j, pos)
                else: self.wd_read(st, j, self.wd_static(j), self.vWS, 1024 * pos)
            st.wait_ds()
            staged.clear()
        gid = f"s_lshl_b32 s{sT0}, s{sIDX}, 2\ns_add_u32 s{sT0}, s{sT0}, s{sW}"
        cid = f"s_lshl_b32 s{sT0}, s2, 2\ns_add_u32 s{sT0}, s{sT0}, s{sW}"
        free_hi = [False]
        def op(name):
            if name[0] == "S": stage(int(name[1:]))
            elif name == "R": unstage()
            elif name[0] == "O":
                u, _, mask = name[1:].partition("^")
                assert int(u) < 6 or free_hi[0] or self.c.loose
                self.odd_pair(st, int(u), int(mask or 0), GU)
            elif name[0] == "F": self.full_unit(st, int(name[1:]), 43)
            elif name == "Tc":
                if self.c.cpf == 1:
                    st(f"{gid}\ns_lshl_b32 s{sT1}, s{sT0}, 9")
                    touch(CODE, vT, f"s{sT1}", 4)
                elif self.c.cpf == 2:
                    st("s_mov_b64 exec, 15")
                    st.vm(f"global_load_dword v{vJ}, v[14:15], off")
                    st("s_mov_b64 exec, -1")
            elif name[:2] == "Td":
                a, b = map(int, name[2:].split("-"))
                st(f"{gid}\ns_lshr_b32 s{sT1}, s{sT0}, 3\ns_and_b32 s{sT2}, s{sT1}, 3\ns_mul_i32 s{sT1}, s{sT1}, 7\ns_add_u32 s{sT1}, s{sT1}, s{sT2}\ns_lshl_b32 s{sT1}, s{sT1}, 14")
                st(f"s_and_b32 s{sT0}, s{sT0}, 7\ns_mul_i32 s{sT0}, s{sT0}, {2048*(b-a)}\ns_add_u32 s{sT1}, s{sT1}, s{sT0}\ns_add_u32 s{sT1}, s{sT1}, {16384*a}")
                touch(WD, vT, f"s{sT1}", 16 * (b - a))
            elif name == "Te":
                st(f"{gid}\ns_lshr_b32 s{sT1}, s{sT0}, 5\ns_mul_i32 s{sT1}, s{sT1}, 28\ns_bitcmp1_b32 s{sT0}, 4\ns_cselect_b32 s{sT2}, 23, 20\ns_add_u32 s{sT1}, s{sT1}, s{sT2}")
                st(f"s_lshl_b32 s{sT1}, s{sT1}, 14\ns_and_b32 s{sT0}, s{sT0}, 15\ns_lshl_b32 s{sT0}, s{sT0}, 10\ns_add_u32 s{sT1}, s{sT1}, s{sT0}")
                touch(WD, vT, f"s{sT1}", 8)
            elif name == "Ts":
                st(f"{gid}\ns_mul_i32 s{sT1}, s{sT0}, {14*1024}\ns_add_u32 s{sT1}, s{sT1}, 384")
                touch(WD, 22, f"s{sT1}", 14)
            elif name == "Tr":
                st(f"{gid}\ns_lshr_b32 s{sT0}, s{sT0}, 1\ns_mul_i32 s{sT1}, s{sT0}, {23*1024}\ns_add_u32 s{sT1}, s{sT1}, {96*3584 + 384}")
                touch(WG, 22, f"s{sT1}", 23)
            elif name == "Tkv":
                st(f"{gid}\ns_lshl_b32 s{sT1}, s{sT0}, 10\ns_add_u32 s{sT1}, s{sT1}, {WS_KV}")
                touch(WS, vT, f"s{sT1}", 8)
            elif name == "Tmd":
                st(f"{cid}\ns_mul_i32 s{sT1}, s{sT0}, {14*128}")
                touch(WD, vT, f"s{sT1}", 14)
            elif name in ("Tmg0", "Tmg1"):
                st(f"{cid}\ns_lshr_b32 s{sT0}, s{sT0}, 1\ns_mul_i32 s{sT1}, s{sT0}, {14*128}\ns_add_u32 s{sT1}, s{sT1}, {917504*int(name[3])}")
                touch(WG, vT, f"s{sT1}", 14)
            elif name == "To":
                st(f"{gid}\ns_lshl_b32 s{sT1}, s{sT0}, 12")
                touch(WO, vT, f"s{sT1}", 32)
            elif name[:2] in ("Tf", "Tq"):
                row0 = (96 if name[1] == "f" else 0) + 256 * int(name[2:])
                st(f"{gid}\ns_lshr_b32 s{sT0}, s{sT0}, 1\ns_mul_i32 s{sT1}, s{sT0}, {4*3584}\ns_add_u32 s{sT1}, s{sT1}, {row0*3584 + (0 if name[1] == 'f' else 128)}")
                if name[1] == "q": st("s_mov_b32 exec_lo, 0x77777777\ns_mov_b32 exec_hi, 0x77777777")
                touch(WG, GU + 4, f"s{sT1}")
                if name[1] == "q": st("s_mov_b64 exec, -1")
            elif name[:2] in ("Th", "Ph"):
                a, b = map(int, name[2:].split("-"))
                st(f"s_lshr_b32 s{sT0}, s{sIDX}, 4\ns_lshl_b32 s{sT1}, s{sG}, 1\ns_add_u32 s{sT0}, s{sT0}, s{sT1}\ns_lshl_b32 s{sT0}, s{sT0}, 2\ns_add_u32 s{sT0}, s{sT0}, s{sW}")
                st(f"s_mul_i32 s{sT0}, s{sT0}, 114688\ns_and_b32 s{sT1}, s{sIDX}, 15\ns_mul_i32 s{sT1}, s{sT1}, 7168\ns_add_u32 s{sT0}, s{sT0}, s{sT1}\ns_add_u32 s{sT0}, s{sT0}, {WS_HH + 1024*a}")
                lines(name, f"s{sT0}", 8 * (b - a))
            elif name == "Tx":
                self.h_base(st, sT0)
                touch(OUT, 22, f"s{sT0}", 16)
                touch(WS, 21, "0", 21)
            elif name in ("Cx", "Cf"):
                st(f"s_lshl_b32 s{sT0}, s{sRB}, 4\ns_lshl_b32 s{sT1}, s{sCB}, 2\ns_add_u32 s{sT0}, s{sT0}, s{sT1}\ns_add_u32 s{sT0}, s{sT0}, s{sW}")
                st.wait_vm("tx" if name == "Cx" else "cx")
                st(f"s_cmp_eq_u32 s{sCOLO}, {2 if self.c.force_slow else 1}\ns_cbranch_scc0 L_{name}s")
                for o, sc in ((st, ""), (self.tailcode, " sc1")):
                    if sc: o.label(f"L_{name}s")
                    if name == "Cx":
                        o(f"s_lshl_b32 s{sT1}, s{sT0}, 11\ns_add_u32 s{sT1}, s{sT1}, {WS_O}")
                        for q in range(2): o.vm(f"buffer_store_dwordx4 v[8:11], v{vL}, {srd(WS)}, s{sT1} offen offset:{1024*q}{sc or ' ' + self.c.cf}", "cx")
                        self.h_base(o, sT1)
                        for q in range(2):
                            o.vm(f"buffer_store_dwordx4 v[8:11], v19, {srd(OUT)}, s{sT1} offen{sc}", "cx")
                            if q == 0: o(f"s_add_u32 s{sT1}, s{sT1}, 8192")
                        o("s_bfm_b64 exec, 16, 0")
                        for base in (WS_ST, WS_PM):
                            o(f"s_lshl_b32 s{sT1}, s{sT0}, 8\ns_add_u32 s{sT1}, s{sT1}, {base}")
                            o.vm(f"buffer_store_dwordx4 v[8:11], v{vL}, {srd(WS)}, s{sT1} offen{sc}", "cx")
                    else:
                        o(f"s_lshl_b32 s{sT1}, s{sT0}, 2\ns_add_u32 s{sT1}, s{sT1}, {WS_FLG2}\ns_mov_b64 exec, 1")
                        o.vm(f"buffer_store_dword v29, off, {srd(WS)}, s{sT1}{sc}")
                    o("s_mov_b64 exec, -1")
                    if sc: o(f"s_branch L_{name}d")
                st.label(f"L_{name}d")
            elif name == "K":
                st(f"s_lshl_b32 s{sT0}, s{sG}, 9\ns_lshl_b32 s{sT1}, s{sW}, 7\ns_add_u32 s{sT0}, s{sT0}, s{sT1}\ns_add_u32 s{sT0}, s{sT0}, {WS_FLG2}\ns_setprio 2")
                self.poll(st, "L_clr", 47, f"s{sT0}", vR, 1, exact=True, lanes=32)
                st(f"s_setprio {self.c.hprio}")
            elif name == "X":
                st(f"s_lshl_b32 s{sT0}, s{sRB}, 15\ns_lshl_b32 s{sT1}, s{sCB}, 8\ns_add_u32 s{sT0}, s{sT0}, s{sT1}\ns_lshl_b32 s{sT1}, s{sW}, 6\ns_add_u32 s{sT0}, s{sT0}, s{sT1}")
                for q in range(2):
                    st.vm(f"buffer_load_dwordx4 {vr(32+4*q,4)}, v40, {srd(X)}, s{sT0} offen offset:{32*q}")
            elif name == "B":
                st(f"s_cmp_lg_u32 s{sW}, 3\ns_cbranch_scc1 L_nowb2")
                st(f"s_lshl_b32 s{sT0}, s{sCB}, 13\ns_add_u32 s{sT0}, s{sT0}, {WS_WB}\ns_mov_b32 s{sCNT}, {SPIN}\ns_setprio 2")
                st.label("L_wb")
                st(f"buffer_load_dwordx3 v[44:46], v{vT}, {srd(WS)}, s{sT0} offen sc1\ns_waitcnt vmcnt(0)")
                st(f"v_cmp_ne_u32 vcc, s{sEP1}, v46\ns_cbranch_vccz L_wb_ok\ns_sub_u32 s{sCNT}, s{sCNT}, 1\ns_cbranch_scc0 L_wb")
                st.label("L_wb_ok")
                st(f"s_setprio {self.c.hprio}\nds_write2_b32 v42, v44, v45 offset0:0 offset1:8\ns_waitcnt lgkmcnt(0)")
                st.label("L_nowb2")
            elif name[0] == "W":
                st.wait_vm()
                self.stamp(st, "h", "drain" + name[1:], 16)
            else: raise KeyError(name)
        chunk(1)
        st(f"s_cmp_lg_u32 s{sW}, 1\ns_cbranch_scc1 L_nopub\ns_mov_b64 exec, 0xff")
        st.vm(f"buffer_store_dwordx4 v[244:247], v{vL}, {srd(WS)}, s{sF} offen sc1", cond=True)
        st("s_mov_b64 exec, -1")
        st.label("L_nopub")
        ints = self.c.sched.split("|")
        assert len(ints) == 8
        for c, ops in enumerate(ints):
            if c == 2 and (self.c.pads or self.c.hal):
                st(f"s_branch L_hpage\n.p2align 12\n.fill {self.c.hoff // 4}, 4, 0xbf800000")
                st.label("L_hpage")
            if c and c == self.c.pads:
                st(f"s_cmp_lg_u32 s{sW}, 0\ns_cbranch_scc1 L_nowalk\ns_mov_b32 s{sWALK}, 1\ns_branch L_pad0")
                st.label("L_walked")
                st(f"s_mov_b32 s{sWALK}, 0")
                st.label("L_nowalk")
            if c == 1:
                st(f"{cid}\ns_cmp_lg_u32 s{sT0}, 0\ns_cbranch_scc1 L_noep")
                st(f"s_mov_b32 s{sT1}, {WS_EPOCH}\ns_mov_b64 exec, 1")
                st.vm(f"buffer_store_dword v31, off, {srd(WS)}, s{sT1} sc1", cond=True)
                st("s_mov_b64 exec, -1")
                st.label("L_noep")
            plain, _, stag = ops.partition("[")
            def staggered(par):
                if not stag: return
                st(f"s_xor_b32 s{sT0}, s{sIDX}, s{sG}\ns_bitcmp1_b32 s{sT0}, 0\ns_cbranch_scc{par} L_st{c}_{par}")
                incond[0] = True
                for name in stag.rstrip("]").split(): op(name)
                incond[0] = False
                st.label(f"L_st{c}_{par}")
            staggered(0)
            for name in plain.split(): op(name)
            st.wait_vm(("kv", c + 1))
            staggered(1)
            self.stamp(st, "h", f"arrBA{c}", 2)
            st.bar(f"BA{c}")
            self.stamp(st, "h", f"cycBA{c}", 32)
            if not items and not staged: free_hi[0] = True
            if c + 2 < 8: chunk(c + 2)
        assert self.c.loose or (not items and not staged)
        st("s_setprio 2")
        self.stamp(st, "h", "BA7")

    def helper_phase_c(self, st):
        st("; ---- helper: phase C")
        vL, XR, ACC, BRG, PM = 1, 32, 16, (4, 8, 40, 44), self.WOR
        st.label("L_phc")
        st(f"s_lshl_b32 s{sT0}, s{sRB}, 2\ns_add_u32 s{sT0}, s{sT0}, s{sCB}\ns_lshl_b32 s{sE}, s{sT0}, 10\ns_lshl_b32 s{sT1}, s{sW}, 2\ns_add_u32 s{sE}, s{sE}, s{sT1}\ns_add_u32 s{sE}, s{sE}, {WS_ST}")
        self.h_base(st, sA)
        st(f"s_add_u32 s{sB}, s{sA}, 8192")
        st.bar("BP")
        st.wait_vm()
        st.bar("BC0")
        st("v_mov_b32 v13, v43\nv_mov_b32 v3, v19")
        rd = lambda j: st.ds(f"ds_read_b128 {vr(BRG[j % 4],4)}, v{vL} offset:{RING + 1024*j}", ("o", j))
        for j in range(3): rd(j)
        for b in (XR, XR + 4): st(f"v_permlane32_swap_b32 v{b}, v{b+2}\nv_permlane32_swap_b32 v{b+1}, v{b+3}")
        for r in range(8): st(f"v_lshlrev_b32 v{ACC+2*r}, 16, v{XR+r}\nv_and_b32 v{ACC+2*r+1}, 0xffff0000, v{XR+r}")
        st(f"v_add_u32 v2, {PML}, v{vL}")
        red = {25: [f"v_add_f32 v{PM}, v{PM}, v{PM+1}", f"v_add_f32 v{PM+2}, v{PM+2}, v{PM+3}", f"v_add_f32 v{PM}, v{PM}, v{PM+2}"],
               26: [f"v_mov_b32 v{PM+1}, v{PM}"], 27: [f"v_permlane32_swap_b32 v{PM}, v{PM+1}", f"v_add_f32 v{PM}, v{PM}, v{PM+1}", f"v_sub_f32 v12, v12, v{PM}"],
               28: ["v_mul_f32 v14, -0.5, v12"]}
        for m in range(32):
            if m == 8:
                self.stamp(st, "h", "own", 1024)
                st.bar("BC1a")
                self.pad(st, 2)
                self.stamp(st, "h", "x2ok", 1027)
                for j in range(8, 11): rd(j)
            st.wait_ds(("o", m))
            if self.c.fake & 32:
                for h in range(2): st(mfma16(ACC + 8 * (m % 2) + 4 * h, self.WOR + 4 * (m ^ h), BRG[m % 4]))
            else: st(mfma32(ACC, self.WOR + 4 * m, BRG[m % 4]))
            if m in (13, 21):
                self.stamp(st, "h", f"m{m}", 1024)
                st.bar("BC1b" if m == 13 else "BC1c")
                self.stamp(st, "h", f"m{m}b", 1024)
            if m == 21: st.ds(f"ds_read_b128 {vr(PM,4)}, v2")
            if m in (15, 17) and self.c.cfull > 0: self.full_unit(st, 3, 13, (m // 17,))
            if m in (22, 24) and self.c.cfull > 1: self.full_unit(st, 4, 13, (m // 24,))
            if m + 3 < 32 and not 8 <= m + 3 < 11: rd(m + 3)
            for op in red.get(m, []): st(op)
        self.stamp(st, "h", "m31", 1024)
        st(f"s_cmp_eq_u32 s{sCOLO}, {2 if self.c.force_slow else 1}\ns_cbranch_scc0 L_c_slow")
        self.c_epilogue(st, "")
        st.label("L_c_done")
        st.nbar += 1
        self.stamp(st, "h", "hflag")
        tc = self.tailcode
        tc.label("L_c_slow")
        self.c_epilogue(tc, " sc1")
        tc("s_branch L_c_done")

    def c_epilogue(self, st, sc):
        vL, ACC, P = 1, 16, 40
        st.nop(10)
        for r in range(8):
            st(f"v_pk_add_f32 {vr(ACC+2*r,2)}, {vr(ACC+2*r,2)}, v[12:13] op_sel_hi:[1,0]")
            if r % 4 == 3:
                for i in range(r - 3, r + 1): st(f"v_cvt_pk_bf16_f32 v{P+i}, v{ACC+2*i}, v{ACC+2*i+1}")
                st(f"v_min_u32 v{P+r-3}, -2, v{P+r-3}")
                st.vm(f"buffer_store_dwordx4 {vr(P+r-3,4)}, v3, {srd(OUT)}, s{sA + r//4} offen{sc}")
        st("s_barrier                ; BC2")
        st.nop(self.c.stlate)
        for r in range(8):
            st(f"v_dot2_f32_bf16 v15, v{P+r}, v{P+r}, {'0' if r == 0 else 'v15'}")
        st(f"s_nop 2\nv_permlane32_swap_b32 v14, v15\nv_add_f32 v2, v14, v15\nv_min_u32 v2, -2, v2")
        st.vm(f"buffer_store_dword v2, v{vL}, {srd(WS)}, s{sE} offen{sc or ' ' + self.c.sf}")

    def e_setup(self, st):
        vL, vP, vA = 1, 2, (7, 8, 9, 10)
        st(f"s_lshr_b32 s{sT0}, s{sIDX}, 3\ns_lshl_b32 s{sT1}, s{sG}, 2\ns_add_u32 s{sT0}, s{sT0}, s{sT1}\ns_lshl_b32 s{sA}, s{sT0}, 1")
        st(f"s_mul_i32 s{sT0}, s{sA}, 114688\ns_mul_i32 s{sT1}, s{sW}, {28*1024}\ns_add_u32 s{sT0}, s{sT0}, s{sT1}")
        for p in range(2): st(f"s_add_u32 s{sP+p}, s{sT0}, {WS_HH + 14336*p}")
        st("v_bfe_u32 v14, v0, 4, 1\nv_lshlrev_b32 v14, 9, v14\nv_and_b32 v15, 15, v0\nv_lshl_add_u32 v14, v15, 4, v14\nv_lshrrev_b32 v11, 5, v0")
        st("v_bfe_u32 v15, v0, 4, 1\nv_lshlrev_b32 v15, 12, v15\nv_lshl_add_u32 v15, v11, 11, v15\nv_mul_u32_u24 v11, 7168, v11\nv_add_u32 v11, v11, v14")
        st("v_bfe_u32 v14, v0, 3, 1\nv_lshl_add_u32 v15, v14, 10, v15\nv_and_b32 v14, 7, v0\nv_lshl_add_u32 v15, v14, 4, v15")
        st(f"s_lshr_b32 s{sT2}, s{sW}, 1\ns_mul_i32 s{sT0}, s{sT2}, 114688\ns_sub_u32 s{sT1}, 114688, s{sT0}")
        st(f"v_add_u32 v{vA[0]}, s{sT0}, v11\nv_add_u32 v{vA[1]}, s{sT1}, v11\nv_add_u32 v{vA[2]}, 4096, v{vA[0]}\nv_add_u32 v{vA[3]}, 4096, v{vA[1]}")
        st(f"v_bfe_u32 v{vP}, v0, 2, 1\nv_lshlrev_b32 v{vP}, 7, v{vP}\nv_and_b32 v14, 3, v0\nv_lshl_add_u32 v{vP}, v14, 2, v{vP}")
        st(f"v_lshrrev_b32 v14, 3, v0\nv_lshl_add_u32 v{vP}, v14, 28, v{vP}")
        st(f"s_lshl_b32 s{sT0}, s{sA}, 7\ns_lshl_b32 s{sT1}, s{sW}, 4\ns_add_u32 s{sB}, s{sT0}, s{sT1}\ns_add_u32 s{sB}, s{sB}, {WS_FLG4}")
        st(f"s_add_u32 s{sA}, s{sA}, s{sT2}")
        st(f"s_and_b32 s{sT0}, s{sIDX}, 7\ns_lshl_b32 s{sT0}, s{sT0}, 1\ns_and_b32 s{sT1}, s{sW}, 1\ns_add_u32 s{sT0}, s{sT0}, s{sT1}")
        st(f"s_lshl_b32 s{sC}, s{sT1}, 14\ns_lshl_b32 s{sT1}, s{sA}, 15\ns_add_u32 s{sC}, s{sC}, s{sT1}\ns_and_b32 s{sT2}, s{sIDX}, 7\ns_lshl_b32 s{sT2}, s{sT2}, 7\ns_add_u32 s{sC}, s{sC}, s{sT2}\ns_add_u32 s{sXCC}, s{sC}, 8192")
        st(f"s_lshl_b32 s{sD}, s{sT0}, 6\ns_add_u32 s{sD}, s{sD}, s{sT1}")
        st(f"s_lshl_b32 s{sF}, s{sA}, 12\ns_add_u32 s{sF}, s{sF}, {WS_ST}")
        st(f"v_and_b32 v14, 31, v0\nv_lshlrev_b32 v14, 10, v14\nv_lshrrev_b32 v3, 5, v0\nv_lshl_add_u32 v14, v3, 4, v14")
        st(f"v_and_b32 v11, 15, v0\nv_lshl_add_u32 v11, v3, 4, v11\nv_lshlrev_b32 v11, 4, v11")

    def helper_phase_de(self, st):
        st("; ---- helper: phases D and E")
        vL, vP, vR = 1, 2, 3
        vWD, vWA, GU = 4, (5, 6, 12, 13), 192
        st(f"v_mov_b32 v{GU}, v13")
        lo = [slot8(8)]
        st(f"s_lshl_b32 s{sE}, s{sW}, 11\ns_add_u32 s{sT1}, s{sE}, {lo[0]}")
        self.wd_addr(st, vWD, vWA, 14, sT1)
        where = {}
        need = {8: 4, 9: 5, 10: 7, 11: 8, 12: 9}
        seen, done = [0], set()
        def dma(j, i):
            assert seen[0] >= need.get(i, 20), (j, i)
            for jj, ii in where.items():
                if ii == i:
                    assert jj in done, (j, jj)
                    st.wait_ds(("wdr", jj))
            where[j] = i
            self.wd_dma(st, j, slot8(i), vWD, sE)
        def read(j, grp, ns=range(4)):
            if slot8(where[j]) - lo[0] > 65535:
                for v in vWA: st(f"v_add_u32 v{v}, 0x8000, v{v}")
                lo[0] += 0x8000
            assert slot8(where[j]) >= lo[0]
            self.wd_read(st, j, grp, vWA, slot8(where[j]) - lo[0], ns)
        wreg = {j: self.wd_static(j) for j in range(18)}
        def rd(js):
            st.wait_vm(("wd", js[-1]))
            for j in js: read(j, wreg[j]); done.add(j)
        vPG, vLD, vN, CK = 200, 201, 202, 204
        st(f"s_lshl_b32 s{sT0}, s{sW}, 2\ns_add_u32 s{sT0}, s{sT0}, {LAND}\nv_mov_b32 v{vLD}, s{sT0}\nv_mov_b32 v{vPG}, {PROG}")
        def prog(n):
            seen[0] = n
            if n in (3, 5, 7, 9, 20): self.stamp(st, "h", f"arr{n}", 4)
            self.lds_spin(st, f"L_pg{n}", vPG, CK, n, sleep=self.c.psleep)
        def land(tag, n):
            st(f"v_mov_b32 v{vN}, {n}")
            st.wait_vm(tag)
            st.ds(f"ds_write_b32 v{vLD}, v{vN}")
        self.e_setup(st)
        if self.c.tcd:
            st(f"s_lshl_b32 s{sT0}, s{sIDX}, 2\ns_add_u32 s{sT0}, s{sT0}, s{sW}\ns_lshl_b32 s{sT0}, s{sT0}, 9\nv_lshl_add_u32 v208, v0, 7, s{sT0}")
            st(f"v_min_u32 v208, L_codeend-L_pc-4, v208\nv_mov_b32 v209, 0\nv_lshl_add_u64 v[208:209], v[208:209], 0, {sr(CODE,2)}")
        st(f"s_setprio {self.c.dprio}")
        self.pace = self.c.pace
        def full(u):
            assert seen[0] >= {7: 2, 8: 3, 9: 3}.get(u, u - 6), u
            self.full_unit(st, u, GU)
        plan = self.c.dplan.split()
        latew = [tuple(map(int, x[1:].split(">"))) for x in plan[len(plan) - self.c.nlate:]]
        for i, op in enumerate(plan[:len(plan) - self.c.nlate]):
            if i == len(plan) - self.c.npoll: st.vm(f"buffer_load_dword v{vR}, v{vP}, {srd(WS)}, s{sB} offen sc1", ("poll", self.stages()[0][0] - 1))
            a = op[1:]
            if op[0] == "F":
                if int(a) >= 3 + self.c.cfull: full(int(a))
            elif op[0] == "W": dma(*map(int, a.split(">")))
            elif op[0] == "P":
                if int(a) == self.c.tcd:
                    st("s_mov_b64 exec, 15")
                    st.vm("global_load_dword v210, v[208:209], off")
                    st("s_mov_b64 exec, -1")
                prog(int(a))
            elif op[0] == "L": land(("full", int(a) - 1), int(a))
            elif op[0] == "R": rd(list(map(int, a.split(","))))
            elif op == "T":
                st(f"s_setprio {self.c.tprio}")
                self.pace = self.c.pace2
        self.stamp(st, "h", "Dhelp_end", 13)
        ACC, vA = 192, (7, 8, 9, 10)
        free = [16, 24, 32, 40]
        areg = {}
        W0 = 20
        ech = self.c.ech
        def step(s):
            if ech:
                if s < W0: t, mt, mh = s // 4, s // 2 % 2, s % 2
                else: t, mt, mh = W0 // 4 + (s - W0) // 2 % 2, 1 if s < W0 + 4 else 0, s % 2
                return [(2 * t + e, mt, mh) for e in range(2)]
            P, mt = (s // 2, s % 2) if s < W0 else (W0 // 2 + (s - W0) % 4, 1 if s < W0 + 4 else 0)
            return [(P, mt, e) for e in range(2)]
        def ldA(s):
            areg[s] = r = free.pop(0)
            for e, (P, mt, mh) in enumerate(step(s)):
                pp, t = P % 2, P // 2
                st.vm(f"buffer_load_dwordx4 {vr(r+4*e,4)}, v{vA[mt + (2 if t >= 4 else 0)]}, {srd(WS)}, s{sP+pp} offen offset:{1024*(t % 4) + 256*mh} sc1", ("a", s))
        def gate(t):
            tc = self.near
            st.wait_vm(("poll", t))
            self.notready(st, vR, t + 1)
            st(f"s_and_b64 vcc, vcc, 0xff\ns_cbranch_scc1 L_x4s{t}")
            st.label(f"L_x4r{t}")
            tc.label(f"L_x4s{t}")
            if self.c.diag & 8: tc(f"s_bitset1_b32 s{CODE}, {t}")
            self.poll(tc, f"L_x4p{t}", vP, f"s{sB}", vR, t + 1, lanes=8)
            tc(f"s_branch L_x4r{t}")
        stg = self.stages()
        f0 = stg[0][0]
        pollat = {x[1]: x[0] for x in stg[1:]}
        gateat = {4 * stg[i][0]: stg[i + 1] for i in range(len(stg) - 1)}
        if self.c.diag & 8: st(f"s_mov_b32 s{CODE}, 0")
        assert not latew
        st(f"s_setprio {self.c.pprio}")
        if self.c.npoll: gate(f0 - 1)
        else: self.poll(st, "L_x4", vP, f"s{sB}", vR, f0, lanes=8)
        if self.c.diag & 8: st(f"s_sub_u32 s{CODE}, {SPIN}, s{sCNT}\ns_lshl_b32 s{CODE}, s{CODE}, 8")
        st(f"s_setprio {self.c.eprio}")
        self.stamp(st, "h", "x4ok", 13)
        self.pace = None
        for j in range(4): ldA(j)
        st("v_mov_b32 v4, v15")
        nextA, nextW, DEPTH = 4, 18, self.c.edepth
        hres = None
        assert max(gateat, default=0) <= W0
        def writeback(counted):
            st(f"s_lshl_b32 s{sT0}, s{sIDX}, 2\ns_add_u32 s{sT0}, s{sT0}, s{sW}\ns_cmp_eq_u32 s{sT0}, {self.c.wbw}\ns_cbranch_scc1 L_wbs")
            if counted: st.vm(f"buffer_load_dword v{vR}, off, {srd(WS)}, s{WS+2}")
            st.label("L_wbr")
            self.near.label("L_wbs")
            self.near("buffer_wbl2 sc1\ns_branch L_wbr")
        started = set()
        def mm(s, nt, nh, e):
            P, mt, mh = step(s)[e]
            d = ACC + 16 * (nt + 2 * mt) + 8 * nh + 4 * mh
            st(mfma16(d, wreg[2 * P][nt] + 4 * nh, areg[s] + 4 * e, None if d in started else "0"))
            started.add(d)
        wneed = lambda J: min(s for s in range(28) if any(J // 2 == x[0] for x in step(s)))
        wlast = lambda P: max(s for s in range(28) if any(P == x[0] for x in step(s)))
        def more(s):
            nonlocal nextA, nextW, hres
            if nextW in wreg:
                read(nextW, wreg[nextW], (2, 3)); nextW += 1
            elif nextW < 28 and wneed(nextW) <= s + 3 and (nextW % 2 or len(free) > 1):
                st.wait_vm(("wd", nextW))
                wreg[nextW] = wreg[nextW - 1] if nextW % 2 else (free.pop(0), free.pop(0))
                read(nextW, wreg[nextW], (0, 1))
            elif s in pollat:
                st.vm(f"buffer_load_dword v{vR}, v{vP}, {srd(WS)}, s{sB} offen sc1", ("poll", pollat.pop(s) - 1))
            elif nextA < 28 and nextA <= s + DEPTH and free and (nextA not in gateat or gateat[nextA][2] <= s):
                if nextA in gateat: gate(gateat[nextA][0] - 1)
                ldA(nextA); nextA += 1
                if nextA == self.c.wbat: writeback(True)
            elif latew and nextA >= self.c.lateat:
                dma(*latew.pop(0))
            elif s >= 6 and hres is None and len(free) > 3:
                hres = [free.pop(0) for _ in range(3)]
                for l in hld(): st.vm(l, "h")
        hld = lambda: [f"buffer_load_dwordx4 {vr(hres[0]+4*i,4)}, v4, {srd(OUT)}, s{(sC, sXCC)[i]} offen sc1" for i in range(2)] + \
                      [f"buffer_load_dword v15, v11, {srd(WS)}, s{sF} offen sc1"]
        BUF, vX = RING, (5, 6, 12, 13)
        valu = []
        quad = ((0, 0), (0, 1), (1, 1), (1, 0))
        for s in range(W0 + 4):
            st.wait_vm(("a", s))
            assert nextW > 2 * step(s)[1][0] + 1
            st.wait_ds(("wdr", 2 * step(s)[1][0] + 1))
            if s % 4 == 0: self.stamp(st, "h", f"Et{s//4}", 8)
            if s == 13:
                assert nextA > 8
                st.wait_vm("h")
                self.validate(st, "L_hr", (hres[0], hres[0] + 4, 15), hres[1], hld())
                res = lambda r: hres[1 + r // 8] + r % 8
                valu += ["v_mov_b32 v11, v15"] + [f"v_permlane32_swap_b32 v{hres[0]+r}, v{hres[0]+r+2}" for r in (0, 1, 4, 5)] + ["v_permlane32_swap_b32 v15, v11"]
                for r in range(8):
                    valu += [f"v_lshlrev_b32 v{res(2*r)}, 16, v{hres[0]+r}", f"v_and_b32 v{res(2*r+1)}, 0xffff0000, v{hres[0]+r}"]
                valu += [f"v_add_f32 v{res(r)}, v{11 if r & 4 else 15}, v{res(r)}" for r in range(16)]
            if s == W0 + 2:
                assert nextW == 28 and not valu
                valu += [f"s_xor_b32 s{sT0}, s{sW}, {a}\ns_mul_i32 s{sT0}, s{sT0}, 12288\ns_add_u32 s{sT0}, s{sT0}, {BUF}\nv_add_u32 v{vX[a]}, s{sT0}, v{vL}" for a in range(4)]
            for i in range(8):
                mm(s, i // 4, *quad[i % 4])
                if s == W0 and i == 0:
                    st(f"v_mov_b32 v4, {PROG}")
                    ck = free.pop(0)
                if s == W0 and i == 2: st.ds(f"ds_read_b128 {vr(ck,4)}, v4", "ck")
                if s == W0 + 1 and i == 7:
                    st.wait_ds("ck")
                    self.lds_min(st, ck, 30)
                    st("s_cbranch_vccnz L_mds")
                    st.label("L_mdr")
                    self.near.label("L_mds")
                    self.lds_spin(self.near, "L_md", 4, ck, 30)
                    self.near("s_branch L_mdr")
                n0 = len(st.lines)
                if i < 7: more(s)
                if len(st.lines) == n0 and i < 7:
                    for _ in range(2 if s < W0 else 1):
                        if valu: st(valu.pop(0))
            free.append(areg[s])
            for P in range(14):
                if wlast(P) == s: free += list(wreg[2 * P])
            if s == 17:
                assert len(valu) <= 16
                free.append(hres[0])
            more(s)
        assert nextA == 28 and not valu, nextA
        self.stamp(st, "h", "Et6", 8)
        wrs = [(a, q) for a in (2, 3, 1) for q in ((0, 2, 1, 3) if ech else (0, 1, 3, 2))]
        def wr():
            a, q = wrs.pop(0)
            st.ds(f"ds_write_b128 v{vX[a]}, {vr(ACC+16*a+4*q,4)} offset:{4096*(a-1) + 1024*q}")
        seq = [(s, nt, x) for nt in (1, 0) for s in range(W0 + 4, W0 + 8) for x in quad]
        for i, (s, nt, x) in enumerate(seq):
            if nt == 1: st.wait_vm(("a", s))
            mm(s, nt, *x)
            if i == 12 and self.c.wbat == 29: writeback(False)
            if i in eval(self.c.wpos): wr()
        assert not wrs
        self.stamp(st, "h", "Emfma_end", 13)
        st.wait_ds()
        st.bar("BE2")
        for q in range(4):
            for a in (1, 2, 3): st.ds(f"ds_read_b128 {vr(ACC+16*a+4*q,4)}, v{vX[0]} offset:{4096*(a-1) + 1024*q}", ("r", q))
        for r in range(0, 16, 2): st(f"v_pk_add_f32 {vr(ACC+r,2)}, {vr(ACC+r,2)}, {vr(res(r),2)}")
        for q in range(4):
            st.wait_ds(("r", q))
            for r in (4 * q, 4 * q + 2):
                st(f"v_pk_add_f32 {vr(ACC+r,2)}, {vr(ACC+r,2)}, {vr(ACC+16+r,2)}\nv_pk_add_f32 {vr(ACC+32+r,2)}, {vr(ACC+32+r,2)}, {vr(ACC+48+r,2)}")
            for r in (4 * q, 4 * q + 2): st(f"v_pk_add_f32 {vr(ACC+r,2)}, {vr(ACC+r,2)}, {vr(ACC+32+r,2)}")
            b = hres[1 + q // 2]
            for e in range(2): st(f"v_cvt_pk_bf16_f32 v{b+2*(q % 2)+e}, v{ACC+4*q+2*e}, v{ACC+4*q+2*e+1}")
            if q % 2:
                st(f"s_nop 1\nv_permlane16_swap_b32 v{b}, v{b+2}\nv_permlane16_swap_b32 v{b+1}, v{b+3}")
                st.vm(f"buffer_store_dwordx4 {vr(b,4)}, v14, {srd(OUT)}, s{sD} offen offset:{32*(q//2)} {self.c.outf}")
        self.pad(st, 0)
        self.stamp(st, "h", "end", 9)
        if self.c.diag & 8:
            self.nstamp["h"].append("gates")
            st(f"s_waitcnt lgkmcnt(0)\ns_mov_b32 s{sSTAMP + 2*(len(self.nstamp['h'])-1)}, s{CODE}")
        self.dump_stamps(st, "h")

    def build(self):
        p, m, h = Stream(), Stream(), Stream()
        self.prologue(p)
        if self.c.pads or self.c.mal: m(".p2align 12" + (f"\n.fill {self.c.moff // 4}, 4, 0xbf800000" if self.c.moff else ""))
        m.label("L_main")
        self.main_phase_a(m); self.main_attention(m); self.main_publish_o(m); self.main_phase_d(m)
        ms = Stream()
        self.sc, self.sfx = " sc1", "_s"
        ms.label("L_main_slow")
        self.main_publish_o(ms); self.main_phase_d(ms)
        self.sc, self.sfx = "", ""
        self.helper_phase_a(h); self.helper_attention(h); self.helper_phase_c(h); self.helper_phase_de(h)
        assert m.nbar + 1 == h.nbar, (m.nbar, h.nbar)
        ref = open("hdr.ref").read().splitlines()
        hdr = [l for l in ref if l.startswith(";") and "@launch" not in l]
        o = "\n".join(hdr) + f"\n; @launch grid=(256,1,1) block=(512,1,1) lds={LDS_BYTES}\n"
        o += DOC
        o += f'.amdgcn_target "amdgcn-amd-amdhsa--gfx950"\n.text\n.globl {NAME}_kernel\n.p2align 8\n.type {NAME}_kernel,@function\n{NAME}_kernel:\n'
        o += p.text() + "\n" + h.text() + "\nL_end:\n    s_endpgm\n" + self.near.text() + "\n" + m.text() + "\nL_codeend:\n" + self.tailcode.text() + "\n" + ms.text() + "\n"
        o += f""".section .rodata,"a"
.p2align 6
.amdhsa_kernel {NAME}_kernel
  .amdhsa_next_free_vgpr 256
  .amdhsa_next_free_sgpr 102
  .amdhsa_accum_offset 256
  .amdhsa_group_segment_fixed_size 0
  .amdhsa_kernarg_size 96
  .amdhsa_user_sgpr_count 2
  .amdhsa_user_sgpr_kernarg_segment_ptr 1
  .amdhsa_system_sgpr_workgroup_id_x 1
.end_amdhsa_kernel
"""
        if self.c.pads:
            import pagepad
            o, n = pagepad.insert(o, (("L_hpage", self.c.hoff, "L_phc", "L_end"), ("L_main", self.c.moff, "L_exit", "L_codeend")), sWALK)
            assert n
        if self.c.al8:
            import align8
            o = align8.align(o, ("L_attn", "L_norm"), self.c.al8 % 10, self.c.al8 >= 10)
        return o

if __name__ == "__main__":
    import hazcheck, json
    cfg = Cfg()
    out = sys.argv[1]
    for a in sys.argv[2:]:
        k, v = a.split("=")
        setattr(cfg, k, v if isinstance(getattr(cfg, k), str) else int(v))
    g = Gen(cfg)
    txt = g.build()
    open(out, "w").write(txt)
    json.dump(dict(g.nstamp, cyc=cfg.cyc) if g.nstamp else {}, open(out + ".stamps.json", "w"))
    errs = hazcheck.check(txt)
    for e in errs[:40]: print(e)
    print(len(errs), "hazard findings;", len(txt.splitlines()), "lines")
```
